```python
import torch

def _softmax(x, axis=-1):
    return torch.softmax(x, dim=axis)
def _gelu(x):
    return torch.nn.functional.gelu(x, approximate="tanh")
def _silu(x):
    return torch.nn.functional.silu(x)
def _sigmoid(x):
    return torch.sigmoid(x)
def _layernorm(x, axis=-1, eps=1e-5):
    m = x.mean(dim=axis, keepdim=True)
    v = x.var(dim=axis, keepdim=True, unbiased=False)
    return (x - m) / torch.sqrt(v + eps)
def _scatter_add(tgt, idx, src, axis=0):
    return tgt.clone().index_add_(axis, idx, src)
def _segment_sum(src, seg, n):
    out = torch.zeros((n,) + src.shape[1:], dtype=src.dtype)
    return out.index_add_(0, seg, src)
def _pad(x, pw):
    flat = tuple(v for pair in reversed(pw) for v in pair)
    return torch.nn.functional.pad(x, flat)

kernel_name = 'concat_heads__grouped_kv_mqa__sliding_local_dilated__prompt'

def setup_inputs():

    _w = (lambda a: (lambda t: t.to(torch.bfloat16) if t.is_floating_point() else t)(torch.as_tensor(a)))
    def _A_setup():
        B, S, D, H = 1, 2048, 512, 32
        Dh = D // H
        return {
            "x": _w((lambda *s: torch.randn(*s, dtype=torch.bfloat16) * 0.05)(B, S, D)),
            "wq": _w((lambda *s: torch.randn(*s, dtype=torch.bfloat16) * 3.2)(D, H * Dh)),
            "wk": _w((lambda *s: torch.randn(*s, dtype=torch.bfloat16) * 3.2)(D, Dh)),
            "wv": _w((lambda *s: torch.randn(*s, dtype=torch.bfloat16) * 1.6)(D, Dh)),
            "wo": _w((lambda *s: torch.randn(*s, dtype=torch.bfloat16) * 1.6)(H * Dh, D)),
        }
    _A_in = _A_setup()

    def _B_setup():
        B, S, D = 1, 2048, 512
        return {
            "x": _w((lambda *s: torch.randn(*s, dtype=torch.bfloat16) * 0.1)(B, S, D)),
            "wqkv": _w((lambda *s: torch.randn(*s, dtype=torch.bfloat16) * 0.8)(D, 3 * D)),
            "wo": _w((lambda *s: torch.randn(*s, dtype=torch.bfloat16) * 0.8)(D, D)),
        }
    _B_in = _B_setup()

    return {
        "A_x": _A_in["x"],
        "A_wq": _A_in["wq"],
        "A_wk": _A_in["wk"],
        "A_wv": _A_in["wv"],
        "A_wo": _A_in["wo"],
        "B_x": _B_in["x"],
        "B_wqkv": _B_in["wqkv"],
        "B_wo": _B_in["wo"],
    }

def reference(A_x, A_wq, A_wk, A_wv, A_wo, B_x, B_wqkv, B_wo):
    def _A_ref(x, wq, wk, wv, wo):
        B, S, D = x.shape
        H = 32
        Dh = D // H
        q = (lambda x, *d: x.permute(*d))((x @ wq).reshape(B, S, H, Dh), 0, 2, 1, 3)
        k = x @ wk
        v = x @ wv
        scores = torch.einsum("bhqd,bkd->bhqk", q, k) * (Dh ** -0.5)
        p = _softmax(scores, axis=-1)
        o = torch.einsum("bhqk,bkd->bhqd", p, v)
        return (lambda x, *d: x.permute(*d))(o, 0, 2, 1, 3).reshape(B, S, H * Dh) @ wo

    def _B_ref(x, wqkv, wo):
        B, S, D = x.shape
        H = 32; Dh = D // H
        W, dil = 8, 2
        qkv = (lambda x, *d: x.permute(*d))((x @ wqkv).reshape(B, S, 3, H, Dh), 2, 0, 3, 1, 4)
        q, k, v = qkv[0], qkv[1], qkv[2]
        scale = Dh ** -0.5
        pos = torch.arange(S)
        off = torch.arange(W) * dil
        idx = pos[:, None] - off[None, :]
        mask = idx >= 0
        idx_c = torch.where(mask, idx, 0).reshape(-1)
        kg = k[:, :, idx_c, :].reshape(B, H, S, W, Dh)
        vg = v[:, :, idx_c, :].reshape(B, H, S, W, Dh)
        logits = torch.einsum("bhsd,bhswd->bhsw", q, kg) * scale
        logits = torch.where(mask[None, None, :, :], logits, -1e9)
        attn = _softmax(logits, axis=-1)
        o = torch.einsum("bhsw,bhswd->bhsd", attn, vg)
        return (lambda x, *d: x.permute(*d))(o, 0, 2, 1, 3).reshape(B, S, D) @ wo

    a = _A_ref(A_x, A_wq, A_wk, A_wv, A_wo)
    b = _B_ref(B_x, B_wqkv, B_wo)
    return torch.concatenate([a, b], axis=-1)
```

```python
import re, sys

REG_RE = re.compile(r'^(-|\|)?(abs\()?(-)?([vsa])(?:(\d+)|\[(\d+):(\d+)\])\)?\|?$')

def parse_reg(tok):
    tok = tok.strip()
    if tok in ('vcc',): return [('s', 106), ('s', 107)]
    if tok == 'vcc_lo': return [('s', 106)]
    if tok == 'vcc_hi': return [('s', 107)]
    if tok == 'exec': return [('s', 126), ('s', 127)]
    if tok == 'exec_lo': return [('s', 126)]
    if tok == 'exec_hi': return [('s', 127)]
    if tok == 'm0': return [('s', 124)]
    m = REG_RE.match(tok)
    if not m: return []
    k = m.group(4)
    if m.group(5) is not None:
        return [(k, int(m.group(5)))]
    return [(k, i) for i in range(int(m.group(6)), int(m.group(7)) + 1)]

TRANS = ('v_exp_f32', 'v_log_f32', 'v_rcp_f32', 'v_rsq_f32', 'v_sqrt_f32', 'v_sin_f32', 'v_cos_f32', 'v_exp_f16', 'v_rcp_iflag_f32')

class Ins:
    def __init__(self, text):
        self.text = text
        t = text.split(';')[0].strip()
        self.label = None
        self.op = None
        self.rd = set(); self.wr = set()
        self.srcC = set(); self.srcAB = set()
        self.kind = 'none'
        self.states = 0
        self.target = None
        if not t: return
        if t.endswith(':'):
            self.label = t[:-1]; self.kind = 'label'; return
        if t.startswith('.'):
            self.kind = 'dir'; return
        parts = t.split(None, 1)
        op = parts[0]; self.op = op
        rest = parts[1] if len(parts) > 1 else ''
        ops = []
        mods = []
        for i, o in enumerate(rest.split(',')):
            o = o.strip()
            if not o: continue
            w = o.split()
            ops.append(w[0]); mods += w[1:]
        self.ops = ops; self.mods = mods
        self.states = 1
        base = re.sub(r'_(e32|e64|sdwa|dpp)$', '', op)
        self.base = base
        R = [parse_reg(o) for o in ops]
        if op == 's_nop':
            self.kind = 'nop'; self.states = int(ops[0], 0) + 1
        elif op.startswith('s_waitcnt'):
            self.kind = 'wait'
            self.vm = None; self.lgkm = None
            m = re.search(r'vmcnt\((\d+)\)', t);   self.vm = int(m.group(1)) if m else None
            m = re.search(r'lgkmcnt\((\d+)\)', t); self.lgkm = int(m.group(1)) if m else None
        elif op in ('s_branch',) or op.startswith('s_cbranch'):
            self.kind = 'branch'; self.target = ops[0]
        elif op == 's_endpgm':
            self.kind = 'end'
        elif op in ('s_barrier', 's_setprio', 's_sleep', 's_sethalt'):
            self.kind = 'salu'
        elif op.startswith('s_load') or op.startswith('s_buffer_load') or op in ('s_memtime', 's_memrealtime'):
            self.kind = 'smem'; self.wr = set(R[0])
            for r in R[1:]: self.rd |= set(r)
        elif op.startswith('s_cmp') or op.startswith('s_bitcmp'):
            self.kind = 'salu'
            for r in R: self.rd |= set(r)
        elif op.startswith('s_'):
            self.kind = 'salu'; self.wr = set(R[0]) if R else set()
            for r in R[1:]: self.rd |= set(r)
            if 'saveexec' in op:
                self.wr |= {('s', 126), ('s', 127)}; self.rd |= {('s', 126), ('s', 127)}
            if op in ('s_addk_i32', 's_mulk_i32'): self.rd |= set(R[0])
        elif op.startswith('v_mfma'):
            self.kind = 'mfma'; self.wr = set(R[0])
            self.srcAB = set(R[1]) | set(R[2]); self.srcC = set(R[3])
            self.rd = self.srcAB | self.srcC
            self.dlist = R[0]; self.clist = R[3]
            self.passes = 8 if '32x32' in op else 4
        elif op.startswith('v_'):
            self.kind = 'valu'
            if base.startswith('v_cmp'):
                self.wr = set(R[0])
                for r in R[1:]: self.rd |= set(r)
            elif base.startswith('v_permlane') and 'swap' in base:
                self.wr = set(R[0]) | set(R[1]); self.rd = set(R[0]) | set(R[1])
            elif base in ('v_add_co_u32', 'v_sub_co_u32', 'v_addc_co_u32', 'v_subb_co_u32', 'v_subrev_co_u32'):
                self.wr = set(R[0]) | set(R[1])
                for r in R[2:]: self.rd |= set(r)
            else:
                self.wr = set(R[0])
                for r in R[1:]: self.rd |= set(r)
                if base in ('v_fmac_f32', 'v_dot2c_f32_bf16', 'v_pk_fmac_f16', 'v_writelane_b32') or 'UNUSED_PRESERVE' in t or op.endswith('_dpp') or any(m.startswith(('row_', 'quad_perm', 'wave_')) for m in mods):
                    self.rd |= set(R[0])
            self.trans = base in TRANS
            self.dpp = op.endswith('_dpp') or any(m.startswith(('row_', 'quad_perm', 'wave_')) for m in mods)
        elif op.startswith('ds_'):
            self.kind = 'ds'
            if base.startswith(('ds_read', 'ds_bpermute', 'ds_permute', 'ds_swizzle')) or '_rtn' in base:
                self.wr = set(R[0])
                for r in R[1:]: self.rd |= set(r)
            else:
                for r in R: self.rd |= set(r)
        elif op.startswith(('buffer_', 'global_')):
            self.kind = 'vmem'
            self.lds = 'lds' in mods or '_lds_' in op
            if base in ('buffer_inv', 'buffer_wbl2'):
                pass
            elif ('load' in base) and not self.lds:
                self.wr = set(R[0])
                for r in R[1:]: self.rd |= set(r)
                if 'd16' in base: self.rd |= set(R[0])
            elif 'atomic' in base and 'sc0' in mods:
                if base.startswith('buffer'):
                    self.wr = set(R[0][:1])
                    for r in R: self.rd |= set(r)
                else:
                    self.wr = set(R[0])
                    for r in R[1:]: self.rd |= set(r)
            else:
                for r in R: self.rd |= set(r)
            if self.lds: self.rd |= {('s', 124)}
            self.widestore = set()
            if 'store' in base and base.endswith(('x3', 'x4')):
                self.widestore = set(R[0]) if base.startswith('buffer') else set(R[1])
        else:
            raise ValueError('unknown op ' + text)

def isv(s): return {r for r in s if r[0] in 'va'}
def iss(s): return {r for r in s if r[0] == 's'}

def required(p, c):
    need = 0
    if p.kind == 'valu':
        vw = isv(p.wr); sw = iss(p.wr)
        if c.kind == 'mfma' and (vw & c.rd): need = max(need, 2)
        if c.kind == 'valu':
            if p.trans and not c.trans and (vw & c.rd): need = max(need, 1)
            if c.base in ('v_readfirstlane_b32', 'v_readlane_b32') and (vw & c.rd): need = max(need, 1)
            if c.base.startswith('v_permlane') and (vw & c.rd): need = max(need, 2)
            if c.dpp and (vw & c.rd): need = max(need, 2)
            if sw & c.rd:
                need = max(need, 4 if c.base in ('v_readlane_b32', 'v_writelane_b32') else 2)
            if c.base == 'v_cndmask_b32' and len(c.ops) == 3 and (('s', 106) in sw): need = max(need, 2)
            if ('sdwa' in p.op or any(m.startswith('op_sel') for m in p.mods)) and (vw & (c.rd | c.wr)): need = max(need, 1)
        if c.kind == 'vmem' and (sw & c.rd): need = max(need, 5)
        if c.kind in ('salu', 'branch', 'smem') and (sw & c.rd): need = max(need, 1)
        if p.trans and c.kind in ('vmem', 'ds') and (vw & c.rd): need = max(need, 1)
    if p.kind == 'mfma':
        P = p.passes
        if c.kind == 'mfma':
            if p.wr & c.srcAB: need = max(need, P + 4)
            if p.wr & c.srcC:
                if not (p.dlist == c.clist and p.passes == c.passes): need = max(need, P + 2)
            if (p.wr & c.wr) and not (p.wr & c.srcC): need = max(need, P + 2)
        if c.kind == 'valu':
            if p.wr & (c.rd | c.wr): need = max(need, P + 4)
            if p.srcC & c.wr: need = max(need, P - 1)
        if c.kind in ('vmem', 'ds'):
            if p.wr & (c.rd | c.wr): need = max(need, P + 4)
            if p.srcC & c.wr: need = max(need, P - 1)
    if p.kind == 'vmem' and p.widestore:
        if c.kind == 'valu' and (p.widestore & c.wr): need = max(need, 2)
        if c.kind in ('mfma', 'vmem', 'ds') and (p.widestore & c.wr): need = max(need, 1)
    if p.kind == 'salu' and (('s', 124) in p.wr):
        if c.kind == 'vmem' and c.lds: need = max(need, 1)
        if c.kind == 'ds' and 'addtid' in c.base: need = max(need, 1)
    return need

class Asm:
    def __init__(self):
        self.ins = []
        self.uid = 0
    def __call__(self, text):
        for l in text.split('\n'):
            l = l.strip()
            if l: self.ins.append(Ins(l))
    def label(self, name): self(name + ':')
    def newlabel(self, p='L'):
        self.uid += 1
        return f'{p}_{self.uid}'
    def _succ(self, i, labels):
        x = self.ins[i]
        if x.kind == 'end': return []
        if x.kind == 'branch':
            t = labels[x.target]
            return [t] if x.op == 's_branch' else [t, i + 1]
        return [i + 1] if i + 1 < len(self.ins) else []
    def pad_hazards(self, verbose=False):
        n_ins = 0
        while True:
            labels = {x.label: i for i, x in enumerate(self.ins) if x.label}
            fix = None
            for i, p in enumerate(self.ins):
                if p.kind not in ('valu', 'mfma', 'vmem', 'salu'): continue
                if p.kind == 'salu' and ('s', 124) not in p.wr: continue
                if p.kind == 'vmem' and not p.widestore: continue
                maxd = 13 if p.kind == 'mfma' else 5
                stack = [(j, 0) for j in self._succ(i, labels)]
                seen = {}
                while stack:
                    j, d = stack.pop()
                    if d >= maxd: continue
                    if seen.get(j, 99) <= d: continue
                    seen[j] = d
                    c = self.ins[j]
                    if c.op is not None:
                        r = required(p, c)
                        if r > d:
                            fix = (j, r - d, i); break
                    for k in self._succ(j, labels): stack.append((k, d + c.states))
                if fix: break
            if not fix: break
            j, n, i = fix
            if verbose: print(f'  pad {n} before [{self.ins[j].text}] (producer [{self.ins[i].text}])', file=sys.stderr)
            prev = self.ins[j-1]
            if prev.kind == 'nop' and getattr(prev, 'auto', False) and prev.states + n <= 16:
                x = Ins(f's_nop {prev.states + n - 1}'); x.auto = True; self.ins[j-1] = x
            else:
                x = Ins(f's_nop {n-1}'); x.auto = True; self.ins.insert(j, x)
            n_ins += 1
        return n_ins
    def text(self):
        out = []
        for x in self.ins:
            if x.kind in ('label', 'dir'): out.append(x.text)
            else: out.append('    ' + x.text)
        return '\n'.join(out) + '\n'

    def check_waits(self, entry_label, maxpaths=200000):
        labels = {x.label: i for i, x in enumerate(self.ins) if x.label}
        errs = set()
        start = (labels[entry_label], (), ())
        stack = [start]; seen = {start}
        while stack:
            pc, vm, lg = stack.pop()
            while True:
                x = self.ins[pc]
                if x.op is not None:
                    touched = x.rd | x.wr
                    for q, nm in ((vm, 'vm'), (lg, 'lgkm')):
                        for (src, regs) in q:
                            if regs & touched:
                                if not (regs & x.rd) and ((nm == 'vm' and x.kind == 'vmem') or (nm == 'lgkm' and x.kind == 'ds' and self.ins[src].kind == 'ds')):
                                    continue
                                errs.add((pc, src, nm))
                    if x.kind == 'wait':
                        if x.vm is not None and len(vm) > x.vm: vm = vm[len(vm) - x.vm:] if x.vm else ()
                        if x.lgkm is not None:
                            if any(self.ins[s].kind == 'smem' for s, _ in lg):
                                if x.lgkm == 0: lg = ()
                            elif len(lg) > x.lgkm: lg = lg[len(lg) - x.lgkm:] if x.lgkm else ()
                    elif x.kind == 'vmem':
                        vm = (vm + ((pc, frozenset(x.wr)),))[-64:]
                    elif x.kind in ('ds', 'smem'):
                        lg = (lg + ((pc, frozenset(x.wr)),))[-32:]
                s = self._succ(pc, labels)
                if not s: break
                if len(s) == 1 and x.kind != 'branch':
                    pc = s[0]; continue
                for t in s:
                    st = (t, vm, lg)
                    if st not in seen:
                        seen.add(st); stack.append(st)
                        if len(seen) > maxpaths: raise RuntimeError('too many states')
                break
        for pc, src, nm in sorted(errs):
            print(f'WAITERR({nm}): [{self.ins[pc].text}] touches pending result of [{self.ins[src].text}]', file=sys.stderr)
        return len(errs)
```

```python
from asmlib import Asm
NAME = "concat_heads__grouped_kv_mqa__sliding_local_dilated__prompt"
HEADER_COMMENTS = open("cdna_kernels/%s.s.ref" % NAME).read().split("; Override launch")[0]

WS_KV = 0
WS_OA = 1 << 20
WS_OB = 3 << 20
WS_SIZE_USED = 5 << 20
CSCALE = 0x3EB8AA3B
import struct
assert abs(struct.unpack('<f', struct.pack('<I', CSCALE))[0] - 0.25 * 1.4426950408889634) < 1e-7

def vr(b, n=1): return f"v{b}" if n == 1 else f"v[{b}:{b+n-1}]"
def sr(b, n=1): return f"s{b}" if n == 1 else f"s[{b}:{b+n-1}]"

def srd(a, d, base, nbytes, add=0):
    if add:
        a(f"s_add_u32 s{d}, s{base}, {add}")
        a(f"s_addc_u32 s{d+1}, s{base+1}, 0")
    else:
        a(f"s_mov_b32 s{d}, s{base}")
        a(f"s_mov_b32 s{d+1}, s{base+1}")
    a(f"s_mov_b32 s{d+2}, {nbytes}")
    a(f"s_mov_b32 s{d+3}, 0x20000")

def load_ptrs(a):
    a("s_load_dwordx16 s[4:19], s[0:1], 0")
    a("s_load_dwordx4 s[20:23], s[0:1], 64")
    a("s_load_dwordx2 s[24:25], s[0:1], 80")
P_AX, P_AWQ, P_AWK, P_AWV, P_AWO, P_BX, P_BWQKV, P_BWO, P_OUT, P_DBG, P_WS = 4, 6, 8, 10, 12, 14, 16, 18, 20, 22, 24

def mfma32(a, d, A, B, c):
    cs = c if isinstance(c, str) else vr(c, 16)
    a(f"v_mfma_f32_32x32x16_bf16 {vr(d,16)}, {vr(A,4)}, {vr(B,4)}, {cs}")
def mfma16(a, d, A, B, c):
    cs = c if isinstance(c, str) else vr(c, 4)
    a(f"v_mfma_f32_16x16x32_bf16 {vr(d,4)}, {vr(A,4)}, {vr(B,4)}, {cs}")

def descriptor(name, nvgpr, nsgpr=96):
    acc = (nvgpr + 3) // 4 * 4
    return f""".amdhsa_kernel {name}
  .amdhsa_next_free_vgpr {nvgpr}
  .amdhsa_next_free_sgpr {nsgpr}
  .amdhsa_accum_offset {acc}
  .amdhsa_group_segment_fixed_size 0
  .amdhsa_kernarg_size 88
  .amdhsa_user_sgpr_count 2
  .amdhsa_user_sgpr_kernarg_segment_ptr 1
  .amdhsa_system_sgpr_workgroup_id_x 1
.end_amdhsa_kernel
"""

def write_file(path, kernels):
    out = HEADER_COMMENTS
    if len(kernels) == 1:
        n, a, g, b, lds, nv = kernels[0]
        out += f"; @launch grid=({g},1,1) block=({b},1,1) lds={lds}\n"
    else:
        for n, a, g, b, lds, nv in kernels:
            out += f"; @launch kernel={n} grid=({g},1,1) block=({b},1,1) lds={lds}\n"
    out += '.amdgcn_target "amdgcn-amd-amdhsa--gfx950"\n.text\n'
    for n, a, g, b, lds, nv in kernels:
        a.pad_hazards()
        e = a.check_waits(n)
        assert e == 0, "wait errors"
        out += f".globl {n}\n.p2align 8\n.type {n},@function\n" + a.text()
    out += '.section .rodata,"a"\n'
    for n, a, g, b, lds, nv in kernels:
        out += ".p2align 6\n" + descriptor(n, nv)
    open(path, "w").write(out)
```

```python
import sys
from common import *

def prologue(a, name, nwg):
    a.label(name)
    a(f"s_cmp_ge_u32 s2, {nwg}")
    a(f"s_cbranch_scc1 {name}_exit")
    load_ptrs(a)
    a("v_and_b32 v1, 63, v0")
    a("v_lshrrev_b32 v2, 6, v0")
    a("v_readfirstlane_b32 s26, v2")
    a("s_and_b32 s27, s2, 7")
    a("s_lshr_b32 s3, s2, 3")

def cvt8(a, dst, src):
    for i in range(4):
        a(f"v_cvt_pk_bf16_f32 v{dst+i}, v{src+2*i}, v{src+2*i+1}")

def tr_base32(a, dst, tmp):
    a(f"v_lshrrev_b32 v{dst}, 5, v1")
    a(f"v_lshlrev_b32 v{dst}, 9, v{dst}")
    a(f"v_bfe_u32 v{tmp}, v1, 2, 2")
    a(f"v_lshl_add_u32 v{dst}, v{tmp}, 6, v{dst}")
    a(f"v_bfe_u32 v{tmp}, v1, 4, 1")
    a(f"v_lshl_add_u32 v{dst}, v{tmp}, 5, v{dst}")
    a(f"v_and_b32 v{tmp}, 3, v1")
    a(f"v_lshl_add_u32 v{dst}, v{tmp}, 3, v{dst}")

def kv_job(a, LKV):
    a("s_lshl_b32 s40, s27, 3")
    a("s_lshr_b32 s41, s3, 2")
    a("s_add_u32 s40, s40, s41")
    a("s_bfe_u32 s41, s3, 0x10001")
    a("s_and_b32 s42, s3, 1")
    a("s_lshl_b32 s43, s40, 5")
    a("s_lshl_b32 s44, s41, 4")
    a("s_add_u32 s43, s43, s44")
    a("s_waitcnt lgkmcnt(0)")
    srd(a, 28, P_AX, 2 << 20)
    a("s_cmp_eq_u32 s42, 0")
    a(f"s_cselect_b32 s32, s{P_AWK}, s{P_AWV}")
    a(f"s_cselect_b32 s33, s{P_AWK+1}, s{P_AWV+1}")
    a("s_mov_b32 s34, 16384")
    a("s_mov_b32 s35, 0x20000")
    srd(a, 36, P_WS, 64 * 2048, WS_KV)
    a("v_lshlrev_b32 v3, 4, v1")
    for q in range(4):
        a(f"s_mov_b32 m0, {LKV + q*4096}")
        a(f"s_mov_b32 s45, {q*4096}")
        for i in range(4):
            a(f"buffer_load_dwordx4 v3, s[32:35], s45 offen offset:{i*1024} lds")
    a("v_and_b32 v4, 15, v1")
    a("v_add_u32 v5, s43, v4")
    a("v_lshlrev_b32 v5, 10, v5")
    a("v_lshrrev_b32 v6, 4, v1")
    a("v_lshl_add_u32 v5, v6, 4, v5")
    X = 16
    for s in range(16):
        a(f"buffer_load_dwordx4 {vr(X+4*s,4)}, v5, s[28:31], 0 offen offset:{s*64}")
    a("v_lshlrev_b32 v7, 8, v6")
    a("v_lshl_add_u32 v7, v4, 3, v7")
    a(f"v_add_u32 v7, {LKV}, v7")
    W = 80
    a("s_waitcnt vmcnt(16)")
    for s in range(16):
        for t in range(2):
            a(f"ds_read_b64_tr_b16 {vr(W+4*s+2*t,2)}, v7 offset:{s*1024 + t*128}")
    a("v_and_b32 v8, 1, v6")
    a("s_cmp_eq_u32 s42, 0")
    a("s_cselect_b32 s45, 9, 8")
    a("s_cselect_b32 s46, 8, 9")
    a("s_lshl_b32 s46, s41, s46")
    a("s_lshl_b32 s47, s42, 10")
    a("s_add_u32 s46, s46, s47")
    a("s_lshl_b32 s47, s40, 11")
    a("s_add_u32 s46, s46, s47")
    a("v_lshlrev_b32 v8, s45, v8")
    a("v_lshl_add_u32 v8, v4, 4, v8")
    a("v_lshrrev_b32 v9, 1, v6")
    a("v_lshl_add_u32 v8, v9, 3, v8")
    a("v_add_u32 v8, s46, v8")
    a("s_waitcnt vmcnt(0) lgkmcnt(0)")
    lv = a.newlabel("kv_v"); ld = a.newlabel("kv_d")
    a("s_cmp_eq_u32 s42, 0")
    a(f"s_cbranch_scc0 {lv}")
    for s in range(16):
        mfma16(a, 12, W+4*s, X+4*s, "0" if s == 0 else 12)
    a(f"s_branch {ld}")
    a.label(lv)
    for s in range(16):
        mfma16(a, 12, X+4*s, W+4*s, "0" if s == 0 else 12)
    a.label(ld)
    a("v_cvt_pk_bf16_f32 v10, v12, v13")
    a("v_cvt_pk_bf16_f32 v11, v14, v15")
    a("buffer_store_dwordx2 v[10:11], v8, s[36:39], 0 offen")

def b1_prog(a):
    RING = 8; SLOT = 3072; WB = RING * SLOT
    a("s_lshl_b32 s40, s27, 2")
    a("s_lshr_b32 s41, s3, 3")
    a("s_add_u32 s40, s40, s41")
    a("s_and_b32 s41, s3, 7")
    a("s_and_b32 s42, s26, 1")
    a("s_lshr_b32 s43, s26, 1")
    a(f"s_mul_i32 s44, s26, {WB}")
    a("s_lshl_b32 s45, s41, 7")
    a("s_lshl_b32 s46, s42, 6")
    a("s_add_u32 s45, s45, s46")
    a("v_lshrrev_b32 v3, 2, v1")
    a("v_mul_u32_u24 v3, 3072, v3")
    a("v_and_b32 v4, 3, v1")
    a("v_lshl_add_u32 v3, v4, 4, v3")
    a("v_add_u32 v3, s45, v3")
    a("v_and_b32 v6, 31, v1")
    a("v_lshrrev_b32 v7, 5, v1")
    a("s_lshl_b32 s46, s40, 6")
    a("s_lshl_b32 s47, s43, 5")
    a("s_add_u32 s47, s47, s46")
    a("v_add_u32 v4, s47, v6")
    a("v_lshlrev_b32 v4, 10, v4")
    a("v_lshl_add_u32 v4, v7, 4, v4")
    a("s_sub_i32 s46, s46, 16")
    a("s_max_i32 s46, s46, 0")
    a("v_and_b32 v5, 15, v1")
    a("v_add_u32 v5, s46, v5")
    a("v_lshlrev_b32 v5, 10, v5")
    a("v_lshl_add_u32 v5, v7, 4, v5")
    tr_base32(a, 8, 9)
    a("v_add_u32 v8, s44, v8")
    a("s_waitcnt lgkmcnt(0)")
    srd(a, 28, P_BX, 2 << 20)
    srd(a, 32, P_BWQKV, 512 * 3072)
    srd(a, 36, P_WS, 2 << 20, WS_OB)
    ACC = 12; XS = 76; WF = 140
    def issue(slot, sW, sX, xoff):
        a(f"s_add_u32 m0, s44, {slot*SLOT}")
        for t in range(3):
            a(f"buffer_load_dwordx4 v3, s[32:35], {sW} offen offset:{t*1024} lds")
        a(f"buffer_load_dwordx4 {vr(XS+8*slot,4)}, v4, s[28:31], {sX} offen offset:{xoff}")
        a(f"buffer_load_dwordx4 {vr(XS+8*slot+4,4)}, v5, s[28:31], {sX} offen offset:{xoff}")
    def trreads(slot, buf):
        for t3 in range(3):
            for t in range(2):
                a(f"ds_read_b64_tr_b16 {vr(WF+12*buf+4*t3+2*t,2)}, v8 offset:{slot*SLOT + t3*1024 + t*256}")
    a("s_mov_b32 s48, 0")
    a("s_mov_b32 s49, 0")
    for s in range(8):
        issue(s, "s48", "s49", s*32)
        a("s_add_u32 s48, s48, 49152")
    for i in range(64): a(f"v_mov_b32 v{ACC+i}, 0")
    a("s_waitcnt vmcnt(35)")
    trreads(0, 0)
    a("s_mov_b32 s50, 0")
    lr1 = a.newlabel("b_rt1"); ldone = a.newlabel("b_gd")
    a("s_cmp_eq_u32 s43, 0")
    a(f"s_cbranch_scc0 {lr1}")
    for rt in range(2):
        if rt == 1: a.label(lr1)
        lp = a.newlabel("b_loop")
        a.label(lp)
        a("s_add_u32 s49, s49, 256")
        a("s_cmp_eq_u32 s50, 3")
        a("s_cselect_b32 s49, 0x7f000000, s49")
        for s in range(8):
            a("s_waitcnt vmcnt(30)")
            trreads((s+1) % 8, (s+1) & 1)
            a("s_waitcnt lgkmcnt(6)")
            w = WF + 12*(s & 1); xm = XS + 8*s; xh = xm + 4
            mfma32(a, ACC, w, xm, ACC)
            mfma32(a, ACC+16, w+4, xm, ACC+16)
            mfma32(a, ACC+32, xm, w+8, ACC+32)
            if rt == 0: mfma32(a, ACC+48, w+4, xh, ACC+48)
            else:       mfma32(a, ACC+48, xh, w+8, ACC+48)
            issue(s, "s48", "s49", s*32)
            a("s_add_u32 s48, s48, 49152")
        a("s_add_u32 s50, s50, 1")
        a("s_cmp_lt_u32 s50, 4")
        a(f"s_cbranch_scc1 {lp}")
        if rt == 0: a(f"s_branch {ldone}")
    a.label(ldone)
    a("s_waitcnt vmcnt(0) lgkmcnt(0)")
    QF = 76; KF = 84; VF = 92; KH = 100; VH = 108; T4 = 112
    a(f"s_mov_b32 s51, {CSCALE}")
    for i in range(16): a(f"v_mul_f32 v{ACC+i}, s51, v{ACC+i}")
    cvt8(a, QF, ACC); cvt8(a, QF+4, ACC+8)
    cvt8(a, KF, ACC+16); cvt8(a, KF+4, ACC+24)
    cvt8(a, VF, ACC+32); cvt8(a, VF+4, ACC+40)
    cvt8(a, KH, ACC+48); cvt8(a, KH+4, ACC+56)
    a("v_lshlrev_b32 v9, 4, v1")
    a("v_add_u32 v10, s44, v9")
    a("s_xor_b32 s52, s26, 2")
    a(f"s_mul_i32 s52, s52, {WB}")
    a("v_add_u32 v11, s52, v9")
    a(f"ds_write_b128 v10, {vr(KF,4)}")
    a(f"ds_write_b128 v10, {vr(KF+4,4)} offset:1024")
    a(f"ds_write_b128 v10, {vr(VF+4,4)} offset:2048")
    a(f"ds_write_b128 v10, {vr(KH+4,4)} offset:3072")
    a("s_waitcnt lgkmcnt(0)")
    a("s_barrier")
    l1 = a.newlabel("b_x1"); l2 = a.newlabel("b_x2")
    a("s_cmp_eq_u32 s43, 0")
    a(f"s_cbranch_scc0 {l1}")
    a(f"ds_read_b128 {vr(VH,4)}, v11 offset:3072")
    a(f"s_branch {l2}")
    a.label(l1)
    a(f"ds_read_b128 {vr(KH,4)}, v11")
    a(f"ds_read_b128 {vr(KH+4,4)}, v11 offset:1024")
    a(f"ds_read_b128 {vr(VH,4)}, v11 offset:2048")
    a.label(l2)
    MM = 12; MH = 28
    a("v_lshlrev_b32 v9, 2, v7")
    a("v_sub_u32 v9, v6, v9")
    a("v_add_u32 v9, 18, v9")
    a("v_mov_b32 v120, 0x5555")
    a("v_mov_b32 v121, 0")
    a("v_lshlrev_b64 v[120:121], v9, v[120:121]")
    a("s_or_b32 s52, s40, s43")
    a("s_cmp_eq_u32 s52, 0")
    a("s_cselect_b32 s52, 0, -1")
    a("v_and_b32 v120, s52, v120")
    a("v_not_b32 v120, v120")
    a("v_not_b32 v121, v121")
    for r in range(16):
        idx = 8*(r >> 2) + (r & 3)
        a(f"v_bfe_i32 v{MM+r}, v121, {idx}, 1")
        a(f"v_lshlrev_b32 v{MM+r}, 23, v{MM+r}")
        if r >= 8:
            a(f"v_bfe_i32 v{MH+r}, v120, {idx}, 1")
            a(f"v_lshlrev_b32 v{MH+r}, 23, v{MH+r}")
        else:
            a(f"v_mov_b32 v{MH+r}, 0")
    a("s_lshl_b32 s52, s40, 1")
    a("s_add_u32 s52, s52, s43")
    a("s_lshl_b32 s52, s52, 5")
    a("s_lshl_b32 s53, s41, 2")
    a("s_add_u32 s52, s52, s53")
    a("s_lshl_b32 s53, s42, 1")
    a("s_add_u32 s52, s52, s53")
    a("s_lshl_b32 s52, s52, 10")
    a("v_lshlrev_b32 v9, 4, v1")
    a("s_waitcnt lgkmcnt(0)")
    SM = 44; SH = 60; O = 124; PP = 140; T = 152
    for hd in range(2):
        mfma32(a, SM, KF+4*hd, QF+4*hd, MM)
        mfma32(a, SH, KH+4*hd, QF+4*hd, MH)
        vals = [SM+i for i in range(16)] + [SH+8+i for i in range(8)]
        a(f"v_max3_f32 v{T}, v{vals[0]}, v{vals[1]}, v{vals[2]}")
        for i in range(3, 23, 2):
            a(f"v_max3_f32 v{T}, v{T}, v{vals[i]}, v{vals[i+1]}")
        a(f"v_max_f32 v{T}, v{T}, v{vals[23]}")
        a(f"v_mov_b32 v{T+1}, v{T}")
        a(f"v_permlane32_swap_b32 v{T}, v{T+1}")
        a(f"v_max_f32 v{T}, v{T}, v{T+1}")
        for v in vals:
            a(f"v_sub_f32 v{v}, v{v}, v{T}")
        for v in vals:
            a(f"v_exp_f32 v{v}, v{v}")
        a(f"v_add_f32 v{T+2}, v{vals[0]}, v{vals[1]}")
        for v in vals[2:]:
            a(f"v_add_f32 v{T+2}, v{T+2}, v{v}")
        cvt8(a, PP, SM); cvt8(a, PP+4, SM+8); cvt8(a, PP+8, SH+8)
        a(f"v_mov_b32 v{T+3}, v{T+2}")
        a(f"v_permlane32_swap_b32 v{T+2}, v{T+3}")
        mfma32(a, O, VF, PP, "0")
        mfma32(a, O, VF+4, PP+4, O)
        mfma32(a, O, VH, PP+8, O)
        a(f"v_add_f32 v{T+2}, v{T+2}, v{T+3}")
        a(f"v_rcp_f32 v{T+2}, v{T+2}")
        for i in range(8):
            a(f"v_mul_f32 v{O+8*hd+i}, v{O+8*hd+i}, v{T+2}")
        cvt8(a, T+4+4*hd, O+8*hd)
        a(f"buffer_store_dwordx4 {vr(T+4+4*hd,4)}, v9, s[36:39], s52 offen offset:{hd*1024}")

def k1():
    a = Asm(); n = "k1_kernel"
    prologue(a, n, 256)
    a("s_cmp_eq_u32 s26, 4")
    a("s_cbranch_scc0 k1_b")
    kv_job(a, 4 * 24576)
    a("s_endpgm")
    a.label("k1_b")
    b1_prog(a)
    a.label(n + "_exit")
    a("s_endpgm")
    return (n, a, 256, 320, 4 * 24576 + 16384, 168)

def k2():
    a = Asm(); n = "k2_kernel"
    prologue(a, n, 256)
    a("s_lshl_b32 s40, s27, 3")
    a("s_lshr_b32 s41, s3, 2")
    a("s_add_u32 s40, s40, s41")
    a("s_and_b32 s41, s3, 3")
    a("s_and_b32 s42, s26, 3")
    a("s_lshr_b32 s43, s26, 2")
    a("s_lshl_b32 s44, s26, 14")
    a("s_lshl_b32 s45, s43, 18")
    a("s_lshl_b32 s46, s41, 8")
    a("s_add_u32 s45, s45, s46")
    a("s_lshl_b32 s46, s42, 6")
    a("s_add_u32 s45, s45, s46")
    a("v_lshrrev_b32 v3, 2, v1")
    a("v_lshlrev_b32 v3, 10, v3")
    a("v_and_b32 v4, 3, v1")
    a("v_lshl_add_u32 v3, v4, 4, v3")
    a("v_add_u32 v3, s45, v3")
    a("v_and_b32 v6, 31, v1")
    a("v_lshrrev_b32 v7, 5, v1")
    a("s_lshl_b32 s45, s40, 15")
    a("s_lshl_b32 s46, s43, 9")
    a("s_add_u32 s45, s45, s46")
    a("v_lshlrev_b32 v4, 10, v6")
    a("v_lshl_add_u32 v4, v7, 4, v4")
    a("v_add_u32 v4, s45, v4")
    tr_base32(a, 8, 9)
    a("v_add_u32 v8, s44, v8")
    a("s_waitcnt lgkmcnt(0)")
    srd(a, 28, P_AX, 2 << 20)
    srd(a, 32, P_AWQ, 512 * 1024)
    srd(a, 36, P_WS, 64 * 2048, WS_KV)
    srd(a, 56, P_WS, 2 << 20, WS_OA)
    X = 16; W = 80; ACC = 144
    a("s_mov_b32 s48, 0")
    for s in range(16):
        a(f"s_add_u32 m0, s44, {s*1024}")
        a(f"buffer_load_dwordx4 v3, s[32:35], s48 offen lds")
        a(f"buffer_load_dwordx4 {vr(X+4*s,4)}, v4, s[28:31], 0 offen offset:{s*32}")
        a("s_add_u32 s48, s48, 16384")
    for s in range(16):
        a(f"s_waitcnt vmcnt({30-2*s})")
        for t in range(2):
            a(f"ds_read_b64_tr_b16 {vr(W+4*s+2*t,2)}, v8 offset:{s*1024+t*256}")
        if s >= 1:
            a("s_waitcnt lgkmcnt(2)")
            mfma32(a, ACC, W+4*(s-1), X+4*(s-1), "0" if s == 1 else ACC)
    a("s_waitcnt lgkmcnt(0)")
    mfma32(a, ACC, W+60, X+60, ACC)
    a("v_lshlrev_b32 v9, 4, v1")
    a("v_add_u32 v10, s44, v9")
    a("s_xor_b32 s45, s44, 0x10000")
    a("v_add_u32 v11, s45, v9")
    for i in range(4):
        a(f"ds_write_b128 v10, {vr(ACC+4*i,4)} offset:{i*1024}")
    a("s_waitcnt lgkmcnt(0)")
    a("s_barrier")
    for i in range(4):
        a(f"ds_read_b128 {vr(X+4*i,4)}, v11 offset:{i*1024}")
    S0, S1, O0, O1, C0, C1, P0, P1, Q0, Q1 = 32, 48, 64, 80, 96, 112, 128, 136, 160, 164
    KB = 168; VB = 184
    NB = 4
    a("v_and_b32 v12, 27, v6")
    a("v_cmp_eq_u32 vcc, 16, v12")
    a("v_mov_b32 v13, 0x3f803f80")
    a("v_cndmask_b32 v12, 0, v13, vcc")
    for i in range(8*NB): a(f"v_mov_b32 v{VB+i}, v12")
    a("v_lshlrev_b32 v14, 8, v7")
    a("v_lshl_add_u32 v14, v6, 4, v14")
    a("s_mov_b32 s60, 0x0000ffff")
    a("s_mov_b32 s61, 0x0000ffff")
    a("s_lshl_b32 s48, s43, 16")
    def kvload(b):
        a(f"buffer_load_dwordx4 {vr(KB+4*b,4)}, v9, s[36:39], s48 offen")
        a("s_mov_b64 exec, s[60:61]")
        a(f"buffer_load_dwordx4 {vr(VB+8*b,4)}, v14, s[36:39], s48 offen offset:1024")
        a(f"buffer_load_dwordx4 {vr(VB+8*b+4,4)}, v14, s[36:39], s48 offen offset:1536")
        a("s_mov_b64 exec, -1")
        a("s_add_u32 s48, s48, 2048")
    a(f"buffer_load_dwordx4 {vr(P0,4)}, v9, s[36:39], 0 offen")
    for b in range(NB): kvload(b)
    a("s_waitcnt lgkmcnt(0)")
    a(f"s_mov_b32 s51, {CSCALE}")
    for i in range(16):
        a(f"v_add_f32 v{ACC+i}, v{ACC+i}, v{X+i}")
    for i in range(16):
        a(f"v_mul_f32 v{ACC+i}, s51, v{ACC+i}")
    cvt8(a, Q0, ACC); cvt8(a, Q1, ACC+8)
    for i in range(32): a(f"v_mov_b32 v{O0+i}, 0")
    a(f"s_waitcnt vmcnt({3*NB})")
    mfma32(a, S0, P0, Q0, "0")
    mfma32(a, S1, P0, Q1, "0")
    for S, C in ((S0, C0), (S1, C1)):
        a(f"v_max3_f32 v12, v{S}, v{S+1}, v{S+2}")
        for i in range(3, 15, 2):
            a(f"v_max3_f32 v12, v12, v{S+i}, v{S+i+1}")
        a(f"v_max_f32 v12, v12, v{S+15}")
        a("v_mov_b32 v13, v12")
        a("v_permlane32_swap_b32 v12, v13")
        a("v_max_f32 v12, v12, v13")
        a(f"v_sub_f32 v{C}, 0, v12")
        for i in range(1, 16): a(f"v_mov_b32 v{C+i}, v{C}")
    a(f"s_waitcnt vmcnt({3*NB-1})")
    mfma32(a, S0, KB, Q0, C0)
    a("s_mov_b32 s50, 0")
    a("s_nop 10")
    a(".p2align 6")
    a.label("k2_loop")
    def half(S, P, O, V, pre, mid):
        for x in pre: x()
        for i in range(8): a(f"v_exp_f32 v{S+i}, v{S+i}")
        a(f"v_exp_f32 v{S+8}, v{S+8}")
        cvt8(a, P, S)
        a(f"v_exp_f32 v{S+9}, v{S+9}")
        a(f"v_exp_f32 v{S+10}, v{S+10}")
        for x in mid: x()
        mfma32(a, O, V, P, O)
        for i in range(11, 16): a(f"v_exp_f32 v{S+i}, v{S+i}")
        cvt8(a, P+4, S+8)
    for b in range(NB):
        nb = (b + 1) % NB
        pb = (b - 1) % NB
        half(S0, P0, O0, VB+8*b,
             [lambda: mfma32(a, S1, KB+4*b, Q1, C1)],
             [lambda: a(f"s_waitcnt vmcnt({3*(NB-1)})")])
        a(f"s_waitcnt vmcnt({3*(NB-1)-1})")
        half(S1, P1, O1, VB+8*b,
             [lambda: mfma32(a, S0, KB+4*nb, Q0, C0), lambda: a(f"v_exp_f32 v{S1}, v{S1}") if False else None, lambda: mfma32(a, O0, VB+8*b+4, P0+4, O0)],
             [])
        a("s_nop 1")
        mfma32(a, O1, VB+8*b+4, P1+4, O1)
        kvload(b)
    a("s_add_u32 s50, s50, 1")
    a(f"s_cmp_lt_u32 s50, {32//NB}")
    a("s_cbranch_scc1 k2_loop")
    a("s_waitcnt vmcnt(0)")
    a("s_barrier")
    l1 = a.newlabel("c1"); l2 = a.newlabel("c2")
    a("s_cmp_eq_u32 s43, 0")
    a(f"s_cbranch_scc0 {l1}")
    for i in range(3): a(f"ds_write_b128 v10, {vr(O1+4*i,4)} offset:{i*1024}")
    a(f"s_branch {l2}")
    a.label(l1)
    for i in range(3): a(f"ds_write_b128 v10, {vr(O0+4*i,4)} offset:{i*1024}")
    a("s_nop 1")
    for i in range(12): a(f"v_mov_b32 v{O0+i}, v{O1+i}")
    a.label(l2)
    a("s_waitcnt lgkmcnt(0)")
    a("s_barrier")
    for i in range(3): a(f"ds_read_b128 {vr(S0+4*i,4)}, v11 offset:{i*1024}")
    a("s_lshl_b32 s52, s40, 5")
    a("s_lshl_b32 s53, s41, 3")
    a("s_add_u32 s52, s52, s53")
    a("s_lshl_b32 s53, s42, 1")
    a("s_add_u32 s52, s52, s53")
    a("s_add_u32 s52, s52, s43")
    a("s_lshl_b32 s52, s52, 10")
    a("s_waitcnt lgkmcnt(0)")
    for i in range(9): a(f"v_add_f32 v{O0+i}, v{O0+i}, v{S0+i}")
    a(f"v_rcp_f32 v12, v{O0+8}")
    for i in range(8): a(f"v_mul_f32 v{O0+i}, v{O0+i}, v12")
    cvt8(a, P0, O0)
    a(f"buffer_store_dwordx4 {vr(P0,4)}, v9, s[56:59], s52 offen")
    a.label(n + "_exit")
    a("s_endpgm")
    return (n, a, 256, 512, 131072, 216)

def k3():
    a = Asm(); n = "k3_kernel"
    prologue(a, n, 256)
    a("s_lshl_b32 s40, s27, 3")
    a("s_lshr_b32 s41, s3, 2")
    a("s_add_u32 s40, s40, s41")
    a("s_and_b32 s41, s3, 3")
    a("s_and_b32 s42, s26, 3")
    a("s_lshr_b32 s43, s26, 2")
    a("s_lshl_b32 s44, s26, 14")
    a("s_lshl_b32 s45, s41, 8")
    a("s_lshl_b32 s46, s42, 6")
    a("s_add_u32 s45, s45, s46")
    a("v_lshrrev_b32 v3, 2, v1")
    a("v_lshlrev_b32 v3, 10, v3")
    a("v_and_b32 v4, 3, v1")
    a("v_lshl_add_u32 v3, v4, 4, v3")
    a("v_add_u32 v3, s45, v3")
    a("v_lshlrev_b32 v9, 4, v1")
    a("v_lshrrev_b32 v8, 5, v1")
    a("v_lshlrev_b32 v8, 8, v8")
    a("v_bfe_u32 v5, v1, 2, 2")
    a("v_lshl_add_u32 v8, v5, 6, v8")
    a("v_bfe_u32 v5, v1, 4, 1")
    a("v_lshl_add_u32 v8, v5, 5, v8")
    a("v_and_b32 v5, 1, v1")
    a("v_lshl_add_u32 v8, v5, 4, v8")
    a("v_bfe_u32 v5, v1, 1, 1")
    a("v_lshl_add_u32 v8, v5, 3, v8")
    a("v_add_u32 v8, s44, v8")
    a("s_waitcnt lgkmcnt(0)")
    a("s_cmp_eq_u32 s43, 0")
    a(f"s_cselect_b32 s32, s{P_AWO}, s{P_BWO}")
    a(f"s_cselect_b32 s33, s{P_AWO+1}, s{P_BWO+1}")
    a("s_mov_b32 s34, 0x80000")
    a("s_mov_b32 s35, 0x20000")
    srd(a, 28, P_WS, 4 << 20, WS_OA)
    srd(a, 36, P_OUT, 4 << 20)
    a("s_lshl_b32 s49, s43, 21")
    a("s_lshl_b32 s46, s40, 15")
    a("s_add_u32 s49, s49, s46")
    a("s_mov_b32 s48, 0")
    X = 16; W = 80; ACC = 96
    def issue(s):
        a(f"s_add_u32 m0, s44, {(s%16)*1024}")
        a(f"buffer_load_dwordx4 v3, s[32:35], s48 offen lds")
        a(f"buffer_load_dwordx4 {vr(X+4*(s%16),4)}, v9, s[28:31], s49 offen")
        a("s_add_u32 s48, s48, 16384")
        a("s_add_u32 s49, s49, 1024")
    for s in range(16): issue(s)
    def trr(s):
        for t in range(2):
            a(f"ds_read_b64_tr_b16 {vr(W+4*(s&1)+2*t,2)}, v8 offset:{(s%16)*1024+t*512}")
    a("s_waitcnt vmcnt(30)")
    trr(0)
    for s in range(32):
        if s + 1 < 32:
            out = min(s + 16, 32) - (s + 2)
            a(f"s_waitcnt vmcnt({2*out})")
            trr(s + 1)
            a("s_waitcnt lgkmcnt(2)")
        else:
            a("s_waitcnt lgkmcnt(0)")
        mfma32(a, ACC, W+4*(s&1), X+4*(s%16), "0" if s == 0 else ACC)
        if s + 16 < 32: issue(s + 16)
    a("v_and_b32 v6, 31, v1")
    a("v_lshrrev_b32 v7, 5, v1")
    a("v_lshlrev_b32 v6, 11, v6")
    a("v_lshl_add_u32 v6, v7, 4, v6")
    a("s_lshl_b32 s46, s40, 16")
    a("s_add_u32 s45, s45, s46")
    a("s_lshl_b32 s46, s43, 10")
    a("s_add_u32 s45, s45, s46")
    cvt8(a, 16, ACC); cvt8(a, 20, ACC+8)
    a("buffer_store_dwordx4 v[16:19], v6, s[36:39], s45 offen")
    a("buffer_store_dwordx4 v[20:23], v6, s[36:39], s45 offen offset:32")
    a.label(n + "_exit")
    a("s_endpgm")
    return (n, a, 256, 512, 131072, 112)

if __name__ == "__main__":
    write_file(sys.argv[1], [k1(), k2(), k3()])
```

```python
import sys
from common import *
DIAG = "--diag" in sys.argv
VAR = dict((x[2:].split("=")+[1])[:2] for x in sys.argv if x.startswith("-V"))

W_KV = 0
W_F1 = 0x20000
W_F3 = 0x30000
W_EP = 0x3F000
W_OA = 1 << 20
W_OB = 3 << 20
W_USED = 8 << 20
L_WK = 0
L_XA = 32768
L_QR0, L_QR1 = 16384, 66048
L_GB = 81920
GB_W, GB_X, GB_SZ = 0, 24576, 34816
L_COMB = 131072
L_BEX = 151552
L_CNT = 160768
LDS_SIZE = 163840
C_KVDONE, C_BB, C_ST, C_EX, C_XA, C_ISS, C_QD = 0, 4, 16, 40, 72, 76, 80
XP = 1040
TAGC = 0x9E3779B9 - (1 << 32)
SPIN = 40000

def cvt8(a, dst, src):
    for i in range(4):
        a(f"v_cvt_pk_bf16_f32 v{dst+i}, v{src+2*i}, v{src+2*i+1}")

def tr_base32(a, dst, tmp):
    a(f"v_lshlrev_b32 v{dst}, 9, v7")
    a(f"v_bfe_u32 v{tmp}, v1, 2, 2")
    a(f"v_lshl_add_u32 v{dst}, v{tmp}, 6, v{dst}")
    a(f"v_bfe_u32 v{tmp}, v1, 4, 1")
    a(f"v_lshl_add_u32 v{dst}, v{tmp}, 5, v{dst}")
    a(f"v_and_b32 v{tmp}, 3, v1")
    a(f"v_lshl_add_u32 v{dst}, v{tmp}, 3, v{dst}")

def tr_base_wo(a, dst, tmp):
    a(f"v_lshlrev_b32 v{dst}, 8, v7")
    a(f"v_bfe_u32 v{tmp}, v1, 2, 2")
    a(f"v_lshl_add_u32 v{dst}, v{tmp}, 6, v{dst}")
    a(f"v_bfe_u32 v{tmp}, v1, 4, 1")
    a(f"v_lshl_add_u32 v{dst}, v{tmp}, 5, v{dst}")
    a(f"v_and_b32 v{tmp}, 1, v1")
    a(f"v_lshl_add_u32 v{dst}, v{tmp}, 4, v{dst}")
    a(f"v_bfe_u32 v{tmp}, v1, 1, 1")
    a(f"v_lshl_add_u32 v{dst}, v{tmp}, 3, v{dst}")

def lds_signal(a, off, addr="v10"):
    a("s_mov_b64 exec, 1")
    a(f"ds_add_u32 {addr}, v11 offset:{off}")
    a("s_mov_b64 exec, -1")
def lds_wait(a, off, val, tmp, stmp, addr="v10", sleep=1):
    l = a.newlabel("lw"); d = a.newlabel("lwd")
    a.label(l)
    a(f"ds_read_b32 v{tmp}, {addr} offset:{off}")
    a("s_waitcnt lgkmcnt(0)")
    a(f"v_readfirstlane_b32 s{stmp}, v{tmp}")
    a(f"s_cmp_ge_u32 s{stmp}, {val}")
    a(f"s_cbranch_scc1 {d}")
    if sleep: a(f"s_sleep {sleep}")
    a(f"s_branch {l}")
    a.label(d)
def bbar(a, tmp=5):
    a("s_add_u32 s58, s58, 4")
    lds_signal(a, C_BB)
    lds_wait(a, C_BB, "s58", tmp, 51, sleep=2)

def poll_flags(a, voff, soff, nl, t, sleep=2):
    l = a.newlabel("pf"); d = a.newlabel("pfd")
    a(f"s_mov_b32 s63, {SPIN}")
    a(f"s_mov_b64 exec, {(1 << nl) - 1}")
    a.label(l)
    a(f"buffer_load_dwordx4 {vr(t,4)}, v{voff}, s[36:39], {soff} offen sc1")
    a("s_waitcnt vmcnt(0)")
    for i in range(4): a(f"v_xor_b32 v{t+i}, s62, v{t+i}")
    a(f"v_or3_b32 v{t}, v{t}, v{t+1}, v{t+2}")
    a(f"v_or_b32 v{t}, v{t}, v{t+3}")
    a(f"v_cmp_ne_u32 vcc, 0, v{t}")
    a("s_nop 1")
    a(f"s_cbranch_vccz {d}")
    a(f"s_sleep {sleep}")
    a("s_sub_u32 s63, s63, 1")
    a("s_cmp_lg_u32 s63, 0")
    a(f"s_cbranch_scc1 {l}")
    a.label(d)
    a("s_mov_b64 exec, -1")

def store_flag(a, soff, t):
    a(f"v_mov_b32 v{t}, s62")
    a(f"v_mov_b32 v{t+1}, 0")
    a("s_mov_b64 exec, 1")
    a(f"buffer_store_dword v{t}, v{t+1}, s[36:39], {soff} offen sc1")
    a("s_mov_b64 exec, -1")

def rowmax16(a, dst, S, init=None):
    if init is None:
        a(f"v_max3_f32 v{dst}, v{S}, v{S+1}, v{S+2}")
        for i in range(3, 15, 2): a(f"v_max3_f32 v{dst}, v{dst}, v{S+i}, v{S+i+1}")
        a(f"v_max_f32 v{dst}, v{dst}, v{S+15}")
    else:
        for i in range(0, 16, 2): a(f"v_max3_f32 v{dst}, v{dst}, v{S+i}, v{S+i+1}")
def xhalf_max(a, dst, tmp):
    a(f"v_mov_b32 v{tmp}, v{dst}")
    a(f"v_permlane32_swap_b32 v{dst}, v{tmp}")
    a(f"v_max_f32 v{dst}, v{dst}, v{tmp}")

def kv_dma(a, sreg, n):
    for q in range(n):
        if (q & 3) == 0: a(f"s_mov_b32 m0, s{sreg}")
        a(f"buffer_load_dwordx4 v9, s[36:39], s{sreg} offen offset:{(q&3)*1024} sc1 lds")
        if (q & 3) == 3 and q + 1 < n: a(f"s_add_u32 s{sreg}, s{sreg}, 4096")

def role_a(a, st):
    a("s_sub_u32 s59, s26, 4")
    a("s_and_b32 s42, s59, 3")
    a("s_lshr_b32 s43, s59, 2")
    srd(a, 28, P_AX, 2 << 20)
    a("s_lshr_b32 s46, s41, 1")
    for k in range(2):
        if k: a("s_xor_b32 s46, s46, 1")
        a("s_lshl_b32 s49, s46, 4")
        a("s_lshl_b32 s48, s59, 1")
        a("s_add_u32 s49, s49, s48")
        a("s_lshl_b32 s48, s40, 5")
        a("s_add_u32 s48, s48, s49")
        a("s_lshl_b32 s48, s48, 10")
        a(f"s_mul_i32 s49, s49, {XP}")
        for q in range(2):
            a(f"s_add_u32 m0, s49, {L_XA + q*XP - q*1024}")
            a(f"buffer_load_dwordx4 v9, s[28:31], s48 offen offset:{q*1024} lds")
    srd(a, 32, P_AWQ, 512 * 1024)
    a("s_lshl_b32 s51, s3, 3")
    a("s_add_u32 s51, s51, s59")
    a("s_lshl_b32 s51, s51, 11")
    a("v_lshlrev_b32 v4, 7, v1")
    a("s_mov_b64 exec, 0xffff")
    a("buffer_load_dword v15, v4, s[32:35], s51 offen")
    a("s_mov_b64 exec, -1")
    a("s_lshl_b32 s50, s43, 18")
    a("s_lshl_b32 s51, s41, 8")
    a("s_add_u32 s50, s50, s51")
    a("s_lshl_b32 s51, s42, 6")
    a("s_add_u32 s50, s50, s51")
    a("v_lshrrev_b32 v3, 2, v1")
    a("v_lshlrev_b32 v3, 10, v3")
    a("v_and_b32 v4, 3, v1")
    a("v_lshl_add_u32 v3, v4, 4, v3")
    WF = 16; XF = 80; ACC = 144
    tr_base32(a, 8, 4)
    a(f"s_mul_i32 s47, s43, {L_QR1 - L_QR0}")
    a(f"s_add_u32 s47, s47, {L_QR0}")
    a("s_lshl_b32 s51, s42, 12")
    a("s_add_u32 s47, s47, s51")
    a("v_add_u32 v8, s47, v8")
    a(f"v_mul_u32_u24 v4, {XP}, v6")
    a("v_lshl_add_u32 v4, v7, 4, v4")
    a("s_lshl_b32 s51, s43, 9")
    a(f"s_add_u32 s51, s51, {L_XA}")
    a("v_add_u32 v4, s51, v4")
    a(f"s_waitcnt vmcnt(3) lgkmcnt(0)")
    a(f"s_add_u32 s62, s62, {TAGC}")
    a("s_barrier")
    st.stamp()
    a("s_waitcnt vmcnt(0)")
    lds_signal(a, C_XA)
    def qissue(s):
        a(f"s_add_u32 m0, s47, {(s%4)*1024}")
        a(f"buffer_load_dwordx4 v3, s[32:35], s50 offen lds")
        a("s_add_u32 s50, s50, 16384")
    for s in range(4): qissue(s)
    lds_wait(a, C_XA, 8, 12, 51)
    for s in range(16):
        a(f"ds_read_b128 {vr(XF+4*s,4)}, v4 offset:{s*32}")
    lds_signal(a, C_QD)
    for s in range(17):
        if s < 16:
            a(f"s_waitcnt vmcnt({3 if s == 0 else min(2, 15-s)})")
            for t in range(2):
                a(f"ds_read_b64_tr_b16 {vr(WF+4*(s&1)+2*t,2)}, v8 offset:{(s%4)*1024 + t*256}")
        if s >= 1:
            a(f"s_waitcnt lgkmcnt({2 if s < 16 else 0})")
            if s + 3 < 16: qissue(s + 3)
            mfma32(a, ACC, WF+4*((s-1)&1), XF+4*(s-1), "0" if s == 1 else ACC)
    st.stamp()
    lds_wait(a, C_QD, 9, 12, 51)
    a("s_xor_b32 s52, s59, 4")
    a("s_lshl_b32 s53, s52, 12")
    a(f"s_add_u32 s53, s53, {L_XA}")
    a("v_add_u32 v12, s53, v9")
    a("s_lshl_b32 s53, s52, 2")
    a("v_add_u32 v13, s53, v10")
    for i in range(4): a(f"ds_write_b128 v12, {vr(ACC+4*i,4)} offset:{i*1024}")
    lds_signal(a, C_EX, "v13")
    S0, S1, O0, O1, C0, C1, P0, P1, Q0, Q1, KB, VB = 16, 32, 48, 64, 80, 96, 112, 120, 128, 132, 136, 144
    for i in range(32): a(f"v_mov_b32 v{O0+i}, 0")
    for i in range(4): a(f"v_mov_b32 v{P1+4+i}, 0")
    a("s_lshl_b32 s56, s43, 11")
    a("v_add_u32 v2, s56, v9")
    a("v_lshlrev_b32 v3, 8, v7")
    a("v_lshl_add_u32 v3, v6, 4, v3")
    a("v_add_u32 v3, s56, v3")
    a("s_mov_b32 s60, 0x0000ffff")
    a("s_mov_b32 s61, 0x0000ffff")
    a("s_lshl_b32 s53, s59, 2")
    a("v_add_u32 v13, s53, v10")
    a("s_lshl_b32 s53, s59, 12")
    a("v_add_u32 v14, s53, v9")
    a(f"v_add_u32 v14, {L_XA}, v14")
    a("v_lshrrev_b32 v15, 1, v1")
    a("v_lshlrev_b32 v15, 4, v15")
    a("v_and_b32 v12, 1, v1")
    a("v_add_u32 v15, v15, v12")
    a("v_lshlrev_b32 v15, 7, v15")
    a("s_lshl_b32 s54, s59, 8")
    a(f"s_add_u32 s54, s54, {W_F1}")
    if "pollfirst" in VAR: poll_flags(a, 15, "s54", 8, S1, sleep=int(VAR.get("psleep", 4)))
    lds_wait(a, C_EX, 1, 12, 51, "v13")
    for i in range(4): a(f"ds_read_b128 {vr(S0+4*i,4)}, v14 offset:{i*1024}")
    st.stamp()
    if "pollfirst" not in VAR: poll_flags(a, 15, "s54", 8, S1, sleep=int(VAR.get("psleep", 4)))
    a("s_waitcnt lgkmcnt(0)")
    kv_dma(a, 53, 4)
    a(f"s_mov_b32 s51, {CSCALE}")
    a("v_and_b32 v12, 27, v6")
    a("v_cmp_eq_u32 vcc, 16, v12")
    a("v_mov_b32 v13, 0x3f803f80")
    a("v_cndmask_b32 v12, 0, v13, vcc")
    a("s_waitcnt lgkmcnt(0)")
    for i in range(16): a(f"v_add_f32 v{S0+i}, v{ACC+i}, v{S0+i}")
    for i in range(16): a(f"v_mul_f32 v{S0+i}, s51, v{S0+i}")
    cvt8(a, Q0, S0); cvt8(a, Q1, S0+8)
    for i in range(16): a(f"v_mov_b32 v{VB+i}, v12")
    st.stamp()
    a("s_waitcnt vmcnt(0)")
    lds_signal(a, C_ST + 0)
    lds_wait(a, C_ST + 0, 8, 12, 51, sleep=0)
    def kvread(b, off):
        a(f"ds_read_b128 {vr(KB+4*b,4)}, v2 offset:{off}")
        a("s_mov_b64 exec, s[60:61]")
        a(f"ds_read_b128 {vr(VB+8*b,4)}, v3 offset:{off+1024}")
        a(f"ds_read_b128 {vr(VB+8*b+4,4)}, v3 offset:{off+1536}")
        a("s_mov_b64 exec, -1")
    a(f"ds_read_b128 {vr(P0,4)}, v9")
    kvread(0, 0)
    a("s_waitcnt lgkmcnt(3)" if not DIAG else "s_waitcnt lgkmcnt(0)")
    mfma32(a, S0, P0, Q0, "0")
    mfma32(a, S1, P0, Q1, "0")
    for S, C in ((S0, C0), (S1, C1)):
        rowmax16(a, 12, S)
        xhalf_max(a, 12, 13)
        a(f"v_sub_f32 v{C}, {VAR.get('bias', 0)}, v12")
        for i in range(1, 16): a(f"v_mov_b32 v{C+i}, v{C}")
        if S == S0:
            a("s_waitcnt lgkmcnt(0)")
            mfma32(a, S0, KB, Q0, C0)
    st.stamp()
    a("s_mov_b32 s50, 0")
    a("s_setprio 3")
    if DIAG: a("s_waitcnt lgkmcnt(0)")
    a(".p2align 6")
    a.label("a_loop")
    def E(S, lo, hi):
        for i in range(lo, hi): a(f"v_exp_f32 v{S+i}, v{S+i}")
    def half(S, P, O, Vx, pvy, snext, w1, post):
        E(S, 0, 2)
        mfma32(a, *pvy)
        for x in post: x()
        E(S, 2, 8)
        if w1: a("s_waitcnt lgkmcnt(0)")
        mfma32(a, *snext)
        cvt8(a, P, S)
        E(S, 8, 12)
        mfma32(a, O, Vx, P, O)
        E(S, 12, 16)
        cvt8(a, P+4, S+8)
    HK = {1: [("w", 8)], 3: [("p", 2)], 4: [("w", 12)], 5: [("p", 1)], 6: [("p", 0)]}
    def hooks():
        a("s_bitcmp1_b32 s50, 2")
        a("s_cbranch_scc1 a_hk_hi")
        a("s_branch a_hk_lo")
        a.label("a_hk_done")
    for t in range(4):
        b = t & 1; nb = b ^ 1
        post = [lambda: kvread(nb, (t+1)*4096)]
        if t == 3: post = [hooks] + post
        half(S0, P0, O0, VB+8*b, (O1, VB+8*nb+4, P1+4, O1), (S1, KB+4*b, Q1, C1), False, post)
        half(S1, P1, O1, VB+8*b, (O0, VB+8*b+4, P0+4, O0), (S0, KB+4*nb, Q0, C0), True, [])
    a("v_add_u32 v2, 16384, v2")
    a("v_add_u32 v3, 16384, v3")
    a("s_add_u32 s50, s50, 1")
    a("s_cmp_lt_u32 s50, 8")
    a("s_cbranch_scc1 a_loop")
    mfma32(a, O1, VB+8+4, P1+4, O1)
    st.stamp()
    a(f"s_mul_i32 s53, s59, 3072")
    a(f"s_add_u32 s53, s53, {L_COMB}")
    a("v_add_u32 v12, s53, v9")
    a(f"s_mul_i32 s53, s52, 3072")
    a(f"s_add_u32 s53, s53, {L_COMB}")
    a("v_add_u32 v13, s53, v9")
    l1 = a.newlabel("c1"); l2 = a.newlabel("c2")
    a("s_cmp_eq_u32 s43, 0")
    a(f"s_cbranch_scc0 {l1}")
    for i in range(3): a(f"ds_write_b128 v12, {vr(O1+4*i,4)} offset:{i*1024}")
    a(f"s_branch {l2}")
    a.label(l1)
    for i in range(3): a(f"ds_write_b128 v12, {vr(O0+4*i,4)} offset:{i*1024}")
    for i in range(9): a(f"v_mov_b32 v{O0+i}, v{O1+i}")
    for i in range(4): a(f"v_mov_b32 v{Q0+i}, v{Q1+i}")
    a.label(l2)
    a("s_lshl_b32 s57, s42, 1")
    a("s_add_u32 s57, s57, s43")
    a("s_lshl_b32 s58, s40, 5")
    a("s_lshl_b32 s53, s41, 3")
    a("s_add_u32 s53, s53, s58")
    a("s_add_u32 s53, s53, s57")
    a("s_lshl_b32 s53, s53, 10")
    a(f"s_add_u32 s53, s53, {W_OA}")
    a("s_waitcnt lgkmcnt(0)")
    a("s_barrier")
    for i in range(3): a(f"ds_read_b128 {vr(S0+4*i,4)}, v13 offset:{i*1024}")
    a("s_mov_b32 s51, 0x7b800000")
    a("s_waitcnt lgkmcnt(0)")
    for i in range(9): a(f"v_add_f32 v{O0+i}, v{O0+i}, v{S0+i}")
    a(f"v_fma_f32 v12, v{O0}, 0, v{O0+8}")
    for i in range(1, 8): a(f"v_fma_f32 v12, v{O0+i}, 0, v12")
    a("v_cmp_ngt_f32 vcc, s51, v12")
    if "forcefb" in VAR: a("s_mov_b64 vcc, -1")
    a("s_nop 1")
    a("s_cbranch_vccnz a_fallback")
    a.label("a_norm")
    a(f"v_rcp_f32 v12, v{O0+8}")
    for i in range(8): a(f"v_mul_f32 v{O0+i}, v{O0+i}, v12")
    cvt8(a, P0, O0)
    for i in range(4): a(f"v_min_u32 v{P0+i}, -2, v{P0+i}")
    a(f"buffer_store_dwordx4 {vr(P0,4)}, v9, s[36:39], s53 offen sc1")
    st.stamp()
    le = a.newlabel("ep")
    a("s_or_b32 s51, s2, s59")
    a("s_cmp_eq_u32 s51, 0")
    a(f"s_cbranch_scc0 {le}")
    a(f"s_mov_b32 s51, {W_EP}")
    store_flag(a, "s51", 12)
    a.label(le)
    a("s_barrier")
    a("s_lshl_b32 s57, s57, 10")
    a("v_add_u32 v12, s57, v9")
    a(f"ds_write_b128 v12, {vr(P0,4)}")
    for d in range(1, 4):
        a(f"s_add_u32 s51, s41, {d}")
        a("s_and_b32 s51, s51, 3")
        a("s_lshl_b32 s51, s51, 3")
        a("s_add_u32 s51, s51, s58")
        a("s_add_u32 s51, s51, s59")
        a("s_lshl_b32 s51, s51, 10")
        a(f"s_add_u32 s{53+d}, s51, {W_OA}")
    a("s_waitcnt lgkmcnt(0)")
    a("s_barrier")
    a(f"s_mov_b32 s63, {SPIN}")
    a.label("a_poll")
    for d in range(1, 4):
        a(f"buffer_load_dwordx4 {vr(S0+4*(d-1),4)}, v9, s[36:39], s{53+d} offen sc1")
    a("s_waitcnt vmcnt(0)")
    a(f"v_max3_u32 v12, v{S0}, v{S0+1}, v{S0+2}")
    for i in range(3, 11, 2): a(f"v_max3_u32 v12, v12, v{S0+i}, v{S0+i+1}")
    a(f"v_max_u32 v12, v12, v{S0+11}")
    a("v_cmp_eq_u32 vcc, -1, v12")
    a("s_nop 1")
    a("s_cbranch_vccz a_got")
    a("s_sleep 1")
    a("s_sub_u32 s63, s63, 1")
    a("s_cmp_lg_u32 s63, 0")
    a("s_cbranch_scc1 a_poll")
    a.label("a_got")
    a("s_lshl_b32 s51, s59, 10")
    a("v_add_u32 v12, s51, v9")
    for d in range(1, 4):
        a(f"ds_write_b128 v12, {vr(S0+4*(d-1),4)} offset:{d*8192}")
    a("s_waitcnt lgkmcnt(0)")
    st.stamp()
    a("s_barrier")
    st.dump(None, 0)
    a("s_endpgm")
    HK[7] = [("w", 16)]
    for nm, rng in (("a_hk_lo", range(0, 4)), ("a_hk_hi", range(4, 8))):
        a.label(nm)
        for i in rng:
            if i not in HK: continue
            nx = a.newlabel("hk")
            a(f"s_cmp_eq_u32 s50, {i}")
            a(f"s_cbranch_scc0 {nx}")
            for kind, v in HK[i]:
                if kind == "w": lds_wait(a, C_ST + v, 4, 12, 51)
                elif kind == "s":
                    a("s_cmp_eq_u32 s43, 0")
                    a("s_cbranch_scc0 a_hk_done")
                    a("s_waitcnt vmcnt(0)")
                    lds_signal(a, C_ST + v)
                else: a(f"s_setprio {v}")
            a("s_branch a_hk_done")
            a.label(nx)
        a("s_branch a_hk_done")
    a.label("a_fallback")
    a("v_mov_b32 v2, v9")
    a("v_mov_b32 v12, 0xff800000")
    a("s_mov_b32 s50, 0")
    a.label("a_fb1")
    a(f"ds_read_b128 {vr(KB,4)}, v2")
    a("s_waitcnt lgkmcnt(0)")
    mfma32(a, S0, KB, Q0, "0")
    a("v_add_u32 v2, 2048, v2")
    rowmax16(a, 12, S0, init=True)
    a("s_add_u32 s50, s50, 1")
    a("s_cmp_lt_u32 s50, 64")
    a("s_cbranch_scc1 a_fb1")
    xhalf_max(a, 12, 13)
    a(f"v_sub_f32 v{C0}, 0, v12")
    for i in range(1, 16): a(f"v_mov_b32 v{C0+i}, v{C0}")
    for i in range(16): a(f"v_mov_b32 v{O0+i}, 0")
    a("v_mov_b32 v2, v9")
    a("v_lshlrev_b32 v3, 8, v7")
    a("v_lshl_add_u32 v3, v6, 4, v3")
    a("s_mov_b32 s50, 0")
    a.label("a_fb2")
    kvread(0, 0)
    a("s_waitcnt lgkmcnt(0)")
    mfma32(a, S0, KB, Q0, C0)
    a("v_add_u32 v2, 2048, v2")
    a("v_add_u32 v3, 2048, v3")
    E(S0, 0, 16)
    cvt8(a, P0, S0); cvt8(a, P0+4, S0+8)
    mfma32(a, O0, VB, P0, O0)
    mfma32(a, O0, VB+4, P0+4, O0)
    a("s_add_u32 s50, s50, 1")
    a("s_cmp_lt_u32 s50, 64")
    a("s_cbranch_scc1 a_fb2")
    a("s_branch a_norm")

def kv_job(a):
    X = 24; W = 88
    lv = a.newlabel("kv_v"); ld = a.newlabel("kv_d")
    def reads(s):
        a(f"ds_read_b128 {vr(X+4*s,4)}, v14 offset:{s*64}")
        for t in range(2):
            a(f"ds_read_b64_tr_b16 {vr(W+4*s+2*t,2)}, v15 offset:{L_WK + s*1024 + t*128}")
    a("s_cmp_eq_u32 s45, 0")
    a(f"s_cbranch_scc0 {lv}")
    for which in range(2):
        if which: a.label(lv)
        for s in range(4): reads(s)
        for s in range(16):
            if s + 4 < 16:
                reads(s + 4); a("s_waitcnt lgkmcnt(12)")
            else:
                a(f"s_waitcnt lgkmcnt({3*(15-s)})")
            if which == 0: mfma16(a, 20, W+4*s, X+4*s, "0" if s == 0 else 20)
            else:          mfma16(a, 20, X+4*s, W+4*s, "0" if s == 0 else 20)
        if not which: a(f"s_branch {ld}")
    a.label(ld)
    lds_signal(a, C_QD)
    a("v_cvt_pk_bf16_f32 v18, v20, v21")
    a("v_cvt_pk_bf16_f32 v19, v22, v23")
    a("buffer_store_dwordx2 v[18:19], v16, s[36:39], s52 offen sc1")
    a("s_waitcnt vmcnt(0)")
    store_flag(a, "s53", 18)

def kv_setup(a):
    a("v_and_b32 v12, 15, v1")
    a("v_lshrrev_b32 v13, 4, v1")
    a(f"v_mul_u32_u24 v14, {XP}, v12")
    a("v_lshl_add_u32 v14, v13, 4, v14")
    a(f"s_mul_i32 s51, s46, {16*XP}")
    a(f"s_add_u32 s51, s51, {L_XA}")
    a("v_add_u32 v14, s51, v14")
    a("v_lshlrev_b32 v15, 8, v13")
    a("v_lshl_add_u32 v15, v12, 3, v15")
    a("v_and_b32 v16, 1, v13")
    a("s_cmp_eq_u32 s45, 0")
    a("s_cselect_b32 s51, 9, 8")
    a("s_cselect_b32 s52, 8, 9")
    a("s_lshl_b32 s52, s46, s52")
    a("s_lshl_b32 s53, s45, 10")
    a("s_add_u32 s52, s52, s53")
    a("s_lshl_b32 s53, s40, 11")
    a("s_add_u32 s52, s52, s53")
    a("v_lshlrev_b32 v16, s51, v16")
    a("v_lshl_add_u32 v16, v12, 4, v16")
    a("v_lshrrev_b32 v17, 1, v13")
    a("v_lshl_add_u32 v16, v17, 3, v16")
    a("s_lshl_b32 s53, s40, 7")
    a("s_lshl_b32 s54, s41, 2")
    a("s_add_u32 s53, s53, s54")
    a(f"s_add_u32 s53, s53, {W_F1}")

def role_b(a, st):
    a("s_setprio 3")
    a("s_and_b32 s45, s41, 1")
    a("s_lshr_b32 s46, s41, 1")
    a("s_cmp_eq_u32 s45, 0")
    a(f"s_cselect_b32 s28, s{P_AWK}, s{P_AWV}")
    a(f"s_cselect_b32 s29, s{P_AWK+1}, s{P_AWV+1}")
    a("s_mov_b32 s30, 16384")
    a("s_mov_b32 s31, 0x20000")
    a("s_lshl_b32 s51, s26, 12")
    a(f"s_add_u32 m0, s51, {L_WK}")
    for q in range(4):
        a(f"buffer_load_dwordx4 v9, s[28:31], s51 offen offset:{q*1024} lds")
    lc = a.newlabel("ci")
    a("s_cmp_eq_u32 s26, 3")
    a(f"s_cbranch_scc0 {lc}")
    a("v_lshl_add_u32 v4, v1, 2, v10")
    a("v_mov_b32 v5, 0")
    a("ds_write_b32 v4, v5")
    a.label(lc)
    kv_setup(a)
    a("s_waitcnt vmcnt(0) lgkmcnt(0)")
    a(f"s_add_u32 s62, s62, {TAGC}")
    a("s_barrier")
    st.stamp()
    if DIAG: a("s_waitcnt lgkmcnt(0)")
    lk = a.newlabel("nokv")
    a("s_cmp_eq_u32 s26, 0")
    a(f"s_cbranch_scc0 {lk}")
    kv_job(a)
    a.label(lk)
    st.stamp()
    a("s_mov_b32 s58, 0")
    a("s_lshr_b32 s44, s40, 1")
    a("s_and_b32 s45, s3, 7")
    a("s_and_b32 s42, s26, 1")
    a("s_lshr_b32 s43, s26, 1")
    srd(a, 28, P_BX, 2 << 20)
    srd(a, 32, P_BWQKV, 512 * 3072)
    a("v_lshrrev_b32 v12, 3, v1")
    a("v_and_b32 v13, 7, v1")
    a("v_bfe_u32 v14, v1, 4, 1")
    a("v_lshlrev_b32 v14, 2, v14")
    a("v_xor_b32 v14, v14, v13")
    a("v_mul_u32_u24 v3, 3072, v12")
    a("v_lshl_add_u32 v3, v14, 4, v3")
    a(f"s_mul_i32 s48, s26, {16*3072}")
    a("s_lshl_b32 s51, s45, 7")
    a("s_add_u32 s48, s48, s51")
    a("v_lshrrev_b32 v14, 1, v12")
    a("v_xor_b32 v14, v14, v13")
    a("v_lshlrev_b32 v4, 10, v12")
    a("v_lshl_add_u32 v4, v14, 4, v4")
    a("v_xor_b32 v2, 64, v4")
    a("v_add_u32 v2, 7168, v2")
    a("s_lshl_b32 s49, s44, 16")
    a("s_lshl_b32 s51, s26, 14")
    a("s_add_u32 s49, s49, s51")
    a("s_lshl_b32 s51, s44, 16")
    a("s_sub_i32 s51, s51, 16384")
    a("s_max_i32 s51, s51, 0")
    a("s_lshl_b32 s52, s42, 13")
    a("s_add_u32 s47, s51, s52")
    a("s_lshl_b32 s52, s42, 6")
    a("v_xor_b32 v17, s52, v4")
    a("v_mul_u32_u24 v8, 3072, v7")
    a("v_bfe_u32 v14, v1, 2, 2")
    a("v_lshl_add_u32 v8, v14, 7, v8")
    a("v_bfe_u32 v14, v1, 3, 1")
    a("v_xor_b32 v14, s42, v14")
    a("v_lshl_add_u32 v8, v14, 6, v8")
    a("v_bfe_u32 v14, v1, 4, 1")
    a("v_lshl_add_u32 v8, v14, 5, v8")
    a("v_and_b32 v14, 3, v1")
    a("v_lshl_add_u32 v8, v14, 3, v8")
    a(f"v_add_u32 v8, {L_GB + GB_W}, v8")
    XM = 152; XH = 156
    a("v_bfe_u32 v14, v1, 1, 3")
    a("v_xor_b32 v14, v14, v7")
    a("v_lshlrev_b32 v14, 4, v14")
    a(f"v_lshl_add_u32 v{XM}, v6, 7, v14")
    a("v_and_b32 v15, 15, v1")
    a(f"v_lshl_add_u32 v{XH}, v15, 7, v14")
    for sp in range(1, 4):
        a(f"v_xor_b32 v{XM+sp}, {32*sp}, v{XM}")
        a(f"v_xor_b32 v{XH+sp}, {32*sp}, v{XH}")
    a("s_lshl_b32 s51, s43, 12")
    a(f"s_add_u32 s51, s51, {L_GB + GB_X}")
    for sp in range(4):
        a(f"v_add_u32 v{XM+sp}, s51, v{XM+sp}")
        a(f"v_add_u32 v{XH+sp}, {L_GB + GB_X + 8192}, v{XH+sp}")
    ACC = 20; WF = 84; XF = 108
    for i in range(64): a(f"v_mov_b32 v{ACC+i}, 0")
    def touch_w(i_expr_s):
        a("s_and_b32 s51, s44, 3")
        a("s_lshl_b32 s51, s51, 6")
        a(f"s_lshl_b32 s52, {i_expr_s}, 8")
        a("s_add_u32 s51, s51, s52")
        a("v_add_u32 v14, s51, v1")
        a("v_lshlrev_b32 v14, 10, v14")
        a("s_lshl_b32 s51, s45, 7")
        a("buffer_load_dword v160, v14, s[32:35], s51 offen")
    def touch2():
        l1 = a.newlabel("t2"); l2 = a.newlabel("t2d")
        a("s_cmp_lt_u32 s26, 2")
        a(f"s_cbranch_scc0 {l1}")
        a("s_add_u32 s53, s26, 4")
        touch_w("s53")
        a(f"s_branch {l2}")
        a.label(l1)
        a("s_lshl_b32 s51, s44, 16")
        a("s_lshl_b32 s52, s45, 13")
        a("s_add_u32 s51, s51, s52")
        a("s_lshl_b32 s52, s42, 12")
        a("s_add_u32 s51, s51, s52")
        a("v_lshlrev_b32 v14, 7, v6")
        a("buffer_load_dword v160, v14, s[28:31], s51 offen")
        a.label(l2)
    MM = 124; MH = 132
    a("v_lshlrev_b32 v5, 2, v7")
    a("v_sub_u32 v5, v6, v5")
    a("v_add_u32 v5, 18, v5")
    a("v_mov_b32 v14, 0x5555")
    a("v_mov_b32 v15, 0")
    a("v_lshlrev_b64 v[14:15], v5, v[14:15]")
    a("s_or_b32 s51, s44, s43")
    a("s_cmp_eq_u32 s51, 0")
    a("s_cselect_b32 s51, 0, -1")
    a("v_and_b32 v14, s51, v14")
    a("v_not_b32 v14, v14")
    a("v_not_b32 v15, v15")
    for r in range(16):
        idx = 8*(r >> 2) + (r & 3)
        a(f"v_bfe_i32 v{MM+r}, v15, {idx}, 1")
        a(f"v_lshlrev_b32 v{MM+r}, 23, v{MM+r}")
        if r >= 8:
            a(f"v_bfe_i32 v{MH+r}, v14, {idx}, 1")
            a(f"v_lshlrev_b32 v{MH+r}, 23, v{MH+r}")
    lds_wait(a, C_ST + 0, 8, 5, 51, sleep=2)
    st.stamp()
    a("s_mul_i32 s54, s26, 12288")
    a("s_add_u32 s54, s54, 32768")
    kv_dma(a, 54, 12)
    touch2()
    touch_w("s26")
    a("s_waitcnt vmcnt(2)")
    lds_signal(a, C_ST + 8)
    a("s_mul_i32 s56, s26, 6144")
    a("s_lshl_b32 s57, s26, 11")
    a("s_lshl_b32 s55, s26, 10")
    def issue_ops(buf):
        base = L_GB + buf * GB_SZ
        ops = []
        for gq in range(2):
            for t in range(3):
                def f(gq=gq, t=t):
                    if t == 0:
                        a(f"s_add_u32 m0, s56, {base + GB_W + gq*3072}")
                        if gq: a(f"s_add_u32 s52, s48, {8*3072}")
                    a(f"buffer_load_dwordx4 v3, s[32:35], {'s52' if gq else 's48'} offen offset:{t*1024} lds")
                ops.append(f)
        def fx0():
            a(f"s_add_u32 m0, s57, {base + GB_X}")
            a(f"s_add_u32 s48, s48, {64*3072}")
            a("buffer_load_dwordx4 v4, s[28:31], s49 offen lds")
        def fx1():
            a("buffer_load_dwordx4 v2, s[28:31], s49 offen offset:1024 lds")
            a("s_add_u32 s49, s49, 128")
        def fh():
            lh = a.newlabel("nh")
            a(f"s_cbranch_vccnz {lh}")
            a(f"s_add_u32 m0, s55, {base + GB_X + 8192}")
            a("buffer_load_dwordx4 v17, s[28:31], s47 offen lds")
            a("s_add_u32 s47, s47, 128")
            a.label(lh)
        return ops + [fx0, fx1, fh]
    def reads(buf, sp, fb):
        for t3 in range(3):
            for t in range(2):
                a(f"ds_read_b64_tr_b16 {vr(WF+12*fb+4*t3+2*t,2)}, v8 offset:{buf*GB_SZ + sp*6144 + t3*1024 + t*512}")
        a(f"ds_read_b128 {vr(XF+8*fb,4)}, v{XM+sp} offset:{buf*GB_SZ}")
        a(f"ds_read_b128 {vr(XF+8*fb+4,4)}, v{XH+sp} offset:{buf*GB_SZ}")
    def mm(fb, k):
        w = WF + 12*fb; x = XF + 8*fb
        if k == 0: mfma32(a, ACC, w, x, ACC)
        elif k == 1: mfma32(a, ACC+16, w+4, x, ACC+16)
        elif k == 2: mfma32(a, ACC+32, x, w+8, ACC+32)
        else:
            l1 = a.newlabel("m4"); l2 = a.newlabel("m4d")
            a(f"s_cbranch_vccnz {l1}")
            mfma32(a, ACC+48, w+4, x+4, ACC+48)
            a(f"s_branch {l2}")
            a.label(l1)
            mfma32(a, ACC+48, x+4, w+8, ACC+48)
            a.label(l2)
    a("s_cmp_eq_u32 s43, 0")
    a("s_cselect_b64 vcc, 0, -1")
    for i in range(20): a(f"v_mov_b32 v{WF+12+i if i < 12 else XF+8+i-12}, 0")
    a("s_waitcnt vmcnt(0)")
    for f in issue_ops(0): f()
    st.stamp()
    a("s_mov_b32 s50, 0")
    a.label("b_loop")
    for buf in range(2):
        mm(1, 0); mm(1, 1)
        a("s_waitcnt vmcnt(0)")
        a("s_add_u32 s58, s58, 4")
        lds_signal(a, C_BB)
        mm(1, 2)
        lds_wait(a, C_BB, "s58", 5, 51, sleep=1)
        reads(buf, 0, 0)
        mm(1, 3)
        ops = issue_ops(buf ^ 1)
        if buf == 1:
            a("s_cmp_eq_u32 s50, 3")
            a("s_cselect_b32 s49, 0x7f000000, s49")
            a("s_cselect_b32 s47, 0x7f000000, s47")
        ops[0](); ops[1]()
        oi = 2
        for sp in range(3):
            reads(buf, sp+1, (sp+1) & 1)
            a("s_waitcnt lgkmcnt(8)")
            for k in range(4):
                mm(sp & 1, k)
                if oi < len(ops): ops[oi](); oi += 1
        a("s_waitcnt lgkmcnt(0)")
    a("s_add_u32 s50, s50, 1")
    a("s_cmp_lt_u32 s50, 4")
    a("s_cbranch_scc1 b_loop")
    for k in range(4): mm(1, k)
    a("s_waitcnt vmcnt(0)")
    st.stamp()
    QF = 84; KF = 92; VF = 100; KH = 108; VH = 116
    cvt8(a, KF, ACC+16); cvt8(a, KF+4, ACC+24)
    cvt8(a, VF, ACC+32); cvt8(a, VF+4, ACC+40)
    cvt8(a, KH, ACC+48); cvt8(a, KH+4, ACC+56)
    a("s_lshl_b32 s51, s42, 12")
    a(f"s_add_u32 s51, s51, {L_BEX}")
    a("v_add_u32 v13, s51, v9")
    l1 = a.newlabel("b_w1"); l2 = a.newlabel("b_w2")
    a(f"s_cbranch_vccnz {l1}")
    a(f"ds_write_b128 v13, {vr(KF,4)}")
    a(f"ds_write_b128 v13, {vr(KF+4,4)} offset:1024")
    a(f"ds_write_b128 v13, {vr(VF+4,4)} offset:2048")
    a(f"s_branch {l2}")
    a.label(l1)
    a(f"ds_write_b128 v13, {vr(KH+4,4)} offset:3072")
    a.label(l2)
    bbar(a)
    a("s_mul_i32 s54, s26, 12288")
    a("s_add_u32 s54, s54, 81920")
    kv_dma(a, 54, 12)
    a("s_cmp_eq_u32 s43, 0")
    a(f"s_cselect_b32 s32, s{P_BWO}, s{P_AWO}")
    a(f"s_cselect_b32 s33, s{P_BWO+1}, s{P_AWO+1}")
    a("s_mov_b32 s34, 0x80000")
    a("s_lshl_b32 s51, s3, 1")
    a("s_add_u32 s51, s51, s42")
    a("s_lshl_b32 s51, s51, 13")
    a("v_lshlrev_b32 v14, 7, v1")
    a("buffer_load_dword v160, v14, s[32:35], s51 offen")
    l1 = a.newlabel("b_x1"); l2 = a.newlabel("b_x2")
    a(f"s_cbranch_vccnz {l1}")
    a(f"ds_read_b128 {vr(VH,4)}, v13 offset:3072")
    a(f"s_branch {l2}")
    a.label(l1)
    a(f"ds_read_b128 {vr(KH,4)}, v13")
    a(f"ds_read_b128 {vr(KH+4,4)}, v13 offset:1024")
    a(f"ds_read_b128 {vr(VH,4)}, v13 offset:2048")
    a.label(l2)
    lsn = a.newlabel("nosn")
    a("s_and_b32 s51, s40, 1")
    a("s_cmp_eq_u32 s51, s43")
    a(f"s_cbranch_scc0 {lsn}")
    a("s_lshl_b32 s51, s40, 2")
    a("s_add_u32 s51, s51, s41")
    a("s_lshl_b32 s51, s51, 1")
    a("s_add_u32 s51, s51, s42")
    a("s_lshl_b32 s51, s51, 12")
    a(f"s_add_u32 s51, s51, {W_OA}")
    for i in range(4): a(f"v_mov_b32 v{120+i}, -1")
    for i in range(4): a(f"buffer_store_dwordx4 v[120:123], v9, s[36:39], s51 offen offset:{i*1024} sc1")
    a.label(lsn)
    cvt8(a, QF, ACC); cvt8(a, QF+4, ACC+8)
    a("s_lshl_b32 s52, s44, 1")
    a("s_add_u32 s52, s52, s43")
    a("s_lshl_b32 s55, s52, 4")
    a("s_lshl_b32 s53, s45, 1")
    a("s_add_u32 s53, s53, s42")
    a("s_add_u32 s55, s55, s53")
    a("s_lshl_b32 s55, s55, 11")
    a(f"s_add_u32 s55, s55, {W_OB}")
    a("s_lshl_b32 s57, s52, 9")
    a("s_lshr_b32 s51, s53, 2")
    a("s_lshl_b32 s51, s51, 7")
    a("s_add_u32 s57, s57, s51")
    a("s_and_b32 s51, s53, 3")
    a("s_lshl_b32 s51, s51, 2")
    a("s_add_u32 s57, s57, s51")
    a(f"s_add_u32 s57, s57, {W_F3}")
    a("s_waitcnt lgkmcnt(0)")
    SM = 20; SH = 36; O = 52; PP = 68; T = 152
    a(f"s_mov_b32 s46, {CSCALE}")
    for hd in range(2):
        mfma32(a, SM, KF+4*hd, QF+4*hd, MM)
        mfma32(a, SH, KH+4*hd, QF+4*hd, MH)
        if hd == 1:
            a("s_waitcnt vmcnt(1)")
            lds_signal(a, C_ST + 12)
        vals = [SM+i for i in range(16)] + [SH+8+i for i in range(8)]
        a(f"v_max3_f32 v{T}, v{vals[0]}, v{vals[1]}, v{vals[2]}")
        for i in range(3, 23, 2):
            a(f"v_max3_f32 v{T}, v{T}, v{vals[i]}, v{vals[i+1]}")
        a(f"v_max_f32 v{T}, v{T}, v{vals[23]}")
        xhalf_max(a, T, T+1)
        a(f"v_mul_f32 v{T}, s46, v{T}")
        for v in vals: a(f"v_fma_f32 v{v}, v{v}, s46, -v{T}")
        for v in vals: a(f"v_exp_f32 v{v}, v{v}")
        a(f"v_add_f32 v{T+2}, v{vals[0]}, v{vals[1]}")
        for v in vals[2:]: a(f"v_add_f32 v{T+2}, v{T+2}, v{v}")
        cvt8(a, PP, SM); cvt8(a, PP+4, SM+8); cvt8(a, PP+8, SH+8)
        a(f"v_mov_b32 v{T+3}, v{T+2}")
        a(f"v_permlane32_swap_b32 v{T+2}, v{T+3}")
        mfma32(a, O, VF, PP, "0")
        mfma32(a, O, VF+4, PP+4, O)
        mfma32(a, O, VH, PP+8, O)
        a(f"v_add_f32 v{T+2}, v{T+2}, v{T+3}")
        a(f"v_rcp_f32 v{T+2}, v{T+2}")
        for i in range(8): a(f"v_mul_f32 v{O+8*hd+i}, v{O+8*hd+i}, v{T+2}")
        cvt8(a, T+4+4*hd, O+8*hd)
        a(f"buffer_store_dwordx4 {vr(T+4+4*hd,4)}, v9, s[36:39], s55 offen offset:{hd*1024} sc1")
    a("s_waitcnt vmcnt(0)")
    store_flag(a, "s57", 12)
    st.stamp()
    srd(a, 32, P_BWO, 512 * 1024)
    srd(a, 28, P_OUT, 4 << 20)
    a("s_lshl_b32 s47, s41, 8")
    a("s_lshl_b32 s51, s26, 6")
    a("s_add_u32 s47, s47, s51")
    a("v_lshrrev_b32 v3, 2, v1")
    a("v_lshlrev_b32 v3, 10, v3")
    a("v_and_b32 v4, 3, v1")
    a("v_lshl_add_u32 v3, v4, 4, v3")
    a("v_add_u32 v3, s47, v3")
    tr_base_wo(a, 8, 4)
    a("s_mul_i32 s56, s26, 7168")
    a(f"s_add_u32 s56, s56, {L_COMB}")
    a("v_add_u32 v8, s56, v8")
    a("v_lshlrev_b32 v4, 11, v6")
    a("v_lshl_add_u32 v4, v7, 4, v4")
    a("s_lshl_b32 s51, s40, 16")
    a("s_add_u32 s47, s47, s51")
    ACC = 12; OB = 28; WL = 40
    a("s_mov_b32 s48, 0")
    a("s_mov_b32 s50, 0")
    a.label("b_stage")
    bbar(a)
    R = 7
    def wissue(i):
        a(f"s_add_u32 m0, s56, {(i%R)*1024}")
        a(f"buffer_load_dwordx4 v3, s[32:35], s48 offen lds")
        a("s_add_u32 s48, s48, 16384")
        a("s_and_b32 s48, s48, 0x7ffff")
    for i in range(R): wissue(i)
    for i in range(32):
        a(f"s_waitcnt vmcnt({R-1 if i == 0 else min(R-2, 31-i)})")
        r = WL + 4*i
        for t in range(2): a(f"ds_read_b64_tr_b16 {vr(r+2*t,2)}, v8 offset:{(i%R)*1024 + t*512}")
        if i >= 1 and i + R - 1 < 32:
            a("s_waitcnt lgkmcnt(2)")
            wissue(i + R - 1)
    a("s_waitcnt lgkmcnt(0)")
    a("s_cmp_eq_u32 s50, 1")
    a("s_cbranch_scc1 b_tail")
    def run(lo, hi, addr, off0):
        o = lambda i: (i - off0) * 1024
        for i in range(lo, min(lo+2, hi)): a(f"ds_read_b128 {vr(OB+4*(i%3),4)}, {addr} offset:{o(i)}")
        for i in range(lo, hi):
            if i + 2 < hi:
                a(f"ds_read_b128 {vr(OB+4*((i+2)%3),4)}, {addr} offset:{o(i+2)}")
                a("s_waitcnt lgkmcnt(2)")
            else:
                a(f"s_waitcnt lgkmcnt({hi-1-i})")
            mfma32(a, ACC, WL+4*i, OB+4*(i%3), "0" if i == 0 else ACC)
    a("v_lshlrev_b32 v5, 7, v1")
    a("s_lshl_b32 s57, s40, 9")
    a(f"s_add_u32 s57, s57, {W_F3}")
    poll_flags(a, 5, "s57", 4, 28, sleep=8)
    st.stamp()
    a("s_lshl_b32 s49, s40, 15")
    a("s_lshl_b32 s51, s26, 12")
    a("s_add_u32 s49, s49, s51")
    a(f"s_add_u32 s49, s49, {W_OB}")
    a(f"s_add_u32 s46, s51, {L_COMB}")
    a(f"v_add_u32 v0, {L_COMB}, v9")
    for rnd in range(2):
        bbar(a)
        a("s_mov_b32 m0, s46")
        for q in range(4):
            a(f"buffer_load_dwordx4 v9, s[36:39], s49 offen offset:{q*1024} sc1 lds")
        a("s_add_u32 s49, s49, 16384")
        a("s_waitcnt vmcnt(0)")
        bbar(a)
        run(16*rnd, 16*rnd+16, "v0", 16*rnd)
    cvt8(a, 28, ACC); cvt8(a, 32, ACC+8)
    a("buffer_store_dwordx4 v[28:31], v4, s[28:31], s47 offen offset:1024")
    a("buffer_store_dwordx4 v[32:35], v4, s[28:31], s47 offen offset:1056")
    srd(a, 32, P_AWO, 512 * 1024)
    a("s_lshl_b32 s48, s41, 17")
    a("s_mov_b32 s50, 1")
    st.stamp()
    a("s_branch b_stage")
    a.label("b_tail")
    lds_signal(a, C_ST + 16)
    st.stamp()
    a("s_barrier")
    a("s_barrier")
    a("s_barrier")
    if DIAG: a("s_waitcnt lgkmcnt(0)")
    run(0, 8, "v9", 0)
    a("s_barrier")
    run(8, 32, "v9", 0)
    cvt8(a, 28, ACC); cvt8(a, 32, ACC+8)
    a("buffer_store_dwordx4 v[28:31], v4, s[28:31], s47 offen")
    a("buffer_store_dwordx4 v[32:35], v4, s[28:31], s47 offen offset:32")
    if DIAG:
        a("s_waitcnt vmcnt(0)")
        st.stamp()
        st.dump(None, 0)

def kernel():
    a = Asm(); n = NAME + "_kernel"
    a.label(n)
    a("s_cmp_ge_u32 s2, 256")
    a("s_cbranch_scc1 k_exit")
    load_ptrs(a)
    sta = Stamps(a, DIAG, real='--cyc' not in sys.argv); stb = Stamps(a, DIAG, real='--cyc' not in sys.argv)
    sta.stamp(); stb.n = sta.n
    a("v_and_b32 v1, 63, v0")
    a("v_lshrrev_b32 v2, 6, v0")
    a("v_readfirstlane_b32 s26, v2")
    a("s_and_b32 s27, s2, 7")
    a("s_lshr_b32 s3, s2, 3")
    a("s_lshl_b32 s40, s27, 3")
    a("s_lshr_b32 s41, s3, 2")
    a("s_add_u32 s40, s40, s41")
    a("s_and_b32 s41, s3, 3")
    a("v_and_b32 v6, 31, v1")
    a("v_lshrrev_b32 v7, 5, v1")
    a("v_lshlrev_b32 v9, 4, v1")
    a(f"v_mov_b32 v10, {L_CNT}")
    a("v_mov_b32 v11, 1")
    a("s_waitcnt lgkmcnt(0)")
    a(f"s_load_dword s62, s[{P_WS}:{P_WS+1}], {W_EP}")
    srd(a, 36, P_WS, W_USED)
    a("s_cmp_lt_u32 s26, 4")
    a("s_cbranch_scc1 role_b")
    role_a(a, sta)
    a.label("role_b")
    role_b(a, stb)
    a.label("k_exit")
    a("s_endpgm")
    return (n, a, 256, 768, LDS_SIZE, 168)

if __name__ == "__main__":
    write_file(sys.argv[1], [kernel()])
```

```python
import re, sys

REG_RE = re.compile(r'^(-|\|)?(abs\()?(-)?([vsa])(?:(\d+)|\[(\d+):(\d+)\])\)?\|?$')

def parse_reg(tok):
    tok = tok.strip()
    if tok in ('vcc',): return [('s', 106), ('s', 107)]
    if tok == 'vcc_lo': return [('s', 106)]
    if tok == 'vcc_hi': return [('s', 107)]
    if tok == 'exec': return [('s', 126), ('s', 127)]
    if tok == 'exec_lo': return [('s', 126)]
    if tok == 'exec_hi': return [('s', 127)]
    if tok == 'm0': return [('s', 124)]
    m = REG_RE.match(tok)
    if not m: return []
    k = m.group(4)
    if m.group(5) is not None:
        return [(k, int(m.group(5)))]
    return [(k, i) for i in range(int(m.group(6)), int(m.group(7)) + 1)]

TRANS = ('v_exp_f32', 'v_log_f32', 'v_rcp_f32', 'v_rsq_f32', 'v_sqrt_f32', 'v_sin_f32', 'v_cos_f32', 'v_exp_f16', 'v_rcp_iflag_f32')

class Ins:
    def __init__(self, text):
        self.text = text
        t = text.split(';')[0].strip()
        self.label = None
        self.op = None
        self.rd = set(); self.wr = set()
        self.srcC = set(); self.srcAB = set()
        self.kind = 'none'
        self.states = 0
        self.target = None
        if not t: return
        if t.endswith(':'):
            self.label = t[:-1]; self.kind = 'label'; return
        if t.startswith('.'):
            self.kind = 'dir'; return
        parts = t.split(None, 1)
        op = parts[0]; self.op = op
        rest = parts[1] if len(parts) > 1 else ''
        ops = []
        mods = []
        for i, o in enumerate(rest.split(',')):
            o = o.strip()
            if not o: continue
            w = o.split()
            ops.append(w[0]); mods += w[1:]
        self.ops = ops; self.mods = mods
        self.states = 1
        base = re.sub(r'_(e32|e64|sdwa|dpp)$', '', op)
        self.base = base
        R = [parse_reg(o) for o in ops]
        if op == 's_nop':
            self.kind = 'nop'; self.states = int(ops[0], 0) + 1
        elif op.startswith('s_waitcnt'):
            self.kind = 'wait'
            self.vm = None; self.lgkm = None
            m = re.search(r'vmcnt\((\d+)\)', t);   self.vm = int(m.group(1)) if m else None
            m = re.search(r'lgkmcnt\((\d+)\)', t); self.lgkm = int(m.group(1)) if m else None
        elif op in ('s_branch',) or op.startswith('s_cbranch'):
            self.kind = 'branch'; self.target = ops[0]
        elif op == 's_endpgm':
            self.kind = 'end'
        elif op in ('s_barrier', 's_setprio', 's_sleep', 's_sethalt'):
            self.kind = 'salu'
        elif op.startswith('s_load') or op.startswith('s_buffer_load') or op in ('s_memtime', 's_memrealtime'):
            self.kind = 'smem'; self.wr = set(R[0])
            for r in R[1:]: self.rd |= set(r)
        elif op.startswith('s_cmp') or op.startswith('s_bitcmp'):
            self.kind = 'salu'
            for r in R: self.rd |= set(r)
        elif op.startswith('s_'):
            self.kind = 'salu'; self.wr = set(R[0]) if R else set()
            for r in R[1:]: self.rd |= set(r)
            if 'saveexec' in op:
                self.wr |= {('s', 126), ('s', 127)}; self.rd |= {('s', 126), ('s', 127)}
            if op in ('s_addk_i32', 's_mulk_i32'): self.rd |= set(R[0])
        elif op.startswith('v_mfma'):
            self.kind = 'mfma'; self.wr = set(R[0])
            self.srcAB = set(R[1]) | set(R[2]); self.srcC = set(R[3])
            self.rd = self.srcAB | self.srcC
            self.dlist = R[0]; self.clist = R[3]
            self.passes = 8 if '32x32' in op else 4
        elif op.startswith('v_'):
            self.kind = 'valu'
            if base.startswith('v_cmp'):
                self.wr = set(R[0])
                for r in R[1:]: self.rd |= set(r)
            elif base.startswith('v_permlane') and 'swap' in base:
                self.wr = set(R[0]) | set(R[1]); self.rd = set(R[0]) | set(R[1])
            elif base in ('v_add_co_u32', 'v_sub_co_u32', 'v_addc_co_u32', 'v_subb_co_u32', 'v_subrev_co_u32'):
                self.wr = set(R[0]) | set(R[1])
                for r in R[2:]: self.rd |= set(r)
            else:
                self.wr = set(R[0])
                for r in R[1:]: self.rd |= set(r)
                if base in ('v_fmac_f32', 'v_dot2c_f32_bf16', 'v_pk_fmac_f16', 'v_writelane_b32') or 'UNUSED_PRESERVE' in t or op.endswith('_dpp') or any(m.startswith(('row_', 'quad_perm', 'wave_')) for m in mods):
                    self.rd |= set(R[0])
            self.trans = base in TRANS
            self.dpp = op.endswith('_dpp') or any(m.startswith(('row_', 'quad_perm', 'wave_')) for m in mods)
        elif op.startswith('ds_'):
            self.kind = 'ds'
            if base.startswith(('ds_read', 'ds_bpermute', 'ds_permute', 'ds_swizzle')) or '_rtn' in base:
                self.wr = set(R[0])
                for r in R[1:]: self.rd |= set(r)
            else:
                for r in R: self.rd |= set(r)
        elif op.startswith(('buffer_', 'global_')):
            self.kind = 'vmem'
            self.lds = 'lds' in mods or '_lds_' in op
            if base in ('buffer_inv', 'buffer_wbl2'):
                pass
            elif ('load' in base) and not self.lds:
                self.wr = set(R[0])
                for r in R[1:]: self.rd |= set(r)
                if 'd16' in base: self.rd |= set(R[0])
            elif 'atomic' in base and 'sc0' in mods:
                if base.startswith('buffer'):
                    self.wr = set(R[0][:1])
                    for r in R: self.rd |= set(r)
                else:
                    self.wr = set(R[0])
                    for r in R[1:]: self.rd |= set(r)
            else:
                for r in R: self.rd |= set(r)
            if self.lds: self.rd |= {('s', 124)}
            self.widestore = set()
            if 'store' in base and base.endswith(('x3', 'x4')):
                self.widestore = set(R[0]) if base.startswith('buffer') else set(R[1])
        else:
            raise ValueError('unknown op ' + text)

def isv(s): return {r for r in s if r[0] in 'va'}
def iss(s): return {r for r in s if r[0] == 's'}

def required(p, c):
    need = 0
    if p.kind == 'valu':
        vw = isv(p.wr); sw = iss(p.wr)
        if c.kind == 'mfma' and (vw & c.rd): need = max(need, 2)
        if c.kind == 'valu':
            if p.trans and not c.trans and (vw & c.rd): need = max(need, 1)
            if c.base in ('v_readfirstlane_b32', 'v_readlane_b32') and (vw & c.rd): need = max(need, 1)
            if c.base.startswith('v_permlane') and (vw & c.rd): need = max(need, 2)
            if c.dpp and (vw & c.rd): need = max(need, 2)
            if sw & c.rd:
                need = max(need, 4 if c.base in ('v_readlane_b32', 'v_writelane_b32') else 2)
            if c.base == 'v_cndmask_b32' and len(c.ops) == 3 and (('s', 106) in sw): need = max(need, 2)
            if ('sdwa' in p.op or any(m.startswith('op_sel') for m in p.mods)) and (vw & (c.rd | c.wr)): need = max(need, 1)
        if c.kind == 'vmem' and (sw & c.rd): need = max(need, 5)
        if c.kind in ('salu', 'branch', 'smem') and (sw & c.rd): need = max(need, 1)
        if p.trans and c.kind in ('vmem', 'ds') and (vw & c.rd): need = max(need, 1)
    if p.kind == 'mfma':
        P = p.passes
        if c.kind == 'mfma':
            if p.wr & c.srcAB: need = max(need, P + 4)
            if p.wr & c.srcC:
                if not (p.dlist == c.clist and p.passes == c.passes): need = max(need, P + 2)
            if (p.wr & c.wr) and not (p.wr & c.srcC): need = max(need, P + 2)
        if c.kind == 'valu':
            if p.wr & (c.rd | c.wr): need = max(need, P + 4)
            if p.srcC & c.wr: need = max(need, P - 1)
        if c.kind in ('vmem', 'ds'):
            if p.wr & (c.rd | c.wr): need = max(need, P + 4)
            if p.srcC & c.wr: need = max(need, P - 1)
    if p.kind == 'vmem' and p.widestore:
        if c.kind == 'valu' and (p.widestore & c.wr): need = max(need, 2)
        if c.kind in ('mfma', 'vmem', 'ds') and (p.widestore & c.wr): need = max(need, 1)
    if p.kind == 'salu' and (('s', 124) in p.wr):
        if c.kind == 'vmem' and c.lds: need = max(need, 1)
        if c.kind == 'ds' and 'addtid' in c.base: need = max(need, 1)
    return need

class Asm:
    def __init__(self):
        self.ins = []
        self.uid = 0
    def __call__(self, text):
        for l in text.split('\n'):
            l = l.strip()
            if l: self.ins.append(Ins(l))
    def label(self, name): self(name + ':')
    def newlabel(self, p='L'):
        self.uid += 1
        return f'{p}_{self.uid}'
    def _succ(self, i, labels):
        x = self.ins[i]
        if x.kind == 'end': return []
        if x.kind == 'branch':
            t = labels[x.target]
            return [t] if x.op == 's_branch' else [t, i + 1]
        return [i + 1] if i + 1 < len(self.ins) else []
    def pad_hazards(self, verbose=False):
        n_ins = 0
        while True:
            labels = {x.label: i for i, x in enumerate(self.ins) if x.label}
            fix = None
            for i, p in enumerate(self.ins):
                if p.kind not in ('valu', 'mfma', 'vmem', 'salu'): continue
                if p.kind == 'salu' and ('s', 124) not in p.wr: continue
                if p.kind == 'vmem' and not p.widestore: continue
                maxd = 13 if p.kind == 'mfma' else 5
                stack = [(j, 0) for j in self._succ(i, labels)]
                seen = {}
                while stack:
                    j, d = stack.pop()
                    if d >= maxd: continue
                    if seen.get(j, 99) <= d: continue
                    seen[j] = d
                    c = self.ins[j]
                    if c.op is not None:
                        r = required(p, c)
                        if r > d:
                            fix = (j, r - d, i); break
                    for k in self._succ(j, labels): stack.append((k, d + c.states))
                if fix: break
            if not fix: break
            j, n, i = fix
            if verbose: print(f'  pad {n} before [{self.ins[j].text}] (producer [{self.ins[i].text}])', file=sys.stderr)
            prev = self.ins[j-1]
            if prev.kind == 'nop' and getattr(prev, 'auto', False) and prev.states + n <= 16:
                x = Ins(f's_nop {prev.states + n - 1}'); x.auto = True; self.ins[j-1] = x
            else:
                x = Ins(f's_nop {n-1}'); x.auto = True; self.ins.insert(j, x)
            n_ins += 1
        return n_ins
    def text(self):
        out = []
        for x in self.ins:
            if x.kind in ('label', 'dir'): out.append(x.text)
            else: out.append('    ' + x.text)
        return '\n'.join(out) + '\n'

    def check_waits(self, entry_label, maxpaths=200000):
        labels = {x.label: i for i, x in enumerate(self.ins) if x.label}
        errs = set()
        start = (labels[entry_label], (), ())
        stack = [start]; seen = {start}
        while stack:
            pc, vm, lg = stack.pop()
            while True:
                x = self.ins[pc]
                if x.op is not None:
                    touched = x.rd | x.wr
                    for q, nm in ((vm, 'vm'), (lg, 'lgkm')):
                        for (src, regs) in q:
                            if regs & touched:
                                if not (regs & x.rd) and ((nm == 'vm' and x.kind == 'vmem') or (nm == 'lgkm' and x.kind == 'ds' and self.ins[src].kind == 'ds')):
                                    continue
                                if x.kind == 'smem' and x.wr <= {('s', 94), ('s', 95)} and regs <= {('s', 94), ('s', 95)}: continue
                                errs.add((pc, src, nm))
                    if x.kind == 'wait':
                        if x.vm is not None and len(vm) > x.vm: vm = vm[len(vm) - x.vm:] if x.vm else ()
                        if x.lgkm is not None:
                            if any(self.ins[s].kind == 'smem' for s, _ in lg):
                                if x.lgkm == 0: lg = ()
                            elif len(lg) > x.lgkm: lg = lg[len(lg) - x.lgkm:] if x.lgkm else ()
                    elif x.kind == 'vmem':
                        vm = (vm + ((pc if x.wr else 0, frozenset(x.wr)),))[-64:]
                        while vm and not vm[0][1]: vm = vm[1:]
                    elif x.kind in ('ds', 'smem'):
                        lg = (lg + ((pc if x.wr else 0, frozenset(x.wr)),))[-32:]
                        while lg and not lg[0][1]: lg = lg[1:]
                s = self._succ(pc, labels)
                if not s: break
                if len(s) == 1 and x.kind != 'branch':
                    pc = s[0]; continue
                for t in s:
                    st = (t, vm, lg)
                    if st not in seen:
                        seen.add(st); stack.append(st)
                        if len(seen) > maxpaths: raise RuntimeError('too many states')
                break
        for pc, src, nm in sorted(errs)[:12]:
            print(f'WAITERR({nm}): [{self.ins[pc].text}] touches pending result of [{self.ins[src].text}]', file=sys.stderr)
        return len(errs)
```

```python
import sys
from common import *
DIAG = "--diag" in sys.argv
VAR = dict((x[2:].split("=")+[1])[:2] for x in sys.argv if x.startswith("-V"))

W_KV = 0
W_F1 = 0x20000
W_F2 = 0x28000
W_F3 = 0x30000
W_EP = 0x3F000
W_OA = 1 << 20
W_OB = 3 << 20
W_HALO = 5 << 20
W_OF = 10 << 20
W_USED = 16 << 20
L_XA = 16384
L_WK = 0
WQ_SLOT = [49664 + 16384*(i % 6) for i in range(8)]
L_GB = 89600
GB_W, GB_X, GB_SZ = 0, 24576, 32896
L_COMB = 131072
L_QX = 155392
L_BEX = 155392
L_CNT = 163584
LDS_SIZE = 163840
C_BB, C_ST, C_EX, C_XA, C_QB, C_QC, C_QD, C_XD = 4, 16, 40, 72, 76, 92, 96, 100
C_ISS, C_QR = 8, 12
C_PR, C_CB, C_OF = 104, 112, 144
L_CB = 0
L_OA = 24576
BIAS = VAR.get("bias", "0xc2c80000")
VSC = 40
MAP81 = 'map24' not in VAR
XP = 1040
TAGC = 0x9E3779B9 - (1 << 32)
SPIN = 40000

def cvt8(a, dst, src):
    for i in range(4):
        a(f"v_cvt_pk_bf16_f32 v{dst+i}, v{src+2*i}, v{src+2*i+1}")

def tr_base32(a, dst, tmp):
    a(f"v_lshlrev_b32 v{dst}, 9, v7")
    a(f"v_bfe_u32 v{tmp}, v1, 2, 2")
    a(f"v_lshl_add_u32 v{dst}, v{tmp}, 6, v{dst}")
    a(f"v_bfe_u32 v{tmp}, v1, 4, 1")
    a(f"v_lshl_add_u32 v{dst}, v{tmp}, 5, v{dst}")
    a(f"v_and_b32 v{tmp}, 3, v1")
    a(f"v_lshl_add_u32 v{dst}, v{tmp}, 3, v{dst}")

def tr_base_wo(a, dst, tmp):
    a(f"v_lshlrev_b32 v{dst}, 8, v7")
    a(f"v_bfe_u32 v{tmp}, v1, 2, 2")
    a(f"v_lshl_add_u32 v{dst}, v{tmp}, 6, v{dst}")
    a(f"v_bfe_u32 v{tmp}, v1, 4, 1")
    a(f"v_lshl_add_u32 v{dst}, v{tmp}, 5, v{dst}")
    a(f"v_and_b32 v{tmp}, 1, v1")
    a(f"v_lshl_add_u32 v{dst}, v{tmp}, 4, v{dst}")
    a(f"v_bfe_u32 v{tmp}, v1, 1, 1")
    a(f"v_lshl_add_u32 v{dst}, v{tmp}, 3, v{dst}")

def lds_signal(a, off, addr="v10"):
    a("s_mov_b64 exec, 1")
    a(f"ds_add_u32 {addr}, v11 offset:{off}")
    a("s_mov_b64 exec, -1")
def lds_wait(a, off, val, tmp, stmp, addr="v10", sleep=1):
    l = a.newlabel("lw"); d = a.newlabel("lwd")
    a.label(l)
    a(f"ds_read_b32 v{tmp}, {addr} offset:{off}")
    a("s_waitcnt lgkmcnt(0)")
    a(f"v_readfirstlane_b32 s{stmp}, v{tmp}")
    a(f"s_cmp_ge_u32 s{stmp}, {val}")
    a(f"s_cbranch_scc1 {d}")
    if sleep: a(f"s_sleep {sleep}")
    a(f"s_branch {l}")
    a.label(d)
def bbar(a, tmp=5):
    a("s_add_u32 s58, s58, 4")
    lds_signal(a, C_BB)
    lds_wait(a, C_BB, "s58", tmp, 51, sleep=2)

def poll_flags(a, voff, soff, nl, t, sleep=2, width=4):
    l = a.newlabel("pf"); d = a.newlabel("pfd")
    a(f"s_mov_b32 s63, {SPIN}")
    a(f"s_mov_b64 exec, {(1 << nl) - 1}")
    a.label(l)
    if width == 4:
        a(f"buffer_load_dwordx4 {vr(t,4)}, v{voff}, s[36:39], {soff} offen sc1")
        a("s_waitcnt vmcnt(0)")
        for i in range(4): a(f"v_xor_b32 v{t+i}, s62, v{t+i}")
        a(f"v_or3_b32 v{t}, v{t}, v{t+1}, v{t+2}")
        a(f"v_or_b32 v{t}, v{t}, v{t+3}")
    else:
        a(f"buffer_load_dword v{t}, v{voff}, s[36:39], {soff} offen sc1")
        a("s_waitcnt vmcnt(0)")
        a(f"v_xor_b32 v{t}, s62, v{t}")
    a(f"v_cmp_ne_u32 vcc, 0, v{t}")
    a("s_nop 1")
    a(f"s_cbranch_vccz {d}")
    a(f"s_sleep {sleep}")
    a("s_sub_u32 s63, s63, 1")
    a("s_cmp_lg_u32 s63, 0")
    a(f"s_cbranch_scc1 {l}")
    a.label(d)
    a("s_mov_b64 exec, -1")

def store_flag(a, soff, t):
    a(f"v_mov_b32 v{t}, s62")
    a(f"v_mov_b32 v{t+1}, 0")
    a("s_mov_b64 exec, 1")
    a(f"buffer_store_dword v{t}, v{t+1}, s[36:39], {soff} offen sc1")
    a("s_mov_b64 exec, -1")

def rowmax16(a, dst, S, init=None):
    if init is None:
        a(f"v_max3_f32 v{dst}, v{S}, v{S+1}, v{S+2}")
        for i in range(3, 15, 2): a(f"v_max3_f32 v{dst}, v{dst}, v{S+i}, v{S+i+1}")
        a(f"v_max_f32 v{dst}, v{dst}, v{S+15}")
    else:
        for i in range(0, 16, 2): a(f"v_max3_f32 v{dst}, v{dst}, v{S+i}, v{S+i+1}")
def xhalf_max(a, dst, tmp):
    a(f"v_mov_b32 v{tmp}, v{dst}")
    a(f"v_permlane32_swap_b32 v{dst}, v{tmp}")
    a(f"v_max_f32 v{dst}, v{dst}, v{tmp}")

def kv_dma(a, sreg, n):
    for q in range(n):
        if (q & 3) == 0:
            a(f"s_mov_b32 m0, s{sreg}")
            a("s_lshl_b32 s51, s3, 12")
            a(f"s_add_u32 s51, s51, s{sreg}")
            a("s_and_b32 s51, s51, 0x1ffff")
        a(f"buffer_load_dwordx4 v9, s[36:39], s51 offen offset:{(q&3)*1024} sc1 lds")
        if (q & 3) == 3 and q + 1 < n: a(f"s_add_u32 s{sreg}, s{sreg}, 4096")

def kv_job(a, st=None):
    X = 24; W = 88
    lv = a.newlabel("kv_v"); ld = a.newlabel("kv_d")
    def reads(s):
        a(f"ds_read_b128 {vr(X+4*s,4)}, v14 offset:{s*64}")
        for t in range(2):
            a(f"ds_read_b64_tr_b16 {vr(W+4*s+2*t,2)}, v15 offset:{L_WK + s*1024 + t*128}")
    a("s_cmp_eq_u32 s45, 0")
    a(f"s_cbranch_scc0 {lv}")
    for which in range(2):
        if which: a.label(lv)
        for s in range(4): reads(s)
        for s in range(16):
            if s + 4 < 16:
                reads(s + 4); a("s_waitcnt lgkmcnt(12)")
            else:
                a(f"s_waitcnt lgkmcnt({3*(15-s)})")
            if which == 0: mfma16(a, 20, W+4*s, X+4*s, "0" if s == 0 else 20)
            else:          mfma16(a, 20, X+4*s, W+4*s, "0" if s == 0 else 20)
        if not which: a(f"s_branch {ld}")
    a.label(ld)
    lds_signal(a, C_XD)
    if st: st.stamp()
    a("s_cmp_eq_u32 s45, 0")
    a(f"s_cselect_b32 s51, 1.0, {hex((127 + VSC) << 23)}")
    for i in range(4): a(f"v_mul_f32 v{20+i}, s51, v{20+i}")
    a("v_cvt_pk_bf16_f32 v18, v20, v21")
    a("v_cvt_pk_bf16_f32 v19, v22, v23")
    a("buffer_store_dwordx2 v[18:19], v16, s[36:39], s52 offen sc1")
    a("s_waitcnt vmcnt(0)")
    store_flag(a, "s53", 18)

def kv_setup(a):
    a("v_and_b32 v12, 15, v1")
    a("v_lshrrev_b32 v13, 4, v1")
    a(f"v_mul_u32_u24 v14, {XP}, v12")
    a("v_lshl_add_u32 v14, v13, 4, v14")
    a(f"s_mul_i32 s51, s46, {16*XP}")
    a(f"s_add_u32 s51, s51, {L_XA}")
    a("v_add_u32 v14, s51, v14")
    a("v_lshlrev_b32 v15, 8, v13")
    a("v_lshl_add_u32 v15, v12, 3, v15")
    a("v_and_b32 v16, 1, v13")
    a("s_cmp_eq_u32 s45, 0")
    a("s_cselect_b32 s51, 9, 8")
    a("s_cselect_b32 s52, 8, 9")
    a("s_lshl_b32 s52, s46, s52")
    a("s_lshl_b32 s53, s45, 10")
    a("s_add_u32 s52, s52, s53")
    a("s_lshl_b32 s53, s40, 11")
    a("s_add_u32 s52, s52, s53")
    a("v_lshlrev_b32 v16, s51, v16")
    a("v_lshl_add_u32 v16, v12, 4, v16")
    a("v_lshrrev_b32 v17, 1, v13")
    a("v_lshl_add_u32 v16, v17, 3, v16")
    a("s_lshl_b32 s53, s40, 7")
    a("s_lshl_b32 s54, s41, 2")
    a("s_add_u32 s53, s53, s54")
    a(f"s_add_u32 s53, s53, {W_F1}")

def stouch_setup(a, slot, bw, bx):
    a("s_lshr_b32 s51, s3, 2")
    a(f"s_lshl_b32 s54, {slot}, 3")
    a("s_add_u32 s51, s51, s54")
    a("s_lshl_b32 s51, s51, 10")
    a("s_lshl_b32 s54, s27, 7")
    a("s_add_u32 s51, s51, s54")
    a(f"s_add_u32 s{bw}, s{P_BWQKV}, s51")
    a(f"s_addc_u32 s{bw+1}, s{P_BWQKV+1}, 0")
    a(f"s_add_u32 s{bw+2}, s{bw}, {24*32768}")
    a(f"s_addc_u32 s{bw+3}, s{bw+1}, 0")
    a("s_lshr_b32 s51, s40, 1")
    a("s_lshl_b32 s51, s51, 16")
    a("s_and_b32 s54, s3, 3")
    a("s_lshl_b32 s54, s54, 14")
    a("s_add_u32 s51, s51, s54")
    a(f"s_lshl_b32 s54, {slot}, 12")
    a("s_add_u32 s51, s51, s54")
    a(f"s_add_u32 s{bx}, s{P_BX}, s51")
    a(f"s_addc_u32 s{bx+1}, s{P_BX+1}, 0")
def stouch_list(chunks, bw, bx):
    l = []
    for c in chunks:
        for r in range(4): l.append((f"s[{bx}:{bx+1}]", r*1024 + c*128))
        for i in range(6):
            m = c*6 + i
            l.append((f"s[{bw}:{bw+1}]", m*32768) if m < 24 else (f"s[{bw+2}:{bw+3}]", (m-24)*32768))
    return l

def role_a(a, st):
    FINE = "fine" in VAR
    class F:
        def stamp(self):
            if FINE: st0.stamp()
    st0 = st; fs = F()
    if FINE:
        class N:
            n = 0
            def stamp(self): pass
            def dump(self, *x): st0.dump(*x)
        st = N()
    a("s_sub_u32 s59, s26, 4")
    a("s_and_b32 s42, s59, 3")
    a("s_lshr_b32 s43, s59, 2")
    srd(a, 28, P_AX, 2 << 20)
    a("s_lshr_b32 s46, s41, 1")
    for k in range(2):
        if k: a("s_xor_b32 s46, s46, 1")
        a("s_lshl_b32 s49, s46, 4")
        a("s_lshl_b32 s48, s59, 1")
        a("s_add_u32 s49, s49, s48")
        a("s_lshl_b32 s48, s40, 5")
        a("s_add_u32 s48, s48, s49")
        a("s_lshl_b32 s48, s48, 10")
        a(f"s_mul_i32 s49, s49, {XP}")
        for q in range(2):
            a(f"s_add_u32 m0, s49, {L_XA + q*XP - q*1024}")
            a(f"buffer_load_dwordx4 v9, s[28:31], s48 offen offset:{q*1024} lds")
    a("s_barrier")
    srd(a, 32, P_AWQ, 512 * 1024)
    S0, S1, O0, O1, C0, C1, P0, P1, Q0, Q1, KB, VB = 16, 32, 48, 64, 80, 96, 112, 120, 128, 132, 136, 144
    a(f"s_bfe_u32 s55, s3, {0x30002 if MAP81 else 0x30001}")
    a("s_cmp_eq_u32 s43, 0")
    a("s_cbranch_scc0 a_kh1")
    def early_init():
        for i in range(32): a(f"v_mov_b32 v{O0+i}, 0")
        a("s_lshl_b32 s56, s43, 11")
        a("v_add_u32 v2, s56, v9")
        a("v_lshlrev_b32 v3, 8, v7")
        a("v_lshl_add_u32 v3, v6, 4, v3")
        a("v_add_u32 v3, s56, v3")
        a("s_mov_b32 s60, 0x0000ffff")
        a("s_mov_b32 s61, 0x0000ffff")
        a("v_and_b32 v14, 27, v6")
        a("v_cmp_eq_u32 vcc, 16, v14")
        a(f"v_mov_b32 v13, {hex(((127 + VSC) << 7) * 0x10001)}")
        a("v_cndmask_b32 v14, 0, v13, vcc")
        for i in range(8): a(f"v_mov_b32 v{VB+i}, v14")
    XF = 16; WF = 144; ACC = 152
    a(f"v_mul_u32_u24 v4, {XP}, v6")
    a("v_lshl_add_u32 v4, v7, 4, v4")
    a("v_lshlrev_b32 v8, 11, v7")
    a("v_bfe_u32 v5, v1, 2, 2")
    a("v_lshl_add_u32 v8, v5, 8, v8")
    a("v_xor_b32 v5, s42, v5")
    a("v_lshl_add_u32 v8, v5, 6, v8")
    a("v_bfe_u32 v5, v1, 4, 1")
    a("v_lshl_add_u32 v8, v5, 5, v8")
    a("v_and_b32 v5, 3, v1")
    a("v_lshl_add_u32 v8, v5, 3, v8")
    a(f"v_add_u32 v8, 49664, v8")
    a(f"v_add_u32 v15, {3*16384}, v8")
    a("s_waitcnt vmcnt(2) lgkmcnt(0)")
    a(f"s_add_u32 s62, s62, {TAGC}")
    a("s_barrier")
    st.stamp()
    a("s_waitcnt vmcnt(0)")
    lds_signal(a, C_XA)
    fs.stamp()
    lds_wait(a, C_XA, 8, 12, 51)
    if "nohold" not in VAR: lds_wait(a, C_XD, 1, 12, 51, sleep=1)
    fs.stamp()
    def xload(i):
        a(f"s_add_u32 s51, s55, {i}")
        a("s_and_b32 s51, s51, 7")
        a("s_lshl_b32 s51, s51, 7")
        a("v_add_u32 v5, s51, v4")
        for sp in range(4):
            a(f"ds_read_b128 {vr(XF+16*i+4*sp,4)}, v5 offset:{L_XA + sp*32}")
    for i in range(6): xload(i)
    st.stamp()
    def wreg(st_): return XF + 4*((st_ - 8) % 32)
    def qread(st_):
        i = st_ >> 2; sp = st_ & 3; sl = i % 6
        for t in range(2):
            a(f"ds_read_b64_tr_b16 {vr(wreg(st_)+2*t,2)}, {'v8' if sl < 3 else 'v15'} offset:{(sl%3)*16384 + sp*4096 + t*1024}")
    fs.stamp()
    lds_wait(a, C_QB + 0, 4, 12, 51, sleep=0)
    fs.stamp()
    for k in range(8): qread(k)
    lds_signal(a, C_QC)
    for grp in range(4):
        if grp < 3:
            lds_wait(a, C_QB + 4*(grp+1), 4, 12, 51, sleep=0)
            fs.stamp()
        if grp == 3: early_init()
        for k in range(8):
            st_ = 8*grp + k
            if grp == 3: a(f"s_waitcnt lgkmcnt({min(15, 2*(7-k) + 1) if not FINE else 0})")
            mfma32(a, ACC, wreg(st_), XF+4*st_, "0" if st_ == 0 else ACC)
            if grp < 3: qread(st_ + 8)
        if grp == 0:
            xload(6); xload(7)
            lds_signal(a, C_XD)
        if grp == 2: lds_signal(a, C_QD)
    st.stamp()
    a(f"s_mov_b32 s51, {CSCALE}")
    a("s_lshl_b32 s53, s42, 11")
    a(f"s_add_u32 s53, s53, {L_QX}")
    a("v_add_u32 v12, s53, v9")
    a("s_lshl_b32 s53, s42, 2")
    a("v_add_u32 v13, s53, v10")
    for i in range(16): a(f"v_mul_f32 v{ACC+i}, s51, v{ACC+i}")
    cvt8(a, Q1, ACC); cvt8(a, Q0, ACC+8)
    a(f"ds_write_b128 v12, {vr(Q1,4)}")
    a(f"ds_write_b128 v12, {vr(Q0,4)} offset:1024")
    lds_signal(a, C_EX, "v13")
    fs.stamp()
    a("s_branch a_join")
    a.label("a_kh1")
    st.n -= 3
    if FINE: st0.n = 1
    a("v_lshrrev_b32 v4, 4, v1")
    a("v_bfe_u32 v5, v1, 2, 2")
    a("v_xor_b32 v5, v5, v4")
    a("v_lshlrev_b32 v3, 10, v4")
    a("v_lshl_add_u32 v3, v5, 6, v3")
    a("v_and_b32 v5, 3, v1")
    a("v_lshl_add_u32 v3, v5, 4, v3")
    a("s_lshl_b32 s48, s42, 14")
    a("s_lshl_b32 s51, s41, 8")
    a("s_add_u32 s48, s48, s51")
    a("s_lshl_b32 s49, s42, 12")
    def op_q(i):
        a(f"s_add_u32 s51, s55, {i}")
        a("s_and_b32 s51, s51, 7")
        a("s_lshl_b32 s51, s51, 16")
        a("s_add_u32 s51, s51, s48")
        for q in range(4):
            a(f"s_add_u32 m0, s49, {WQ_SLOT[i] + q*1024}")
            if q: a("s_add_u32 s51, s51, 4096")
            a("buffer_load_dwordx4 v3, s[32:35], s51 offen lds")
    NPRE = 2
    for i in range(NPRE): op_q(i)
    a("s_waitcnt vmcnt(10) lgkmcnt(0)")
    a(f"s_add_u32 s62, s62, {TAGC}")
    a("s_barrier")
    st.stamp()
    a("s_waitcnt vmcnt(8)")
    fs.stamp()
    lds_signal(a, C_XA)
    if "nohold" not in VAR: lds_wait(a, C_XD, 1, 12, 51, sleep=1)
    op_q(2); op_q(3)
    a("s_waitcnt vmcnt(8)")
    fs.stamp()
    lds_signal(a, C_QB + 0)
    op_q(4); op_q(5)
    a("s_waitcnt vmcnt(8)")
    fs.stamp()
    lds_signal(a, C_QB + 4)
    lds_wait(a, C_QC, 4, 12, 51, sleep=0)
    fs.stamp()
    op_q(6); op_q(7)
    fs.stamp()
    lds_signal(a, C_ISS)
    a("s_waitcnt vmcnt(8)")
    fs.stamp()
    lds_signal(a, C_QB + 8)
    a("s_waitcnt vmcnt(0)")
    fs.stamp()
    lds_signal(a, C_QB + 12)
    st.stamp()
    early_init()
    a("s_lshl_b32 s53, s42, 11")
    a(f"s_add_u32 s53, s53, {L_QX}")
    a("v_add_u32 v15, s53, v9")
    a("s_lshl_b32 s53, s42, 2")
    a("v_add_u32 v13, s53, v10")
    lds_wait(a, C_EX, 1, 12, 51, "v13")
    a(f"ds_read_b128 {vr(Q0,4)}, v15")
    a(f"ds_read_b128 {vr(Q1,4)}, v15 offset:1024")
    fs.stamp()
    lds_signal(a, C_QR)
    st.stamp()
    a.label("a_join")
    def tail_setup():
        a("s_xor_b32 s52, s59, 4")
        a("s_mul_i32 s53, s59, 3072")
        a(f"v_add_u32 v160, s53, v9")
        a("s_mul_i32 s53, s52, 3072")
        a(f"v_add_u32 v161, s53, v9")
        a("s_lshl_b32 s53, s59, 2")
        a("v_add_u32 v162, s53, v10")
        a("s_lshl_b32 s53, s52, 2")
        a("v_add_u32 v163, s53, v10")
        a("s_lshl_b32 s57, s42, 1")
        a("s_add_u32 s57, s57, s43")
        a("s_lshl_b32 s58, s40, 5")
        a("s_lshl_b32 s53, s41, 3")
        a("s_add_u32 s53, s53, s58")
        a("s_add_u32 s53, s53, s57")
        a("s_lshl_b32 s53, s53, 10")
        a(f"s_add_u32 s44, s53, {W_OA}")
        a("s_lshl_b32 s57, s57, 10")
        a(f"s_add_u32 s57, s57, {L_OA}")
        a("v_add_u32 v164, s57, v9")
        a(f"s_add_u32 s48, s44, {W_OF - W_OA}")
        a("s_lshl_b32 s57, s59, 10")
        a(f"s_add_u32 s57, s57, {L_OA}")
        a("v_add_u32 v165, s57, v9")
        for d in range(1, 4):
            a(f"s_add_u32 s51, s41, {d}")
            a("s_and_b32 s51, s51, 3")
            a("s_lshl_b32 s51, s51, 3")
            a("s_add_u32 s51, s51, s58")
            a("s_add_u32 s51, s51, s59")
            a("s_lshl_b32 s51, s51, 10")
            a(f"s_add_u32 s{44+d}, s51, {W_OA}")
    for i in range(8, 16): a(f"v_mov_b32 v{VB+i}, v14")
    for i in range(4): a(f"v_mov_b32 v{P1+4+i}, 0")
    st.stamp()
    lds_wait(a, C_ST + 0, 4, 12, 51, sleep=0)
    if FINE: st0.n = 12
    fs.stamp()
    def kvread(b, off):
        a(f"ds_read_b128 {vr(KB+4*b,4)}, v2 offset:{off}")
        a("s_mov_b64 exec, s[60:61]")
        a(f"ds_read_b128 {vr(VB+8*b,4)}, v3 offset:{off+1024}")
        a(f"ds_read_b128 {vr(VB+8*b+4,4)}, v3 offset:{off+1536}")
        a("s_mov_b64 exec, -1")
    a(f"ds_read_b128 {vr(P0,4)}, v9")
    kvread(0, 0)
    a("s_waitcnt lgkmcnt(3)" if not DIAG else "s_waitcnt lgkmcnt(0)")
    mfma32(a, S0, P0, Q0, "0")
    mfma32(a, S1, P0, Q1, "0")
    for S, C in ((S0, C0), (S1, C1)):
        rowmax16(a, 12, S)
        xhalf_max(a, 12, 13)
        a(f"v_sub_f32 v{C}, {BIAS}, v12")
        for i in range(1, 16): a(f"v_mov_b32 v{C+i}, v{C}")
        if S == S0:
            a("s_waitcnt lgkmcnt(0)")
            mfma32(a, S0, KB, Q0, C0)
    st.stamp()
    a("s_mov_b32 s50, 0")
    a(f"s_setprio {VAR.get('ap0', 3)}")
    if DIAG: a("s_waitcnt lgkmcnt(0)")
    a(".p2align 6")
    a.label("a_loop")
    def E(S, lo, hi):
        for i in range(lo, hi): a(f"v_exp_f32 v{S+i}, v{S+i}")
    def half(S, P, O, Vx, pvy, snext, w1, post):
        E(S, 0, 2)
        mfma32(a, *pvy)
        for x in post: x()
        E(S, 2, 8)
        if w1: a("s_waitcnt lgkmcnt(0)")
        mfma32(a, *snext)
        cvt8(a, P, S)
        E(S, 8, 12)
        mfma32(a, O, Vx, P, O)
        E(S, 12, 16)
        cvt8(a, P+4, S+8)
    HK = {0: [("w", 4)], 1: [("w", 8)], 3: [("p", 2)], 4: [("w", 12)], 5: [("p", 1)], 6: [("p", 0)]}
    if "ap0" in VAR: HK = {0: [("w", 4)], 1: [("w", 8)], 3: [("p", 1)], 4: [("w", 12)], 6: [("p", 0)]}
    def hooks():
        a("s_bitcmp1_b32 s50, 2")
        a("s_cbranch_scc1 a_hk_hi")
        a("s_branch a_hk_lo")
        a.label("a_hk_done")
    for t in range(4):
        b = t & 1; nb = b ^ 1
        post = [lambda: kvread(nb, (t+1)*4096)]
        if t == 3: post = [hooks] + post
        half(S0, P0, O0, VB+8*b, (O1, VB+8*nb+4, P1+4, O1), (S1, KB+4*b, Q1, C1), False, post)
        half(S1, P1, O1, VB+8*b, (O0, VB+8*b+4, P0+4, O0), (S0, KB+4*nb, Q0, C0), True, [])
    a("v_add_u32 v2, 16384, v2")
    a("v_add_u32 v3, 16384, v3")
    a("s_add_u32 s50, s50, 1")
    a("s_cmp_lt_u32 s50, 8")
    a("s_cbranch_scc1 a_loop")
    mfma32(a, O1, VB+8+4, P1+4, O1)
    st.stamp()
    for i in range(2): a(f"ds_write_b128 v160, {vr(O0+4*i,4)} offset:{L_CB + i*1024}")
    a(f"ds_write_b32 v160, v{O0+8} offset:{L_CB + 2048}")
    lds_signal(a, C_CB, "v162")
    a("s_setprio 3")
    lds_wait(a, C_CB, 1, 12, 51, "v163", sleep=1)
    for i in range(2): a(f"ds_read_b128 {vr(S0+4*i,4)}, v161 offset:{L_CB + i*1024}")
    a(f"ds_read_b32 v{S0+8}, v161 offset:{L_CB + 2048}")
    a("s_mov_b32 s51, 0x7b800000")
    a(f"s_mov_b32 s53, {hex((127 - 85) << 23)}")
    a("s_waitcnt lgkmcnt(0)")
    a(f"v_add_f32 v{O1+8}, v{O1+8}, v{S0+8}")
    a(f"v_rcp_f32 v14, v{O1+8}")
    for i in range(8): a(f"v_add_f32 v{O1+i}, v{O1+i}, v{S0+i}")
    a(f"v_add_f32 v12, abs(v{O1}), abs(v{O1+1})")
    a(f"v_add_f32 v13, abs(v{O1+2}), abs(v{O1+3})")
    for i in range(4, 8, 2):
        a(f"v_add_f32 v12, v12, abs(v{O1+i})")
        a(f"v_add_f32 v13, v13, abs(v{O1+i+1})")
    a("v_add_f32 v12, v12, v13")
    a(f"v_add_f32 v13, v12, v{O1+8}")
    a("v_cmp_ngt_f32 vcc, s51, v13")
    a("v_cmp_gt_f32 s[64:65], s53, v12")
    a("s_or_b64 vcc, vcc, s[64:65]")
    if "forcefb" in VAR: a("s_mov_b64 vcc, -1")
    a("s_cbranch_vccnz a_fallback")
    a.label("a_norm")
    for i in range(8): a(f"v_mul_f32 v{O1+i}, v{O1+i}, v14")
    cvt8(a, P0, O1)
    for i in range(4): a(f"v_min_u32 v{P0+i}, -2, v{P0+i}")
    if "noslow" not in VAR: a(f"buffer_store_dwordx4 {vr(P0,4)}, v9, s[36:39], s44 offen sc1")
    if "nofast" not in VAR: a(f"buffer_store_dwordx4 {vr(P0,4)}, v9, s[36:39], s48 offen")
    a(f"ds_write_b128 v164, {vr(P0,4)}")
    lds_signal(a, C_OF)
    st.stamp()
    le = a.newlabel("ep")
    a("s_or_b32 s51, s2, s59")
    a("s_cmp_eq_u32 s51, 0")
    a(f"s_cbranch_scc0 {le}")
    a(f"s_mov_b32 s51, {W_EP}")
    store_flag(a, "s51", 12)
    a.label(le)
    a(f"s_mov_b32 s63, {SPIN}")
    a("s_mov_b32 s50, 0")
    a.label("a_poll")
    a(f"s_cmp_lt_u32 s63, {SPIN - int(VAR.get('fastn', 12))}")
    a("s_cselect_b32 s51, s63, 0")
    a("s_bitcmp1_b32 s51, 0")
    a(f"s_cselect_b32 s51, 0, {W_OF - W_OA}")
    a("v_add_u32 v13, s51, v9")
    for d in range(1, 4):
        a(f"buffer_load_dwordx4 {vr(S0+4*(d-1),4)}, v13, s[36:39], s{44+d} offen sc1")
    a("s_sub_u32 s63, s63, 1")
    for d in range(1, 4):
        r = S0 + 4*(d-1)
        nx = a.newlabel("pn")
        a(f"s_waitcnt vmcnt({3-d})")
        a(f"s_bitcmp1_b32 s50, {d}")
        a(f"s_cbranch_scc1 {nx}")
        a(f"v_max3_u32 v12, v{r}, v{r+1}, v{r+2}")
        a(f"v_max_u32 v12, v12, v{r+3}")
        a("v_cmp_eq_u32 vcc, -1, v12")
        a("s_cmp_eq_u32 s63, 0")
        a("s_cselect_b64 vcc, 0, vcc")
        a(f"s_cbranch_vccnz {nx}")
        a(f"ds_write_b128 v165, {vr(r,4)} offset:{d*8192}")
        lds_signal(a, C_OF + 4*d)
        a(f"s_bitset1_b32 s50, {d}")
        a.label(nx)
    a("s_cmp_eq_u32 s50, 14")
    a("s_cbranch_scc1 a_got")
    a(f"s_sleep {VAR.get('tsleep', 1)}")
    a("s_branch a_poll")
    a.label("a_got")
    st.stamp()
    st.dump(None, 0)
    a("s_endpgm")
    HK[3] = HK.get(3, []) + [("sig", C_PR)]
    HK[2] = [("w", 8), ("f", tail_setup)]
    del HK[1]
    HK[7] = [("w", 16), ("w8", C_PR)]
    for nm, rng in (("a_hk_lo", range(0, 4)), ("a_hk_hi", range(4, 8))):
        a.label(nm)
        for i in rng:
            if i not in HK: continue
            nx = a.newlabel("hk")
            a(f"s_cmp_eq_u32 s50, {i}")
            a(f"s_cbranch_scc0 {nx}")
            for kind, v in HK[i]:
                if kind == "w": lds_wait(a, C_ST + v, 4, 12, 51)
                elif kind == "sig": lds_signal(a, v)
                elif kind == "f": v()
                elif kind == "w8": lds_wait(a, v, 8, 12, 51)
                elif kind == "s":
                    a("s_cmp_eq_u32 s43, 0")
                    a("s_cbranch_scc0 a_hk_done")
                    a("s_waitcnt vmcnt(0)")
                    lds_signal(a, C_ST + v)
                else: a(f"s_setprio {v}")
            a("s_branch a_hk_done")
            a.label(nx)
        a("s_branch a_hk_done")
    a.label("a_fallback")
    a("v_mov_b32 v12, 0xff800000")
    a("s_mov_b32 s50, 0")
    a.label("a_fb1")
    a(f"buffer_load_dwordx4 {vr(KB,4)}, v9, s[36:39], s50 offen sc1")
    a("s_waitcnt vmcnt(0)")
    mfma32(a, S0, KB, Q1, "0")
    a("s_add_u32 s50, s50, 2048")
    rowmax16(a, 12, S0, init=True)
    a("s_cmp_lt_u32 s50, 0x20000")
    a("s_cbranch_scc1 a_fb1")
    xhalf_max(a, 12, 13)
    a(f"v_sub_f32 v{C0}, 0, v12")
    for i in range(1, 16): a(f"v_mov_b32 v{C0+i}, v{C0}")
    for i in range(16): a(f"v_mov_b32 v{O1+i}, 0")
    a("v_lshlrev_b32 v3, 8, v7")
    a("v_lshl_add_u32 v3, v6, 4, v3")
    a("s_mov_b32 s50, 0")
    a.label("a_fb2")
    a(f"buffer_load_dwordx4 {vr(KB,4)}, v9, s[36:39], s50 offen sc1")
    a("s_mov_b64 exec, s[60:61]")
    a(f"buffer_load_dwordx4 {vr(VB,4)}, v3, s[36:39], s50 offen offset:1024 sc1")
    a(f"buffer_load_dwordx4 {vr(VB+4,4)}, v3, s[36:39], s50 offen offset:1536 sc1")
    a("s_mov_b64 exec, -1")
    a("s_waitcnt vmcnt(0)")
    mfma32(a, S0, KB, Q1, C0)
    a("s_add_u32 s50, s50, 2048")
    E(S0, 0, 16)
    cvt8(a, P0, S0); cvt8(a, P0+4, S0+8)
    mfma32(a, O1, VB, P0, O1)
    mfma32(a, O1, VB+4, P0+4, O1)
    a("s_cmp_lt_u32 s50, 0x20000")
    a("s_cbranch_scc1 a_fb2")
    a(f"v_rcp_f32 v14, v{O1+8}")
    a("s_branch a_norm")

def role_b(a, st):
    a("s_setprio 3")
    a("s_and_b32 s45, s41, 1")
    a("s_lshr_b32 s46, s41, 1")
    a("s_cmp_eq_u32 s45, 0")
    a(f"s_cselect_b32 s28, s{P_AWK}, s{P_AWV}")
    a(f"s_cselect_b32 s29, s{P_AWK+1}, s{P_AWV+1}")
    a("s_mov_b32 s30, 16384")
    a("s_mov_b32 s31, 0x20000")
    a("s_lshl_b32 s51, s26, 12")
    a(f"s_add_u32 m0, s51, {L_WK}")
    for q in range(4):
        a(f"buffer_load_dwordx4 v9, s[28:31], s51 offen offset:{q*1024} lds")
    a("s_barrier")
    a("s_mov_b32 s58, 0")
    a("s_lshr_b32 s44, s40, 1")
    a("s_and_b32 s42, s26, 1")
    a("s_lshr_b32 s43, s26, 1")
    srd(a, 28, P_BX, 2 << 20)
    srd(a, 32, P_BWQKV, 512 * 3072)
    a("v_lshrrev_b32 v12, 3, v1")
    a("v_and_b32 v13, 7, v1")
    a("v_bfe_u32 v14, v1, 4, 1")
    a("v_lshlrev_b32 v14, 2, v14")
    a("v_xor_b32 v14, v14, v13")
    a("v_mul_u32_u24 v3, 3072, v12")
    a("v_lshl_add_u32 v3, v14, 4, v3")
    a("v_lshlrev_b32 v4, 10, v12")
    a("v_lshl_add_u32 v4, v14, 4, v4")
    a(f"s_mul_i32 s64, s26, {16*3072}")
    a("s_lshl_b32 s51, s27, 7")
    a("s_add_u32 s64, s64, s51")
    a("s_lshl_b32 s65, s44, 16")
    a("s_lshl_b32 s51, s26, 14")
    a("s_add_u32 s65, s65, s51")
    if MAP81:
        a("s_lshr_b32 s67, s3, 3")
        a("s_lshl_b32 s67, s67, 1")
        a("s_add_u32 s67, s67, s3")
    else:
        a("s_lshr_b32 s67, s3, 2")
        a("s_lshl_b32 s51, s3, 1")
        a("s_add_u32 s67, s67, s51")
    a("s_and_b32 s67, s67, 7")
    a("s_mul_i32 s56, s26, 6144")
    a(f"s_add_u32 s56, s56, {L_GB + GB_W}")
    a("s_mul_i32 s57, s26, 2080")
    a(f"s_add_u32 s57, s57, {L_GB + GB_X}")
    def issue_ops(buf):
        o = buf * GB_SZ
        def pre():
            a(f"s_mul_i32 s48, s67, {64*3072}")
            a("s_add_u32 s48, s48, s64")
            a(f"s_add_u32 s47, s48, {8*3072}")
            a("s_lshl_b32 s49, s67, 7")
            a("s_add_u32 s49, s49, s65")
            a("s_add_u32 s66, s49, 8192")
            a("s_add_u32 s67, s67, 1")
            a("s_and_b32 s67, s67, 7")
        ops = [pre]
        for q in range(2):
            def fx(q=q):
                a(f"s_add_u32 m0, s57, {o + q*1040}")
                a(f"buffer_load_dwordx4 v4, s[28:31], {'s66' if q else 's49'} offen lds")
            ops.append(fx)
        for gq in range(2):
            for t in range(3):
                def f(gq=gq, t=t):
                    if t == 0: a(f"s_add_u32 m0, s56, {o + gq*3072}")
                    a(f"buffer_load_dwordx4 v3, s[32:35], {'s47' if gq else 's48'} offen offset:{t*1024} lds")
                ops.append(f)
        return ops
    BST = VAR.get("bstart", "st4")
    if BST == "early":
        for f in issue_ops(0): f()
    lk = a.newlabel("nokv")
    a("v_lshl_add_u32 v5, v1, 2, v10")
    a("v_mov_b32 v12, 0")
    a("ds_write_b32 v5, v12")
    kv_setup(a)
    a(f"s_waitcnt vmcnt({8 if BST == 'early' else 0}) lgkmcnt(0)")
    a(f"s_add_u32 s62, s62, {TAGC}")
    a("s_barrier")
    a("s_cmp_eq_u32 s26, 3")
    a(f"s_cbranch_scc0 {lk}")
    kv_job(a, st if "fine" in VAR else None)
    a.label(lk)
    st.stamp()
    a("s_mov_b32 s45, s27")
    a("v_mul_u32_u24 v8, 3072, v7")
    a("v_bfe_u32 v14, v1, 2, 2")
    a("v_lshl_add_u32 v8, v14, 7, v8")
    a("v_bfe_u32 v14, v1, 3, 1")
    a("v_xor_b32 v14, s42, v14")
    a("v_lshl_add_u32 v8, v14, 6, v8")
    a("v_bfe_u32 v14, v1, 4, 1")
    a("v_lshl_add_u32 v8, v14, 5, v8")
    a("v_and_b32 v14, 3, v1")
    a("v_lshl_add_u32 v8, v14, 3, v8")
    a(f"v_add_u32 v8, {L_GB + GB_W}, v8")
    XM = 152
    a("v_bfe_u32 v14, v1, 1, 1")
    a("v_lshlrev_b32 v14, 2, v14")
    a("v_or_b32 v14, v14, v7")
    a("v_lshlrev_b32 v14, 4, v14")
    a("v_and_b32 v15, 7, v1")
    a("v_lshl_add_u32 v14, v15, 7, v14")
    a("v_xor_b32 v15, 64, v14")
    a("v_lshrrev_b32 v16, 3, v6")
    a("v_mul_u32_u24 v16, 1040, v16")
    a("s_mul_i32 s51, s43, 4160")
    a(f"s_add_u32 s51, s51, {L_GB + GB_X}")
    a(f"v_add3_u32 v{XM}, v14, v16, s51")
    a(f"v_add3_u32 v{XM+1}, v15, v16, s51")
    ACC = 20; WF = 84; XF = 108
    for i in range(48): a(f"v_mov_b32 v{ACC+i}, 0")
    for i in range(16): a(f"v_mov_b32 v{WF+12+i if i < 12 else XF+4+i-12}, 0")
    MM = 124; MH = 132
    a("v_lshlrev_b32 v5, 2, v7")
    a("v_sub_u32 v5, v6, v5")
    a("v_add_u32 v5, 18, v5")
    a("v_mov_b32 v14, 0x5555")
    a("v_mov_b32 v15, 0")
    a("v_lshlrev_b64 v[14:15], v5, v[14:15]")
    a("s_or_b32 s51, s44, s43")
    a("s_cmp_eq_u32 s51, 0")
    a("s_cselect_b32 s51, 0, -1")
    a("v_and_b32 v14, s51, v14")
    a("v_not_b32 v14, v14")
    a("v_not_b32 v15, v15")
    for r in range(16):
        idx = 8*(r >> 2) + (r & 3)
        a(f"v_bfe_i32 v{MM+r}, v15, {idx}, 1")
        a(f"v_lshlrev_b32 v{MM+r}, 23, v{MM+r}")
        if r >= 8:
            a(f"v_bfe_i32 v{MH+r}, v14, {idx}, 1")
            a(f"v_lshlrev_b32 v{MH+r}, 23, v{MH+r}")
    def read_ops(buf, sp, fb):
        r = []
        for t3 in range(3):
            for t in range(2):
                r.append(f"ds_read_b64_tr_b16 {vr(WF+12*fb+4*t3+2*t,2)}, v8 offset:{buf*GB_SZ + sp*6144 + t3*1024 + t*512}")
        r.insert(2, f"ds_read_b128 {vr(XF+4*fb,4)}, v{XM+(sp>>1)} offset:{buf*GB_SZ + (sp&1)*32}")
        return r
    def mm(fb, k):
        w = WF + 12*fb; x = XF + 4*fb
        if "nomm" in VAR: return
        if k == 0: mfma32(a, ACC, w, x, ACC)
        elif k == 1: mfma32(a, ACC+16, w+4, x, ACC+16)
        else: mfma32(a, ACC+32, x, w+8, ACC+32)
    a("v_lshrrev_b32 v15, 1, v1")
    a("v_lshlrev_b32 v15, 3, v15")
    a("v_and_b32 v12, 1, v1")
    a("v_add_u32 v15, v15, v12")
    a("s_add_u32 s51, s26, s3")
    a("s_lshl_b32 s51, s51, 1")
    a("v_add_u32 v15, s51, v15")
    a("v_and_b32 v15, 63, v15")
    a("v_lshlrev_b32 v15, 7, v15")
    a(f"s_mov_b32 s54, {W_F1}")
    lds_wait(a, C_XD, 1, 5, 51, sleep=2)
    PG = VAR.get("pgate", "qb8")
    if PG == "iss": lds_wait(a, C_ISS, 4, 5, 51, sleep=1)
    if PG.startswith("qb"): lds_wait(a, C_QB + int(PG[2:]), 4, 5, 51, sleep=1)
    st.stamp()
    poll_flags(a, 15, "s54", 16, 16, sleep=int(VAR.get("psleep", 4)))
    st.stamp()
    for k in range(5):
        if k == 1: lds_wait(a, C_XD, 5, 5, 51)
        if k == 3: lds_wait(a, C_QD, 4, 5, 51)
        a("s_lshl_b32 s53, s26, 12")
        a(f"s_add_u32 s53, s53, {k*16384}")
        kv_dma(a, 53, 4)
        if k == 0:
            a("s_waitcnt vmcnt(0)")
            lds_signal(a, C_ST + 0)
    a("s_waitcnt vmcnt(8)")
    lds_signal(a, C_ST + 4)
    a("s_cmp_eq_u32 s43, 0")
    a(f"s_cselect_b32 s4, s{P_BWO}, s{P_AWO}")
    a(f"s_cselect_b32 s5, s{P_BWO+1}, s{P_AWO+1}")
    a("s_mov_b32 s6, 0x80000")
    a("s_mov_b32 s7, 0x20000")
    a("s_lshl_b32 s51, s3, 1")
    a("s_add_u32 s51, s51, s42")
    a("s_lshl_b32 s51, s51, 13")
    if MAP81: a("v_lshlrev_b32 v14, 7, v1")
    else:
        a("s_lshr_b32 s54, s41, 1")
        a("s_lshl_b32 s54, s54, 9")
        a("s_add_u32 s51, s51, s54")
        a("v_lshrrev_b32 v14, 2, v6")
        a("v_lshlrev_b32 v14, 10, v14")
        a("v_and_b32 v15, 3, v1")
        a("v_lshl_add_u32 v14, v15, 7, v14")
    a("buffer_load_dword v160, v14, s[4:7], s51 offen")
    for f in issue_ops(0): f()
    a("s_waitcnt vmcnt(9)")
    lds_signal(a, C_ST + 8)
    a(f"s_setprio {VAR.get('bprio', 3)}")
    st.stamp()
    a("s_mov_b32 s50, 0")
    if "nogemm" in VAR: a("s_branch b_gend")
    a.label("b_loop")
    for buf in range(2):
        mm(1, 0)
        a("s_waitcnt vmcnt(0)")
        a("s_add_u32 s58, s58, 4")
        lds_signal(a, C_BB)
        mm(1, 1)
        ops = issue_ops(buf ^ 1)
        if buf == 1:
            a("s_cmp_eq_u32 s50, 3")
            a("s_cselect_b32 s64, 0x7f000000, s64")
            a("s_cselect_b32 s65, 0x7f000000, s65")
            for r in (56, 57): a(f"s_cselect_b32 s{r}, 0x30000, s{r}")
        ops[0]()
        lds_wait(a, C_BB, "s58", 5, 51, sleep=int(VAR.get("bsleep", 0)))
        for x in read_ops(buf, 0, 0): a(x)
        mm(1, 2)
        oi = 1
        for _ in range(3): ops[oi](); oi += 1
        for sp in range(3):
            for x in read_ops(buf, sp+1, (sp+1) & 1): a(x)
            a("s_waitcnt lgkmcnt(7)")
            for k in range(3):
                mm(sp & 1, k)
                for _ in range(2):
                    if oi < len(ops): ops[oi](); oi += 1
        a("s_waitcnt lgkmcnt(0)")
    a("s_add_u32 s50, s50, 1")
    a("s_cmp_lt_u32 s50, 4")
    a("s_cbranch_scc1 b_loop")
    a.label("b_gend")
    for k in range(3): mm(1, k)
    a("s_setprio 3")
    a("s_waitcnt vmcnt(0)")
    st.stamp()
    QF = 84; KF = 92; VF = 100; KH = 108; VH = 116
    cvt8(a, KF, ACC+16); cvt8(a, KF+4, ACC+24)
    cvt8(a, VF, ACC+32); cvt8(a, VF+4, ACC+40)
    a("s_mul_i32 s51, s42, 3072")
    a(f"s_add_u32 s51, s51, {L_BEX}")
    a("v_add_u32 v13, s51, v9")
    a("s_lshl_b32 s52, s44, 3")
    a("s_add_u32 s52, s52, s45")
    a("s_lshl_b32 s53, s52, 1")
    a("s_add_u32 s53, s53, s42")
    a("s_mul_i32 s53, s53, 3072")
    a(f"s_add_u32 s53, s53, {W_HALO}")
    a("s_lshl_b32 s52, s52, 7")
    a("s_lshl_b32 s51, s42, 2")
    a("s_add_u32 s52, s52, s51")
    a(f"s_add_u32 s52, s52, {W_F2}")
    l1 = a.newlabel("b_w1"); l2 = a.newlabel("b_w2")
    a("s_cmp_eq_u32 s43, 0")
    a(f"s_cbranch_scc0 {l1}")
    lds_wait(a, C_QR, 4, 5, 51, sleep=2)
    a(f"ds_write_b128 v13, {vr(KF,4)}")
    a(f"ds_write_b128 v13, {vr(KF+4,4)} offset:1024")
    a(f"ds_write_b128 v13, {vr(VF+4,4)} offset:2048")
    a(f"s_branch {l2}")
    a.label(l1)
    a(f"buffer_store_dwordx4 {vr(KF,4)}, v9, s[36:39], s53 offen sc1")
    a(f"buffer_store_dwordx4 {vr(KF+4,4)}, v9, s[36:39], s53 offen offset:1024 sc1")
    a(f"buffer_store_dwordx4 {vr(VF+4,4)}, v9, s[36:39], s53 offen offset:2048 sc1")
    a("s_waitcnt vmcnt(0)")
    store_flag(a, "s52", 14)
    a.label(l2)
    bbar(a)
    a("s_mul_i32 s54, s26, 12288")
    a("s_add_u32 s54, s54, 81920")
    kv_dma(a, 54, 12)
    l1 = a.newlabel("b_x1"); l2 = a.newlabel("b_x2")
    a("s_or_b32 s51, s44, 0")
    a("s_cselect_b32 s51, s43, 1")
    a("s_cmp_eq_u32 s51, 0")
    a(f"s_cbranch_scc0 {l1}")
    a(f"s_sub_u32 s52, s52, {8*128}")
    a(f"s_sub_u32 s53, s53, {16*3072}")
    a("v_mov_b32 v5, 0")
    poll_flags(a, 5, "s52", 1, 14, sleep=6, width=1)
    a(f"buffer_load_dwordx4 {vr(KH,4)}, v9, s[36:39], s53 offen sc1")
    a(f"buffer_load_dwordx4 {vr(KH+4,4)}, v9, s[36:39], s53 offen offset:1024 sc1")
    a(f"buffer_load_dwordx4 {vr(VH,4)}, v9, s[36:39], s53 offen offset:2048 sc1")
    a("s_waitcnt vmcnt(0)")
    a(f"s_branch {l2}")
    a.label(l1)
    a(f"ds_read_b128 {vr(KH,4)}, v13")
    a(f"ds_read_b128 {vr(KH+4,4)}, v13 offset:1024")
    a(f"ds_read_b128 {vr(VH,4)}, v13 offset:2048")
    a.label(l2)
    lsn = a.newlabel("nosn")
    a("s_and_b32 s51, s40, 1")
    a("s_cmp_eq_u32 s51, s43")
    a(f"s_cbranch_scc0 {lsn}")
    a("s_lshl_b32 s51, s40, 2")
    a("s_add_u32 s51, s51, s41")
    a("s_lshl_b32 s51, s51, 1")
    a("s_add_u32 s51, s51, s42")
    a("s_lshl_b32 s51, s51, 12")
    a(f"s_add_u32 s51, s51, {W_OA}")
    for i in range(4): a(f"v_mov_b32 v{120+i}, -1")
    for i in range(4): a(f"buffer_store_dwordx4 v[120:123], v9, s[36:39], s51 offen offset:{i*1024} sc1")
    a(f"s_add_u32 s51, s51, {W_OF - W_OA}")
    for i in range(4): a(f"buffer_store_dwordx4 v[120:123], v9, s[36:39], s51 offen offset:{i*1024} sc1")
    a.label(lsn)
    cvt8(a, QF, ACC); cvt8(a, QF+4, ACC+8)
    a("s_lshl_b32 s52, s44, 1")
    a("s_add_u32 s52, s52, s43")
    a("s_lshl_b32 s55, s52, 4")
    a("s_lshl_b32 s53, s45, 1")
    a("s_add_u32 s53, s53, s42")
    a("s_add_u32 s55, s55, s53")
    a("s_lshl_b32 s55, s55, 11")
    a(f"s_add_u32 s55, s55, {W_OB}")
    a("s_lshl_b32 s57, s52, 9")
    a("s_lshr_b32 s51, s53, 2")
    a("s_lshl_b32 s51, s51, 7")
    a("s_add_u32 s57, s57, s51")
    a("s_and_b32 s51, s53, 3")
    a("s_lshl_b32 s51, s51, 2")
    a("s_add_u32 s57, s57, s51")
    a(f"s_add_u32 s57, s57, {W_F3}")
    a("s_waitcnt lgkmcnt(0)")
    SM = 20; SH = 36; O = 52; PP = 68; T = 152
    a(f"s_mov_b32 s46, {CSCALE}")
    if "nolocal" in VAR:
        a("s_waitcnt vmcnt(0)")
        lds_signal(a, C_ST + 12)
    for hd in range(2 if "nolocal" not in VAR else 0):
        mfma32(a, SM, KF+4*hd, QF+4*hd, MM)
        mfma32(a, SH, KH+4*hd, QF+4*hd, MH)
        if hd == 1:
            a("s_waitcnt vmcnt(1)")
            lds_signal(a, C_ST + 12)
        vals = [SM+i for i in range(16)] + [SH+8+i for i in range(8)]
        a(f"v_max3_f32 v{T}, v{vals[0]}, v{vals[1]}, v{vals[2]}")
        for i in range(3, 23, 2):
            a(f"v_max3_f32 v{T}, v{T}, v{vals[i]}, v{vals[i+1]}")
        a(f"v_max_f32 v{T}, v{T}, v{vals[23]}")
        xhalf_max(a, T, T+1)
        a(f"v_mul_f32 v{T}, s46, v{T}")
        for v in vals: a(f"v_fma_f32 v{v}, v{v}, s46, -v{T}")
        for v in vals: a(f"v_exp_f32 v{v}, v{v}")
        a(f"v_add_f32 v{T+2}, v{vals[0]}, v{vals[1]}")
        for v in vals[2:]: a(f"v_add_f32 v{T+2}, v{T+2}, v{v}")
        cvt8(a, PP, SM); cvt8(a, PP+4, SM+8); cvt8(a, PP+8, SH+8)
        a(f"v_mov_b32 v{T+3}, v{T+2}")
        a(f"v_permlane32_swap_b32 v{T+2}, v{T+3}")
        mfma32(a, O, VF, PP, "0")
        mfma32(a, O, VF+4, PP+4, O)
        mfma32(a, O, VH, PP+8, O)
        a(f"v_add_f32 v{T+2}, v{T+2}, v{T+3}")
        a(f"v_rcp_f32 v{T+2}, v{T+2}")
        for i in range(8): a(f"v_mul_f32 v{O+8*hd+i}, v{O+8*hd+i}, v{T+2}")
        cvt8(a, T+4+4*hd, O+8*hd)
        a(f"buffer_store_dwordx4 {vr(T+4+4*hd,4)}, v9, s[36:39], s55 offen offset:{hd*1024} sc1")
    a("s_waitcnt vmcnt(0)")
    store_flag(a, "s57", 12)
    st.stamp()
    srd(a, 32, P_BWO, 512 * 1024)
    srd(a, 28, P_OUT, 4 << 20)
    a("s_lshl_b32 s47, s41, 8")
    a("s_lshl_b32 s51, s26, 6")
    a("s_add_u32 s47, s47, s51")
    a("v_lshrrev_b32 v3, 2, v1")
    a("v_lshlrev_b32 v3, 10, v3")
    a("v_and_b32 v4, 3, v1")
    a("v_lshl_add_u32 v3, v4, 4, v3")
    a("v_add_u32 v3, s47, v3")
    tr_base_wo(a, 8, 4)
    a("s_mul_i32 s56, s26, 7168")
    a(f"s_add_u32 s56, s56, {L_COMB}")
    a("v_add_u32 v8, s56, v8")
    a("v_lshlrev_b32 v4, 11, v6")
    a("v_lshl_add_u32 v4, v7, 4, v4")
    a("s_lshl_b32 s51, s40, 16")
    a("s_add_u32 s47, s47, s51")
    ACC = 12; OB = 28; WL = 40
    a("s_mov_b32 s48, 0")
    a("s_mov_b32 s50, 0")
    a.label("b_stage")
    bbar(a)
    R = 7
    def wissue(i):
        a(f"s_add_u32 m0, s56, {(i%R)*1024}")
        a(f"buffer_load_dwordx4 v3, s[32:35], s48 offen lds")
        a("s_add_u32 s48, s48, 16384")
        a("s_and_b32 s48, s48, 0x7ffff")
    for i in range(R): wissue(i)
    for i in range(32):
        a(f"s_waitcnt vmcnt({R-1 if i == 0 else min(R-2, 31-i)})")
        r = WL + 4*i
        for t in range(2): a(f"ds_read_b64_tr_b16 {vr(r+2*t,2)}, v8 offset:{(i%R)*1024 + t*512}")
        if i >= 1 and i + R - 1 < 32:
            a("s_waitcnt lgkmcnt(2)")
            wissue(i + R - 1)
    a("s_waitcnt lgkmcnt(0)")
    a("s_cmp_eq_u32 s50, 1")
    a("s_cbranch_scc1 b_tail")
    def run(lo, hi, addr, off0):
        o = lambda i: (i - off0) * 1024
        for i in range(lo, min(lo+2, hi)): a(f"ds_read_b128 {vr(OB+4*(i%3),4)}, {addr} offset:{o(i)}")
        for i in range(lo, hi):
            if i + 2 < hi:
                a(f"ds_read_b128 {vr(OB+4*((i+2)%3),4)}, {addr} offset:{o(i+2)}")
                a("s_waitcnt lgkmcnt(2)")
            else:
                a(f"s_waitcnt lgkmcnt({hi-1-i})")
            mfma32(a, ACC, WL+4*i, OB+4*(i%3), "0" if i == 0 else ACC)
    a("v_lshlrev_b32 v5, 7, v1")
    a("s_lshl_b32 s57, s40, 9")
    a(f"s_add_u32 s57, s57, {W_F3}")
    poll_flags(a, 5, "s57", 4, 28, sleep=8)
    lds_signal(a, C_ST + 16)
    st.stamp()
    a("s_lshl_b32 s49, s40, 15")
    a("s_lshl_b32 s51, s26, 12")
    a("s_add_u32 s49, s49, s51")
    a(f"s_add_u32 s49, s49, {W_OB}")
    a(f"s_add_u32 s46, s51, {L_COMB}")
    a(f"v_add_u32 v0, {L_COMB}, v9")
    for rnd in range(2):
        bbar(a)
        a("s_mov_b32 m0, s46")
        for q in range(4):
            a(f"buffer_load_dwordx4 v9, s[36:39], s49 offen offset:{q*1024} sc1 lds")
        a("s_add_u32 s49, s49, 16384")
        a("s_waitcnt vmcnt(0)")
        bbar(a)
        if "noop" not in VAR: run(16*rnd, 16*rnd+16, "v0", 16*rnd)
    cvt8(a, 28, ACC); cvt8(a, 32, ACC+8)
    a("buffer_store_dwordx4 v[28:31], v4, s[28:31], s47 offen offset:1024 " + VAR.get("stb", "nt"))
    a("buffer_store_dwordx4 v[32:35], v4, s[28:31], s47 offen offset:1056 " + VAR.get("stb", "nt"))
    srd(a, 32, P_AWO, 512 * 1024)
    a("s_lshl_b32 s48, s41, 17")
    a("s_mov_b32 s50, 1")
    st.stamp()
    a("s_branch b_stage")
    a.label("b_tail")
    st.stamp()
    a(f"v_add_u32 v0, {L_OA}, v9")
    lds_wait(a, C_CB + 0, 1, 5, 51, sleep=16)
    for d in range(4):
        lds_wait(a, C_OF + 4*d, 8, 5, 51, sleep=1)
        run(8*d, 8*d + 8, "v0", 0)
    cvt8(a, 28, ACC); cvt8(a, 32, ACC+8)
    a("buffer_store_dwordx4 v[28:31], v4, s[28:31], s47 offen " + VAR.get("sta", "nt"))
    a("buffer_store_dwordx4 v[32:35], v4, s[28:31], s47 offen offset:32 " + VAR.get("sta", "nt"))
    if DIAG:
        a("s_waitcnt vmcnt(0)")
        st.stamp()
        st.dump(None, 0)

def kernel():
    a = Asm(); n = NAME + "_kernel"
    a.label(n)
    a("s_cmp_ge_u32 s2, 256")
    a("s_cbranch_scc1 k_exit")
    load_ptrs(a)
    sta = Stamps(a, DIAG, real='--cyc' not in sys.argv); stb = Stamps(a, DIAG, real='--cyc' not in sys.argv)
    sta.stamp(); stb.n = sta.n
    a("v_and_b32 v1, 63, v0")
    a("v_lshrrev_b32 v2, 6, v0")
    a("v_readfirstlane_b32 s26, v2")
    a("s_and_b32 s27, s2, 7")
    a("s_lshr_b32 s3, s2, 3")
    if MAP81:
        a("s_lshl_b32 s40, s27, 3")
        a("s_lshr_b32 s41, s3, 2")
        a("s_add_u32 s40, s40, s41")
        a("s_and_b32 s41, s3, 3")
    else:
        a("s_lshr_b32 s40, s27, 1")
        a("s_lshl_b32 s40, s40, 4")
        a("s_lshr_b32 s41, s3, 1")
        a("s_add_u32 s40, s40, s41")
        a("s_and_b32 s41, s27, 1")
        a("s_lshl_b32 s41, s41, 1")
        a("s_and_b32 s27, s3, 1")
        a("s_add_u32 s41, s41, s27")
    a("s_lshl_b32 s27, s41, 1")
    a("s_and_b32 s51, s40, 1")
    a("s_add_u32 s27, s27, s51")
    a("v_and_b32 v6, 31, v1")
    a("v_lshrrev_b32 v7, 5, v1")
    a("v_lshlrev_b32 v9, 4, v1")
    a(f"v_mov_b32 v10, {L_CNT}")
    a("v_mov_b32 v11, 1")
    a("s_waitcnt lgkmcnt(0)")
    a(f"s_load_dword s62, s[{P_WS}:{P_WS+1}], {W_EP}")
    srd(a, 36, P_WS, W_USED)
    a("s_cmp_lt_u32 s26, 4")
    a("s_cbranch_scc1 role_b")
    role_a(a, sta)
    a.label("role_b")
    role_b(a, stb)
    a.label("k_exit")
    a("s_endpgm")
    return (n, a, 256, 768, LDS_SIZE, 168)

if __name__ == "__main__":
    write_file(sys.argv[1], [kernel()])
```

```python
from asmlib import Asm
NAME = "concat_heads__grouped_kv_mqa__sliding_local_dilated__prompt"
HEADER_COMMENTS = open("cdna_kernels/%s.s.ref" % NAME).read().split("; Override launch")[0]

WS_KV = 0
WS_OA = 1 << 20
WS_OB = 3 << 20
WS_SIZE_USED = 5 << 20
CSCALE = 0x3EB8AA3B
import struct
assert abs(struct.unpack('<f', struct.pack('<I', CSCALE))[0] - 0.25 * 1.4426950408889634) < 1e-7

def vr(b, n=1): return f"v{b}" if n == 1 else f"v[{b}:{b+n-1}]"
def sr(b, n=1): return f"s{b}" if n == 1 else f"s[{b}:{b+n-1}]"

def srd(a, d, base, nbytes, add=0):
    if add:
        a(f"s_add_u32 s{d}, s{base}, {add}")
        a(f"s_addc_u32 s{d+1}, s{base+1}, 0")
    else:
        a(f"s_mov_b32 s{d}, s{base}")
        a(f"s_mov_b32 s{d+1}, s{base+1}")
    a(f"s_mov_b32 s{d+2}, {nbytes}")
    a(f"s_mov_b32 s{d+3}, 0x20000")

def load_ptrs(a):
    a("s_load_dwordx16 s[4:19], s[0:1], 0")
    a("s_load_dwordx4 s[20:23], s[0:1], 64")
    a("s_load_dwordx2 s[24:25], s[0:1], 80")
P_AX, P_AWQ, P_AWK, P_AWV, P_AWO, P_BX, P_BWQKV, P_BWO, P_OUT, P_DBG, P_WS = 4, 6, 8, 10, 12, 14, 16, 18, 20, 22, 24

def mfma32(a, d, A, B, c):
    cs = c if isinstance(c, str) else vr(c, 16)
    a(f"v_mfma_f32_32x32x16_bf16 {vr(d,16)}, {vr(A,4)}, {vr(B,4)}, {cs}")
def mfma16(a, d, A, B, c):
    cs = c if isinstance(c, str) else vr(c, 4)
    a(f"v_mfma_f32_16x16x32_bf16 {vr(d,4)}, {vr(A,4)}, {vr(B,4)}, {cs}")

def descriptor(name, nvgpr, nsgpr=100):
    acc = (nvgpr + 3) // 4 * 4
    return f""".amdhsa_kernel {name}
  .amdhsa_next_free_vgpr {nvgpr}
  .amdhsa_next_free_sgpr {nsgpr}
  .amdhsa_accum_offset {acc}
  .amdhsa_group_segment_fixed_size 0
  .amdhsa_kernarg_size 88
  .amdhsa_user_sgpr_count 2
  .amdhsa_user_sgpr_kernarg_segment_ptr 1
  .amdhsa_system_sgpr_workgroup_id_x 1
.end_amdhsa_kernel
"""

def write_file(path, kernels):
    out = HEADER_COMMENTS
    if len(kernels) == 1:
        n, a, g, b, lds, nv = kernels[0]
        out += f"; @launch grid=({g},1,1) block=({b},1,1) lds={lds}\n"
    else:
        for n, a, g, b, lds, nv in kernels:
            out += f"; @launch kernel={n} grid=({g},1,1) block=({b},1,1) lds={lds}\n"
    out += '.amdgcn_target "amdgcn-amd-amdhsa--gfx950"\n.text\n'
    for n, a, g, b, lds, nv in kernels:
        a.pad_hazards()
        e = a.check_waits(n)
        assert e == 0, "wait errors"
        out += f".globl {n}\n.p2align 8\n.type {n},@function\n" + a.text()
    out += '.section .rodata,"a"\n'
    for n, a, g, b, lds, nv in kernels:
        out += ".p2align 6\n" + descriptor(n, nv)
    open(path, "w").write(out)
    import subprocess
    r = subprocess.run(["clang", "-x", "assembler", "-target", "amdgcn-amd-amdhsa", "-mcpu=gfx950", "-c", path, "-o", "_chk.o"], capture_output=True, text=True)
    assert r.returncode == 0, r.stderr[:2000]

WS_STAMP = 8 << 20
class Stamps:
    def __init__(self, a, enabled, base=70, real=False):
        self.a = a; self.en = enabled; self.base = base; self.n = 0; self.real = real
    def stamp(self):
        if not self.en: return
        self.a(f"{'s_memrealtime' if self.real else 's_memtime'} s[{self.base+2*self.n}:{self.base+2*self.n+1}]")
        self.n += 1
    def dump(self, slot_sgpr_expr_setup, region=0):
        if not self.en: return
        a = self.a
        a("s_waitcnt lgkmcnt(0)")
        a("s_mov_b64 exec, -1")
        import sys
        dbg = [x for x in sys.argv if x.startswith("--dbg=")]
        if dbg:
            wg, wv = dbg[0][6:].split(",")
            l = a.newlabel("nodump")
            a(f"s_cmp_eq_u32 s2, {wg}")
            a(f"s_cbranch_scc0 {l}")
            a(f"s_cmp_eq_u32 s26, {wv}")
            a(f"s_cbranch_scc0 {l}")
            a(f"s_mov_b32 s64, s{P_DBG}")
            a(f"s_mov_b32 s65, s{P_DBG+1}")
            a("s_mov_b32 s66, 256")
            a("s_mov_b32 s67, 0x20000")
            a("v_mov_b32 v2, 0")
            for k in range(self.n):
                a(f"s_sub_u32 s68, s{self.base+2*k}, s{self.base}")
                a(f"v_mov_b32 v3, s68")
                a(f"buffer_store_dword v3, v2, s[64:67], 0 offen offset:{4*k}")
            a.label(l)
            return
        a(f"s_add_u32 s64, s{P_WS}, {WS_STAMP + region*(1<<18)}")
        a(f"s_addc_u32 s65, s{P_WS+1}, 0")
        a("s_mov_b32 s66, 0x40000")
        a("s_mov_b32 s67, 0x20000")
        a("s_lshl_b32 s68, s2, 4")
        a("s_add_u32 s68, s68, s26")
        a("s_lshl_b32 s68, s68, 6")
        a("v_mov_b32 v2, 0")
        for k in range(self.n):
            a(f"v_mov_b32 v3, s{self.base+2*k}")
            a(f"buffer_store_dword v3, v2, s[64:67], s68 offen offset:{4*k}")
```

```python
from asmlib import Asm
NAME = "concat_heads__grouped_kv_mqa__sliding_local_dilated__prompt"
HEADER_COMMENTS = open("cdna_kernels/%s.s.ref" % NAME).read().split("; Override launch")[0]

WS_KV = 0
WS_OA = 1 << 20
WS_OB = 3 << 20
WS_SIZE_USED = 5 << 20
CSCALE = 0x3EB8AA3B
import struct
assert abs(struct.unpack('<f', struct.pack('<I', CSCALE))[0] - 0.25 * 1.4426950408889634) < 1e-7

def vr(b, n=1): return f"v{b}" if n == 1 else f"v[{b}:{b+n-1}]"
def sr(b, n=1): return f"s{b}" if n == 1 else f"s[{b}:{b+n-1}]"

def srd(a, d, base, nbytes, add=0):
    if add:
        a(f"s_add_u32 s{d}, s{base}, {add}")
        a(f"s_addc_u32 s{d+1}, s{base+1}, 0")
    else:
        a(f"s_mov_b32 s{d}, s{base}")
        a(f"s_mov_b32 s{d+1}, s{base+1}")
    a(f"s_mov_b32 s{d+2}, {nbytes}")
    a(f"s_mov_b32 s{d+3}, 0x20000")

def load_ptrs(a):
    a("s_load_dwordx16 s[4:19], s[0:1], 0")
    a("s_load_dwordx4 s[20:23], s[0:1], 64")
    a("s_load_dwordx2 s[24:25], s[0:1], 80")
P_AX, P_AWQ, P_AWK, P_AWV, P_AWO, P_BX, P_BWQKV, P_BWO, P_OUT, P_DBG, P_WS = 4, 6, 8, 10, 12, 14, 16, 18, 20, 22, 24

def mfma32(a, d, A, B, c):
    cs = c if isinstance(c, str) else vr(c, 16)
    a(f"v_mfma_f32_32x32x16_bf16 {vr(d,16)}, {vr(A,4)}, {vr(B,4)}, {cs}")
def mfma16(a, d, A, B, c):
    cs = c if isinstance(c, str) else vr(c, 4)
    a(f"v_mfma_f32_16x16x32_bf16 {vr(d,4)}, {vr(A,4)}, {vr(B,4)}, {cs}")

def descriptor(name, nvgpr, nsgpr=100):
    acc = (nvgpr + 3) // 4 * 4
    return f""".amdhsa_kernel {name}
  .amdhsa_next_free_vgpr {nvgpr}
  .amdhsa_next_free_sgpr {nsgpr}
  .amdhsa_accum_offset {acc}
  .amdhsa_group_segment_fixed_size 0
  .amdhsa_kernarg_size 88
  .amdhsa_user_sgpr_count 2
  .amdhsa_user_sgpr_kernarg_segment_ptr 1
  .amdhsa_system_sgpr_workgroup_id_x 1
.end_amdhsa_kernel
"""

DESCR = """;
"""
def write_file(path, kernels):
    out = HEADER_COMMENTS
    if len(kernels) == 1:
        n, a, g, b, lds, nv = kernels[0]
        out += f"; @launch grid=({g},1,1) block=({b},1,1) lds={lds}\n"
    else:
        for n, a, g, b, lds, nv in kernels:
            out += f"; @launch kernel={n} grid=({g},1,1) block=({b},1,1) lds={lds}\n"
    out += DESCR
    out += '.amdgcn_target "amdgcn-amd-amdhsa--gfx950"\n.text\n'
    for n, a, g, b, lds, nv in kernels:
        a.pad_hazards()
        e = a.check_waits(n)
        assert e == 0, "wait errors"
        out += f".globl {n}\n.p2align 8\n.type {n},@function\n" + a.text()
    out += '.section .rodata,"a"\n'
    for n, a, g, b, lds, nv in kernels:
        out += ".p2align 6\n" + descriptor(n, nv)
    open(path, "w").write(out)
    import subprocess
    r = subprocess.run(["clang", "-x", "assembler", "-target", "amdgcn-amd-amdhsa", "-mcpu=gfx950", "-c", path, "-o", "_chk.o"], capture_output=True, text=True)
    assert r.returncode == 0, r.stderr[:2000]

WS_STAMP = 8 << 20
class Stamps:
    def __init__(self, a, enabled, base=70, real=False):
        self.a = a; self.en = enabled; self.base = base; self.n = 0; self.real = real
    def stamp(self):
        if not self.en: return
        self.a(f"{'s_memrealtime' if self.real else 's_memtime'} s[{self.base+2*self.n}:{self.base+2*self.n+1}]")
        self.n += 1
    def dump(self, slot_sgpr_expr_setup, region=0):
        if not self.en: return
        a = self.a
        a("s_waitcnt lgkmcnt(0)")
        a("s_mov_b64 exec, -1")
        import sys
        dbg = [x for x in sys.argv if x.startswith("--dbg=")]
        if dbg:
            wg, wv = dbg[0][6:].split(",")
            l = a.newlabel("nodump")
            a(f"s_cmp_eq_u32 s2, {wg}")
            a(f"s_cbranch_scc0 {l}")
            a(f"s_cmp_eq_u32 s26, {wv}")
            a(f"s_cbranch_scc0 {l}")
            a(f"s_mov_b32 s64, s{P_DBG}")
            a(f"s_mov_b32 s65, s{P_DBG+1}")
            a("s_mov_b32 s66, 256")
            a("s_mov_b32 s67, 0x20000")
            a("v_mov_b32 v2, 0")
            for k in range(self.n):
                a(f"s_sub_u32 s68, s{self.base+2*k}, s{self.base}")
                a(f"v_mov_b32 v3, s68")
                a(f"buffer_store_dword v3, v2, s[64:67], 0 offen offset:{4*k}")
            enc = [x for x in sys.argv if x.startswith("--enc=")]
            if enc:
                k = int(enc[0][6:])
                if k < self.n:
                    last = self.base + 2*(self.n-1)
                    a(f"s_sub_u32 s68, s{self.base+2*k}, s{self.base}")
                    a("s_lshl_b32 s68, s68, 2")
                    l2 = a.newlabel("enc")
                    a.label(l2)
                    a("s_memrealtime s[64:65]")
                    a("s_waitcnt lgkmcnt(0)")
                    a(f"s_sub_u32 s66, s64, s{last}")
                    a("s_cmp_lt_u32 s66, s68")
                    a(f"s_cbranch_scc1 {l2}")
            a.label(l)
            return
        a(f"s_add_u32 s64, s{P_WS}, {WS_STAMP + region*(1<<18)}")
        a(f"s_addc_u32 s65, s{P_WS+1}, 0")
        a("s_mov_b32 s66, 0x40000")
        a("s_mov_b32 s67, 0x20000")
        a("s_lshl_b32 s68, s2, 4")
        a("s_add_u32 s68, s68, s26")
        a("s_lshl_b32 s68, s68, 6")
        a("v_mov_b32 v2, 0")
        for k in range(self.n):
            a(f"v_mov_b32 v3, s{self.base+2*k}")
            a(f"buffer_store_dword v3, v2, s[64:67], s68 offen offset:{4*k}")
```

```python
import sys
from common import *
DIAG = "--diag" in sys.argv
VAR = dict((x[2:].split("=")+[1])[:2] for x in sys.argv if x.startswith("-V"))

W_KV = 0
W_F1 = 0x20000
W_F2 = 0x28000
W_F3 = 0x30000
W_EP = 0x3F000
W_OA = 1 << 20
W_OB = 3 << 20
W_HALO = 5 << 20
W_OF = 10 << 20
W_USED = 16 << 20
L_XA = 16384
L_WK = 0
WQ_SLOT = [49664 + 16384*(i % 6) for i in range(8)]
L_GB = 89600
GB_W, GB_X, GB_SZ = 0, 24576, 32896
L_COMB = 131072
L_QX = 155392
L_BEX = 155392
L_CNT = 163584
LDS_SIZE = 163840
C_BB, C_ST, C_EX, C_XA, C_QB, C_QC, C_QD, C_XD = 4, 16, 40, 72, 76, 92, 96, 100
C_ISS, C_QR = 8, 12
C_PR, C_CB, C_OF = 104, 112, 144
L_CB = 0
L_OA = 24576
BIAS = VAR.get("bias", "0xc2c80000")
VSC = 40
MAP81 = 'map24' not in VAR
XP = 1040
TAGC = 0x9E3779B9 - (1 << 32)
SPIN = 40000

def cvt8(a, dst, src):
    for i in range(4):
        a(f"v_cvt_pk_bf16_f32 v{dst+i}, v{src+2*i}, v{src+2*i+1}")

def tr_base32(a, dst, tmp):
    a(f"v_lshlrev_b32 v{dst}, 9, v7")
    a(f"v_bfe_u32 v{tmp}, v1, 2, 2")
    a(f"v_lshl_add_u32 v{dst}, v{tmp}, 6, v{dst}")
    a(f"v_bfe_u32 v{tmp}, v1, 4, 1")
    a(f"v_lshl_add_u32 v{dst}, v{tmp}, 5, v{dst}")
    a(f"v_and_b32 v{tmp}, 3, v1")
    a(f"v_lshl_add_u32 v{dst}, v{tmp}, 3, v{dst}")

def tr_base_wo(a, dst, tmp):
    a(f"v_lshlrev_b32 v{dst}, 8, v7")
    a(f"v_bfe_u32 v{tmp}, v1, 2, 2")
    a(f"v_lshl_add_u32 v{dst}, v{tmp}, 6, v{dst}")
    a(f"v_bfe_u32 v{tmp}, v1, 4, 1")
    a(f"v_lshl_add_u32 v{dst}, v{tmp}, 5, v{dst}")
    a(f"v_and_b32 v{tmp}, 1, v1")
    a(f"v_lshl_add_u32 v{dst}, v{tmp}, 4, v{dst}")
    a(f"v_bfe_u32 v{tmp}, v1, 1, 1")
    a(f"v_lshl_add_u32 v{dst}, v{tmp}, 3, v{dst}")

def lds_signal(a, off, addr="v10"):
    a("s_mov_b64 exec, 1")
    a(f"ds_add_u32 {addr}, v11 offset:{off}")
    a("s_mov_b64 exec, -1")
def lds_wait(a, off, val, tmp, stmp, addr="v10", sleep=1):
    l = a.newlabel("lw"); d = a.newlabel("lwd")
    a.label(l)
    a(f"ds_read_b32 v{tmp}, {addr} offset:{off}")
    a("s_waitcnt lgkmcnt(0)")
    a(f"v_readfirstlane_b32 s{stmp}, v{tmp}")
    a(f"s_cmp_ge_u32 s{stmp}, {val}")
    a(f"s_cbranch_scc1 {d}")
    if sleep: a(f"s_sleep {sleep}")
    a(f"s_branch {l}")
    a.label(d)
def bbar(a, tmp=5):
    a("s_add_u32 s58, s58, 4")
    lds_signal(a, C_BB)
    lds_wait(a, C_BB, "s58", tmp, 51, sleep=2)

def poll_flags(a, voff, soff, nl, t, sleep=2, width=4):
    l = a.newlabel("pf"); d = a.newlabel("pfd")
    a(f"s_mov_b32 s63, {SPIN}")
    a(f"s_mov_b64 exec, {(1 << nl) - 1}")
    a.label(l)
    if width == 4:
        a(f"buffer_load_dwordx4 {vr(t,4)}, v{voff}, s[36:39], {soff} offen sc1")
        a("s_waitcnt vmcnt(0)")
        for i in range(4): a(f"v_xor_b32 v{t+i}, s62, v{t+i}")
        a(f"v_or3_b32 v{t}, v{t}, v{t+1}, v{t+2}")
        a(f"v_or_b32 v{t}, v{t}, v{t+3}")
    else:
        a(f"buffer_load_dword v{t}, v{voff}, s[36:39], {soff} offen sc1")
        a("s_waitcnt vmcnt(0)")
        a(f"v_xor_b32 v{t}, s62, v{t}")
    a(f"v_cmp_ne_u32 vcc, 0, v{t}")
    a("s_nop 1")
    a(f"s_cbranch_vccz {d}")
    a(f"s_sleep {sleep}")
    a("s_sub_u32 s63, s63, 1")
    a("s_cmp_lg_u32 s63, 0")
    a(f"s_cbranch_scc1 {l}")
    a.label(d)
    a("s_mov_b64 exec, -1")

def store_flag(a, soff, t):
    a(f"v_mov_b32 v{t}, s62")
    a(f"v_mov_b32 v{t+1}, 0")
    a("s_mov_b64 exec, 1")
    a(f"buffer_store_dword v{t}, v{t+1}, s[36:39], {soff} offen sc1")
    a("s_mov_b64 exec, -1")

def rowmax16(a, dst, S, init=None):
    if init is None:
        a(f"v_max3_f32 v{dst}, v{S}, v{S+1}, v{S+2}")
        for i in range(3, 15, 2): a(f"v_max3_f32 v{dst}, v{dst}, v{S+i}, v{S+i+1}")
        a(f"v_max_f32 v{dst}, v{dst}, v{S+15}")
    else:
        for i in range(0, 16, 2): a(f"v_max3_f32 v{dst}, v{dst}, v{S+i}, v{S+i+1}")
def xhalf_max(a, dst, tmp):
    a(f"v_mov_b32 v{tmp}, v{dst}")
    a(f"v_permlane32_swap_b32 v{dst}, v{tmp}")
    a(f"v_max_f32 v{dst}, v{dst}, v{tmp}")

def kv_dma(a, sreg, n):
    for q in range(n):
        if (q & 3) == 0:
            a(f"s_mov_b32 m0, s{sreg}")
            a("s_lshl_b32 s51, s3, 12")
            a(f"s_add_u32 s51, s51, s{sreg}")
            a("s_and_b32 s51, s51, 0x1ffff")
        a(f"buffer_load_dwordx4 v9, s[36:39], s51 offen offset:{(q&3)*1024} sc1 lds")
        if (q & 3) == 3 and q + 1 < n: a(f"s_add_u32 s{sreg}, s{sreg}, 4096")

def kv_job(a, st=None):
    X = 24; W = 88
    lv = a.newlabel("kv_v"); ld = a.newlabel("kv_d")
    def reads(s):
        a(f"ds_read_b128 {vr(X+4*s,4)}, v14 offset:{s*64}")
        for t in range(2):
            a(f"ds_read_b64_tr_b16 {vr(W+4*s+2*t,2)}, v15 offset:{L_WK + s*1024 + t*128}")
    a("s_cmp_eq_u32 s45, 0")
    a(f"s_cbranch_scc0 {lv}")
    for which in range(2):
        if which: a.label(lv)
        for s in range(4): reads(s)
        for s in range(16):
            if s + 4 < 16:
                reads(s + 4); a("s_waitcnt lgkmcnt(12)")
            else:
                a(f"s_waitcnt lgkmcnt({3*(15-s)})")
            if which == 0: mfma16(a, 20, W+4*s, X+4*s, "0" if s == 0 else 20)
            else:          mfma16(a, 20, X+4*s, W+4*s, "0" if s == 0 else 20)
        if not which: a(f"s_branch {ld}")
    a.label(ld)
    lds_signal(a, C_XD)
    if st: st.stamp()
    a("s_cmp_eq_u32 s45, 0")
    a(f"s_cselect_b32 s51, 1.0, {hex((127 + VSC) << 23)}")
    for i in range(4): a(f"v_mul_f32 v{20+i}, s51, v{20+i}")
    a("v_cvt_pk_bf16_f32 v18, v20, v21")
    a("v_cvt_pk_bf16_f32 v19, v22, v23")
    a("buffer_store_dwordx2 v[18:19], v16, s[36:39], s52 offen sc1")
    a("s_waitcnt vmcnt(0)")
    store_flag(a, "s53", 18)

def kv_setup(a):
    a("v_and_b32 v12, 15, v1")
    a("v_lshrrev_b32 v13, 4, v1")
    a(f"v_mul_u32_u24 v14, {XP}, v12")
    a("v_lshl_add_u32 v14, v13, 4, v14")
    a(f"s_mul_i32 s51, s46, {16*XP}")
    a(f"s_add_u32 s51, s51, {L_XA}")
    a("v_add_u32 v14, s51, v14")
    a("v_lshlrev_b32 v15, 8, v13")
    a("v_lshl_add_u32 v15, v12, 3, v15")
    a("v_and_b32 v16, 1, v13")
    a("s_cmp_eq_u32 s45, 0")
    a("s_cselect_b32 s51, 9, 8")
    a("s_cselect_b32 s52, 8, 9")
    a("s_lshl_b32 s52, s46, s52")
    a("s_lshl_b32 s53, s45, 10")
    a("s_add_u32 s52, s52, s53")
    a("s_lshl_b32 s53, s40, 11")
    a("s_add_u32 s52, s52, s53")
    a("v_lshlrev_b32 v16, s51, v16")
    a("v_lshl_add_u32 v16, v12, 4, v16")
    a("v_lshrrev_b32 v17, 1, v13")
    a("v_lshl_add_u32 v16, v17, 3, v16")
    a("s_lshl_b32 s53, s40, 7")
    a("s_lshl_b32 s54, s41, 2")
    a("s_add_u32 s53, s53, s54")
    a(f"s_add_u32 s53, s53, {W_F1}")

def stouch_setup(a, slot, bw, bx):
    a("s_lshr_b32 s51, s3, 2")
    a(f"s_lshl_b32 s54, {slot}, 3")
    a("s_add_u32 s51, s51, s54")
    a("s_lshl_b32 s51, s51, 10")
    a("s_lshl_b32 s54, s27, 7")
    a("s_add_u32 s51, s51, s54")
    a(f"s_add_u32 s{bw}, s{P_BWQKV}, s51")
    a(f"s_addc_u32 s{bw+1}, s{P_BWQKV+1}, 0")
    a(f"s_add_u32 s{bw+2}, s{bw}, {24*32768}")
    a(f"s_addc_u32 s{bw+3}, s{bw+1}, 0")
    a("s_lshr_b32 s51, s40, 1")
    a("s_lshl_b32 s51, s51, 16")
    a("s_and_b32 s54, s3, 3")
    a("s_lshl_b32 s54, s54, 14")
    a("s_add_u32 s51, s51, s54")
    a(f"s_lshl_b32 s54, {slot}, 12")
    a("s_add_u32 s51, s51, s54")
    a(f"s_add_u32 s{bx}, s{P_BX}, s51")
    a(f"s_addc_u32 s{bx+1}, s{P_BX+1}, 0")
def stouch_list(chunks, bw, bx):
    l = []
    for c in chunks:
        for r in range(4): l.append((f"s[{bx}:{bx+1}]", r*1024 + c*128))
        for i in range(6):
            m = c*6 + i
            l.append((f"s[{bw}:{bw+1}]", m*32768) if m < 24 else (f"s[{bw+2}:{bw+3}]", (m-24)*32768))
    return l

def role_a(a, st):
    FINE = "fine" in VAR
    class F:
        def stamp(self):
            if FINE: st0.stamp()
    st0 = st; fs = F()
    if FINE:
        class N:
            n = 0
            def stamp(self): pass
            def dump(self, *x): st0.dump(*x)
        st = N()
    a("s_sub_u32 s59, s26, 4")
    a("s_and_b32 s42, s59, 3")
    a("s_lshr_b32 s43, s59, 2")
    srd(a, 28, P_AX, 2 << 20)
    a("s_lshr_b32 s46, s41, 1")
    for k in range(2):
        if k: a("s_xor_b32 s46, s46, 1")
        a("s_lshl_b32 s49, s46, 4")
        a("s_lshl_b32 s48, s59, 1")
        a("s_add_u32 s49, s49, s48")
        a("s_lshl_b32 s48, s40, 5")
        a("s_add_u32 s48, s48, s49")
        a("s_lshl_b32 s48, s48, 10")
        a(f"s_mul_i32 s49, s49, {XP}")
        for q in range(2):
            a(f"s_add_u32 m0, s49, {L_XA + q*XP - q*1024}")
            a(f"buffer_load_dwordx4 v9, s[28:31], s48 offen offset:{q*1024} lds")
    if "nobar0" not in VAR: a("s_barrier")
    srd(a, 32, P_AWQ, 512 * 1024)
    S0, S1, O0, O1, C0, C1, P0, P1, Q0, Q1, KB, VB = 16, 32, 48, 64, 80, 96, 112, 120, 128, 132, 136, 144
    a(f"s_bfe_u32 s55, s3, {0x30002 if MAP81 else 0x30001}")
    a("s_cmp_eq_u32 s43, 0")
    a("s_cbranch_scc0 a_kh1")
    def early_init():
        for i in range(32): a(f"v_mov_b32 v{O0+i}, 0")
        a("s_lshl_b32 s56, s43, 11")
        a("v_add_u32 v2, s56, v9")
        a("v_lshlrev_b32 v3, 8, v7")
        a("v_lshl_add_u32 v3, v6, 4, v3")
        a("v_add_u32 v3, s56, v3")
        a("s_mov_b32 s60, 0x0000ffff")
        a("s_mov_b32 s61, 0x0000ffff")
        a("v_and_b32 v14, 27, v6")
        a("v_cmp_eq_u32 vcc, 16, v14")
        a(f"v_mov_b32 v13, {hex(((127 + VSC) << 7) * 0x10001)}")
        a("v_cndmask_b32 v14, 0, v13, vcc")
        for i in range(8): a(f"v_mov_b32 v{VB+i}, v14")
    XF = 16; WF = 144; ACC = 152
    a(f"v_mul_u32_u24 v4, {XP}, v6")
    a("v_lshl_add_u32 v4, v7, 4, v4")
    a("v_lshlrev_b32 v8, 11, v7")
    a("v_bfe_u32 v5, v1, 2, 2")
    a("v_lshl_add_u32 v8, v5, 8, v8")
    a("v_xor_b32 v5, s42, v5")
    a("v_lshl_add_u32 v8, v5, 6, v8")
    a("v_bfe_u32 v5, v1, 4, 1")
    a("v_lshl_add_u32 v8, v5, 5, v8")
    a("v_and_b32 v5, 3, v1")
    a("v_lshl_add_u32 v8, v5, 3, v8")
    a(f"v_add_u32 v8, 49664, v8")
    a(f"v_add_u32 v15, {3*16384}, v8")
    a("s_waitcnt vmcnt(2) lgkmcnt(0)")
    a("s_barrier")
    st.stamp()
    a("s_waitcnt vmcnt(0)")
    lds_signal(a, C_XA)
    fs.stamp()
    lds_wait(a, C_XA, 8, 12, 51)
    if "nohold" not in VAR: lds_wait(a, C_XD, 1, 12, 51, sleep=1)
    fs.stamp()
    def xload(i):
        a(f"s_add_u32 s51, s55, {i}")
        a("s_and_b32 s51, s51, 7")
        a("s_lshl_b32 s51, s51, 7")
        a("v_add_u32 v5, s51, v4")
        for sp in range(4):
            a(f"ds_read_b128 {vr(XF+16*i+4*sp,4)}, v5 offset:{L_XA + sp*32}")
    for i in range(6): xload(i)
    st.stamp()
    def wreg(st_): return XF + 4*((st_ - 8) % 32)
    def qread(st_):
        i = st_ >> 2; sp = st_ & 3; sl = i % 6
        for t in range(2):
            a(f"ds_read_b64_tr_b16 {vr(wreg(st_)+2*t,2)}, {'v8' if sl < 3 else 'v15'} offset:{(sl%3)*16384 + sp*4096 + t*1024}")
    fs.stamp()
    lds_wait(a, C_QB + 0, 4, 12, 51, sleep=0)
    fs.stamp()
    for k in range(8): qread(k)
    lds_signal(a, C_QC)
    for grp in range(4):
        if grp < 3:
            lds_wait(a, C_QB + 4*(grp+1), 4, 12, 51, sleep=0)
            fs.stamp()
        if grp == 3: early_init()
        for k in range(8):
            st_ = 8*grp + k
            if grp == 3: a(f"s_waitcnt lgkmcnt({min(15, 2*(7-k) + 1) if not FINE else 0})")
            mfma32(a, ACC, wreg(st_), XF+4*st_, "0" if st_ == 0 else ACC)
            if grp < 3: qread(st_ + 8)
        if grp == 0:
            xload(6); xload(7)
            lds_signal(a, C_XD)
        if grp == 2: lds_signal(a, C_QD)
    st.stamp()
    a(f"s_mov_b32 s51, {CSCALE}")
    a("s_lshl_b32 s53, s42, 11")
    a(f"s_add_u32 s53, s53, {L_QX}")
    a("v_add_u32 v12, s53, v9")
    a("s_lshl_b32 s53, s42, 2")
    a("v_add_u32 v13, s53, v10")
    for i in range(16): a(f"v_mul_f32 v{ACC+i}, s51, v{ACC+i}")
    cvt8(a, Q1, ACC); cvt8(a, Q0, ACC+8)
    a(f"ds_write_b128 v12, {vr(Q1,4)}")
    a(f"ds_write_b128 v12, {vr(Q0,4)} offset:1024")
    lds_signal(a, C_EX, "v13")
    fs.stamp()
    a("s_branch a_join")
    a.label("a_kh1")
    st.n -= 3
    if FINE: st0.n = 1
    a("v_lshrrev_b32 v4, 4, v1")
    a("v_bfe_u32 v5, v1, 2, 2")
    a("v_xor_b32 v5, v5, v4")
    a("v_lshlrev_b32 v3, 10, v4")
    a("v_lshl_add_u32 v3, v5, 6, v3")
    a("v_and_b32 v5, 3, v1")
    a("v_lshl_add_u32 v3, v5, 4, v3")
    a("s_lshl_b32 s48, s42, 14")
    a("s_lshl_b32 s51, s41, 8")
    a("s_add_u32 s48, s48, s51")
    a("s_lshl_b32 s49, s42, 12")
    def op_q(i):
        a(f"s_add_u32 s51, s55, {i}")
        a("s_and_b32 s51, s51, 7")
        a("s_lshl_b32 s51, s51, 16")
        a("s_add_u32 s51, s51, s48")
        for q in range(4):
            a(f"s_add_u32 m0, s49, {WQ_SLOT[i] + q*1024}")
            if q: a("s_add_u32 s51, s51, 4096")
            a("buffer_load_dwordx4 v3, s[32:35], s51 offen lds")
    NPRE = 2
    for i in range(NPRE): op_q(i)
    a("s_waitcnt vmcnt(10) lgkmcnt(0)")
    a("s_barrier")
    st.stamp()
    a("s_waitcnt vmcnt(8)")
    fs.stamp()
    lds_signal(a, C_XA)
    if "nohold" not in VAR: lds_wait(a, C_XD, 1, 12, 51, sleep=1)
    op_q(2); op_q(3)
    a("s_waitcnt vmcnt(8)")
    fs.stamp()
    lds_signal(a, C_QB + 0)
    op_q(4); op_q(5)
    a("s_waitcnt vmcnt(8)")
    fs.stamp()
    lds_signal(a, C_QB + 4)
    lds_wait(a, C_QC, 4, 12, 51, sleep=0)
    fs.stamp()
    op_q(6); op_q(7)
    fs.stamp()
    lds_signal(a, C_ISS)
    a("s_waitcnt vmcnt(8)")
    fs.stamp()
    lds_signal(a, C_QB + 8)
    a("s_waitcnt vmcnt(0)")
    fs.stamp()
    lds_signal(a, C_QB + 12)
    st.stamp()
    early_init()
    a("s_lshl_b32 s53, s42, 11")
    a(f"s_add_u32 s53, s53, {L_QX}")
    a("v_add_u32 v15, s53, v9")
    a("s_lshl_b32 s53, s42, 2")
    a("v_add_u32 v13, s53, v10")
    lds_wait(a, C_EX, 1, 12, 51, "v13")
    a(f"ds_read_b128 {vr(Q0,4)}, v15")
    a(f"ds_read_b128 {vr(Q1,4)}, v15 offset:1024")
    fs.stamp()
    lds_signal(a, C_QR)
    st.stamp()
    a.label("a_join")
    def tail_setup():
        a("s_xor_b32 s52, s59, 4")
        a("s_mul_i32 s53, s59, 3072")
        a(f"v_add_u32 v160, s53, v9")
        a("s_mul_i32 s53, s52, 3072")
        a(f"v_add_u32 v161, s53, v9")
        a("s_lshl_b32 s53, s59, 2")
        a("v_add_u32 v162, s53, v10")
        a("s_lshl_b32 s53, s52, 2")
        a("v_add_u32 v163, s53, v10")
        a("s_lshl_b32 s57, s42, 1")
        a("s_add_u32 s57, s57, s43")
        a("s_lshl_b32 s58, s40, 5")
        a("s_lshl_b32 s53, s41, 3")
        a("s_add_u32 s53, s53, s58")
        a("s_add_u32 s53, s53, s57")
        a("s_lshl_b32 s53, s53, 10")
        a(f"s_add_u32 s44, s53, {W_OA}")
        a("s_lshl_b32 s57, s57, 10")
        a(f"s_add_u32 s57, s57, {L_OA}")
        a("v_add_u32 v164, s57, v9")
        a(f"s_add_u32 s48, s44, {W_OF - W_OA}")
        a("s_lshl_b32 s57, s59, 10")
        a(f"s_add_u32 s57, s57, {L_OA}")
        a("v_add_u32 v165, s57, v9")
        for d in range(1, 4):
            a(f"s_add_u32 s51, s41, {d}")
            a("s_and_b32 s51, s51, 3")
            a("s_lshl_b32 s51, s51, 3")
            a("s_add_u32 s51, s51, s58")
            a("s_add_u32 s51, s51, s59")
            a("s_lshl_b32 s51, s51, 10")
            a(f"s_add_u32 s{44+d}, s51, {W_OA}")
    for i in range(8, 16): a(f"v_mov_b32 v{VB+i}, v14")
    for i in range(4): a(f"v_mov_b32 v{P1+4+i}, 0")
    st.stamp()
    lds_wait(a, C_ST + 0, 4, 12, 51, sleep=0)
    if FINE: st0.n = 12
    fs.stamp()
    def kvread(b, off):
        a(f"ds_read_b128 {vr(KB+4*b,4)}, v2 offset:{off}")
        a("s_mov_b64 exec, s[60:61]")
        a(f"ds_read_b128 {vr(VB+8*b,4)}, v3 offset:{off+1024}")
        a(f"ds_read_b128 {vr(VB+8*b+4,4)}, v3 offset:{off+1536}")
        a("s_mov_b64 exec, -1")
    a(f"ds_read_b128 {vr(P0,4)}, v9")
    DEEP = "shallow" not in VAR
    def kread(b, off): a(f"ds_read_b128 {vr(KB+4*b,4)}, v2 offset:{off}")
    def vread(b, off):
        a("s_mov_b64 exec, s[60:61]")
        a(f"ds_read_b128 {vr(VB+8*b,4)}, v3 offset:{off+1024}")
        a(f"ds_read_b128 {vr(VB+8*b+4,4)}, v3 offset:{off+1536}")
        a("s_mov_b64 exec, -1")
    kvread(0, 0)
    if DEEP: kread(1, 4096)
    a(f"s_waitcnt lgkmcnt({4 if DEEP else 3})" if not DIAG else "s_waitcnt lgkmcnt(0)")
    mfma32(a, S0, P0, Q0, "0")
    mfma32(a, S1, P0, Q1, "0")
    for S, C in ((S0, C0), (S1, C1)):
        rowmax16(a, 12, S)
        xhalf_max(a, 12, 13)
        a(f"v_sub_f32 v{C}, {BIAS}, v12")
        for i in range(1, 16): a(f"v_mov_b32 v{C+i}, v{C}")
        if S == S0:
            a("s_waitcnt lgkmcnt(0)")
            mfma32(a, S0, KB, Q0, C0)
    st.stamp()
    a("s_mov_b32 s50, 0")
    a(f"s_setprio {VAR.get('ap0', 3)}")
    if DIAG: a("s_waitcnt lgkmcnt(0)")
    a(".p2align 6")
    a.label("a_loop")
    def E(S, lo, hi):
        for i in range(lo, hi): a(f"v_exp_f32 v{S+i}, v{S+i}")
    def half(S, P, O, Vx, pvy, snext, w1, post, post2=(), w2=None):
        E(S, 0, 2)
        mfma32(a, *pvy)
        for x in post: x()
        E(S, 2, 8)
        if w1: a("s_waitcnt lgkmcnt(0)")
        mfma32(a, *snext)
        for x in post2: x()
        cvt8(a, P, S)
        E(S, 8, 12)
        if w2 is not None: a(f"s_waitcnt lgkmcnt({w2})")
        mfma32(a, O, Vx, P, O)
        E(S, 12, 16)
        cvt8(a, P+4, S+8)
    HK = {0: [("w", 4)], 1: [("w", 8)], 3: [("p", 2)], 4: [("w", 12)], 5: [("p", 1)], 6: [("p", 0)]}
    VAR.setdefault("pr", "4,6,7")
    if "pr" in VAR:
        for k in list(HK): HK[k] = [x for x in HK[k] if x[0] != "p"]
        for lvl, it in zip((2, 1, 0), VAR["pr"].split(",")): HK.setdefault(int(it), []).append(("p", lvl))
    if "ap0" in VAR: HK = {0: [("w", 4)], 1: [("w", 8)], 3: [("p", 1)], 4: [("w", 12)], 6: [("p", 0)]}
    def hooks():
        a("s_bitcmp1_b32 s50, 2")
        a("s_cbranch_scc1 a_hk_hi")
        a("s_branch a_hk_lo")
        a.label("a_hk_done")
    for t in range(4):
        b = t & 1; nb = b ^ 1
        if DEEP:
            post = [lambda: vread(nb, (t+1)*4096)]
            if t == 2: post = [hooks] + post
            half(S0, P0, O0, VB+8*b, (O1, VB+8*nb+4, P1+4, O1), (S1, KB+4*b, Q1, C1), False, post, [lambda: kread(b, (t+2)*4096)], 3)
            half(S1, P1, O1, VB+8*b, (O0, VB+8*b+4, P0+4, O0), (S0, KB+4*nb, Q0, C0), False, [])
            continue
        post = [lambda: kvread(nb, (t+1)*4096)]
        if t == 3: post = [hooks] + post
        half(S0, P0, O0, VB+8*b, (O1, VB+8*nb+4, P1+4, O1), (S1, KB+4*b, Q1, C1), False, post)
        half(S1, P1, O1, VB+8*b, (O0, VB+8*b+4, P0+4, O0), (S0, KB+4*nb, Q0, C0), True, [])
    a("v_add_u32 v2, 16384, v2")
    a("v_add_u32 v3, 16384, v3")
    a("s_add_u32 s50, s50, 1")
    a("s_cmp_lt_u32 s50, 8")
    a("s_cbranch_scc1 a_loop")
    mfma32(a, O1, VB+8+4, P1+4, O1)
    st.stamp()
    for i in range(2): a(f"ds_write_b128 v160, {vr(O0+4*i,4)} offset:{L_CB + i*1024}")
    a(f"ds_write_b32 v160, v{O0+8} offset:{L_CB + 2048}")
    lds_signal(a, C_CB, "v162")
    a("s_setprio 3")
    lds_wait(a, C_CB, 1, 12, 51, "v163", sleep=1)
    for i in range(2): a(f"ds_read_b128 {vr(S0+4*i,4)}, v161 offset:{L_CB + i*1024}")
    a(f"ds_read_b32 v{S0+8}, v161 offset:{L_CB + 2048}")
    a("s_mov_b32 s51, 0x7b800000")
    a(f"s_mov_b32 s53, {hex((127 - 85) << 23)}")
    a("s_waitcnt lgkmcnt(0)")
    a(f"v_add_f32 v{O1+8}, v{O1+8}, v{S0+8}")
    a(f"v_rcp_f32 v14, v{O1+8}")
    for i in range(8): a(f"v_add_f32 v{O1+i}, v{O1+i}, v{S0+i}")
    a(f"v_add_f32 v12, abs(v{O1}), abs(v{O1+1})")
    a(f"v_add_f32 v13, abs(v{O1+2}), abs(v{O1+3})")
    for i in range(4, 8, 2):
        a(f"v_add_f32 v12, v12, abs(v{O1+i})")
        a(f"v_add_f32 v13, v13, abs(v{O1+i+1})")
    a("v_add_f32 v12, v12, v13")
    a(f"v_add_f32 v13, v12, v{O1+8}")
    a("v_cmp_ngt_f32 vcc, s51, v13")
    a("v_cmp_gt_f32 s[64:65], s53, v12")
    a("s_or_b64 vcc, vcc, s[64:65]")
    if "forcefb" in VAR: a("s_mov_b64 vcc, -1")
    a("s_cbranch_vccnz a_fallback")
    a.label("a_norm")
    for i in range(8): a(f"v_mul_f32 v{O1+i}, v{O1+i}, v14")
    cvt8(a, P0, O1)
    for i in range(4): a(f"v_min_u32 v{P0+i}, -2, v{P0+i}")
    if "noslow" not in VAR: a(f"buffer_store_dwordx4 {vr(P0,4)}, v9, s[36:39], s44 offen sc1")
    if "nofast" not in VAR: a(f"buffer_store_dwordx4 {vr(P0,4)}, v9, s[36:39], s48 offen")
    a(f"ds_write_b128 v164, {vr(P0,4)}")
    lds_signal(a, C_OF)
    st.stamp()
    a(f"s_mov_b32 s63, {SPIN}")
    a("s_mov_b32 s50, 0")
    a.label("a_poll")
    a(f"s_cmp_lt_u32 s63, {SPIN - int(VAR.get('fastn', 12))}")
    a("s_cselect_b32 s51, s63, 0")
    a("s_bitcmp1_b32 s51, 0")
    a(f"s_cselect_b32 s51, 0, {W_OF - W_OA}")
    a("v_add_u32 v13, s51, v9")
    for d in range(1, 4):
        a(f"buffer_load_dwordx4 {vr(S0+4*(d-1),4)}, v13, s[36:39], s{44+d} offen sc1")
    a("s_sub_u32 s63, s63, 1")
    for d in range(1, 4):
        r = S0 + 4*(d-1)
        nx = a.newlabel("pn")
        a(f"s_waitcnt vmcnt({3-d})")
        a(f"s_bitcmp1_b32 s50, {d}")
        a(f"s_cbranch_scc1 {nx}")
        a(f"v_max3_u32 v12, v{r}, v{r+1}, v{r+2}")
        a(f"v_max_u32 v12, v12, v{r+3}")
        a("v_cmp_eq_u32 vcc, -1, v12")
        a("s_cmp_eq_u32 s63, 0")
        a("s_cselect_b64 vcc, 0, vcc")
        a(f"s_cbranch_vccnz {nx}")
        a(f"ds_write_b128 v165, {vr(r,4)} offset:{d*8192}")
        lds_signal(a, C_OF + 4*d)
        a(f"s_bitset1_b32 s50, {d}")
        a.label(nx)
    a("s_cmp_eq_u32 s50, 14")
    a("s_cbranch_scc1 a_got")
    a(f"s_sleep {VAR.get('tsleep', 1)}")
    a("s_branch a_poll")
    a.label("a_got")
    st.stamp()
    st.dump(None, 0)
    a("s_endpgm")
    HK[3] = HK.get(3, []) + [("sig", C_PR)]
    HK[2] = [x for x in HK.get(2, []) if x[0] == "p"] + [("w", 8), ("f", tail_setup)]
    HK[1] = [x for x in HK[1] if x[0] == "p"]
    HK[7] = [x for x in HK.get(7, []) if x[0] == "p"] + [("w", 16), ("w8", C_PR)]
    for nm, rng in (("a_hk_lo", range(0, 4)), ("a_hk_hi", range(4, 8))):
        a.label(nm)
        for i in rng:
            if i not in HK: continue
            nx = a.newlabel("hk")
            a(f"s_cmp_eq_u32 s50, {i}")
            a(f"s_cbranch_scc0 {nx}")
            for kind, v in HK[i]:
                if kind == "w": lds_wait(a, C_ST + v, 4, 12, 51)
                elif kind == "sig": lds_signal(a, v)
                elif kind == "f": v()
                elif kind == "w8": lds_wait(a, v, 8, 12, 51)
                elif kind == "s":
                    a("s_cmp_eq_u32 s43, 0")
                    a("s_cbranch_scc0 a_hk_done")
                    a("s_waitcnt vmcnt(0)")
                    lds_signal(a, C_ST + v)
                else: a(f"s_setprio {v}")
            a("s_branch a_hk_done")
            a.label(nx)
        a("s_branch a_hk_done")
    a.label("a_fallback")
    a("v_mov_b32 v12, 0xff800000")
    a("s_mov_b32 s50, 0")
    a.label("a_fb1")
    a(f"buffer_load_dwordx4 {vr(KB,4)}, v9, s[36:39], s50 offen sc1")
    a("s_waitcnt vmcnt(0)")
    mfma32(a, S0, KB, Q1, "0")
    a("s_add_u32 s50, s50, 2048")
    rowmax16(a, 12, S0, init=True)
    a("s_cmp_lt_u32 s50, 0x20000")
    a("s_cbranch_scc1 a_fb1")
    xhalf_max(a, 12, 13)
    a(f"v_sub_f32 v{C0}, 0, v12")
    for i in range(1, 16): a(f"v_mov_b32 v{C0+i}, v{C0}")
    for i in range(16): a(f"v_mov_b32 v{O1+i}, 0")
    a("v_lshlrev_b32 v3, 8, v7")
    a("v_lshl_add_u32 v3, v6, 4, v3")
    a("s_mov_b32 s50, 0")
    a.label("a_fb2")
    a(f"buffer_load_dwordx4 {vr(KB,4)}, v9, s[36:39], s50 offen sc1")
    a("s_mov_b64 exec, s[60:61]")
    a(f"buffer_load_dwordx4 {vr(VB,4)}, v3, s[36:39], s50 offen offset:1024 sc1")
    a(f"buffer_load_dwordx4 {vr(VB+4,4)}, v3, s[36:39], s50 offen offset:1536 sc1")
    a("s_mov_b64 exec, -1")
    a("s_waitcnt vmcnt(0)")
    mfma32(a, S0, KB, Q1, C0)
    a("s_add_u32 s50, s50, 2048")
    E(S0, 0, 16)
    cvt8(a, P0, S0); cvt8(a, P0+4, S0+8)
    mfma32(a, O1, VB, P0, O1)
    mfma32(a, O1, VB+4, P0+4, O1)
    a("s_cmp_lt_u32 s50, 0x20000")
    a("s_cbranch_scc1 a_fb2")
    a(f"v_rcp_f32 v14, v{O1+8}")
    a("s_branch a_norm")

def role_b(a, st):
    a("s_setprio 3")
    a("s_and_b32 s45, s41, 1")
    a("s_lshr_b32 s46, s41, 1")
    a("s_cmp_eq_u32 s45, 0")
    a(f"s_cselect_b32 s28, s{P_AWK}, s{P_AWV}")
    a(f"s_cselect_b32 s29, s{P_AWK+1}, s{P_AWV+1}")
    a("s_mov_b32 s30, 16384")
    a("s_mov_b32 s31, 0x20000")
    a("s_lshl_b32 s51, s26, 12")
    a(f"s_add_u32 m0, s51, {L_WK}")
    for q in range(4):
        a(f"buffer_load_dwordx4 v9, s[28:31], s51 offen offset:{q*1024} lds")
    a(f"v_mov_b32 v18, {W_EP}")
    a("buffer_load_dword v19, v18, s[36:39], 0 offen sc1")
    if "nobar0" not in VAR: a("s_barrier")
    a("s_mov_b32 s58, 0")
    a("s_lshr_b32 s44, s40, 1")
    a("s_and_b32 s42, s26, 1")
    a("s_lshr_b32 s43, s26, 1")
    srd(a, 28, P_BX, 2 << 20)
    srd(a, 32, P_BWQKV, 512 * 3072)
    a("v_lshrrev_b32 v12, 3, v1")
    a("v_and_b32 v13, 7, v1")
    a("v_bfe_u32 v14, v1, 4, 1")
    a("v_lshlrev_b32 v14, 2, v14")
    a("v_xor_b32 v14, v14, v13")
    a("v_mul_u32_u24 v3, 3072, v12")
    a("v_lshl_add_u32 v3, v14, 4, v3")
    a("v_lshlrev_b32 v4, 10, v12")
    a("v_lshl_add_u32 v4, v14, 4, v4")
    a(f"s_mul_i32 s64, s26, {16*3072}")
    a("s_lshl_b32 s51, s27, 7")
    a("s_add_u32 s64, s64, s51")
    a("s_lshl_b32 s65, s44, 16")
    a("s_lshl_b32 s51, s26, 14")
    a("s_add_u32 s65, s65, s51")
    if MAP81:
        a("s_lshr_b32 s67, s3, 3")
        a("s_lshl_b32 s67, s67, 1")
        a("s_add_u32 s67, s67, s3")
    else:
        a("s_lshr_b32 s67, s3, 2")
        a("s_lshl_b32 s51, s3, 1")
        a("s_add_u32 s67, s67, s51")
    a("s_and_b32 s67, s67, 7")
    a("s_mul_i32 s56, s26, 6144")
    a(f"s_add_u32 s56, s56, {L_GB + GB_W}")
    a("s_mul_i32 s57, s26, 2080")
    a(f"s_add_u32 s57, s57, {L_GB + GB_X}")
    def issue_ops(buf):
        o = buf * GB_SZ
        def pre():
            a(f"s_mul_i32 s48, s67, {64*3072}")
            a("s_add_u32 s48, s48, s64")
            a(f"s_add_u32 s47, s48, {8*3072}")
            a("s_lshl_b32 s49, s67, 7")
            a("s_add_u32 s49, s49, s65")
            a("s_add_u32 s66, s49, 8192")
            a("s_add_u32 s67, s67, 1")
            a("s_and_b32 s67, s67, 7")
        ops = [pre]
        for q in range(2):
            def fx(q=q):
                a(f"s_add_u32 m0, s57, {o + q*1040}")
                a(f"buffer_load_dwordx4 v4, s[28:31], {'s66' if q else 's49'} offen lds")
            ops.append(fx)
        for gq in range(2):
            for t in range(3):
                def f(gq=gq, t=t):
                    if t == 0: a(f"s_add_u32 m0, s56, {o + gq*3072}")
                    a(f"buffer_load_dwordx4 v3, s[32:35], {'s47' if gq else 's48'} offen offset:{t*1024} lds")
                ops.append(f)
        return ops
    BST = VAR.get("bstart", "st4")
    if BST == "early":
        for f in issue_ops(0): f()
    lk = a.newlabel("nokv")
    a("v_lshl_add_u32 v5, v1, 2, v10")
    a("v_mov_b32 v12, 0")
    a("ds_write_b32 v5, v12")
    kv_setup(a)
    a("s_waitcnt vmcnt(0) lgkmcnt(0)")
    a("v_readfirstlane_b32 s62, v19")
    a(f"s_add_u32 s62, s62, {TAGC}")
    a("s_barrier")
    a("s_cmp_eq_u32 s26, 3")
    a(f"s_cbranch_scc0 {lk}")
    kv_job(a, st if "fine" in VAR else None)
    a.label(lk)
    st.stamp()
    a("s_mov_b32 s45, s27")
    a("v_mul_u32_u24 v8, 3072, v7")
    a("v_bfe_u32 v14, v1, 2, 2")
    a("v_lshl_add_u32 v8, v14, 7, v8")
    a("v_bfe_u32 v14, v1, 3, 1")
    a("v_xor_b32 v14, s42, v14")
    a("v_lshl_add_u32 v8, v14, 6, v8")
    a("v_bfe_u32 v14, v1, 4, 1")
    a("v_lshl_add_u32 v8, v14, 5, v8")
    a("v_and_b32 v14, 3, v1")
    a("v_lshl_add_u32 v8, v14, 3, v8")
    a(f"v_add_u32 v8, {L_GB + GB_W}, v8")
    XM = 152
    a("v_bfe_u32 v14, v1, 1, 1")
    a("v_lshlrev_b32 v14, 2, v14")
    a("v_or_b32 v14, v14, v7")
    a("v_lshlrev_b32 v14, 4, v14")
    a("v_and_b32 v15, 7, v1")
    a("v_lshl_add_u32 v14, v15, 7, v14")
    a("v_xor_b32 v15, 64, v14")
    a("v_lshrrev_b32 v16, 3, v6")
    a("v_mul_u32_u24 v16, 1040, v16")
    a("s_mul_i32 s51, s43, 4160")
    a(f"s_add_u32 s51, s51, {L_GB + GB_X}")
    a(f"v_add3_u32 v{XM}, v14, v16, s51")
    a(f"v_add3_u32 v{XM+1}, v15, v16, s51")
    ACC = 20; WF = 84; XF = 108
    for i in range(48): a(f"v_mov_b32 v{ACC+i}, 0")
    for i in range(16): a(f"v_mov_b32 v{WF+12+i if i < 12 else XF+4+i-12}, 0")
    MM = 124; MH = 132
    a("v_lshlrev_b32 v5, 2, v7")
    a("v_sub_u32 v5, v6, v5")
    a("v_add_u32 v5, 18, v5")
    a("v_mov_b32 v14, 0x5555")
    a("v_mov_b32 v15, 0")
    a("v_lshlrev_b64 v[14:15], v5, v[14:15]")
    a("s_or_b32 s51, s44, s43")
    a("s_cmp_eq_u32 s51, 0")
    a("s_cselect_b32 s51, 0, -1")
    a("v_and_b32 v14, s51, v14")
    a("v_not_b32 v14, v14")
    a("v_not_b32 v15, v15")
    for r in range(16):
        idx = 8*(r >> 2) + (r & 3)
        a(f"v_bfe_i32 v{MM+r}, v15, {idx}, 1")
        a(f"v_lshlrev_b32 v{MM+r}, 23, v{MM+r}")
        if r >= 8:
            a(f"v_bfe_i32 v{MH+r}, v14, {idx}, 1")
            a(f"v_lshlrev_b32 v{MH+r}, 23, v{MH+r}")
    def read_ops(buf, sp, fb):
        r = []
        for t3 in range(3):
            for t in range(2):
                r.append(f"ds_read_b64_tr_b16 {vr(WF+12*fb+4*t3+2*t,2)}, v8 offset:{buf*GB_SZ + sp*6144 + t3*1024 + t*512}")
        r.insert(2, f"ds_read_b128 {vr(XF+4*fb,4)}, v{XM+(sp>>1)} offset:{buf*GB_SZ + (sp&1)*32}")
        return r
    def mm(fb, k):
        w = WF + 12*fb; x = XF + 4*fb
        if "nomm" in VAR: return
        if k == 0: mfma32(a, ACC, w, x, ACC)
        elif k == 1: mfma32(a, ACC+16, w+4, x, ACC+16)
        else: mfma32(a, ACC+32, x, w+8, ACC+32)
    a("v_lshrrev_b32 v15, 1, v1")
    a("v_lshlrev_b32 v15, 3, v15")
    a("v_and_b32 v12, 1, v1")
    a("v_add_u32 v15, v15, v12")
    a("s_add_u32 s51, s26, s3")
    a("s_lshl_b32 s51, s51, 1")
    a("v_add_u32 v15, s51, v15")
    a("v_and_b32 v15, 63, v15")
    a("v_lshlrev_b32 v15, 7, v15")
    a(f"s_mov_b32 s54, {W_F1}")
    lds_wait(a, C_XD, 1, 5, 51, sleep=2)
    PG = VAR.get("pgate", "qb8")
    if PG == "iss": lds_wait(a, C_ISS, 4, 5, 51, sleep=1)
    if PG.startswith("qb"): lds_wait(a, C_QB + int(PG[2:]), 4, 5, 51, sleep=1)
    st.stamp()
    poll_flags(a, 15, "s54", 16, 16, sleep=int(VAR.get("psleep", 4)))
    st.stamp()
    for k in range(5):
        if k == 1: lds_wait(a, C_XD, 5, 5, 51)
        if k == 3: lds_wait(a, C_QD, 4, 5, 51)
        a("s_lshl_b32 s53, s26, 12")
        a(f"s_add_u32 s53, s53, {k*16384}")
        kv_dma(a, 53, 4)
        if k == 0:
            a("s_waitcnt vmcnt(0)")
            lds_signal(a, C_ST + 0)
    a("s_waitcnt vmcnt(8)")
    lds_signal(a, C_ST + 4)
    a("s_cmp_eq_u32 s43, 0")
    a(f"s_cselect_b32 s4, s{P_BWO}, s{P_AWO}")
    a(f"s_cselect_b32 s5, s{P_BWO+1}, s{P_AWO+1}")
    a("s_mov_b32 s6, 0x80000")
    a("s_mov_b32 s7, 0x20000")
    a("s_lshl_b32 s51, s3, 1")
    a("s_add_u32 s51, s51, s42")
    a("s_lshl_b32 s51, s51, 13")
    if MAP81: a("v_lshlrev_b32 v14, 7, v1")
    else:
        a("s_lshr_b32 s54, s41, 1")
        a("s_lshl_b32 s54, s54, 9")
        a("s_add_u32 s51, s51, s54")
        a("v_lshrrev_b32 v14, 2, v6")
        a("v_lshlrev_b32 v14, 10, v14")
        a("v_and_b32 v15, 3, v1")
        a("v_lshl_add_u32 v14, v15, 7, v14")
    a("buffer_load_dword v160, v14, s[4:7], s51 offen")
    for f in issue_ops(0): f()
    a("s_waitcnt vmcnt(9)")
    lds_signal(a, C_ST + 8)
    a(f"s_setprio {VAR.get('bprio', 3)}")
    st.stamp()
    a("s_mov_b32 s50, 0")
    if "nogemm" in VAR: a("s_branch b_gend")
    a.label("b_loop")
    for buf in range(2):
        mm(1, 0)
        a("s_waitcnt vmcnt(0)")
        a("s_add_u32 s58, s58, 4")
        lds_signal(a, C_BB)
        mm(1, 1)
        ops = issue_ops(buf ^ 1)
        if buf == 1:
            a("s_cmp_eq_u32 s50, 3")
            a("s_cselect_b32 s64, 0x7f000000, s64")
            a("s_cselect_b32 s65, 0x7f000000, s65")
            for r in (56, 57): a(f"s_cselect_b32 s{r}, 0x30000, s{r}")
        ops[0]()
        lds_wait(a, C_BB, "s58", 5, 51, sleep=int(VAR.get("bsleep", 0)))
        for x in read_ops(buf, 0, 0): a(x)
        mm(1, 2)
        oi = 1
        for _ in range(3): ops[oi](); oi += 1
        for sp in range(3):
            for x in read_ops(buf, sp+1, (sp+1) & 1): a(x)
            a("s_waitcnt lgkmcnt(7)")
            for k in range(3):
                mm(sp & 1, k)
                for _ in range(2):
                    if oi < len(ops): ops[oi](); oi += 1
        a("s_waitcnt lgkmcnt(0)")
    a("s_add_u32 s50, s50, 1")
    a("s_cmp_lt_u32 s50, 4")
    a("s_cbranch_scc1 b_loop")
    a.label("b_gend")
    a("s_add_u32 s58, s58, 4")
    lds_signal(a, C_BB)
    for k in range(3): mm(1, k)
    a("s_setprio 3")
    lds_wait(a, C_BB, "s58", 5, 51, sleep=0)
    a("s_mul_i32 s54, s26, 12288")
    a("s_add_u32 s54, s54, 81920")
    kv_dma(a, 54, 12)
    st.stamp()
    QF = 84; KF = 92; VF = 100; KH = 108; VH = 116
    cvt8(a, KF, ACC+16); cvt8(a, KF+4, ACC+24)
    cvt8(a, VF, ACC+32); cvt8(a, VF+4, ACC+40)
    a("s_mul_i32 s51, s42, 3072")
    a(f"s_add_u32 s51, s51, {L_BEX}")
    a("v_add_u32 v13, s51, v9")
    a("s_lshl_b32 s52, s44, 3")
    a("s_add_u32 s52, s52, s45")
    a("s_lshl_b32 s53, s52, 1")
    a("s_add_u32 s53, s53, s42")
    a("s_mul_i32 s53, s53, 3072")
    a(f"s_add_u32 s53, s53, {W_HALO}")
    a("s_lshl_b32 s52, s52, 7")
    a("s_lshl_b32 s51, s42, 2")
    a("s_add_u32 s52, s52, s51")
    a(f"s_add_u32 s52, s52, {W_F2}")
    l1 = a.newlabel("b_w1"); l2 = a.newlabel("b_w2")
    a("s_cmp_eq_u32 s43, 0")
    a(f"s_cbranch_scc0 {l1}")
    lds_wait(a, C_QR, 4, 5, 51, sleep=2)
    a(f"ds_write_b128 v13, {vr(KF,4)}")
    a(f"ds_write_b128 v13, {vr(KF+4,4)} offset:1024")
    a(f"ds_write_b128 v13, {vr(VF+4,4)} offset:2048")
    a("s_waitcnt vmcnt(0)")
    a(f"s_branch {l2}")
    a.label(l1)
    a(f"buffer_store_dwordx4 {vr(KF,4)}, v9, s[36:39], s53 offen sc1")
    a(f"buffer_store_dwordx4 {vr(KF+4,4)}, v9, s[36:39], s53 offen offset:1024 sc1")
    a(f"buffer_store_dwordx4 {vr(VF+4,4)}, v9, s[36:39], s53 offen offset:2048 sc1")
    a("s_waitcnt vmcnt(0)")
    store_flag(a, "s52", 14)
    a.label(l2)
    a("s_waitcnt vmcnt(1)")
    lds_signal(a, C_ST + 12)
    bbar(a)
    l1 = a.newlabel("b_x1"); l2 = a.newlabel("b_x2")
    a("s_or_b32 s51, s44, 0")
    a("s_cselect_b32 s51, s43, 1")
    a("s_cmp_eq_u32 s51, 0")
    a(f"s_cbranch_scc0 {l1}")
    a(f"s_sub_u32 s52, s52, {8*128}")
    a(f"s_sub_u32 s53, s53, {16*3072}")
    a("v_mov_b32 v5, 0")
    poll_flags(a, 5, "s52", 1, 14, sleep=6, width=1)
    a(f"buffer_load_dwordx4 {vr(KH,4)}, v9, s[36:39], s53 offen sc1")
    a(f"buffer_load_dwordx4 {vr(KH+4,4)}, v9, s[36:39], s53 offen offset:1024 sc1")
    a(f"buffer_load_dwordx4 {vr(VH,4)}, v9, s[36:39], s53 offen offset:2048 sc1")
    a("s_waitcnt vmcnt(0)")
    a(f"s_branch {l2}")
    a.label(l1)
    a(f"ds_read_b128 {vr(KH,4)}, v13")
    a(f"ds_read_b128 {vr(KH+4,4)}, v13 offset:1024")
    a(f"ds_read_b128 {vr(VH,4)}, v13 offset:2048")
    a.label(l2)
    lsn = a.newlabel("nosn")
    a("s_and_b32 s51, s40, 1")
    a("s_cmp_eq_u32 s51, s43")
    a(f"s_cbranch_scc0 {lsn}")
    a("s_lshl_b32 s51, s40, 2")
    a("s_add_u32 s51, s51, s41")
    a("s_lshl_b32 s51, s51, 1")
    a("s_add_u32 s51, s51, s42")
    a("s_lshl_b32 s51, s51, 12")
    a(f"s_add_u32 s51, s51, {W_OA}")
    for i in range(4): a(f"v_mov_b32 v{120+i}, -1")
    for i in range(4): a(f"buffer_store_dwordx4 v[120:123], v9, s[36:39], s51 offen offset:{i*1024} sc1")
    a(f"s_add_u32 s51, s51, {W_OF - W_OA}")
    for i in range(4): a(f"buffer_store_dwordx4 v[120:123], v9, s[36:39], s51 offen offset:{i*1024} sc1")
    a.label(lsn)
    cvt8(a, QF, ACC); cvt8(a, QF+4, ACC+8)
    a("s_lshl_b32 s52, s44, 1")
    a("s_add_u32 s52, s52, s43")
    a("s_lshl_b32 s55, s52, 4")
    a("s_lshl_b32 s53, s45, 1")
    a("s_add_u32 s53, s53, s42")
    a("s_add_u32 s55, s55, s53")
    a("s_lshl_b32 s55, s55, 11")
    a(f"s_add_u32 s55, s55, {W_OB}")
    a("s_lshl_b32 s57, s52, 9")
    a("s_lshr_b32 s51, s53, 2")
    a("s_lshl_b32 s51, s51, 7")
    a("s_add_u32 s57, s57, s51")
    a("s_and_b32 s51, s53, 3")
    a("s_lshl_b32 s51, s51, 2")
    a("s_add_u32 s57, s57, s51")
    a(f"s_add_u32 s57, s57, {W_F3}")
    a("s_waitcnt lgkmcnt(0)")
    SM = 20; SH = 36; O = 52; PP = 68; T = 152
    a(f"s_mov_b32 s46, {CSCALE}")
    for hd in range(2 if "nolocal" not in VAR else 0):
        mfma32(a, SM, KF+4*hd, QF+4*hd, MM)
        mfma32(a, SH, KH+4*hd, QF+4*hd, MH)
        vals = [SM+i for i in range(16)] + [SH+8+i for i in range(8)]
        a(f"v_max3_f32 v{T}, v{vals[0]}, v{vals[1]}, v{vals[2]}")
        for i in range(3, 23, 2):
            a(f"v_max3_f32 v{T}, v{T}, v{vals[i]}, v{vals[i+1]}")
        a(f"v_max_f32 v{T}, v{T}, v{vals[23]}")
        xhalf_max(a, T, T+1)
        a(f"v_mul_f32 v{T}, s46, v{T}")
        for v in vals: a(f"v_fma_f32 v{v}, v{v}, s46, -v{T}")
        for v in vals: a(f"v_exp_f32 v{v}, v{v}")
        a(f"v_add_f32 v{T+2}, v{vals[0]}, v{vals[1]}")
        for v in vals[2:]: a(f"v_add_f32 v{T+2}, v{T+2}, v{v}")
        cvt8(a, PP, SM); cvt8(a, PP+4, SM+8); cvt8(a, PP+8, SH+8)
        a(f"v_mov_b32 v{T+3}, v{T+2}")
        a(f"v_permlane32_swap_b32 v{T+2}, v{T+3}")
        mfma32(a, O, VF, PP, "0")
        mfma32(a, O, VF+4, PP+4, O)
        mfma32(a, O, VH, PP+8, O)
        a(f"v_add_f32 v{T+2}, v{T+2}, v{T+3}")
        a(f"v_rcp_f32 v{T+2}, v{T+2}")
        for i in range(8): a(f"v_mul_f32 v{O+8*hd+i}, v{O+8*hd+i}, v{T+2}")
        cvt8(a, T+4+4*hd, O+8*hd)
        a(f"buffer_store_dwordx4 {vr(T+4+4*hd,4)}, v9, s[36:39], s55 offen offset:{hd*1024} sc1")
    a("s_waitcnt vmcnt(0)")
    store_flag(a, "s57", 12)
    st.stamp()
    srd(a, 32, P_BWO, 512 * 1024)
    srd(a, 28, P_OUT, 4 << 20)
    a("s_lshl_b32 s47, s41, 8")
    a("s_lshl_b32 s51, s26, 6")
    a("s_add_u32 s47, s47, s51")
    a("v_lshrrev_b32 v3, 2, v1")
    a("v_lshlrev_b32 v3, 10, v3")
    a("v_and_b32 v4, 3, v1")
    a("v_lshl_add_u32 v3, v4, 4, v3")
    a("v_add_u32 v3, s47, v3")
    tr_base_wo(a, 8, 4)
    a("s_mul_i32 s56, s26, 7168")
    a(f"s_add_u32 s56, s56, {L_COMB}")
    a("v_add_u32 v8, s56, v8")
    a("v_lshlrev_b32 v4, 11, v6")
    a("v_lshl_add_u32 v4, v7, 4, v4")
    a("s_lshl_b32 s51, s40, 16")
    a("s_add_u32 s47, s47, s51")
    ACC = 12; OB = 28; WL = 40
    a("s_mov_b32 s48, 0")
    a("s_mov_b32 s50, 0")
    a.label("b_stage")
    bbar(a)
    R = 7
    def wissue(i):
        a(f"s_add_u32 m0, s56, {(i%R)*1024}")
        a(f"buffer_load_dwordx4 v3, s[32:35], s48 offen lds")
        a("s_add_u32 s48, s48, 16384")
        a("s_and_b32 s48, s48, 0x7ffff")
    for i in range(R): wissue(i)
    for i in range(32):
        a(f"s_waitcnt vmcnt({R-1 if i == 0 else min(R-2, 31-i)})")
        r = WL + 4*i
        for t in range(2): a(f"ds_read_b64_tr_b16 {vr(r+2*t,2)}, v8 offset:{(i%R)*1024 + t*512}")
        if i >= 1 and i + R - 1 < 32:
            a("s_waitcnt lgkmcnt(2)")
            wissue(i + R - 1)
    a("s_waitcnt lgkmcnt(0)")
    a("s_cmp_eq_u32 s50, 1")
    a("s_cbranch_scc1 b_tail")
    def run(lo, hi, addr, off0):
        o = lambda i: (i - off0) * 1024
        for i in range(lo, min(lo+2, hi)): a(f"ds_read_b128 {vr(OB+4*(i%3),4)}, {addr} offset:{o(i)}")
        for i in range(lo, hi):
            if i + 2 < hi:
                a(f"ds_read_b128 {vr(OB+4*((i+2)%3),4)}, {addr} offset:{o(i+2)}")
                a("s_waitcnt lgkmcnt(2)")
            else:
                a(f"s_waitcnt lgkmcnt({hi-1-i})")
            mfma32(a, ACC, WL+4*i, OB+4*(i%3), "0" if i == 0 else ACC)
    a("v_lshlrev_b32 v5, 7, v1")
    a("s_lshl_b32 s57, s40, 9")
    a(f"s_add_u32 s57, s57, {W_F3}")
    poll_flags(a, 5, "s57", 4, 28, sleep=8)
    lds_signal(a, C_ST + 16)
    st.stamp()
    a("s_lshl_b32 s49, s40, 15")
    a("s_lshl_b32 s51, s26, 12")
    a("s_add_u32 s49, s49, s51")
    a(f"s_add_u32 s49, s49, {W_OB}")
    a(f"s_add_u32 s46, s51, {L_COMB}")
    a(f"v_add_u32 v0, {L_COMB}, v9")
    for rnd in range(2):
        bbar(a)
        a("s_mov_b32 m0, s46")
        for q in range(4):
            a(f"buffer_load_dwordx4 v9, s[36:39], s49 offen offset:{q*1024} sc1 lds")
        a("s_add_u32 s49, s49, 16384")
        a("s_waitcnt vmcnt(0)")
        bbar(a)
        if "noop" not in VAR: run(16*rnd, 16*rnd+16, "v0", 16*rnd)
    cvt8(a, 28, ACC); cvt8(a, 32, ACC+8)
    a("buffer_store_dwordx4 v[28:31], v4, s[28:31], s47 offen offset:1024 " + VAR.get("stb", "nt"))
    a("buffer_store_dwordx4 v[32:35], v4, s[28:31], s47 offen offset:1056 " + VAR.get("stb", "nt"))
    srd(a, 32, P_AWO, 512 * 1024)
    a("s_lshl_b32 s48, s41, 17")
    a("s_mov_b32 s50, 1")
    st.stamp()
    a("s_branch b_stage")
    a.label("b_tail")
    st.stamp()
    le = a.newlabel("ep")
    a("s_or_b32 s51, s2, s26")
    a("s_cmp_eq_u32 s51, 0")
    a(f"s_cbranch_scc0 {le}")
    a(f"s_mov_b32 s51, {W_EP}")
    store_flag(a, "s51", 28)
    a.label(le)
    a(f"v_add_u32 v0, {L_OA}, v9")
    lds_wait(a, C_CB + 0, 1, 5, 51, sleep=16)
    for d in range(4):
        lds_wait(a, C_OF + 4*d, 8, 5, 51, sleep=int(VAR.get("osleep", 0)))
        if d == 0: run(0, 8, "v0", 0)
        else:
            for i in range(8*d, 8*d + 8): a(f"ds_read_b128 {vr(WL+4*(i-8),4)}, v0 offset:{i*1024}")
            for i in range(8*d, 8*d + 8):
                a(f"s_waitcnt lgkmcnt({8*d + 7 - i})")
                mfma32(a, ACC, WL+4*i, WL+4*(i-8), ACC)
    cvt8(a, 28, ACC); cvt8(a, 32, ACC+8)
    a("buffer_store_dwordx4 v[28:31], v4, s[28:31], s47 offen " + VAR.get("sta", "nt"))
    a("buffer_store_dwordx4 v[32:35], v4, s[28:31], s47 offen offset:32 " + VAR.get("sta", "nt"))
    if DIAG:
        a("s_waitcnt vmcnt(0)")
        st.stamp()
        st.dump(None, 0)

def kernel():
    a = Asm(); n = NAME + "_kernel"
    a.label(n)
    a("s_cmp_ge_u32 s2, 256")
    a("s_cbranch_scc1 k_exit")
    load_ptrs(a)
    sta = Stamps(a, DIAG, real='--cyc' not in sys.argv); stb = Stamps(a, DIAG, real='--cyc' not in sys.argv)
    sta.stamp(); stb.n = sta.n
    a("v_and_b32 v1, 63, v0")
    a("v_lshrrev_b32 v2, 6, v0")
    a("v_readfirstlane_b32 s26, v2")
    a("s_and_b32 s27, s2, 7")
    a("s_lshr_b32 s3, s2, 3")
    if MAP81:
        a("s_lshl_b32 s40, s27, 3")
        a("s_lshr_b32 s41, s3, 2")
        a("s_add_u32 s40, s40, s41")
        a("s_and_b32 s41, s3, 3")
    else:
        a("s_lshr_b32 s40, s27, 1")
        a("s_lshl_b32 s40, s40, 4")
        a("s_lshr_b32 s41, s3, 1")
        a("s_add_u32 s40, s40, s41")
        a("s_and_b32 s41, s27, 1")
        a("s_lshl_b32 s41, s41, 1")
        a("s_and_b32 s27, s3, 1")
        a("s_add_u32 s41, s41, s27")
    a("s_lshl_b32 s27, s41, 1")
    a("s_and_b32 s51, s40, 1")
    a("s_add_u32 s27, s27, s51")
    a("v_and_b32 v6, 31, v1")
    a("v_lshrrev_b32 v7, 5, v1")
    a("v_lshlrev_b32 v9, 4, v1")
    a(f"v_mov_b32 v10, {L_CNT}")
    a("v_mov_b32 v11, 1")
    a("s_waitcnt lgkmcnt(0)")
    srd(a, 36, P_WS, W_USED)
    a("s_cmp_lt_u32 s26, 4")
    a("s_cbranch_scc1 role_b")
    role_a(a, sta)
    a.label("role_b")
    role_b(a, stb)
    a.label("k_exit")
    a("s_endpgm")
    return (n, a, 256, 768, LDS_SIZE, 168)

if __name__ == "__main__":
    write_file(sys.argv[1], [kernel()])
```

```python
import sys
from common import *
DIAG = "--diag" in sys.argv
VAR = dict((x[2:].split("=")+[1])[:2] for x in sys.argv if x.startswith("-V"))

W_KV = 0
W_F1 = 0x20000
W_F2 = 0x28000
W_F3 = 0x30000
W_EP = 0x3F000
W_KF = 0x40000
W_OA = 1 << 20
W_OB = 3 << 20
W_HALO = 5 << 20
W_OF = 10 << 20
W_USED = 16 << 20
L_XA = 16384
L_WK = 0
WQ_SLOT = [49664 + 16384*i for i in range(6)] + [16384, 32768]
L_GB = 89600
GB_W, GB_X, GB_SZ = 0, 24576, 32896
L_COMB = 131072
L_QX = 155392
L_BEX = 155392
L_CNT = 163584
LDS_SIZE = 163840
C_BB, C_ST, C_EX, C_XA, C_QB, C_QC, C_QD, C_XD = 4, 16, 40, 72, 76, 92, 96, 100
C_ISS, C_QR = 8, 12
C_PR, C_CB, C_OF = 104, 112, 144
L_CB = 0
L_OA = 24576
BIAS = VAR.get("bias", "0xc2c80000")
VSC = 40
MAP81 = 'map24' not in VAR
XP = 1040
TAGC = 0x9E3779B9 - (1 << 32)
SPIN = 40000

def cvt8(a, dst, src):
    for i in range(4):
        a(f"v_cvt_pk_bf16_f32 v{dst+i}, v{src+2*i}, v{src+2*i+1}")

def tr_base32(a, dst, tmp):
    a(f"v_lshlrev_b32 v{dst}, 9, v7")
    a(f"v_bfe_u32 v{tmp}, v1, 2, 2")
    a(f"v_lshl_add_u32 v{dst}, v{tmp}, 6, v{dst}")
    a(f"v_bfe_u32 v{tmp}, v1, 4, 1")
    a(f"v_lshl_add_u32 v{dst}, v{tmp}, 5, v{dst}")
    a(f"v_and_b32 v{tmp}, 3, v1")
    a(f"v_lshl_add_u32 v{dst}, v{tmp}, 3, v{dst}")

def tr_base_wo(a, dst, tmp):
    a(f"v_lshlrev_b32 v{dst}, 8, v7")
    a(f"v_bfe_u32 v{tmp}, v1, 2, 2")
    a(f"v_lshl_add_u32 v{dst}, v{tmp}, 6, v{dst}")
    a(f"v_bfe_u32 v{tmp}, v1, 4, 1")
    a(f"v_lshl_add_u32 v{dst}, v{tmp}, 5, v{dst}")
    a(f"v_and_b32 v{tmp}, 1, v1")
    a(f"v_lshl_add_u32 v{dst}, v{tmp}, 4, v{dst}")
    a(f"v_bfe_u32 v{tmp}, v1, 1, 1")
    a(f"v_lshl_add_u32 v{dst}, v{tmp}, 3, v{dst}")

def lds_signal(a, off, addr="v10"):
    a("s_mov_b64 exec, 1")
    a(f"ds_add_u32 {addr}, v11 offset:{off}")
    a("s_mov_b64 exec, -1")
def lds_wait(a, off, val, tmp, stmp, addr="v10", sleep=1):
    l = a.newlabel("lw"); d = a.newlabel("lwd")
    a.label(l)
    a(f"ds_read_b32 v{tmp}, {addr} offset:{off}")
    a("s_waitcnt lgkmcnt(0)")
    a(f"v_readfirstlane_b32 s{stmp}, v{tmp}")
    a(f"s_cmp_ge_u32 s{stmp}, {val}")
    a(f"s_cbranch_scc1 {d}")
    if sleep: a(f"s_sleep {sleep}")
    a(f"s_branch {l}")
    a.label(d)
def bbar(a, tmp=5):
    a("s_add_u32 s58, s58, 4")
    lds_signal(a, C_BB)
    lds_wait(a, C_BB, "s58", tmp, 51, sleep=2)

def poll_flags(a, voff, soff, nl, t, sleep=2, width=4):
    l = a.newlabel("pf"); d = a.newlabel("pfd")
    a(f"s_mov_b32 s63, {SPIN}")
    a(f"s_mov_b64 exec, {(1 << nl) - 1}")
    a.label(l)
    if width == 4:
        a(f"buffer_load_dwordx4 {vr(t,4)}, v{voff}, s[36:39], {soff} offen sc1")
        a("s_waitcnt vmcnt(0)")
        for i in range(4): a(f"v_xor_b32 v{t+i}, s62, v{t+i}")
        a(f"v_or3_b32 v{t}, v{t}, v{t+1}, v{t+2}")
        a(f"v_or_b32 v{t}, v{t}, v{t+3}")
    else:
        a(f"buffer_load_dword v{t}, v{voff}, s[36:39], {soff} offen sc1")
        a("s_waitcnt vmcnt(0)")
        a(f"v_xor_b32 v{t}, s62, v{t}")
    a(f"v_cmp_ne_u32 vcc, 0, v{t}")
    a("s_nop 1")
    a(f"s_cbranch_vccz {d}")
    a(f"s_sleep {sleep}")
    a("s_sub_u32 s63, s63, 1")
    a("s_cmp_lg_u32 s63, 0")
    a(f"s_cbranch_scc1 {l}")
    a.label(d)
    a("s_mov_b64 exec, -1")

def store_flag(a, soff, t):
    a(f"v_mov_b32 v{t}, s62")
    a(f"v_mov_b32 v{t+1}, 0")
    a("s_mov_b64 exec, 1")
    a(f"buffer_store_dword v{t}, v{t+1}, s[36:39], {soff} offen sc1")
    a("s_mov_b64 exec, -1")

def rowmax16(a, dst, S, init=None):
    if init is None:
        a(f"v_max3_f32 v{dst}, v{S}, v{S+1}, v{S+2}")
        for i in range(3, 15, 2): a(f"v_max3_f32 v{dst}, v{dst}, v{S+i}, v{S+i+1}")
        a(f"v_max_f32 v{dst}, v{dst}, v{S+15}")
    else:
        for i in range(0, 16, 2): a(f"v_max3_f32 v{dst}, v{dst}, v{S+i}, v{S+i+1}")
def xhalf_max(a, dst, tmp):
    a(f"v_mov_b32 v{tmp}, v{dst}")
    a(f"v_permlane32_swap_b32 v{dst}, v{tmp}")
    a(f"v_max_f32 v{dst}, v{dst}, v{tmp}")

def kv_dma(a, sreg, n, first=False):
    for q in range(n):
        if (q & 3) == 0:
            a(f"s_mov_b32 m0, s{sreg}")
            a(f"s_lshr_b32 s51, s{sreg}, 12")
            if not first:
                a("s_add_u32 s51, s51, s59")
                a("s_cmp_ge_u32 s51, 32")
                a("s_cselect_b32 s52, 28, 0")
                a("s_sub_u32 s51, s51, s52")
            a("s_add_u32 s51, s51, s55")
            a("s_and_b32 s51, s51, 31")
            a("s_lshl_b32 s51, s51, 12")
        a(f"buffer_load_dwordx4 v9, s[36:39], s51 offen offset:{(q&3)*1024} sc1 lds")
        if (q & 3) == 3 and q + 1 < n: a(f"s_add_u32 s{sreg}, s{sreg}, 4096")

def kv_job(a, st=None):
    X = 24; W = 88
    lv = a.newlabel("kv_v"); ld = a.newlabel("kv_d")
    def reads(s):
        a(f"ds_read_b128 {vr(X+4*s,4)}, v14 offset:{s*64}")
        for t in range(2):
            a(f"ds_read_b64_tr_b16 {vr(W+4*s+2*t,2)}, v15 offset:{L_WK + s*1024 + t*128}")
    a("s_cmp_eq_u32 s45, 0")
    a(f"s_cbranch_scc0 {lv}")
    for which in range(2):
        if which: a.label(lv)
        for s in range(4): reads(s)
        for s in range(16):
            if s + 4 < 16:
                reads(s + 4); a("s_waitcnt lgkmcnt(12)")
            else:
                a(f"s_waitcnt lgkmcnt({3*(15-s)})")
            if which == 0: mfma16(a, 20, W+4*s, X+4*s, "0" if s == 0 else 20)
            else:          mfma16(a, 20, X+4*s, W+4*s, "0" if s == 0 else 20)
        if not which: a(f"s_branch {ld}")
    a.label(ld)
def kv_store(a):
    a("s_cmp_eq_u32 s45, 0")
    a(f"s_cselect_b32 s51, 1.0, {hex((127 + VSC) << 23)}")
    for i in range(4): a(f"v_mul_f32 v{20+i}, s51, v{20+i}")
    a("v_cvt_pk_bf16_f32 v156, v20, v21")
    a("v_cvt_pk_bf16_f32 v157, v22, v23")
    a("v_xor_b32 v158, s62, v156")
    a("v_xor_b32 v159, s62, v157")
    if "nokvfast" not in VAR: a("buffer_store_dwordx4 v[156:159], v17, s[36:39], s54 offen")
    a("buffer_store_dwordx2 v[156:157], v16, s[36:39], s52 offen sc1")
def kv_flag(a):
    a("s_waitcnt vmcnt(0)")
    store_flag(a, "s53", 18)

def kv_setup(a):
    a("v_and_b32 v12, 15, v1")
    a("v_lshrrev_b32 v13, 4, v1")
    a(f"v_mul_u32_u24 v14, {XP}, v12")
    a("v_lshl_add_u32 v14, v13, 4, v14")
    a(f"s_mul_i32 s51, s46, {16*XP}")
    a(f"s_add_u32 s51, s51, {L_XA}")
    a("v_add_u32 v14, s51, v14")
    a("v_lshlrev_b32 v15, 8, v13")
    a("v_lshl_add_u32 v15, v12, 3, v15")
    a("v_and_b32 v16, 1, v13")
    a("s_cmp_eq_u32 s45, 0")
    a("s_cselect_b32 s51, 9, 8")
    a("s_cselect_b32 s52, 8, 9")
    a("s_lshl_b32 s52, s46, s52")
    a("s_lshl_b32 s53, s45, 10")
    a("s_add_u32 s52, s52, s53")
    a("s_lshl_b32 s53, s40, 11")
    a("s_add_u32 s52, s52, s53")
    a("v_lshlrev_b32 v16, s51, v16")
    a("v_lshl_add_u32 v16, v12, 4, v16")
    a("v_lshrrev_b32 v17, 1, v13")
    a("v_lshl_add_u32 v16, v17, 3, v16")
    a("s_lshl_b32 s53, s40, 7")
    a("s_lshl_b32 s54, s41, 2")
    a("s_add_u32 s53, s53, s54")
    a(f"s_add_u32 s53, s53, {W_F1}")
    a("v_lshlrev_b32 v17, 1, v16")
    a("s_lshl_b32 s54, s52, 1")
    a(f"s_add_u32 s54, s54, {W_KF}")

def stouch_setup(a, slot, bw, bx):
    a("s_lshr_b32 s51, s3, 2")
    a(f"s_lshl_b32 s54, {slot}, 3")
    a("s_add_u32 s51, s51, s54")
    a("s_lshl_b32 s51, s51, 10")
    a("s_lshl_b32 s54, s27, 7")
    a("s_add_u32 s51, s51, s54")
    a(f"s_add_u32 s{bw}, s{P_BWQKV}, s51")
    a(f"s_addc_u32 s{bw+1}, s{P_BWQKV+1}, 0")
    a(f"s_add_u32 s{bw+2}, s{bw}, {24*32768}")
    a(f"s_addc_u32 s{bw+3}, s{bw+1}, 0")
    a("s_lshr_b32 s51, s40, 1")
    a("s_lshl_b32 s51, s51, 16")
    a("s_and_b32 s54, s3, 3")
    a("s_lshl_b32 s54, s54, 14")
    a("s_add_u32 s51, s51, s54")
    a(f"s_lshl_b32 s54, {slot}, 12")
    a("s_add_u32 s51, s51, s54")
    a(f"s_add_u32 s{bx}, s{P_BX}, s51")
    a(f"s_addc_u32 s{bx+1}, s{P_BX+1}, 0")
def stouch_list(chunks, bw, bx):
    l = []
    for c in chunks:
        for r in range(4): l.append((f"s[{bx}:{bx+1}]", r*1024 + c*128))
        for i in range(6):
            m = c*6 + i
            l.append((f"s[{bw}:{bw+1}]", m*32768) if m < 24 else (f"s[{bw+2}:{bw+3}]", (m-24)*32768))
    return l

def role_a(a, st):
    FINE = "fine" in VAR
    class F:
        def stamp(self):
            if FINE: st0.stamp()
    st0 = st; fs = F()
    if FINE:
        class N:
            n = 0
            def stamp(self): pass
            def dump(self, *x): st0.dump(*x)
        st = N()
    a("s_sub_u32 s59, s26, 4")
    a("s_and_b32 s42, s59, 3")
    a("s_lshr_b32 s43, s59, 2")
    srd(a, 28, P_AX, 2 << 20)
    a("s_lshr_b32 s46, s41, 1")
    for k in range(2):
        if k: a("s_xor_b32 s46, s46, 1")
        a("s_lshl_b32 s49, s46, 4")
        a("s_lshl_b32 s48, s59, 1")
        a("s_add_u32 s49, s49, s48")
        a("s_lshl_b32 s48, s40, 5")
        a("s_add_u32 s48, s48, s49")
        a("s_lshl_b32 s48, s48, 10")
        a(f"s_mul_i32 s49, s49, {XP}")
        for q in range(2):
            a(f"s_add_u32 m0, s49, {L_XA + q*XP - q*1024}")
            a(f"buffer_load_dwordx4 v9, s[28:31], s48 offen offset:{q*1024} lds")
    if "nobar0" not in VAR: a("s_barrier")
    srd(a, 32, P_AWQ, 512 * 1024)
    S0, S1, O0, O1, C0, C1, P0, P1, Q0, Q1, KB, VB = 16, 32, 48, 64, 80, 96, 112, 120, 128, 132, 136, 144
    a(f"s_bfe_u32 s55, s3, {0x30002 if MAP81 else 0x30001}")
    a("s_cmp_eq_u32 s43, 0")
    a("s_cbranch_scc0 a_kh1")
    def early_init():
        for i in range(32): a(f"v_mov_b32 v{O0+i}, 0")
        a("s_lshl_b32 s56, s43, 11")
        a("v_add_u32 v2, s56, v9")
        a("v_lshlrev_b32 v3, 8, v7")
        a("v_lshl_add_u32 v3, v6, 4, v3")
        a("v_add_u32 v3, s56, v3")
        a("s_mov_b32 s60, 0x0000ffff")
        a("s_mov_b32 s61, 0x0000ffff")
        a("v_and_b32 v14, 27, v6")
        a("v_cmp_eq_u32 vcc, 16, v14")
        a(f"v_mov_b32 v13, {hex(((127 + VSC) << 7) * 0x10001)}")
        a("v_cndmask_b32 v14, 0, v13, vcc")
        for i in range(8): a(f"v_mov_b32 v{VB+i}, v14")
    XF = 16; WF = 144; ACC = 152
    a(f"v_mul_u32_u24 v4, {XP}, v6")
    a("v_lshl_add_u32 v4, v7, 4, v4")
    a("v_lshlrev_b32 v8, 11, v7")
    a("v_bfe_u32 v5, v1, 2, 2")
    a("v_lshl_add_u32 v8, v5, 8, v8")
    a("v_xor_b32 v5, s42, v5")
    a("v_lshl_add_u32 v8, v5, 6, v8")
    a("v_bfe_u32 v5, v1, 4, 1")
    a("v_lshl_add_u32 v8, v5, 5, v8")
    a("v_and_b32 v5, 3, v1")
    a("v_lshl_add_u32 v8, v5, 3, v8")
    a(f"s_waitcnt vmcnt({0 if 'merge' in VAR else 2}) lgkmcnt(0)")
    a("s_barrier")
    st.stamp()
    if "merge" not in VAR:
        a("s_waitcnt vmcnt(0)")
        a("s_barrier")
    fs.stamp()
    def xload(i):
        a(f"s_add_u32 s51, s55, {i}")
        a("s_and_b32 s51, s51, 7")
        a("s_lshl_b32 s51, s51, 7")
        a("v_add_u32 v5, s51, v4")
        for sp in range(4):
            a(f"ds_read_b128 {vr(XF+16*i+4*sp,4)}, v5 offset:{L_XA + sp*32}")
    for i in range(8): xload(i)
    a("v_add_u32 v5, 16384, v8")
    a("v_add_u32 v15, 115200, v8")
    a("v_add_u32 v8, 66048, v8")
    st.stamp(); fs.stamp()
    a("s_waitcnt lgkmcnt(0)")
    wmap = {}
    free = [144, 148]
    def qread(st_):
        i = st_ >> 2; sp = st_ & 3; sl = WQ_SLOT[i]
        r = free.pop(0); wmap[st_] = r
        base, off = ("v5", sl - 16384) if sl < 66048 else (("v8", sl - 66048) if sl < 115200 else ("v15", sl - 115200))
        for t in range(2):
            a(f"ds_read_b64_tr_b16 {vr(r+2*t,2)}, {base} offset:{off + sp*4096 + t*1024}")
    nr = 0; avail = 0; pend = []
    LEAD = int(VAR.get("lead", 4))
    for st_ in range(32):
        if avail < 32 and (st_ >= avail - LEAD):
            a("s_barrier")
            if FINE: fs.stamp(); a("s_waitcnt lgkmcnt(0)"); pend = []
            avail += 8
        while nr < avail and free and len(pend) <= 12:
            qread(nr); pend += [nr, nr]; nr += 1
            if nr == 32: lds_signal(a, C_QD); pend += [99]
        if st_ in pend:
            k = len(pend) - 1 - max(i for i, x in enumerate(pend) if x == st_)
            a(f"s_waitcnt lgkmcnt({k})")
            pend = pend[len(pend)-k:] if k else []
        mfma32(a, ACC, wmap[st_], XF+4*st_, "0" if st_ == 0 else ACC)
        for r in (wmap[st_], XF+4*st_):
            if not (48 <= r < 80) and (r < 144 or st_ < 6): free.append(r)
        if st_ == 17: early_init()
    st.stamp()
    a(f"s_mov_b32 s51, {CSCALE}")
    a("s_lshl_b32 s53, s42, 11")
    a(f"s_add_u32 s53, s53, {L_QX}")
    a("v_add_u32 v12, s53, v9")
    a("s_lshl_b32 s53, s42, 2")
    a("v_add_u32 v13, s53, v10")
    for i in range(16): a(f"v_mul_f32 v{ACC+i}, s51, v{ACC+i}")
    cvt8(a, Q1, ACC); cvt8(a, Q0, ACC+8)
    a(f"ds_write_b128 v12, {vr(Q1,4)}")
    a(f"ds_write_b128 v12, {vr(Q0,4)} offset:1024")
    lds_signal(a, C_EX, "v13")
    fs.stamp()
    a("s_branch a_join")
    a.label("a_kh1")
    st.n -= 3
    if FINE: st0.n = 1
    a("v_lshrrev_b32 v4, 4, v1")
    a("v_bfe_u32 v5, v1, 2, 2")
    a("v_xor_b32 v5, v5, v4")
    a("v_lshlrev_b32 v3, 10, v4")
    a("v_lshl_add_u32 v3, v5, 6, v3")
    a("v_and_b32 v5, 3, v1")
    a("v_lshl_add_u32 v3, v5, 4, v3")
    a("s_lshl_b32 s48, s42, 14")
    a("s_lshl_b32 s51, s41, 8")
    a("s_add_u32 s48, s48, s51")
    a("s_lshl_b32 s49, s42, 12")
    def op_q(i):
        a(f"s_add_u32 s51, s55, {i}")
        a("s_and_b32 s51, s51, 7")
        a("s_lshl_b32 s51, s51, 16")
        a("s_add_u32 s51, s51, s48")
        for q in range(4):
            a(f"s_add_u32 m0, s49, {WQ_SLOT[i] + q*1024}")
            if q: a("s_add_u32 s51, s51, 4096")
            a("buffer_load_dwordx4 v3, s[32:35], s51 offen lds")
    NPRE = int(VAR.get('npre', 2))
    for i in range(NPRE): op_q(i)
    MERGE = "merge" in VAR
    a(f"s_waitcnt vmcnt({4*NPRE + (0 if MERGE else 2)}) lgkmcnt(0)")
    a("s_barrier")
    st.stamp()
    if not MERGE:
        a(f"s_waitcnt vmcnt({4*NPRE})")
        a("s_barrier")
    fs.stamp()
    nxt = NPRE
    for gq in range(3):
        lim = 6 if gq == 0 else 8
        for _ in range(2):
            if nxt < lim: op_q(nxt); nxt += 1
        a(f"s_waitcnt vmcnt({4*(nxt - 2*gq - 2)})")
        fs.stamp()
        a("s_barrier")
    a("s_waitcnt vmcnt(0)")
    fs.stamp()
    a("s_barrier")
    st.stamp()
    early_init()
    a("s_lshl_b32 s53, s42, 11")
    a(f"s_add_u32 s53, s53, {L_QX}")
    a("v_add_u32 v15, s53, v9")
    a("s_lshl_b32 s53, s42, 2")
    a("v_add_u32 v13, s53, v10")
    lds_wait(a, C_EX, 1, 12, 51, "v13")
    a(f"ds_read_b128 {vr(Q0,4)}, v15")
    a(f"ds_read_b128 {vr(Q1,4)}, v15 offset:1024")
    fs.stamp()
    lds_signal(a, C_QR)
    st.stamp()
    a.label("a_join")
    def tail_setup():
        a("s_xor_b32 s52, s59, 4")
        a("s_mul_i32 s53, s59, 3072")
        a(f"v_add_u32 v160, s53, v9")
        a("s_mul_i32 s53, s52, 3072")
        a(f"v_add_u32 v161, s53, v9")
        a("s_lshl_b32 s53, s59, 2")
        a("v_add_u32 v162, s53, v10")
        a("s_lshl_b32 s53, s52, 2")
        a("v_add_u32 v163, s53, v10")
        a("s_lshl_b32 s57, s42, 1")
        a("s_add_u32 s57, s57, s43")
        a("s_lshl_b32 s58, s40, 5")
        a("s_lshl_b32 s53, s41, 3")
        a("s_add_u32 s53, s53, s58")
        a("s_add_u32 s53, s53, s57")
        a("s_lshl_b32 s53, s53, 10")
        a(f"s_add_u32 s44, s53, {W_OA}")
        a("s_lshl_b32 s57, s57, 10")
        a(f"s_add_u32 s57, s57, {L_OA}")
        a("v_add_u32 v164, s57, v9")
        a(f"s_add_u32 s48, s44, {W_OF - W_OA}")
        a("s_lshl_b32 s57, s59, 10")
        a(f"s_add_u32 s57, s57, {L_OA}")
        a("v_add_u32 v165, s57, v9")
        for d in range(1, 4):
            a(f"s_add_u32 s51, s41, {d}")
            a("s_and_b32 s51, s51, 3")
            a("s_lshl_b32 s51, s51, 3")
            a("s_add_u32 s51, s51, s58")
            a("s_add_u32 s51, s51, s59")
            a("s_lshl_b32 s51, s51, 10")
            a(f"s_add_u32 s{44+d}, s51, {W_OA}")
    for i in range(8, 16): a(f"v_mov_b32 v{VB+i}, v14")
    for i in range(4): a(f"v_mov_b32 v{P1+4+i}, 0")
    st.stamp()
    lds_wait(a, C_ST + 0, 4, 12, 51, sleep=0)
    if FINE: st0.n = 12
    fs.stamp()
    def kvread(b, off):
        a(f"ds_read_b128 {vr(KB+4*b,4)}, v2 offset:{off}")
        a("s_mov_b64 exec, s[60:61]")
        a(f"ds_read_b128 {vr(VB+8*b,4)}, v3 offset:{off+1024}")
        a(f"ds_read_b128 {vr(VB+8*b+4,4)}, v3 offset:{off+1536}")
        a("s_mov_b64 exec, -1")
    a(f"ds_read_b128 {vr(P0,4)}, v9")
    DEEP = "shallow" not in VAR
    def kread(b, off): a(f"ds_read_b128 {vr(KB+4*b,4)}, v2 offset:{off}")
    def vread(b, off):
        a("s_mov_b64 exec, s[60:61]")
        a(f"ds_read_b128 {vr(VB+8*b,4)}, v3 offset:{off+1024}")
        a(f"ds_read_b128 {vr(VB+8*b+4,4)}, v3 offset:{off+1536}")
        a("s_mov_b64 exec, -1")
    kvread(0, 0)
    if DEEP: kread(1, 4096)
    a(f"s_waitcnt lgkmcnt({4 if DEEP else 3})" if not DIAG else "s_waitcnt lgkmcnt(0)")
    mfma32(a, S0, P0, Q0, "0")
    mfma32(a, S1, P0, Q1, "0")
    for S, C in ((S0, C0), (S1, C1)):
        rowmax16(a, 12, S)
        xhalf_max(a, 12, 13)
        a(f"v_sub_f32 v{C}, {BIAS}, v12")
        for i in range(1, 16): a(f"v_mov_b32 v{C+i}, v{C}")
        if S == S0:
            a("s_waitcnt lgkmcnt(0)")
            mfma32(a, S0, KB, Q0, C0)
    st.stamp()
    a("s_mov_b32 s50, 0")
    a(f"s_setprio {VAR.get('ap0', 3)}")
    if DIAG: a("s_waitcnt lgkmcnt(0)")
    a(".p2align 6")
    for _ in range(int(VAR.get("shift", 0))): a("s_nop 0")
    a.label("a_loop")
    def E(S, lo, hi):
        for i in range(lo, hi): a(f"v_exp_f32{VAR.get('enc', '')} v{S+i}, v{S+i}")
    def half(S, P, O, Vx, pvy, snext, w1, post, post2=(), w2=None):
        E(S, 0, 2)
        mfma32(a, *pvy)
        for x in post: x()
        E(S, 2, 8)
        if w1: a("s_waitcnt lgkmcnt(0)")
        mfma32(a, *snext)
        for x in post2: x()
        cvt8(a, P, S)
        E(S, 8, 12)
        if w2 is not None: a(f"s_waitcnt lgkmcnt({w2})")
        mfma32(a, O, Vx, P, O)
        E(S, 12, 16)
        cvt8(a, P+4, S+8)
    HK = {0: [("w", 4)], 1: [("w", 8)], 3: [("p", 2)], 4: [("w", 12)], 5: [("p", 1)], 6: [("p", 0)]}
    VAR.setdefault("pr", "4,6,7")
    if "pr" in VAR:
        for k in list(HK): HK[k] = [x for x in HK[k] if x[0] != "p"]
        for lvl, it in zip((2, 1, 0), VAR["pr"].split(",")): HK.setdefault(int(it), []).append(("p", lvl))
    if "ap0" in VAR: HK = {0: [("w", 4)], 1: [("w", 8)], 3: [("p", 1)], 4: [("w", 12)], 6: [("p", 0)]}
    def hooks():
        a("s_bitcmp1_b32 s50, 2")
        a("s_cbranch_scc1 a_hk_hi")
        a("s_branch a_hk_lo")
        a.label("a_hk_done")
    for t in range(4):
        b = t & 1; nb = b ^ 1
        if DEEP:
            post = [lambda: vread(nb, (t+1)*4096)]
            if t == 2: post = [hooks] + post
            half(S0, P0, O0, VB+8*b, (O1, VB+8*nb+4, P1+4, O1), (S1, KB+4*b, Q1, C1), False, post, [lambda: kread(b, (t+2)*4096)], 3)
            half(S1, P1, O1, VB+8*b, (O0, VB+8*b+4, P0+4, O0), (S0, KB+4*nb, Q0, C0), False, [])
            continue
        post = [lambda: kvread(nb, (t+1)*4096)]
        if t == 3: post = [hooks] + post
        half(S0, P0, O0, VB+8*b, (O1, VB+8*nb+4, P1+4, O1), (S1, KB+4*b, Q1, C1), False, post)
        half(S1, P1, O1, VB+8*b, (O0, VB+8*b+4, P0+4, O0), (S0, KB+4*nb, Q0, C0), True, [])
    a("v_add_u32 v2, 16384, v2")
    a("v_add_u32 v3, 16384, v3")
    a("s_add_u32 s50, s50, 1")
    a("s_cmp_lt_u32 s50, 8")
    a("s_cbranch_scc1 a_loop")
    mfma32(a, O1, VB+8+4, P1+4, O1)
    st.stamp()
    for i in range(2): a(f"ds_write_b128 v160, {vr(O0+4*i,4)} offset:{L_CB + i*1024}")
    a(f"ds_write_b32 v160, v{O0+8} offset:{L_CB + 2048}")
    lds_signal(a, C_CB, "v162")
    a("s_setprio 3")
    lds_wait(a, C_CB, 1, 12, 51, "v163", sleep=int(VAR.get("cbsleep", 0)))
    if "tfine" in VAR: st.stamp()
    for i in range(2): a(f"ds_read_b128 {vr(S0+4*i,4)}, v161 offset:{L_CB + i*1024}")
    a(f"ds_read_b32 v{S0+8}, v161 offset:{L_CB + 2048}")
    a("s_mov_b32 s51, 0x7b800000")
    a(f"s_mov_b32 s53, {hex((127 - 85) << 23)}")
    a("s_waitcnt lgkmcnt(0)")
    a(f"v_add_f32 v{O1+8}, v{O1+8}, v{S0+8}")
    a(f"v_rcp_f32 v14, v{O1+8}")
    for i in range(8): a(f"v_add_f32 v{O1+i}, v{O1+i}, v{S0+i}")
    a(f"v_add_f32 v12, abs(v{O1}), abs(v{O1+1})")
    a(f"v_add_f32 v13, abs(v{O1+2}), abs(v{O1+3})")
    for i in range(4, 8, 2):
        a(f"v_add_f32 v12, v12, abs(v{O1+i})")
        a(f"v_add_f32 v13, v13, abs(v{O1+i+1})")
    a("v_add_f32 v12, v12, v13")
    a(f"v_add_f32 v13, v12, v{O1+8}")
    a("v_cmp_ngt_f32 vcc, s51, v13")
    a("v_cmp_gt_f32 s[64:65], s53, v12")
    a("s_or_b64 vcc, vcc, s[64:65]")
    if "forcefb" in VAR: a("s_mov_b64 vcc, -1")
    a("s_cbranch_vccnz a_fallback")
    a.label("a_norm")
    for i in range(8): a(f"v_mul_f32 v{O1+i}, v{O1+i}, v14")
    cvt8(a, P0, O1)
    for i in range(4): a(f"v_min_u32 v{P0+i}, -2, v{P0+i}")
    if "nofast" not in VAR: a(f"buffer_store_dwordx4 {vr(P0,4)}, v9, s[36:39], s48 offen " + VAR.get("fst", ""))
    lds_wait(a, C_ST + 20, 4, 12, 51, sleep=0)
    a(f"ds_write_b128 v164, {vr(P0,4)}")
    lds_signal(a, C_OF)
    st.stamp()
    a(f"s_mov_b32 s63, {SPIN}")
    a("s_mov_b32 s50, 0")
    a.label("a_poll")
    a(f"s_cmp_lt_u32 s63, {SPIN - int(VAR.get('fastn', 12))}")
    a("s_cselect_b32 s51, s63, 0")
    a("s_bitcmp1_b32 s51, 0")
    a(f"s_cselect_b32 s51, 0, {W_OF - W_OA}")
    a("v_add_u32 v13, s51, v9")
    for d in range(1, 4):
        a(f"buffer_load_dwordx4 {vr(S0+4*(d-1),4)}, v13, s[36:39], s{44+d} offen sc1")
    a("s_sub_u32 s63, s63, 1")
    for d in range(1, 4):
        r = S0 + 4*(d-1)
        nx = a.newlabel("pn")
        a(f"s_waitcnt vmcnt({3-d})")
        a(f"s_bitcmp1_b32 s50, {d}")
        a(f"s_cbranch_scc1 {nx}")
        a(f"v_max3_u32 v12, v{r}, v{r+1}, v{r+2}")
        a(f"v_max_u32 v12, v12, v{r+3}")
        a("v_cmp_eq_u32 vcc, -1, v12")
        a("s_cmp_eq_u32 s63, 0")
        a("s_cselect_b64 vcc, 0, vcc")
        a(f"s_cbranch_vccnz {nx}")
        a(f"ds_write_b128 v165, {vr(r,4)} offset:{d*8192}")
        lds_signal(a, C_OF + 4*d)
        a(f"s_bitset1_b32 s50, {d}")
        a.label(nx)
    a("s_cmp_eq_u32 s50, 14")
    a("s_cbranch_scc1 a_got")
    ls = a.newlabel("sl")
    a(f"s_cmp_eq_u32 s63, {SPIN - int(VAR.get('slown', 4))}")
    a(f"s_cbranch_scc0 {ls}")
    a(f"buffer_store_dwordx4 {vr(P0,4)}, v9, s[36:39], s44 offen sc1")
    a.label(ls)
    if int(VAR.get('tsleep', 0)): a(f"s_sleep {VAR.get('tsleep', 0)}")
    a("s_branch a_poll")
    a.label("a_got")
    if "xnoslow" not in VAR: a(f"buffer_store_dwordx4 {vr(P0,4)}, v9, s[36:39], s44 offen sc1")
    st.stamp()
    if "tfine" in VAR:
        a("s_waitcnt lgkmcnt(0)")
        a(f"s_sub_u32 s72, {SPIN}, s63")
        a("s_add_u32 s72, s72, s70")
    st.dump(None, 0)
    a("s_endpgm")
    def pretouch():
        a(f"v_lshlrev_b32 v13, 7, v1")
        a(f"v_add_u32 v13, {W_OF - W_OA}, v13")
        a("s_mov_b64 exec, 0xff")
        for d in range(1, 4): a(f"buffer_load_dword v166, v13, s[36:39], s{44+d} offen sc1")
        a("s_mov_b64 exec, -1")
    HK[3] = HK.get(3, []) + [("sig", C_PR)]
    HK[2] = [x for x in HK.get(2, []) if x[0] == "p"] + [("f", tail_setup)]
    HK[7] = [x for x in HK.get(7, []) if x[0] == "p"] + [("w", 16), ("w8", C_PR)] + ([("f", pretouch)] if "nopre" not in VAR else [])
    for nm, rng in (("a_hk_lo", range(0, 4)), ("a_hk_hi", range(4, 8))):
        a.label(nm)
        for i in rng:
            if i not in HK: continue
            nx = a.newlabel("hk")
            a(f"s_cmp_eq_u32 s50, {i}")
            a(f"s_cbranch_scc0 {nx}")
            for kind, v in HK[i]:
                if kind == "w": lds_wait(a, C_ST + v, 4, 12, 51)
                elif kind == "sig": lds_signal(a, v)
                elif kind == "f": v()
                elif kind == "w8": lds_wait(a, v, 8, 12, 51)
                elif kind == "s":
                    a("s_cmp_eq_u32 s43, 0")
                    a("s_cbranch_scc0 a_hk_done")
                    a("s_waitcnt vmcnt(0)")
                    lds_signal(a, C_ST + v)
                else: a(f"s_setprio {v}")
            a("s_branch a_hk_done")
            a.label(nx)
        a("s_branch a_hk_done")
    a.label("a_fallback")
    a("v_mov_b32 v12, 0xff800000")
    a("s_mov_b32 s50, 0")
    a.label("a_fb1")
    a(f"buffer_load_dwordx4 {vr(KB,4)}, v9, s[36:39], s50 offen sc1")
    a("s_waitcnt vmcnt(0)")
    mfma32(a, S0, KB, Q1, "0")
    a("s_add_u32 s50, s50, 2048")
    rowmax16(a, 12, S0, init=True)
    a("s_cmp_lt_u32 s50, 0x20000")
    a("s_cbranch_scc1 a_fb1")
    xhalf_max(a, 12, 13)
    a(f"v_sub_f32 v{C0}, 0, v12")
    for i in range(1, 16): a(f"v_mov_b32 v{C0+i}, v{C0}")
    for i in range(16): a(f"v_mov_b32 v{O1+i}, 0")
    a("v_lshlrev_b32 v3, 8, v7")
    a("v_lshl_add_u32 v3, v6, 4, v3")
    a("s_mov_b32 s50, 0")
    a.label("a_fb2")
    a(f"buffer_load_dwordx4 {vr(KB,4)}, v9, s[36:39], s50 offen sc1")
    a("s_mov_b64 exec, s[60:61]")
    a(f"buffer_load_dwordx4 {vr(VB,4)}, v3, s[36:39], s50 offen offset:1024 sc1")
    a(f"buffer_load_dwordx4 {vr(VB+4,4)}, v3, s[36:39], s50 offen offset:1536 sc1")
    a("s_mov_b64 exec, -1")
    a("s_waitcnt vmcnt(0)")
    mfma32(a, S0, KB, Q1, C0)
    a("s_add_u32 s50, s50, 2048")
    E(S0, 0, 16)
    cvt8(a, P0, S0); cvt8(a, P0+4, S0+8)
    mfma32(a, O1, VB, P0, O1)
    mfma32(a, O1, VB+4, P0+4, O1)
    a("s_cmp_lt_u32 s50, 0x20000")
    a("s_cbranch_scc1 a_fb2")
    a(f"v_rcp_f32 v14, v{O1+8}")
    a("s_branch a_norm")

def role_b(a, st):
    a("s_setprio 3")
    a("s_and_b32 s45, s41, 1")
    a("s_lshr_b32 s46, s41, 1")
    a("s_cmp_eq_u32 s45, 0")
    a(f"s_cselect_b32 s28, s{P_AWK}, s{P_AWV}")
    a(f"s_cselect_b32 s29, s{P_AWK+1}, s{P_AWV+1}")
    a("s_mov_b32 s30, 16384")
    a("s_mov_b32 s31, 0x20000")
    a("s_lshl_b32 s51, s26, 12")
    a(f"s_add_u32 m0, s51, {L_WK}")
    for q in range(4):
        a(f"buffer_load_dwordx4 v9, s[28:31], s51 offen offset:{q*1024} lds")
    a(f"v_mov_b32 v18, {W_EP}")
    a("buffer_load_dword v19, v18, s[36:39], 0 offen sc1")
    if "nobar0" not in VAR: a("s_barrier")
    a("s_mov_b32 s58, 0")
    a("s_lshr_b32 s44, s40, 1")
    a("s_and_b32 s42, s26, 1")
    a("s_lshr_b32 s43, s26, 1")
    srd(a, 28, P_BX, 2 << 20)
    srd(a, 32, P_BWQKV, 512 * 3072)
    a("v_lshrrev_b32 v12, 3, v1")
    a("v_and_b32 v13, 7, v1")
    a("v_bfe_u32 v14, v1, 4, 1")
    a("v_lshlrev_b32 v14, 2, v14")
    a("v_xor_b32 v14, v14, v13")
    a("v_mul_u32_u24 v3, 3072, v12")
    a("v_lshl_add_u32 v3, v14, 4, v3")
    a("v_lshlrev_b32 v4, 10, v12")
    a("v_lshl_add_u32 v4, v14, 4, v4")
    a(f"s_mul_i32 s64, s26, {16*3072}")
    a("s_lshl_b32 s51, s27, 7")
    a("s_add_u32 s64, s64, s51")
    a("s_lshl_b32 s65, s44, 16")
    a("s_lshl_b32 s51, s26, 14")
    a("s_add_u32 s65, s65, s51")
    if MAP81:
        a("s_lshr_b32 s67, s3, 3")
        a("s_lshl_b32 s67, s67, 1")
        a("s_add_u32 s67, s67, s3")
    else:
        a("s_lshr_b32 s67, s3, 2")
        a("s_lshl_b32 s51, s3, 1")
        a("s_add_u32 s67, s67, s51")
    a("s_and_b32 s67, s67, 7")
    a("s_mul_i32 s56, s26, 6144")
    a(f"s_add_u32 s56, s56, {L_GB + GB_W}")
    a("s_mul_i32 s57, s26, 2080")
    a(f"s_add_u32 s57, s57, {L_GB + GB_X}")
    def issue_ops(buf):
        o = buf * GB_SZ
        def pre():
            a(f"s_mul_i32 s48, s67, {64*3072}")
            a("s_add_u32 s48, s48, s64")
            a(f"s_add_u32 s47, s48, {8*3072}")
            a("s_lshl_b32 s49, s67, 7")
            a("s_add_u32 s49, s49, s65")
            a("s_add_u32 s66, s49, 8192")
            a("s_add_u32 s67, s67, 1")
            a("s_and_b32 s67, s67, 7")
        ops = [pre]
        for q in range(2):
            def fx(q=q):
                a(f"s_add_u32 m0, s57, {o + q*1040}")
                a(f"buffer_load_dwordx4 v4, s[28:31], {'s66' if q else 's49'} offen lds")
            ops.append(fx)
        for gq in range(2):
            for t in range(3):
                def f(gq=gq, t=t):
                    if t == 0: a(f"s_add_u32 m0, s56, {o + gq*3072}")
                    a(f"buffer_load_dwordx4 v3, s[32:35], {'s47' if gq else 's48'} offen offset:{t*1024} lds")
                ops.append(f)
        return ops
    BST = VAR.get("bstart", "st4")
    if BST == "early":
        for f in issue_ops(0): f()
    lk = a.newlabel("nokv")
    a("v_lshl_add_u32 v5, v1, 2, v10")
    a("v_mov_b32 v12, 0")
    a("ds_write_b32 v5, v12")
    kv_setup(a)
    a("s_waitcnt vmcnt(0) lgkmcnt(0)")
    a("v_readfirstlane_b32 s62, v19")
    a(f"s_add_u32 s62, s62, {TAGC}")
    a("s_barrier")
    a("s_cmp_eq_u32 s26, 3")
    a(f"s_cbranch_scc0 {lk}")
    kv_job(a)
    if "merge" not in VAR: a("s_barrier")
    kv_store(a)
    lk2 = a.newlabel("kvs")
    a(f"s_branch {lk2}")
    a.label(lk)
    if "merge" not in VAR: a("s_barrier")
    a.label(lk2)
    a("s_mov_b32 s45, s27")
    a("v_mul_u32_u24 v8, 3072, v7")
    a("v_bfe_u32 v14, v1, 2, 2")
    a("v_lshl_add_u32 v8, v14, 7, v8")
    a("v_bfe_u32 v14, v1, 3, 1")
    a("v_xor_b32 v14, s42, v14")
    a("v_lshl_add_u32 v8, v14, 6, v8")
    a("v_bfe_u32 v14, v1, 4, 1")
    a("v_lshl_add_u32 v8, v14, 5, v8")
    a("v_and_b32 v14, 3, v1")
    a("v_lshl_add_u32 v8, v14, 3, v8")
    a(f"v_add_u32 v8, {L_GB + GB_W}, v8")
    XM = 152
    a("v_bfe_u32 v14, v1, 1, 1")
    a("v_lshlrev_b32 v14, 2, v14")
    a("v_or_b32 v14, v14, v7")
    a("v_lshlrev_b32 v14, 4, v14")
    a("v_and_b32 v15, 7, v1")
    a("v_lshl_add_u32 v14, v15, 7, v14")
    a("v_xor_b32 v15, 64, v14")
    a("v_lshrrev_b32 v16, 3, v6")
    a("v_mul_u32_u24 v16, 1040, v16")
    a("s_mul_i32 s51, s43, 4160")
    a(f"s_add_u32 s51, s51, {L_GB + GB_X}")
    a(f"v_add3_u32 v{XM}, v14, v16, s51")
    a(f"v_add3_u32 v{XM+1}, v15, v16, s51")
    ACC = 20; WF = 84; XF = 108
    for i in range(48): a(f"v_mov_b32 v{ACC+i}, 0")
    for i in range(16): a(f"v_mov_b32 v{WF+12+i if i < 12 else XF+4+i-12}, 0")
    a("s_barrier")
    lk3 = a.newlabel("kvf")
    a("s_cmp_eq_u32 s26, 3")
    a(f"s_cbranch_scc0 {lk3}")
    kv_flag(a)
    a.label(lk3)
    st.stamp()
    a("s_barrier")
    MM = 124; MH = 132
    a("v_lshlrev_b32 v5, 2, v7")
    a("v_sub_u32 v5, v6, v5")
    a("v_add_u32 v5, 18, v5")
    a("v_mov_b32 v14, 0x5555")
    a("v_mov_b32 v15, 0")
    a("v_lshlrev_b64 v[14:15], v5, v[14:15]")
    a("s_or_b32 s51, s44, s43")
    a("s_cmp_eq_u32 s51, 0")
    a("s_cselect_b32 s51, 0, -1")
    a("v_and_b32 v14, s51, v14")
    a("v_not_b32 v14, v14")
    a("v_not_b32 v15, v15")
    for r in range(16):
        idx = 8*(r >> 2) + (r & 3)
        a(f"v_bfe_i32 v{MM+r}, v15, {idx}, 1")
        a(f"v_lshlrev_b32 v{MM+r}, 23, v{MM+r}")
        if r >= 8:
            a(f"v_bfe_i32 v{MH+r}, v14, {idx}, 1")
            a(f"v_lshlrev_b32 v{MH+r}, 23, v{MH+r}")
    def read_ops(buf, sp, fb):
        r = []
        for t3 in range(3):
            for t in range(2):
                r.append(f"ds_read_b64_tr_b16 {vr(WF+12*fb+4*t3+2*t,2)}, v8 offset:{buf*GB_SZ + sp*6144 + t3*1024 + t*512}")
        r.insert(2, f"ds_read_b128 {vr(XF+4*fb,4)}, v{XM+(sp>>1)} offset:{buf*GB_SZ + (sp&1)*32}")
        return r
    def mm(fb, k):
        w = WF + 12*fb; x = XF + 4*fb
        if "nomm" in VAR: return
        if k == 0: mfma32(a, ACC, w, x, ACC)
        elif k == 1: mfma32(a, ACC+16, w+4, x, ACC+16)
        else: mfma32(a, ACC+32, x, w+8, ACC+32)
    a("s_lshr_b32 s55, s40, 3")
    a("s_lshl_b32 s55, s55, 2")
    a("s_cmp_ge_u32 s3, 28")
    a("s_cselect_b32 s51, 28, 0")
    a("s_sub_u32 s59, s3, s51")
    a("s_add_u32 s53, s55, s26")
    a("s_lshl_b32 s53, s53, 13")
    a(f"s_add_u32 s53, s53, {W_KF}")
    a("s_add_u32 s52, s53, 4096")
    a("s_lshl_b32 s51, s26, 12")
    a("v_lshlrev_b32 v13, 3, v1")
    a("v_add_u32 v13, s51, v13")
    FQ = [68, 72, 76, 80, 84, 88, 92, 108]
    def kf_loads():
        for i, r in enumerate(FQ):
            a(f"buffer_load_dwordx4 {vr(r,4)}, v9, s[36:39], {'s53' if i < 4 else 's52'} offen offset:{(i&3)*1024} sc1")
    a(f"s_mov_b32 s63, {int(VAR.get('kfn', 3))}")
    a("s_mov_b32 s46, 0")
    a("s_barrier")
    kf_loads()
    a("s_barrier")
    st.stamp()
    a.label("b_kf")
    a("v_mov_b32 v14, 0")
    for i, r in enumerate(FQ):
        a(f"s_waitcnt vmcnt({7-i})")
        a(f"ds_write_b64 v13, {vr(r,2)} offset:{L_WK + i*512}")
        a(f"v_xor_b32 v15, v{r}, v{r+2}")
        a(f"v_xor_b32 v16, v{r+1}, v{r+3}")
        a("v_xor_b32 v15, s62, v15")
        a("v_xor_b32 v16, s62, v16")
        a("v_or3_b32 v14, v14, v15, v16")
    a("v_cmp_ne_u32 vcc, 0, v14")
    a("s_nop 1")
    a("s_cbranch_vccz b_kf_ok")
    a("s_sub_u32 s63, s63, 1")
    a("s_cbranch_scc1 b_kf_done")
    kf_loads()
    a("s_branch b_kf")
    a.label("b_kf_ok")
    lds_signal(a, C_ST + 0)
    a("s_mov_b32 s46, 1")
    a.label("b_kf_done")
    st.stamp()
    a("v_lshlrev_b32 v15, 7, v1")
    a("s_lshl_b32 s54, s26, 11")
    a(f"s_add_u32 s54, s54, {W_F1}")
    poll_flags(a, 15, "s54", 16, 16, sleep=int(VAR.get("psleep", 4)))
    bbar(a)
    lf = a.newlabel("kfok")
    a("s_cmp_eq_u32 s46, 1")
    a(f"s_cbranch_scc1 {lf}")
    a("s_lshl_b32 s53, s26, 12")
    kv_dma(a, 53, 4, first=True)
    a("s_waitcnt vmcnt(0)")
    lds_signal(a, C_ST + 0)
    a.label(lf)
    lds_wait(a, C_QD, 4, 5, 51)
    for k in range(1, 5):
        a("s_lshl_b32 s53, s26, 12")
        a(f"s_add_u32 s53, s53, {k*16384}")
        kv_dma(a, 53, 4)
        if k == 2:
            a("s_waitcnt vmcnt(4)")
            lds_signal(a, C_ST + 4)
    a("s_cmp_eq_u32 s43, 0")
    a(f"s_cselect_b32 s4, s{P_BWO}, s{P_AWO}")
    a(f"s_cselect_b32 s5, s{P_BWO+1}, s{P_AWO+1}")
    a("s_mov_b32 s6, 0x80000")
    a("s_mov_b32 s7, 0x20000")
    a("s_lshl_b32 s51, s3, 1")
    a("s_add_u32 s51, s51, s42")
    a("s_lshl_b32 s51, s51, 13")
    if MAP81: a("v_lshlrev_b32 v14, 7, v1")
    else:
        a("s_lshr_b32 s54, s41, 1")
        a("s_lshl_b32 s54, s54, 9")
        a("s_add_u32 s51, s51, s54")
        a("v_lshrrev_b32 v14, 2, v6")
        a("v_lshlrev_b32 v14, 10, v14")
        a("v_and_b32 v15, 3, v1")
        a("v_lshl_add_u32 v14, v15, 7, v14")
    a("buffer_load_dword v160, v14, s[4:7], s51 offen")
    for f in issue_ops(0): f()
    a("s_waitcnt vmcnt(9)")
    lds_signal(a, C_ST + 8)
    a(f"s_setprio {VAR.get('bprio', 3)}")
    st.stamp()
    a("s_mov_b32 s50, 0")
    if "nogemm" in VAR: a("s_branch b_gend")
    a.label("b_loop")
    for buf in range(2):
        mm(1, 0)
        a("s_waitcnt vmcnt(0)")
        a("s_add_u32 s58, s58, 4")
        lds_signal(a, C_BB)
        mm(1, 1)
        ops = issue_ops(buf ^ 1)
        if buf == 1:
            a("s_cmp_eq_u32 s50, 3")
            a("s_cselect_b32 s64, 0x7f000000, s64")
            a("s_cselect_b32 s65, 0x7f000000, s65")
            for r in (56, 57): a(f"s_cselect_b32 s{r}, 0x30000, s{r}")
        ops[0]()
        lds_wait(a, C_BB, "s58", 5, 51, sleep=int(VAR.get("bsleep", 0)))
        for x in read_ops(buf, 0, 0): a(x)
        mm(1, 2)
        oi = 1
        for _ in range(3): ops[oi](); oi += 1
        for sp in range(3):
            for x in read_ops(buf, sp+1, (sp+1) & 1): a(x)
            a("s_waitcnt lgkmcnt(7)")
            for k in range(3):
                mm(sp & 1, k)
                for _ in range(2):
                    if oi < len(ops): ops[oi](); oi += 1
        a("s_waitcnt lgkmcnt(0)")
    a("s_add_u32 s50, s50, 1")
    a("s_cmp_lt_u32 s50, 4")
    a("s_cbranch_scc1 b_loop")
    a.label("b_gend")
    for k in range(3): mm(1, k)
    a("s_setprio 3")
    st.stamp()
    QF = 84; KF = 92; VF = 100; KH = 108; VH = 116
    cvt8(a, KF, ACC+16); cvt8(a, KF+4, ACC+24)
    cvt8(a, VF, ACC+32); cvt8(a, VF+4, ACC+40)
    a("s_mul_i32 s51, s42, 3072")
    a(f"s_add_u32 s51, s51, {L_BEX}")
    a("v_add_u32 v13, s51, v9")
    a("s_lshl_b32 s52, s44, 3")
    a("s_add_u32 s52, s52, s45")
    a("s_lshl_b32 s53, s52, 1")
    a("s_add_u32 s53, s53, s42")
    a("s_mul_i32 s53, s53, 3072")
    a(f"s_add_u32 s53, s53, {W_HALO}")
    a("s_lshl_b32 s52, s52, 7")
    a("s_lshl_b32 s51, s42, 2")
    a("s_add_u32 s52, s52, s51")
    a(f"s_add_u32 s52, s52, {W_F2}")
    l1 = a.newlabel("b_w1"); l2 = a.newlabel("b_w2")
    a("s_cmp_eq_u32 s43, 0")
    a(f"s_cbranch_scc0 {l1}")
    lds_wait(a, C_QR, 4, 5, 51, sleep=2)
    a(f"ds_write_b128 v13, {vr(KF,4)}")
    a(f"ds_write_b128 v13, {vr(KF+4,4)} offset:1024")
    a(f"ds_write_b128 v13, {vr(VF+4,4)} offset:2048")
    a(f"s_branch {l2}")
    a.label(l1)
    a(f"buffer_store_dwordx4 {vr(KF,4)}, v9, s[36:39], s53 offen sc1")
    a(f"buffer_store_dwordx4 {vr(KF+4,4)}, v9, s[36:39], s53 offen offset:1024 sc1")
    a(f"buffer_store_dwordx4 {vr(VF+4,4)}, v9, s[36:39], s53 offen offset:2048 sc1")
    a("s_waitcnt vmcnt(0)")
    store_flag(a, "s52", 14)
    a.label(l2)
    bbar(a)
    a("s_mov_b32 s60, s52")
    a("s_mul_i32 s54, s26, 12288")
    a("s_add_u32 s54, s54, 81920")
    kv_dma(a, 54, 12)
    a("s_mov_b32 s52, s60")
    l1 = a.newlabel("b_x1"); l2 = a.newlabel("b_x2")
    a("s_or_b32 s51, s44, 0")
    a("s_cselect_b32 s51, s43, 1")
    a("s_cmp_eq_u32 s51, 0")
    a(f"s_cbranch_scc0 {l1}")
    a(f"s_sub_u32 s52, s52, {8*128}")
    a(f"s_sub_u32 s53, s53, {16*3072}")
    a("v_mov_b32 v5, 0")
    poll_flags(a, 5, "s52", 1, 14, sleep=6, width=1)
    a(f"buffer_load_dwordx4 {vr(KH,4)}, v9, s[36:39], s53 offen sc1")
    a(f"buffer_load_dwordx4 {vr(KH+4,4)}, v9, s[36:39], s53 offen offset:1024 sc1")
    a(f"buffer_load_dwordx4 {vr(VH,4)}, v9, s[36:39], s53 offen offset:2048 sc1")
    a("s_waitcnt vmcnt(0)")
    a(f"s_branch {l2}")
    a.label(l1)
    a(f"ds_read_b128 {vr(KH,4)}, v13")
    a(f"ds_read_b128 {vr(KH+4,4)}, v13 offset:1024")
    a(f"ds_read_b128 {vr(VH,4)}, v13 offset:2048")
    a.label(l2)
    lsn = a.newlabel("nosn")
    a("s_and_b32 s51, s40, 1")
    a("s_cmp_eq_u32 s51, s43")
    a(f"s_cbranch_scc0 {lsn}")
    a("s_lshl_b32 s51, s40, 2")
    a("s_add_u32 s51, s51, s41")
    a("s_lshl_b32 s51, s51, 1")
    a("s_add_u32 s51, s51, s42")
    a("s_lshl_b32 s51, s51, 12")
    a(f"s_add_u32 s51, s51, {W_OA}")
    for i in range(4): a(f"v_mov_b32 v{120+i}, -1")
    for i in range(4 if "xnoslow" not in VAR else 0): a(f"buffer_store_dwordx4 v[120:123], v9, s[36:39], s51 offen offset:{i*1024} sc1")
    a(f"s_add_u32 s51, s51, {W_OF - W_OA}")
    for i in range(4): a(f"buffer_store_dwordx4 v[120:123], v9, s[36:39], s51 offen offset:{i*1024} sc1")
    a.label(lsn)
    cvt8(a, QF, ACC); cvt8(a, QF+4, ACC+8)
    a("s_lshl_b32 s52, s44, 1")
    a("s_add_u32 s52, s52, s43")
    a("s_lshl_b32 s55, s52, 4")
    a("s_lshl_b32 s53, s45, 1")
    a("s_add_u32 s53, s53, s42")
    a("s_add_u32 s55, s55, s53")
    a("s_lshl_b32 s55, s55, 11")
    a(f"s_add_u32 s55, s55, {W_OB}")
    a("s_lshl_b32 s57, s52, 9")
    a("s_lshr_b32 s51, s53, 2")
    a("s_lshl_b32 s51, s51, 7")
    a("s_add_u32 s57, s57, s51")
    a("s_and_b32 s51, s53, 3")
    a("s_lshl_b32 s51, s51, 2")
    a("s_add_u32 s57, s57, s51")
    a(f"s_add_u32 s57, s57, {W_F3}")
    a("s_waitcnt lgkmcnt(0)")
    SM = 20; SH = 36; O = 52; PP = 68; T = 152
    a(f"s_mov_b32 s46, {CSCALE}")
    for hd in range(2 if "nolocal" not in VAR else 0):
        mfma32(a, SM, KF+4*hd, QF+4*hd, MM)
        mfma32(a, SH, KH+4*hd, QF+4*hd, MH)
        if hd == 1:
            a("s_waitcnt vmcnt(1)")
            lds_signal(a, C_ST + 12)
        vals = [SM+i for i in range(16)] + [SH+8+i for i in range(8)]
        a(f"v_max3_f32 v{T}, v{vals[0]}, v{vals[1]}, v{vals[2]}")
        for i in range(3, 23, 2):
            a(f"v_max3_f32 v{T}, v{T}, v{vals[i]}, v{vals[i+1]}")
        a(f"v_max_f32 v{T}, v{T}, v{vals[23]}")
        xhalf_max(a, T, T+1)
        a(f"v_mul_f32 v{T}, s46, v{T}")
        for v in vals: a(f"v_fma_f32 v{v}, v{v}, s46, -v{T}")
        for v in vals: a(f"v_exp_f32 v{v}, v{v}")
        a(f"v_add_f32 v{T+2}, v{vals[0]}, v{vals[1]}")
        for v in vals[2:]: a(f"v_add_f32 v{T+2}, v{T+2}, v{v}")
        cvt8(a, PP, SM); cvt8(a, PP+4, SM+8); cvt8(a, PP+8, SH+8)
        a(f"v_mov_b32 v{T+3}, v{T+2}")
        a(f"v_permlane32_swap_b32 v{T+2}, v{T+3}")
        mfma32(a, O, VF, PP, "0")
        mfma32(a, O, VF+4, PP+4, O)
        mfma32(a, O, VH, PP+8, O)
        a(f"v_add_f32 v{T+2}, v{T+2}, v{T+3}")
        a(f"v_rcp_f32 v{T+2}, v{T+2}")
        for i in range(8): a(f"v_mul_f32 v{O+8*hd+i}, v{O+8*hd+i}, v{T+2}")
        cvt8(a, T+4+4*hd, O+8*hd)
        a(f"buffer_store_dwordx4 {vr(T+4+4*hd,4)}, v9, s[36:39], s55 offen offset:{hd*1024} sc1")
    a("s_waitcnt vmcnt(0)")
    store_flag(a, "s57", 12)
    st.stamp()
    srd(a, 32, P_BWO, 512 * 1024)
    srd(a, 28, P_OUT, 4 << 20)
    a("s_lshl_b32 s47, s41, 8")
    a("s_lshl_b32 s51, s26, 6")
    a("s_add_u32 s47, s47, s51")
    a("v_lshrrev_b32 v3, 2, v1")
    a("v_lshlrev_b32 v3, 10, v3")
    a("v_and_b32 v4, 3, v1")
    a("v_lshl_add_u32 v3, v4, 4, v3")
    a("v_add_u32 v3, s47, v3")
    tr_base_wo(a, 8, 4)
    a("s_mul_i32 s56, s26, 7168")
    a(f"s_add_u32 s56, s56, {L_COMB}")
    a("v_add_u32 v8, s56, v8")
    a("v_lshlrev_b32 v4, 11, v6")
    a("v_lshl_add_u32 v4, v7, 4, v4")
    a("s_lshl_b32 s51, s40, 16")
    a("s_add_u32 s47, s47, s51")
    ACC = 12; OB = 28; WL = 40
    a("s_mov_b32 s48, 0")
    bbar(a)
    R = 7
    def wissue(i):
        a(f"s_add_u32 m0, s56, {(i%R)*1024}")
        a(f"buffer_load_dwordx4 v3, s[32:35], s48 offen lds")
        a("s_add_u32 s48, s48, 16384")
        a("s_and_b32 s48, s48, 0x7ffff")
    def trr(i):
        for t in range(2): a(f"ds_read_b64_tr_b16 {vr(WL+4*i+2*t,2)}, v8 offset:{(i%R)*1024 + t*512}")
    for i in range(R): wissue(i)
    for i in range(32):
        a(f"s_waitcnt vmcnt({R-1 if i == 0 else min(R-2, 31-i)})")
        trr(i)
        if i >= 1 and i + R - 1 < 32:
            a("s_waitcnt lgkmcnt(2)")
            wissue(i + R - 1)
    def run(lo, hi, addr, off0):
        o = lambda i: (i - off0) * 1024
        for i in range(lo, min(lo+2, hi)): a(f"ds_read_b128 {vr(OB+4*(i%3),4)}, {addr} offset:{o(i)}")
        for i in range(lo, hi):
            if i + 2 < hi:
                a(f"ds_read_b128 {vr(OB+4*((i+2)%3),4)}, {addr} offset:{o(i+2)}")
                a("s_waitcnt lgkmcnt(2)")
            else:
                a(f"s_waitcnt lgkmcnt({hi-1-i})")
            mfma32(a, ACC, WL+4*i, OB+4*(i%3), "0" if i == 0 else ACC)
    a("v_lshlrev_b32 v5, 7, v1")
    a("s_lshl_b32 s57, s40, 9")
    a(f"s_add_u32 s57, s57, {W_F3}")
    poll_flags(a, 5, "s57", 4, 28, sleep=8)
    lds_signal(a, C_ST + 16)
    st.stamp()
    lds_wait(a, C_PR, 8, 5, 51, sleep=8)
    a("s_lshl_b32 s49, s40, 15")
    a("s_lshl_b32 s51, s26, 13")
    a("s_add_u32 s49, s49, s51")
    a(f"s_add_u32 s49, s49, {W_OB}")
    a(f"s_add_u32 s46, s51, {L_OA}")
    for q in range(8):
        if (q & 3) == 0:
            a(f"s_add_u32 m0, s46, {q*1024}")
            if q: a("s_add_u32 s49, s49, 4096")
        a(f"buffer_load_dwordx4 v9, s[36:39], s49 offen offset:{(q&3)*1024} sc1 lds")
    srd(a, 32, P_AWO, 512 * 1024)
    a("s_lshl_b32 s48, s41, 17")
    for i in range(R): wissue(i)
    a(f"v_add_u32 v0, {L_OA}, v9")
    a(f"s_waitcnt vmcnt({R})")
    bbar(a)
    def ord_(i): a(f"ds_read_b128 {vr(OB+4*(i%3),4)}, v0 offset:{i*1024}")
    ord_(0); ord_(1)
    q = ["o0", "o1"]
    def lw(tag):
        k = len(q) - 1 - max(j for j, x in enumerate(q) if x == tag)
        a(f"s_waitcnt lgkmcnt({k})")
        del q[:len(q)-k]
    for i in range(32):
        if i + 2 < 32: ord_(i + 2); q.append(f"o{i+2}")
        if i == 29: lds_signal(a, C_ST + 20); q.append("sig")
        if f"o{i}" in q: lw(f"o{i}")
        mfma32(a, ACC, WL+4*i, OB+4*(i%3), "0" if i == 0 else ACC)
        if i >= 2 and i + R - 2 < 32:
            if f"t{i-2}" in q: lw(f"t{i-2}")
            wissue(i + R - 2)
        issued = min(31, max(R - 1, i + R - 2))
        a(f"s_waitcnt vmcnt({issued - i})")
        trr(i); q += [f"t{i}", f"t{i}"]
    cvt8(a, 28, ACC); cvt8(a, 32, ACC+8)
    a("buffer_store_dwordx4 v[28:31], v4, s[28:31], s47 offen offset:1024 " + VAR.get("stb", "nt"))
    a("buffer_store_dwordx4 v[32:35], v4, s[28:31], s47 offen offset:1056 " + VAR.get("stb", "nt"))
    st.stamp()
    a.label("b_tail")
    st.stamp()
    le = a.newlabel("ep")
    a("s_or_b32 s51, s2, s26")
    a("s_cmp_eq_u32 s51, 0")
    a(f"s_cbranch_scc0 {le}")
    a(f"s_mov_b32 s51, {W_EP}")
    store_flag(a, "s51", 28)
    a.label(le)
    a(f"v_add_u32 v0, {L_OA}, v9")
    lds_wait(a, C_CB + 0, 1, 5, 51, sleep=16)
    def rd(i): a(f"ds_read_b128 {vr(WL+4*(i-8),4)}, v0 offset:{i*1024}")
    lds_wait(a, C_OF, 8, 5, 51, sleep=0)
    if "tfine" in VAR: st.n = 5; st.stamp(); a("s_waitcnt lgkmcnt(0)")
    run(0, 8, "v0", 0)
    lds_wait(a, C_OF + 4, 8, 5, 51, sleep=0)
    if "tfine" in VAR: st.stamp(); a("s_waitcnt lgkmcnt(0)")
    for i in range(8, 16): rd(i)
    NE = int(VAR.get("ne", 3))
    for i in range(8, 8 + NE):
        a(f"s_waitcnt lgkmcnt({15 - i})")
        mfma32(a, ACC, WL+4*i, WL+4*(i-8), ACC)
        if i == 8: a(f"ds_read_b64 v[28:29], v10 offset:{C_OF + 8}")
    a("s_waitcnt lgkmcnt(0)")
    a("v_min_u32 v28, v28, v29")
    a("v_readfirstlane_b32 s51, v28")
    a("s_cmp_ge_u32 s51, 8")
    a("s_cbranch_scc0 b_slowtail")
    for i in range(8, 8 + NE): rd(i + 8)
    for i in range(8 + NE, 32):
        if i >= 16: a(f"s_waitcnt lgkmcnt({min(7, 31 - i)})")
        mfma32(a, ACC, WL+4*i, WL+4*(i-8), ACC)
        if i + 8 < 32: rd(i + 8)
    a("s_branch b_fin")
    a.label("b_slowtail")
    for d in range(1, 4):
        if d > 1:
            lds_wait(a, C_OF + 4*d, 8, 5, 51, sleep=0)
            for i in range(8*d, 8*d + 8): rd(i)
        for i in range(8*d + (NE if d == 1 else 0), 8*d + 8):
            a(f"s_waitcnt lgkmcnt({8*d + 7 - i})")
            mfma32(a, ACC, WL+4*i, WL+4*(i-8), ACC)
    a.label("b_fin")
    cvt8(a, 28, ACC); cvt8(a, 32, ACC+8)
    a("buffer_store_dwordx4 v[28:31], v4, s[28:31], s47 offen " + VAR.get("sta", "nt"))
    a("buffer_store_dwordx4 v[32:35], v4, s[28:31], s47 offen offset:32 " + VAR.get("sta", "nt"))
    if DIAG:
        if "tfine" in VAR: st.stamp()
        a("s_waitcnt vmcnt(0)")
        st.stamp()
        st.dump(None, 0)

def kernel():
    a = Asm(); n = NAME + "_kernel"
    a.label(n)
    a("s_cmp_ge_u32 s2, 256")
    a("s_cbranch_scc1 k_exit")
    load_ptrs(a)
    sta = Stamps(a, DIAG, real='--cyc' not in sys.argv); stb = Stamps(a, DIAG, real='--cyc' not in sys.argv)
    sta.stamp(); stb.n = sta.n
    a("v_and_b32 v1, 63, v0")
    a("v_lshrrev_b32 v2, 6, v0")
    a("v_readfirstlane_b32 s26, v2")
    a("s_and_b32 s27, s2, 7")
    a("s_lshr_b32 s3, s2, 3")
    if MAP81:
        a("s_lshl_b32 s40, s27, 3")
        a("s_lshr_b32 s41, s3, 2")
        a("s_add_u32 s40, s40, s41")
        a("s_and_b32 s41, s3, 3")
    else:
        a("s_lshr_b32 s40, s27, 1")
        a("s_lshl_b32 s40, s40, 4")
        a("s_lshr_b32 s41, s3, 1")
        a("s_add_u32 s40, s40, s41")
        a("s_and_b32 s41, s27, 1")
        a("s_lshl_b32 s41, s41, 1")
        a("s_and_b32 s27, s3, 1")
        a("s_add_u32 s41, s41, s27")
    a("s_lshl_b32 s27, s41, 1")
    a("s_and_b32 s51, s40, 1")
    a("s_add_u32 s27, s27, s51")
    a("v_and_b32 v6, 31, v1")
    a("v_lshrrev_b32 v7, 5, v1")
    a("v_lshlrev_b32 v9, 4, v1")
    a(f"v_mov_b32 v10, {L_CNT}")
    a("v_mov_b32 v11, 1")
    a("s_waitcnt lgkmcnt(0)")
    srd(a, 36, P_WS, W_USED)
    a("s_cmp_lt_u32 s26, 4")
    a("s_cbranch_scc1 role_b")
    role_a(a, sta)
    a.label("role_b")
    role_b(a, stb)
    a.label("k_exit")
    a("s_endpgm")
    return (n, a, 256, 768, LDS_SIZE, 168)

if __name__ == "__main__":
    write_file(sys.argv[1], [kernel()])
```

```python
import sys
from common import *
DIAG = "--diag" in sys.argv
VAR = dict((x[2:].split("=")+[1])[:2] for x in sys.argv if x.startswith("-V"))

W_KV = 0
W_F1 = 0x20000
W_F2 = 0x28000
W_F3 = 0x30000
W_EP = 0x3F000
W_KF = 0x40000
W_OA = 1 << 20
W_OB = 3 << 20
W_HALO = 5 << 20
W_OF = 10 << 20
W_USED = 16 << 20
L_XA = 16384
L_WK = 0
WQ_SLOT = [49664 + 16384*i for i in range(6)] + [16384, 32768]
L_GB = 89600
GB_W, GB_X, GB_SZ = 0, 24576, 32896
L_COMB = 131072
L_QX = 155392
L_BEX = 155392
L_CNT = 163584
LDS_SIZE = 163840
C_BB, C_ST, C_EX, C_XA, C_QB, C_QC, C_QD, C_XD = 4, 16, 40, 72, 76, 92, 96, 100
C_ISS, C_QR = 8, 12
C_PR, C_CB, C_OF = 104, 112, 144
L_CB = 0
L_OA = 24576
BIAS = VAR.get("bias", "0xc2c80000")
VSC = 40
MAP81 = 'map24' not in VAR
XP = 1040
TAGC = 0x9E3779B9 - (1 << 32)
SPIN = 40000

def cvt8(a, dst, src):
    for i in range(4):
        a(f"v_cvt_pk_bf16_f32 v{dst+i}, v{src+2*i}, v{src+2*i+1}")

def tr_base32(a, dst, tmp):
    a(f"v_lshlrev_b32 v{dst}, 9, v7")
    a(f"v_bfe_u32 v{tmp}, v1, 2, 2")
    a(f"v_lshl_add_u32 v{dst}, v{tmp}, 6, v{dst}")
    a(f"v_bfe_u32 v{tmp}, v1, 4, 1")
    a(f"v_lshl_add_u32 v{dst}, v{tmp}, 5, v{dst}")
    a(f"v_and_b32 v{tmp}, 3, v1")
    a(f"v_lshl_add_u32 v{dst}, v{tmp}, 3, v{dst}")

def tr_base_wo(a, dst, tmp):
    a(f"v_lshlrev_b32 v{dst}, 8, v7")
    a(f"v_bfe_u32 v{tmp}, v1, 2, 2")
    a(f"v_lshl_add_u32 v{dst}, v{tmp}, 6, v{dst}")
    a(f"v_bfe_u32 v{tmp}, v1, 4, 1")
    a(f"v_lshl_add_u32 v{dst}, v{tmp}, 5, v{dst}")
    a(f"v_and_b32 v{tmp}, 1, v1")
    a(f"v_lshl_add_u32 v{dst}, v{tmp}, 4, v{dst}")
    a(f"v_bfe_u32 v{tmp}, v1, 1, 1")
    a(f"v_lshl_add_u32 v{dst}, v{tmp}, 3, v{dst}")

def lds_signal(a, off, addr="v10"):
    a("s_mov_b64 exec, 1")
    a(f"ds_add_u32 {addr}, v11 offset:{off}")
    a("s_mov_b64 exec, -1")
def lds_wait(a, off, val, tmp, stmp, addr="v10", sleep=1):
    l = a.newlabel("lw"); d = a.newlabel("lwd")
    a.label(l)
    a(f"ds_read_b32 v{tmp}, {addr} offset:{off}")
    a("s_waitcnt lgkmcnt(0)")
    a(f"v_readfirstlane_b32 s{stmp}, v{tmp}")
    a(f"s_cmp_ge_u32 s{stmp}, {val}")
    a(f"s_cbranch_scc1 {d}")
    if sleep: a(f"s_sleep {sleep}")
    a(f"s_branch {l}")
    a.label(d)
def bbar(a, tmp=5):
    a("s_add_u32 s58, s58, 4")
    lds_signal(a, C_BB)
    lds_wait(a, C_BB, "s58", tmp, 51, sleep=2)

def poll_flags(a, voff, soff, nl, t, sleep=2, width=4):
    l = a.newlabel("pf"); d = a.newlabel("pfd")
    a(f"s_mov_b32 s63, {SPIN}")
    a(f"s_mov_b64 exec, {(1 << nl) - 1}")
    a.label(l)
    if width == 4:
        a(f"buffer_load_dwordx4 {vr(t,4)}, v{voff}, s[36:39], {soff} offen sc1")
        a("s_waitcnt vmcnt(0)")
        for i in range(4): a(f"v_xor_b32 v{t+i}, s62, v{t+i}")
        a(f"v_or3_b32 v{t}, v{t}, v{t+1}, v{t+2}")
        a(f"v_or_b32 v{t}, v{t}, v{t+3}")
    else:
        a(f"buffer_load_dword v{t}, v{voff}, s[36:39], {soff} offen sc1")
        a("s_waitcnt vmcnt(0)")
        a(f"v_xor_b32 v{t}, s62, v{t}")
    a(f"v_cmp_ne_u32 vcc, 0, v{t}")
    a("s_nop 1")
    a(f"s_cbranch_vccz {d}")
    a(f"s_sleep {sleep}")
    a("s_sub_u32 s63, s63, 1")
    a("s_cmp_lg_u32 s63, 0")
    a(f"s_cbranch_scc1 {l}")
    a.label(d)
    a("s_mov_b64 exec, -1")

def store_flag(a, soff, t):
    a(f"v_mov_b32 v{t}, s62")
    a(f"v_mov_b32 v{t+1}, 0")
    a("s_mov_b64 exec, 1")
    a(f"buffer_store_dword v{t}, v{t+1}, s[36:39], {soff} offen sc1")
    a("s_mov_b64 exec, -1")

def rowmax16(a, dst, S, init=None):
    if init is None:
        a(f"v_max3_f32 v{dst}, v{S}, v{S+1}, v{S+2}")
        for i in range(3, 15, 2): a(f"v_max3_f32 v{dst}, v{dst}, v{S+i}, v{S+i+1}")
        a(f"v_max_f32 v{dst}, v{dst}, v{S+15}")
    else:
        for i in range(0, 16, 2): a(f"v_max3_f32 v{dst}, v{dst}, v{S+i}, v{S+i+1}")
def xhalf_max(a, dst, tmp):
    a(f"v_mov_b32 v{tmp}, v{dst}")
    a(f"v_permlane32_swap_b32 v{dst}, v{tmp}")
    a(f"v_max_f32 v{dst}, v{dst}, v{tmp}")

def kv_dma(a, sreg, n, first=False):
    for q in range(n):
        if (q & 3) == 0:
            a(f"s_mov_b32 m0, s{sreg}")
            a(f"s_lshr_b32 s51, s{sreg}, 12")
            if not first:
                a("s_add_u32 s51, s51, s59")
                a("s_cmp_ge_u32 s51, 32")
                a("s_cselect_b32 s52, 28, 0")
                a("s_sub_u32 s51, s51, s52")
            a("s_add_u32 s51, s51, s55")
            a("s_and_b32 s51, s51, 31")
            a("s_lshl_b32 s51, s51, 12")
        a(f"buffer_load_dwordx4 v9, s[36:39], s51 offen offset:{(q&3)*1024} sc1 lds")
        if (q & 3) == 3 and q + 1 < n: a(f"s_add_u32 s{sreg}, s{sreg}, 4096")

def kv_job(a, st=None):
    X = 24; W = 88
    lv = a.newlabel("kv_v"); ld = a.newlabel("kv_d")
    def reads(s):
        a(f"ds_read_b128 {vr(X+4*s,4)}, v14 offset:{s*64}")
        for t in range(2):
            a(f"ds_read_b64_tr_b16 {vr(W+4*s+2*t,2)}, v15 offset:{L_WK + s*1024 + t*128}")
    a("s_cmp_eq_u32 s45, 0")
    a(f"s_cbranch_scc0 {lv}")
    for which in range(2):
        if which: a.label(lv)
        for s in range(4): reads(s)
        for s in range(16):
            if s + 4 < 16:
                reads(s + 4); a("s_waitcnt lgkmcnt(12)")
            else:
                a(f"s_waitcnt lgkmcnt({3*(15-s)})")
            if which == 0: mfma16(a, 20, W+4*s, X+4*s, "0" if s == 0 else 20)
            else:          mfma16(a, 20, X+4*s, W+4*s, "0" if s == 0 else 20)
        if not which: a(f"s_branch {ld}")
    a.label(ld)
def kv_store(a):
    a("s_cmp_eq_u32 s45, 0")
    a(f"s_cselect_b32 s51, 1.0, {hex((127 + VSC) << 23)}")
    for i in range(4): a(f"v_mul_f32 v{20+i}, s51, v{20+i}")
    a("v_cvt_pk_bf16_f32 v156, v20, v21")
    a("v_cvt_pk_bf16_f32 v157, v22, v23")
    a("v_xor_b32 v158, s62, v156")
    a("v_xor_b32 v159, s62, v157")
    if "nokvfast" not in VAR: a("buffer_store_dwordx4 v[156:159], v17, s[36:39], s54 offen")
    a("buffer_store_dwordx2 v[156:157], v16, s[36:39], s52 offen sc1")
def kv_flag(a):
    a("s_waitcnt vmcnt(0)")
    store_flag(a, "s53", 18)

def kv_setup(a):
    a("v_and_b32 v12, 15, v1")
    a("v_lshrrev_b32 v13, 4, v1")
    a(f"v_mul_u32_u24 v14, {XP}, v12")
    a("v_lshl_add_u32 v14, v13, 4, v14")
    a(f"s_mul_i32 s51, s46, {16*XP}")
    a(f"s_add_u32 s51, s51, {L_XA}")
    a("v_add_u32 v14, s51, v14")
    a("v_lshlrev_b32 v15, 8, v13")
    a("v_lshl_add_u32 v15, v12, 3, v15")
    a("v_and_b32 v16, 1, v13")
    a("s_cmp_eq_u32 s45, 0")
    a("s_cselect_b32 s51, 9, 8")
    a("s_cselect_b32 s52, 8, 9")
    a("s_lshl_b32 s52, s46, s52")
    a("s_lshl_b32 s53, s45, 10")
    a("s_add_u32 s52, s52, s53")
    a("s_lshl_b32 s53, s40, 11")
    a("s_add_u32 s52, s52, s53")
    a("v_lshlrev_b32 v16, s51, v16")
    a("v_lshl_add_u32 v16, v12, 4, v16")
    a("v_lshrrev_b32 v17, 1, v13")
    a("v_lshl_add_u32 v16, v17, 3, v16")
    a("s_lshl_b32 s53, s40, 7")
    a("s_lshl_b32 s54, s41, 2")
    a("s_add_u32 s53, s53, s54")
    a(f"s_add_u32 s53, s53, {W_F1}")
    a("v_lshlrev_b32 v17, 1, v16")
    a("s_lshl_b32 s54, s52, 1")
    a(f"s_add_u32 s54, s54, {W_KF}")

def stouch_setup(a, slot, bw, bx):
    a("s_lshr_b32 s51, s3, 2")
    a(f"s_lshl_b32 s54, {slot}, 3")
    a("s_add_u32 s51, s51, s54")
    a("s_lshl_b32 s51, s51, 10")
    a("s_lshl_b32 s54, s27, 7")
    a("s_add_u32 s51, s51, s54")
    a(f"s_add_u32 s{bw}, s{P_BWQKV}, s51")
    a(f"s_addc_u32 s{bw+1}, s{P_BWQKV+1}, 0")
    a(f"s_add_u32 s{bw+2}, s{bw}, {24*32768}")
    a(f"s_addc_u32 s{bw+3}, s{bw+1}, 0")
    a("s_lshr_b32 s51, s40, 1")
    a("s_lshl_b32 s51, s51, 16")
    a("s_and_b32 s54, s3, 3")
    a("s_lshl_b32 s54, s54, 14")
    a("s_add_u32 s51, s51, s54")
    a(f"s_lshl_b32 s54, {slot}, 12")
    a("s_add_u32 s51, s51, s54")
    a(f"s_add_u32 s{bx}, s{P_BX}, s51")
    a(f"s_addc_u32 s{bx+1}, s{P_BX+1}, 0")
def stouch_list(chunks, bw, bx):
    l = []
    for c in chunks:
        for r in range(4): l.append((f"s[{bx}:{bx+1}]", r*1024 + c*128))
        for i in range(6):
            m = c*6 + i
            l.append((f"s[{bw}:{bw+1}]", m*32768) if m < 24 else (f"s[{bw+2}:{bw+3}]", (m-24)*32768))
    return l

def role_a(a, st):
    FINE = "fine" in VAR
    class F:
        def stamp(self):
            if FINE: st0.stamp()
    st0 = st; fs = F()
    if FINE:
        class N:
            n = 0
            def stamp(self): pass
            def dump(self, *x): st0.dump(*x)
        st = N()
    a("s_sub_u32 s59, s26, 4")
    a("s_and_b32 s42, s59, 3")
    a("s_lshr_b32 s43, s59, 2")
    srd(a, 28, P_AX, 2 << 20)
    a("s_lshr_b32 s46, s41, 1")
    for k in range(2):
        if k: a("s_xor_b32 s46, s46, 1")
        a("s_lshl_b32 s49, s46, 4")
        a("s_lshl_b32 s48, s59, 1")
        a("s_add_u32 s49, s49, s48")
        a("s_lshl_b32 s48, s40, 5")
        a("s_add_u32 s48, s48, s49")
        a("s_lshl_b32 s48, s48, 10")
        a(f"s_mul_i32 s49, s49, {XP}")
        for q in range(2):
            a(f"s_add_u32 m0, s49, {L_XA + q*XP - q*1024}")
            a(f"buffer_load_dwordx4 v9, s[28:31], s48 offen offset:{q*1024} lds")
    if "nobar0" not in VAR: a("s_barrier")
    srd(a, 32, P_AWQ, 512 * 1024)
    S0, S1, O0, O1, C0, C1, P0, P1, Q0, Q1, KB, VB = 16, 32, 48, 64, 80, 96, 112, 120, 128, 132, 136, 144
    a(f"s_bfe_u32 s55, s3, {0x30002 if MAP81 else 0x30001}")
    a("s_cmp_eq_u32 s43, 0")
    a("s_cbranch_scc0 a_kh1")
    def early_init():
        for i in range(32): a(f"v_mov_b32 v{O0+i}, 0")
        a("s_lshl_b32 s56, s43, 11")
        a("v_add_u32 v2, s56, v9")
        a("v_lshlrev_b32 v3, 8, v7")
        a("v_lshl_add_u32 v3, v6, 4, v3")
        a("v_add_u32 v3, s56, v3")
        a("s_mov_b32 s60, 0x0000ffff")
        a("s_mov_b32 s61, 0x0000ffff")
        a("v_and_b32 v14, 27, v6")
        a("v_cmp_eq_u32 vcc, 16, v14")
        a(f"v_mov_b32 v13, {hex(((127 + VSC) << 7) * 0x10001)}")
        a("v_cndmask_b32 v14, 0, v13, vcc")
        for i in range(8): a(f"v_mov_b32 v{VB+i}, v14")
    XF = 16; WF = 144; ACC = 152
    a(f"v_mul_u32_u24 v4, {XP}, v6")
    a("v_lshl_add_u32 v4, v7, 4, v4")
    a("v_lshlrev_b32 v8, 11, v7")
    a("v_bfe_u32 v5, v1, 2, 2")
    a("v_lshl_add_u32 v8, v5, 8, v8")
    a("v_xor_b32 v5, s42, v5")
    a("v_lshl_add_u32 v8, v5, 6, v8")
    a("v_bfe_u32 v5, v1, 4, 1")
    a("v_lshl_add_u32 v8, v5, 5, v8")
    a("v_and_b32 v5, 3, v1")
    a("v_lshl_add_u32 v8, v5, 3, v8")
    a(f"s_waitcnt vmcnt({0 if 'merge' in VAR else 2}) lgkmcnt(0)")
    a("s_barrier")
    st.stamp()
    if "merge" not in VAR:
        a("s_waitcnt vmcnt(0)")
        a("s_barrier")
    fs.stamp()
    def xload(i):
        a(f"s_add_u32 s51, s55, {i}")
        a("s_and_b32 s51, s51, 7")
        a("s_lshl_b32 s51, s51, 7")
        a("v_add_u32 v5, s51, v4")
        for sp in range(4):
            a(f"ds_read_b128 {vr(XF+16*i+4*sp,4)}, v5 offset:{L_XA + sp*32}")
    for i in range(8): xload(i)
    a("v_add_u32 v5, 16384, v8")
    a("v_add_u32 v15, 115200, v8")
    a("v_add_u32 v8, 66048, v8")
    st.stamp(); fs.stamp()
    a("s_waitcnt lgkmcnt(0)")
    wmap = {}
    free = [144, 148]
    def qread(st_):
        i = st_ >> 2; sp = st_ & 3; sl = WQ_SLOT[i]
        r = free.pop(0); wmap[st_] = r
        base, off = ("v5", sl - 16384) if sl < 66048 else (("v8", sl - 66048) if sl < 115200 else ("v15", sl - 115200))
        for t in range(2):
            a(f"ds_read_b64_tr_b16 {vr(r+2*t,2)}, {base} offset:{off + sp*4096 + t*1024}")
    nr = 0; avail = 0; pend = []
    LEAD = int(VAR.get("lead", 4))
    for st_ in range(32):
        if avail < 32 and (st_ >= avail - LEAD):
            a("s_barrier")
            if FINE: fs.stamp(); a("s_waitcnt lgkmcnt(0)"); pend = []
            avail += 8
        while nr < avail and free and len(pend) <= 12:
            qread(nr); pend += [nr, nr]; nr += 1
            if nr == 32: lds_signal(a, C_QD); pend += [99]
        if st_ in pend:
            k = len(pend) - 1 - max(i for i, x in enumerate(pend) if x == st_)
            a(f"s_waitcnt lgkmcnt({k})")
            pend = pend[len(pend)-k:] if k else []
        mfma32(a, ACC, wmap[st_], XF+4*st_, "0" if st_ == 0 else ACC)
        for r in (wmap[st_], XF+4*st_):
            if not (48 <= r < 80) and (r < 144 or st_ < 6): free.append(r)
        if st_ == 17: early_init()
    st.stamp()
    a(f"s_mov_b32 s51, {CSCALE}")
    a("s_lshl_b32 s53, s42, 11")
    a(f"s_add_u32 s53, s53, {L_QX}")
    a("v_add_u32 v12, s53, v9")
    a("s_lshl_b32 s53, s42, 2")
    a("v_add_u32 v13, s53, v10")
    for i in range(16): a(f"v_mul_f32 v{ACC+i}, s51, v{ACC+i}")
    cvt8(a, Q1, ACC); cvt8(a, Q0, ACC+8)
    a(f"ds_write_b128 v12, {vr(Q1,4)}")
    a(f"ds_write_b128 v12, {vr(Q0,4)} offset:1024")
    lds_signal(a, C_EX, "v13")
    fs.stamp()
    a("s_branch a_join")
    a.label("a_kh1")
    st.n -= 3
    if FINE: st0.n = 1
    a("v_lshrrev_b32 v4, 4, v1")
    a("v_bfe_u32 v5, v1, 2, 2")
    a("v_xor_b32 v5, v5, v4")
    a("v_lshlrev_b32 v3, 10, v4")
    a("v_lshl_add_u32 v3, v5, 6, v3")
    a("v_and_b32 v5, 3, v1")
    a("v_lshl_add_u32 v3, v5, 4, v3")
    a("s_lshl_b32 s48, s42, 14")
    a("s_lshl_b32 s51, s41, 8")
    a("s_add_u32 s48, s48, s51")
    a("s_lshl_b32 s49, s42, 12")
    def op_q(i):
        a(f"s_add_u32 s51, s55, {i}")
        a("s_and_b32 s51, s51, 7")
        a("s_lshl_b32 s51, s51, 16")
        a("s_add_u32 s51, s51, s48")
        for q in range(4):
            a(f"s_add_u32 m0, s49, {WQ_SLOT[i] + q*1024}")
            if q: a("s_add_u32 s51, s51, 4096")
            a("buffer_load_dwordx4 v3, s[32:35], s51 offen lds")
    NPRE = int(VAR.get('npre', 2))
    for i in range(NPRE): op_q(i)
    MERGE = "merge" in VAR
    a(f"s_waitcnt vmcnt({4*NPRE + (0 if MERGE else 2)}) lgkmcnt(0)")
    a("s_barrier")
    st.stamp()
    if not MERGE:
        a(f"s_waitcnt vmcnt({4*NPRE})")
        a("s_barrier")
    fs.stamp()
    nxt = NPRE
    for gq in range(3):
        lim = 6 if gq == 0 else 8
        for _ in range(2):
            if nxt < lim: op_q(nxt); nxt += 1
        a(f"s_waitcnt vmcnt({4*(nxt - 2*gq - 2)})")
        fs.stamp()
        a("s_barrier")
    a("s_waitcnt vmcnt(0)")
    fs.stamp()
    a("s_barrier")
    st.stamp()
    early_init()
    a("s_lshl_b32 s53, s42, 11")
    a(f"s_add_u32 s53, s53, {L_QX}")
    a("v_add_u32 v15, s53, v9")
    a("s_lshl_b32 s53, s42, 2")
    a("v_add_u32 v13, s53, v10")
    lds_wait(a, C_EX, 1, 12, 51, "v13")
    a(f"ds_read_b128 {vr(Q0,4)}, v15")
    a(f"ds_read_b128 {vr(Q1,4)}, v15 offset:1024")
    fs.stamp()
    lds_signal(a, C_QR)
    st.stamp()
    a.label("a_join")
    def tail_setup():
        a("s_xor_b32 s52, s59, 4")
        a("s_mul_i32 s53, s59, 3072")
        a(f"v_add_u32 v160, s53, v9")
        a("s_mul_i32 s53, s52, 3072")
        a(f"v_add_u32 v161, s53, v9")
        a("s_lshl_b32 s53, s59, 2")
        a("v_add_u32 v162, s53, v10")
        a("s_lshl_b32 s53, s52, 2")
        a("v_add_u32 v163, s53, v10")
        a("s_lshl_b32 s57, s42, 1")
        a("s_add_u32 s57, s57, s43")
        a("s_lshl_b32 s58, s40, 5")
        a("s_lshl_b32 s53, s41, 3")
        a("s_add_u32 s53, s53, s58")
        a("s_add_u32 s53, s53, s57")
        a("s_lshl_b32 s53, s53, 10")
        a(f"s_add_u32 s44, s53, {W_OA}")
        a("s_lshl_b32 s57, s57, 10")
        a(f"s_add_u32 s57, s57, {L_OA}")
        a("v_add_u32 v164, s57, v9")
        a(f"s_add_u32 s48, s44, {W_OF - W_OA}")
        a("s_lshl_b32 s57, s59, 10")
        a(f"s_add_u32 s57, s57, {L_OA}")
        a("v_add_u32 v165, s57, v9")
        for d in range(1, 4):
            a(f"s_add_u32 s51, s41, {d}")
            a("s_and_b32 s51, s51, 3")
            a("s_lshl_b32 s51, s51, 3")
            a("s_add_u32 s51, s51, s58")
            a("s_add_u32 s51, s51, s59")
            a("s_lshl_b32 s51, s51, 10")
            a(f"s_add_u32 s{44+d}, s51, {W_OA}")
    for i in range(8, 16): a(f"v_mov_b32 v{VB+i}, v14")
    for i in range(4): a(f"v_mov_b32 v{P1+4+i}, 0")
    st.stamp()
    lds_wait(a, C_ST + 0, 4, 12, 51, sleep=0)
    if FINE: st0.n = 12
    fs.stamp()
    def kvread(b, off):
        a(f"ds_read_b128 {vr(KB+4*b,4)}, v2 offset:{off}")
        a("s_mov_b64 exec, s[60:61]")
        a(f"ds_read_b128 {vr(VB+8*b,4)}, v3 offset:{off+1024}")
        a(f"ds_read_b128 {vr(VB+8*b+4,4)}, v3 offset:{off+1536}")
        a("s_mov_b64 exec, -1")
    a(f"ds_read_b128 {vr(P0,4)}, v9")
    DEEP = "shallow" not in VAR
    def kread(b, off): a(f"ds_read_b128 {vr(KB+4*b,4)}, v2 offset:{off}")
    def vread(b, off):
        a("s_mov_b64 exec, s[60:61]")
        a(f"ds_read_b128 {vr(VB+8*b,4)}, v3 offset:{off+1024}")
        a(f"ds_read_b128 {vr(VB+8*b+4,4)}, v3 offset:{off+1536}")
        a("s_mov_b64 exec, -1")
    kvread(0, 0)
    if DEEP: kread(1, 4096)
    a(f"s_waitcnt lgkmcnt({4 if DEEP else 3})" if not DIAG else "s_waitcnt lgkmcnt(0)")
    mfma32(a, S0, P0, Q0, "0")
    mfma32(a, S1, P0, Q1, "0")
    for S, C in ((S0, C0), (S1, C1)):
        rowmax16(a, 12, S)
        xhalf_max(a, 12, 13)
        a(f"v_sub_f32 v{C}, {BIAS}, v12")
        for i in range(1, 16): a(f"v_mov_b32 v{C+i}, v{C}")
        if S == S0:
            a("s_waitcnt lgkmcnt(0)")
            mfma32(a, S0, KB, Q0, C0)
    st.stamp()
    a("s_mov_b32 s50, 0")
    a(f"s_setprio {VAR.get('ap0', 3)}")
    if DIAG: a("s_waitcnt lgkmcnt(0)")
    a(".p2align 6")
    for _ in range(int(VAR.get("shift", 0))): a("s_nop 0")
    a.label("a_loop")
    def E(S, lo, hi):
        for i in range(lo, hi): a(f"v_exp_f32{VAR.get('enc', '')} v{S+i}, v{S+i}")
    def half(S, P, O, Vx, pvy, snext, w1, post, post2=(), w2=None):
        E(S, 0, 2)
        mfma32(a, *pvy)
        for x in post: x()
        E(S, 2, 8)
        if w1: a("s_waitcnt lgkmcnt(0)")
        mfma32(a, *snext)
        for x in post2: x()
        cvt8(a, P, S)
        E(S, 8, 12)
        if w2 is not None: a(f"s_waitcnt lgkmcnt({w2})")
        mfma32(a, O, Vx, P, O)
        E(S, 12, 16)
        cvt8(a, P+4, S+8)
    HK = {0: [("w", 4)], 1: [("w", 8)], 3: [("p", 2)], 4: [("w", 12)], 5: [("p", 1)], 6: [("p", 0)]}
    VAR.setdefault("pr", "4,6,7")
    if "pr" in VAR:
        for k in list(HK): HK[k] = [x for x in HK[k] if x[0] != "p"]
        for lvl, it in zip((2, 1, 0), VAR["pr"].split(",")): HK.setdefault(int(it), []).append(("p", lvl))
    if "ap0" in VAR: HK = {0: [("w", 4)], 1: [("w", 8)], 3: [("p", 1)], 4: [("w", 12)], 6: [("p", 0)]}
    def hooks():
        a("s_bitcmp1_b32 s50, 2")
        a("s_cbranch_scc1 a_hk_hi")
        a("s_branch a_hk_lo")
        a.label("a_hk_done")
    for t in range(4):
        b = t & 1; nb = b ^ 1
        if DEEP:
            post = [lambda: vread(nb, (t+1)*4096)]
            if t == 2: post = [hooks] + post
            half(S0, P0, O0, VB+8*b, (O1, VB+8*nb+4, P1+4, O1), (S1, KB+4*b, Q1, C1), False, post, [lambda: kread(b, (t+2)*4096)], 3)
            half(S1, P1, O1, VB+8*b, (O0, VB+8*b+4, P0+4, O0), (S0, KB+4*nb, Q0, C0), False, [])
            continue
        post = [lambda: kvread(nb, (t+1)*4096)]
        if t == 3: post = [hooks] + post
        half(S0, P0, O0, VB+8*b, (O1, VB+8*nb+4, P1+4, O1), (S1, KB+4*b, Q1, C1), False, post)
        half(S1, P1, O1, VB+8*b, (O0, VB+8*b+4, P0+4, O0), (S0, KB+4*nb, Q0, C0), True, [])
    a("v_add_u32 v2, 16384, v2")
    a("v_add_u32 v3, 16384, v3")
    a("s_add_u32 s50, s50, 1")
    a("s_cmp_lt_u32 s50, 8")
    a("s_cbranch_scc1 a_loop")
    mfma32(a, O1, VB+8+4, P1+4, O1)
    st.stamp()
    for i in range(2): a(f"ds_write_b128 v160, {vr(O0+4*i,4)} offset:{L_CB + i*1024}")
    a(f"ds_write_b32 v160, v{O0+8} offset:{L_CB + 2048}")
    lds_signal(a, C_CB, "v162")
    a("s_setprio 3")
    lds_wait(a, C_CB, 1, 12, 51, "v163", sleep=int(VAR.get("cbsleep", 0)))
    if "tfine" in VAR: st.stamp()
    for i in range(2): a(f"ds_read_b128 {vr(S0+4*i,4)}, v161 offset:{L_CB + i*1024}")
    a(f"ds_read_b32 v{S0+8}, v161 offset:{L_CB + 2048}")
    a("s_mov_b32 s51, 0x7b800000")
    a(f"s_mov_b32 s53, {hex((127 - 85) << 23)}")
    a("s_waitcnt lgkmcnt(0)")
    a(f"v_add_f32 v{O1+8}, v{O1+8}, v{S0+8}")
    a(f"v_rcp_f32 v14, v{O1+8}")
    for i in range(8): a(f"v_add_f32 v{O1+i}, v{O1+i}, v{S0+i}")
    a(f"v_add_f32 v12, abs(v{O1}), abs(v{O1+1})")
    a(f"v_add_f32 v13, abs(v{O1+2}), abs(v{O1+3})")
    for i in range(4, 8, 2):
        a(f"v_add_f32 v12, v12, abs(v{O1+i})")
        a(f"v_add_f32 v13, v13, abs(v{O1+i+1})")
    a("v_add_f32 v12, v12, v13")
    a(f"v_add_f32 v13, v12, v{O1+8}")
    a("v_cmp_ngt_f32 vcc, s51, v13")
    a("v_cmp_gt_f32 s[64:65], s53, v12")
    a("s_or_b64 vcc, vcc, s[64:65]")
    if "forcefb" in VAR: a("s_mov_b64 vcc, -1")
    a("s_cbranch_vccnz a_fallback")
    a.label("a_norm")
    for i in range(8): a(f"v_mul_f32 v{O1+i}, v{O1+i}, v14")
    cvt8(a, P0, O1)
    for i in range(4): a(f"v_min_u32 v{P0+i}, -2, v{P0+i}")
    if "nofast" not in VAR: a(f"buffer_store_dwordx4 {vr(P0,4)}, v9, s[36:39], s48 offen " + VAR.get("fst", ""))
    lds_wait(a, C_ST + 20, 4, 12, 51, sleep=0)
    a(f"ds_write_b128 v164, {vr(P0,4)}")
    lds_signal(a, C_OF)
    st.stamp()
    a(f"s_mov_b32 s63, {SPIN}")
    a("s_mov_b32 s50, 0")
    a.label("a_poll")
    a(f"s_cmp_lt_u32 s63, {SPIN - int(VAR.get('fastn', 12))}")
    a("s_cselect_b32 s51, s63, 0")
    a("s_bitcmp1_b32 s51, 0")
    a(f"s_cselect_b32 s51, 0, {W_OF - W_OA}")
    a("v_add_u32 v13, s51, v9")
    for d in range(1, 4):
        a(f"buffer_load_dwordx4 {vr(S0+4*(d-1),4)}, v13, s[36:39], s{44+d} offen sc1")
    a("s_sub_u32 s63, s63, 1")
    for d in range(1, 4):
        r = S0 + 4*(d-1)
        nx = a.newlabel("pn")
        a(f"s_waitcnt vmcnt({3-d})")
        a(f"s_bitcmp1_b32 s50, {d}")
        a(f"s_cbranch_scc1 {nx}")
        a(f"v_max3_u32 v12, v{r}, v{r+1}, v{r+2}")
        a(f"v_max_u32 v12, v12, v{r+3}")
        a("v_cmp_eq_u32 vcc, -1, v12")
        a("s_cmp_eq_u32 s63, 0")
        a("s_cselect_b64 vcc, 0, vcc")
        a(f"s_cbranch_vccnz {nx}")
        a(f"ds_write_b128 v165, {vr(r,4)} offset:{d*8192}")
        lds_signal(a, C_OF + 4*d)
        a(f"s_bitset1_b32 s50, {d}")
        a.label(nx)
    a("s_cmp_eq_u32 s50, 14")
    a("s_cbranch_scc1 a_got")
    ls = a.newlabel("sl")
    a(f"s_cmp_eq_u32 s63, {SPIN - int(VAR.get('slown', 4))}")
    a(f"s_cbranch_scc0 {ls}")
    a(f"buffer_store_dwordx4 {vr(P0,4)}, v9, s[36:39], s44 offen sc1")
    a.label(ls)
    if int(VAR.get('tsleep', 0)): a(f"s_sleep {VAR.get('tsleep', 0)}")
    a("s_branch a_poll")
    a.label("a_got")
    if "xnoslow" not in VAR: a(f"buffer_store_dwordx4 {vr(P0,4)}, v9, s[36:39], s44 offen sc1")
    st.stamp()
    if "tfine" in VAR:
        a("s_waitcnt lgkmcnt(0)")
        a(f"s_sub_u32 s72, {SPIN}, s63")
        a("s_add_u32 s72, s72, s70")
    st.dump(None, 0)
    a("s_endpgm")
    def pretouch():
        a(f"v_lshlrev_b32 v13, 7, v1")
        a(f"v_add_u32 v13, {W_OF - W_OA}, v13")
        a("s_mov_b64 exec, 0xff")
        for d in range(1, 4): a(f"buffer_load_dword v166, v13, s[36:39], s{44+d} offen sc1")
        a("s_mov_b64 exec, -1")
    HK[3] = HK.get(3, []) + [("sig", C_PR)]
    HK[2] = [x for x in HK.get(2, []) if x[0] == "p"] + [("f", tail_setup)]
    HK[7] = [x for x in HK.get(7, []) if x[0] == "p"] + [("w", 16), ("w8", C_PR)] + ([("f", pretouch)] if "nopre" not in VAR else [])
    for nm, rng in (("a_hk_lo", range(0, 4)), ("a_hk_hi", range(4, 8))):
        a.label(nm)
        for i in rng:
            if i not in HK: continue
            nx = a.newlabel("hk")
            a(f"s_cmp_eq_u32 s50, {i}")
            a(f"s_cbranch_scc0 {nx}")
            for kind, v in HK[i]:
                if kind == "w": lds_wait(a, C_ST + v, 4, 12, 51)
                elif kind == "sig": lds_signal(a, v)
                elif kind == "f": v()
                elif kind == "w8": lds_wait(a, v, 8, 12, 51)
                elif kind == "s":
                    a("s_cmp_eq_u32 s43, 0")
                    a("s_cbranch_scc0 a_hk_done")
                    a("s_waitcnt vmcnt(0)")
                    lds_signal(a, C_ST + v)
                else: a(f"s_setprio {v}")
            a("s_branch a_hk_done")
            a.label(nx)
        a("s_branch a_hk_done")
    a.label("a_fallback")
    a("v_mov_b32 v12, 0xff800000")
    a("s_mov_b32 s50, 0")
    a.label("a_fb1")
    a(f"buffer_load_dwordx4 {vr(KB,4)}, v9, s[36:39], s50 offen sc1")
    a("s_waitcnt vmcnt(0)")
    mfma32(a, S0, KB, Q1, "0")
    a("s_add_u32 s50, s50, 2048")
    rowmax16(a, 12, S0, init=True)
    a("s_cmp_lt_u32 s50, 0x20000")
    a("s_cbranch_scc1 a_fb1")
    xhalf_max(a, 12, 13)
    a(f"v_sub_f32 v{C0}, 0, v12")
    for i in range(1, 16): a(f"v_mov_b32 v{C0+i}, v{C0}")
    for i in range(16): a(f"v_mov_b32 v{O1+i}, 0")
    a("v_lshlrev_b32 v3, 8, v7")
    a("v_lshl_add_u32 v3, v6, 4, v3")
    a("s_mov_b32 s50, 0")
    a.label("a_fb2")
    a(f"buffer_load_dwordx4 {vr(KB,4)}, v9, s[36:39], s50 offen sc1")
    a("s_mov_b64 exec, s[60:61]")
    a(f"buffer_load_dwordx4 {vr(VB,4)}, v3, s[36:39], s50 offen offset:1024 sc1")
    a(f"buffer_load_dwordx4 {vr(VB+4,4)}, v3, s[36:39], s50 offen offset:1536 sc1")
    a("s_mov_b64 exec, -1")
    a("s_waitcnt vmcnt(0)")
    mfma32(a, S0, KB, Q1, C0)
    a("s_add_u32 s50, s50, 2048")
    E(S0, 0, 16)
    cvt8(a, P0, S0); cvt8(a, P0+4, S0+8)
    mfma32(a, O1, VB, P0, O1)
    mfma32(a, O1, VB+4, P0+4, O1)
    a("s_cmp_lt_u32 s50, 0x20000")
    a("s_cbranch_scc1 a_fb2")
    a(f"v_rcp_f32 v14, v{O1+8}")
    a("s_branch a_norm")

def role_b(a, st):
    a("s_setprio 3")
    a("s_and_b32 s45, s41, 1")
    a("s_lshr_b32 s46, s41, 1")
    a("s_cmp_eq_u32 s45, 0")
    a(f"s_cselect_b32 s28, s{P_AWK}, s{P_AWV}")
    a(f"s_cselect_b32 s29, s{P_AWK+1}, s{P_AWV+1}")
    a("s_mov_b32 s30, 16384")
    a("s_mov_b32 s31, 0x20000")
    a("s_lshl_b32 s51, s26, 12")
    a(f"s_add_u32 m0, s51, {L_WK}")
    for q in range(4):
        a(f"buffer_load_dwordx4 v9, s[28:31], s51 offen offset:{q*1024} lds")
    a(f"v_mov_b32 v18, {W_EP}")
    a("buffer_load_dword v19, v18, s[36:39], 0 offen sc1")
    if "nobar0" not in VAR: a("s_barrier")
    a("s_mov_b32 s58, 0")
    a("s_lshr_b32 s44, s40, 1")
    a("s_and_b32 s42, s26, 1")
    a("s_lshr_b32 s43, s26, 1")
    srd(a, 28, P_BX, 2 << 20)
    srd(a, 32, P_BWQKV, 512 * 3072)
    a("v_lshrrev_b32 v12, 3, v1")
    a("v_and_b32 v13, 7, v1")
    a("v_bfe_u32 v14, v1, 4, 1")
    a("v_lshlrev_b32 v14, 2, v14")
    a("v_xor_b32 v14, v14, v13")
    a("v_mul_u32_u24 v3, 3072, v12")
    a("v_lshl_add_u32 v3, v14, 4, v3")
    a("v_lshlrev_b32 v4, 10, v12")
    a("v_lshl_add_u32 v4, v14, 4, v4")
    a(f"s_mul_i32 s64, s26, {16*3072}")
    a("s_lshl_b32 s51, s27, 7")
    a("s_add_u32 s64, s64, s51")
    a("s_lshl_b32 s65, s44, 16")
    a("s_lshl_b32 s51, s26, 14")
    a("s_add_u32 s65, s65, s51")
    if MAP81:
        a("s_lshr_b32 s67, s3, 3")
        a("s_lshl_b32 s67, s67, 1")
        a("s_add_u32 s67, s67, s3")
    else:
        a("s_lshr_b32 s67, s3, 2")
        a("s_lshl_b32 s51, s3, 1")
        a("s_add_u32 s67, s67, s51")
    a("s_and_b32 s67, s67, 7")
    a("s_mul_i32 s56, s26, 6144")
    a(f"s_add_u32 s56, s56, {L_GB + GB_W}")
    a("s_mul_i32 s57, s26, 2080")
    a(f"s_add_u32 s57, s57, {L_GB + GB_X}")
    def issue_ops(buf):
        o = buf * GB_SZ
        def pre():
            a(f"s_mul_i32 s48, s67, {64*3072}")
            a("s_add_u32 s48, s48, s64")
            a(f"s_add_u32 s47, s48, {8*3072}")
            a("s_lshl_b32 s49, s67, 7")
            a("s_add_u32 s49, s49, s65")
            a("s_add_u32 s66, s49, 8192")
            a("s_add_u32 s67, s67, 1")
            a("s_and_b32 s67, s67, 7")
        ops = [pre]
        for q in range(2):
            def fx(q=q):
                a(f"s_add_u32 m0, s57, {o + q*1040}")
                a(f"buffer_load_dwordx4 v4, s[28:31], {'s66' if q else 's49'} offen lds")
            ops.append(fx)
        for gq in range(2):
            for t in range(3):
                def f(gq=gq, t=t):
                    if t == 0: a(f"s_add_u32 m0, s56, {o + gq*3072}")
                    a(f"buffer_load_dwordx4 v3, s[32:35], {'s47' if gq else 's48'} offen offset:{t*1024} lds")
                ops.append(f)
        return ops
    BST = VAR.get("bstart", "st4")
    if BST == "early":
        for f in issue_ops(0): f()
    lk = a.newlabel("nokv")
    a("v_lshl_add_u32 v5, v1, 2, v10")
    a("v_mov_b32 v12, 0")
    a("ds_write_b32 v5, v12")
    kv_setup(a)
    a("s_waitcnt vmcnt(0) lgkmcnt(0)")
    a("v_readfirstlane_b32 s62, v19")
    a(f"s_add_u32 s62, s62, {TAGC}")
    a("s_barrier")
    a("s_cmp_eq_u32 s26, 3")
    a(f"s_cbranch_scc0 {lk}")
    kv_job(a)
    if "merge" not in VAR: a("s_barrier")
    kv_store(a)
    lk2 = a.newlabel("kvs")
    a(f"s_branch {lk2}")
    a.label(lk)
    if "merge" not in VAR: a("s_barrier")
    a.label(lk2)
    a("s_mov_b32 s45, s27")
    a("v_mul_u32_u24 v8, 3072, v7")
    a("v_bfe_u32 v14, v1, 2, 2")
    a("v_lshl_add_u32 v8, v14, 7, v8")
    a("v_bfe_u32 v14, v1, 3, 1")
    a("v_xor_b32 v14, s42, v14")
    a("v_lshl_add_u32 v8, v14, 6, v8")
    a("v_bfe_u32 v14, v1, 4, 1")
    a("v_lshl_add_u32 v8, v14, 5, v8")
    a("v_and_b32 v14, 3, v1")
    a("v_lshl_add_u32 v8, v14, 3, v8")
    a(f"v_add_u32 v8, {L_GB + GB_W}, v8")
    XM = 152
    a("v_bfe_u32 v14, v1, 1, 1")
    a("v_lshlrev_b32 v14, 2, v14")
    a("v_or_b32 v14, v14, v7")
    a("v_lshlrev_b32 v14, 4, v14")
    a("v_and_b32 v15, 7, v1")
    a("v_lshl_add_u32 v14, v15, 7, v14")
    a("v_xor_b32 v15, 64, v14")
    a("v_lshrrev_b32 v16, 3, v6")
    a("v_mul_u32_u24 v16, 1040, v16")
    a("s_mul_i32 s51, s43, 4160")
    a(f"s_add_u32 s51, s51, {L_GB + GB_X}")
    a(f"v_add3_u32 v{XM}, v14, v16, s51")
    a(f"v_add3_u32 v{XM+1}, v15, v16, s51")
    ACC = 20; WF = 84; XF = 108
    for i in range(48): a(f"v_mov_b32 v{ACC+i}, 0")
    for i in range(16): a(f"v_mov_b32 v{WF+12+i if i < 12 else XF+4+i-12}, 0")
    a("s_barrier")
    lk3 = a.newlabel("kvf")
    a("s_cmp_eq_u32 s26, 3")
    a(f"s_cbranch_scc0 {lk3}")
    kv_flag(a)
    a.label(lk3)
    st.stamp()
    a("s_barrier")
    MM = 124; MH = 132
    a("v_lshlrev_b32 v5, 2, v7")
    a("v_sub_u32 v5, v6, v5")
    a("v_add_u32 v5, 18, v5")
    a("v_mov_b32 v14, 0x5555")
    a("v_mov_b32 v15, 0")
    a("v_lshlrev_b64 v[14:15], v5, v[14:15]")
    a("s_or_b32 s51, s44, s43")
    a("s_cmp_eq_u32 s51, 0")
    a("s_cselect_b32 s51, 0, -1")
    a("v_and_b32 v14, s51, v14")
    a("v_not_b32 v14, v14")
    a("v_not_b32 v15, v15")
    for r in range(16):
        idx = 8*(r >> 2) + (r & 3)
        a(f"v_bfe_i32 v{MM+r}, v15, {idx}, 1")
        a(f"v_lshlrev_b32 v{MM+r}, 23, v{MM+r}")
        if r >= 8:
            a(f"v_bfe_i32 v{MH+r}, v14, {idx}, 1")
            a(f"v_lshlrev_b32 v{MH+r}, 23, v{MH+r}")
    def read_ops(buf, sp, fb):
        r = []
        for t3 in range(3):
            for t in range(2):
                r.append(f"ds_read_b64_tr_b16 {vr(WF+12*fb+4*t3+2*t,2)}, v8 offset:{buf*GB_SZ + sp*6144 + t3*1024 + t*512}")
        r.insert(2, f"ds_read_b128 {vr(XF+4*fb,4)}, v{XM+(sp>>1)} offset:{buf*GB_SZ + (sp&1)*32}")
        return r
    def mm(fb, k):
        w = WF + 12*fb; x = XF + 4*fb
        if "nomm" in VAR: return
        if k == 0: mfma32(a, ACC, w, x, ACC)
        elif k == 1: mfma32(a, ACC+16, w+4, x, ACC+16)
        else: mfma32(a, ACC+32, x, w+8, ACC+32)
    a("s_lshr_b32 s55, s40, 3")
    a("s_lshl_b32 s55, s55, 2")
    a("s_cmp_ge_u32 s3, 28")
    a("s_cselect_b32 s51, 28, 0")
    a("s_sub_u32 s59, s3, s51")
    a("s_add_u32 s53, s55, s26")
    a("s_lshl_b32 s53, s53, 13")
    a(f"s_add_u32 s53, s53, {W_KF}")
    a("s_add_u32 s52, s53, 4096")
    a("s_lshl_b32 s51, s26, 12")
    a("v_lshlrev_b32 v13, 3, v1")
    a("v_add_u32 v13, s51, v13")
    FQ = [68, 72, 76, 80, 84, 88, 92, 108]
    def kf_loads():
        for i, r in enumerate(FQ):
            a(f"buffer_load_dwordx4 {vr(r,4)}, v9, s[36:39], {'s53' if i < 4 else 's52'} offen offset:{(i&3)*1024} sc1")
    a(f"s_mov_b32 s63, {int(VAR.get('kfn', 3))}")
    a("s_mov_b32 s46, 0")
    a("s_barrier")
    kf_loads()
    a("s_barrier")
    st.stamp()
    a.label("b_kf")
    a("v_mov_b32 v14, 0")
    for i, r in enumerate(FQ):
        a(f"s_waitcnt vmcnt({7-i})")
        a(f"ds_write_b64 v13, {vr(r,2)} offset:{L_WK + i*512}")
        a(f"v_xor_b32 v15, v{r}, v{r+2}")
        a(f"v_xor_b32 v16, v{r+1}, v{r+3}")
        a("v_xor_b32 v15, s62, v15")
        a("v_xor_b32 v16, s62, v16")
        a("v_or3_b32 v14, v14, v15, v16")
    a("v_cmp_ne_u32 vcc, 0, v14")
    a("s_nop 1")
    a("s_cbranch_vccz b_kf_ok")
    a("s_sub_u32 s63, s63, 1")
    a("s_cbranch_scc1 b_kf_done")
    kf_loads()
    a("s_branch b_kf")
    a.label("b_kf_ok")
    lds_signal(a, C_ST + 0)
    a("s_mov_b32 s46, 1")
    a.label("b_kf_done")
    st.stamp()
    a("v_lshlrev_b32 v15, 7, v1")
    a("s_lshl_b32 s54, s26, 11")
    a(f"s_add_u32 s54, s54, {W_F1}")
    poll_flags(a, 15, "s54", 16, 16, sleep=int(VAR.get("psleep", 4)))
    bbar(a)
    lf = a.newlabel("kfok")
    a("s_cmp_eq_u32 s46, 1")
    a(f"s_cbranch_scc1 {lf}")
    a("s_lshl_b32 s53, s26, 12")
    kv_dma(a, 53, 4, first=True)
    a("s_waitcnt vmcnt(0)")
    lds_signal(a, C_ST + 0)
    a.label(lf)
    lds_wait(a, C_QD, 4, 5, 51)
    for k in range(1, 5):
        a("s_lshl_b32 s53, s26, 12")
        a(f"s_add_u32 s53, s53, {k*16384}")
        kv_dma(a, 53, 4)
        if k == 2:
            a("s_waitcnt vmcnt(4)")
            lds_signal(a, C_ST + 4)
    a("s_cmp_eq_u32 s43, 0")
    a(f"s_cselect_b32 s4, s{P_BWO}, s{P_AWO}")
    a(f"s_cselect_b32 s5, s{P_BWO+1}, s{P_AWO+1}")
    a("s_mov_b32 s6, 0x80000")
    a("s_mov_b32 s7, 0x20000")
    a("s_lshl_b32 s51, s3, 1")
    a("s_add_u32 s51, s51, s42")
    a("s_lshl_b32 s51, s51, 13")
    if MAP81: a("v_lshlrev_b32 v14, 7, v1")
    else:
        a("s_lshr_b32 s54, s41, 1")
        a("s_lshl_b32 s54, s54, 9")
        a("s_add_u32 s51, s51, s54")
        a("v_lshrrev_b32 v14, 2, v6")
        a("v_lshlrev_b32 v14, 10, v14")
        a("v_and_b32 v15, 3, v1")
        a("v_lshl_add_u32 v14, v15, 7, v14")
    a("buffer_load_dword v160, v14, s[4:7], s51 offen")
    for f in issue_ops(0): f()
    a("s_waitcnt vmcnt(9)")
    lds_signal(a, C_ST + 8)
    a(f"s_setprio {VAR.get('bprio', 3)}")
    st.stamp()
    a("s_mov_b32 s50, 0")
    if "nogemm" in VAR: a("s_branch b_gend")
    a.label("b_loop")
    for buf in range(2):
        mm(1, 0)
        a("s_waitcnt vmcnt(0)")
        a("s_add_u32 s58, s58, 4")
        lds_signal(a, C_BB)
        mm(1, 1)
        ops = issue_ops(buf ^ 1)
        if buf == 1:
            a("s_cmp_eq_u32 s50, 3")
            a("s_cselect_b32 s64, 0x7f000000, s64")
            a("s_cselect_b32 s65, 0x7f000000, s65")
            for r in (56, 57): a(f"s_cselect_b32 s{r}, 0x30000, s{r}")
        ops[0]()
        lds_wait(a, C_BB, "s58", 5, 51, sleep=int(VAR.get("bsleep", 0)))
        for x in read_ops(buf, 0, 0): a(x)
        mm(1, 2)
        oi = 1
        for _ in range(3): ops[oi](); oi += 1
        for sp in range(3):
            for x in read_ops(buf, sp+1, (sp+1) & 1): a(x)
            a("s_waitcnt lgkmcnt(7)")
            for k in range(3):
                mm(sp & 1, k)
                for _ in range(2):
                    if oi < len(ops): ops[oi](); oi += 1
        a("s_waitcnt lgkmcnt(0)")
    a("s_add_u32 s50, s50, 1")
    a("s_cmp_lt_u32 s50, 4")
    a("s_cbranch_scc1 b_loop")
    a.label("b_gend")
    for k in range(3): mm(1, k)
    a("s_setprio 3")
    st.stamp()
    QF = 84; KF = 92; VF = 100; KH = 108; VH = 116
    cvt8(a, KF, ACC+16); cvt8(a, KF+4, ACC+24)
    cvt8(a, VF, ACC+32); cvt8(a, VF+4, ACC+40)
    a("s_mul_i32 s51, s42, 3072")
    a(f"s_add_u32 s51, s51, {L_BEX}")
    a("v_add_u32 v13, s51, v9")
    a("s_lshl_b32 s52, s44, 3")
    a("s_add_u32 s52, s52, s45")
    a("s_lshl_b32 s53, s52, 1")
    a("s_add_u32 s53, s53, s42")
    a("s_mul_i32 s53, s53, 3072")
    a(f"s_add_u32 s53, s53, {W_HALO}")
    a("s_lshl_b32 s52, s52, 7")
    a("s_lshl_b32 s51, s42, 2")
    a("s_add_u32 s52, s52, s51")
    a(f"s_add_u32 s52, s52, {W_F2}")
    l1 = a.newlabel("b_w1"); l2 = a.newlabel("b_w2")
    a("s_cmp_eq_u32 s43, 0")
    a(f"s_cbranch_scc0 {l1}")
    lds_wait(a, C_QR, 4, 5, 51, sleep=2)
    a(f"ds_write_b128 v13, {vr(KF,4)}")
    a(f"ds_write_b128 v13, {vr(KF+4,4)} offset:1024")
    a(f"ds_write_b128 v13, {vr(VF+4,4)} offset:2048")
    a(f"s_branch {l2}")
    a.label(l1)
    a(f"buffer_store_dwordx4 {vr(KF,4)}, v9, s[36:39], s53 offen sc1")
    a(f"buffer_store_dwordx4 {vr(KF+4,4)}, v9, s[36:39], s53 offen offset:1024 sc1")
    a(f"buffer_store_dwordx4 {vr(VF+4,4)}, v9, s[36:39], s53 offen offset:2048 sc1")
    a("s_waitcnt vmcnt(0)")
    store_flag(a, "s52", 14)
    a.label(l2)
    bbar(a)
    a("s_mov_b32 s60, s52")
    a("s_mul_i32 s54, s26, 12288")
    a("s_add_u32 s54, s54, 81920")
    kv_dma(a, 54, 12)
    a("s_mov_b32 s52, s60")
    l1 = a.newlabel("b_x1"); l2 = a.newlabel("b_x2")
    a("s_or_b32 s51, s44, 0")
    a("s_cselect_b32 s51, s43, 1")
    a("s_cmp_eq_u32 s51, 0")
    a(f"s_cbranch_scc0 {l1}")
    a(f"s_sub_u32 s52, s52, {8*128}")
    a(f"s_sub_u32 s53, s53, {16*3072}")
    a("v_mov_b32 v5, 0")
    poll_flags(a, 5, "s52", 1, 14, sleep=6, width=1)
    a(f"buffer_load_dwordx4 {vr(KH,4)}, v9, s[36:39], s53 offen sc1")
    a(f"buffer_load_dwordx4 {vr(KH+4,4)}, v9, s[36:39], s53 offen offset:1024 sc1")
    a(f"buffer_load_dwordx4 {vr(VH,4)}, v9, s[36:39], s53 offen offset:2048 sc1")
    a("s_waitcnt vmcnt(0)")
    a(f"s_branch {l2}")
    a.label(l1)
    a(f"ds_read_b128 {vr(KH,4)}, v13")
    a(f"ds_read_b128 {vr(KH+4,4)}, v13 offset:1024")
    a(f"ds_read_b128 {vr(VH,4)}, v13 offset:2048")
    a.label(l2)
    lsn = a.newlabel("nosn")
    a("s_and_b32 s51, s40, 1")
    a("s_cmp_eq_u32 s51, s43")
    a(f"s_cbranch_scc0 {lsn}")
    a("s_lshl_b32 s51, s40, 2")
    a("s_add_u32 s51, s51, s41")
    a("s_lshl_b32 s51, s51, 1")
    a("s_add_u32 s51, s51, s42")
    a("s_lshl_b32 s51, s51, 12")
    a(f"s_add_u32 s51, s51, {W_OA}")
    for i in range(4): a(f"v_mov_b32 v{120+i}, -1")
    for i in range(4 if "xnoslow" not in VAR else 0): a(f"buffer_store_dwordx4 v[120:123], v9, s[36:39], s51 offen offset:{i*1024} sc1")
    a(f"s_add_u32 s51, s51, {W_OF - W_OA}")
    for i in range(4): a(f"buffer_store_dwordx4 v[120:123], v9, s[36:39], s51 offen offset:{i*1024} sc1")
    a.label(lsn)
    cvt8(a, QF, ACC); cvt8(a, QF+4, ACC+8)
    a("s_lshl_b32 s52, s44, 1")
    a("s_add_u32 s52, s52, s43")
    a("s_lshl_b32 s55, s52, 4")
    a("s_lshl_b32 s53, s45, 1")
    a("s_add_u32 s53, s53, s42")
    a("s_add_u32 s55, s55, s53")
    a("s_lshl_b32 s55, s55, 11")
    a(f"s_add_u32 s55, s55, {W_OB}")
    a("s_lshl_b32 s57, s52, 9")
    a("s_lshr_b32 s51, s53, 2")
    a("s_lshl_b32 s51, s51, 7")
    a("s_add_u32 s57, s57, s51")
    a("s_and_b32 s51, s53, 3")
    a("s_lshl_b32 s51, s51, 2")
    a("s_add_u32 s57, s57, s51")
    a(f"s_add_u32 s57, s57, {W_F3}")
    a("s_waitcnt lgkmcnt(0)")
    SM = 20; SH = 36; O = 52; PP = 68; T = 152
    a(f"s_mov_b32 s46, {CSCALE}")
    for hd in range(2 if "nolocal" not in VAR else 0):
        mfma32(a, SM, KF+4*hd, QF+4*hd, MM)
        mfma32(a, SH, KH+4*hd, QF+4*hd, MH)
        if hd == 1:
            a("s_waitcnt vmcnt(1)")
            lds_signal(a, C_ST + 12)
        vals = [SM+i for i in range(16)] + [SH+8+i for i in range(8)]
        a(f"v_max3_f32 v{T}, v{vals[0]}, v{vals[1]}, v{vals[2]}")
        for i in range(3, 23, 2):
            a(f"v_max3_f32 v{T}, v{T}, v{vals[i]}, v{vals[i+1]}")
        a(f"v_max_f32 v{T}, v{T}, v{vals[23]}")
        xhalf_max(a, T, T+1)
        a(f"v_mul_f32 v{T}, s46, v{T}")
        for v in vals: a(f"v_fma_f32 v{v}, v{v}, s46, -v{T}")
        for v in vals: a(f"v_exp_f32 v{v}, v{v}")
        a(f"v_add_f32 v{T+2}, v{vals[0]}, v{vals[1]}")
        for v in vals[2:]: a(f"v_add_f32 v{T+2}, v{T+2}, v{v}")
        cvt8(a, PP, SM); cvt8(a, PP+4, SM+8); cvt8(a, PP+8, SH+8)
        a(f"v_mov_b32 v{T+3}, v{T+2}")
        a(f"v_permlane32_swap_b32 v{T+2}, v{T+3}")
        mfma32(a, O, VF, PP, "0")
        mfma32(a, O, VF+4, PP+4, O)
        mfma32(a, O, VH, PP+8, O)
        a(f"v_add_f32 v{T+2}, v{T+2}, v{T+3}")
        a(f"v_rcp_f32 v{T+2}, v{T+2}")
        for i in range(8): a(f"v_mul_f32 v{O+8*hd+i}, v{O+8*hd+i}, v{T+2}")
        cvt8(a, T+4+4*hd, O+8*hd)
        a(f"buffer_store_dwordx4 {vr(T+4+4*hd,4)}, v9, s[36:39], s55 offen offset:{hd*1024} sc1")
    a("s_waitcnt vmcnt(0)")
    store_flag(a, "s57", 12)
    st.stamp()
    srd(a, 32, P_BWO, 512 * 1024)
    srd(a, 28, P_OUT, 4 << 20)
    a("s_lshl_b32 s47, s41, 8")
    a("s_lshl_b32 s51, s26, 6")
    a("s_add_u32 s47, s47, s51")
    a("v_lshrrev_b32 v3, 2, v1")
    a("v_lshlrev_b32 v3, 10, v3")
    a("v_and_b32 v4, 3, v1")
    a("v_lshl_add_u32 v3, v4, 4, v3")
    a("v_add_u32 v3, s47, v3")
    tr_base_wo(a, 8, 4)
    a("s_mul_i32 s56, s26, 7168")
    a(f"s_add_u32 s56, s56, {L_COMB}")
    a("v_add_u32 v8, s56, v8")
    a("v_lshlrev_b32 v4, 11, v6")
    a("v_lshl_add_u32 v4, v7, 4, v4")
    a("s_lshl_b32 s51, s40, 16")
    a("s_add_u32 s47, s47, s51")
    ACC = 12; OB = 28; WL = 40
    a("s_mov_b32 s48, 0")
    bbar(a)
    R = 7
    def wissue(i):
        a(f"s_add_u32 m0, s56, {(i%R)*1024}")
        a(f"buffer_load_dwordx4 v3, s[32:35], s48 offen lds")
        a("s_add_u32 s48, s48, 16384")
        a("s_and_b32 s48, s48, 0x7ffff")
    def trr(i):
        for t in range(2): a(f"ds_read_b64_tr_b16 {vr(WL+4*i+2*t,2)}, v8 offset:{(i%R)*1024 + t*512}")
    for i in range(R): wissue(i)
    for i in range(32):
        a(f"s_waitcnt vmcnt({R-1 if i == 0 else min(R-2, 31-i)})")
        trr(i)
        if i >= 1 and i + R - 1 < 32:
            a("s_waitcnt lgkmcnt(2)")
            wissue(i + R - 1)
    def run(lo, hi, addr, off0):
        o = lambda i: (i - off0) * 1024
        for i in range(lo, min(lo+2, hi)): a(f"ds_read_b128 {vr(OB+4*(i%3),4)}, {addr} offset:{o(i)}")
        for i in range(lo, hi):
            if i + 2 < hi:
                a(f"ds_read_b128 {vr(OB+4*((i+2)%3),4)}, {addr} offset:{o(i+2)}")
                a("s_waitcnt lgkmcnt(2)")
            else:
                a(f"s_waitcnt lgkmcnt({hi-1-i})")
            mfma32(a, ACC, WL+4*i, OB+4*(i%3), "0" if i == 0 else ACC)
    a("v_lshlrev_b32 v5, 7, v1")
    a("s_lshl_b32 s57, s40, 9")
    a(f"s_add_u32 s57, s57, {W_F3}")
    poll_flags(a, 5, "s57", 4, 28, sleep=8)
    lds_signal(a, C_ST + 16)
    st.stamp()
    lds_wait(a, C_PR, 8, 5, 51, sleep=8)
    a("s_lshl_b32 s49, s40, 15")
    a("s_lshl_b32 s51, s26, 13")
    a("s_add_u32 s49, s49, s51")
    a(f"s_add_u32 s49, s49, {W_OB}")
    a(f"s_add_u32 s46, s51, {L_OA}")
    for q in range(8):
        if (q & 3) == 0:
            a(f"s_add_u32 m0, s46, {q*1024}")
            if q: a("s_add_u32 s49, s49, 4096")
        a(f"buffer_load_dwordx4 v9, s[36:39], s49 offen offset:{(q&3)*1024} sc1 lds")
    srd(a, 32, P_AWO, 512 * 1024)
    a("s_lshl_b32 s48, s41, 17")
    for i in range(R): wissue(i)
    a(f"v_add_u32 v0, {L_OA}, v9")
    a(f"s_waitcnt vmcnt({R})")
    bbar(a)
    def ord_(i): a(f"ds_read_b128 {vr(OB+4*(i%3),4)}, v0 offset:{i*1024}")
    ord_(0); ord_(1)
    q = ["o0", "o1"]
    def lw(tag):
        k = len(q) - 1 - max(j for j, x in enumerate(q) if x == tag)
        a(f"s_waitcnt lgkmcnt({k})")
        del q[:len(q)-k]
    for i in range(32):
        if i + 2 < 32: ord_(i + 2); q.append(f"o{i+2}")
        if i == 29: lds_signal(a, C_ST + 20); q.append("sig")
        if f"o{i}" in q: lw(f"o{i}")
        mfma32(a, ACC, WL+4*i, OB+4*(i%3), "0" if i == 0 else ACC)
        if i >= 2 and i + R - 2 < 32:
            if f"t{i-2}" in q: lw(f"t{i-2}")
            wissue(i + R - 2)
        issued = min(31, max(R - 1, i + R - 2))
        a(f"s_waitcnt vmcnt({issued - i})")
        trr(i); q += [f"t{i}", f"t{i}"]
    cvt8(a, 28, ACC); cvt8(a, 32, ACC+8)
    a("buffer_store_dwordx4 v[28:31], v4, s[28:31], s47 offen offset:1024 " + VAR.get("stb", "nt"))
    a("buffer_store_dwordx4 v[32:35], v4, s[28:31], s47 offen offset:1056 " + VAR.get("stb", "nt"))
    st.stamp()
    a.label("b_tail")
    st.stamp()
    le = a.newlabel("ep")
    a("s_or_b32 s51, s2, s26")
    a("s_cmp_eq_u32 s51, 0")
    a(f"s_cbranch_scc0 {le}")
    a(f"s_mov_b32 s51, {W_EP}")
    store_flag(a, "s51", 28)
    a.label(le)
    a(f"v_add_u32 v0, {L_OA}, v9")
    lds_wait(a, C_CB + 0, 1, 5, 51, sleep=16)
    def rd(i): a(f"ds_read_b128 {vr(WL+4*(i-8),4)}, v0 offset:{i*1024}")
    lds_wait(a, C_OF, 8, 5, 51, sleep=0)
    if "tfine" in VAR: st.n = 5; st.stamp(); a("s_waitcnt lgkmcnt(0)")
    run(0, 8, "v0", 0)
    lds_wait(a, C_OF + 4, 8, 5, 51, sleep=0)
    if "tfine" in VAR: st.stamp(); a("s_waitcnt lgkmcnt(0)")
    for i in range(8, 16): rd(i)
    NE = int(VAR.get("ne", 3))
    for i in range(8, 8 + NE):
        a(f"s_waitcnt lgkmcnt({15 - i})")
        mfma32(a, ACC, WL+4*i, WL+4*(i-8), ACC)
        if i == 8: a(f"ds_read_b64 v[28:29], v10 offset:{C_OF + 8}")
    a("s_waitcnt lgkmcnt(0)")
    a("v_min_u32 v28, v28, v29")
    a("v_readfirstlane_b32 s51, v28")
    a("s_cmp_ge_u32 s51, 8")
    a("s_cbranch_scc0 b_slowtail")
    for i in range(8, 8 + NE): rd(i + 8)
    for i in range(8 + NE, 32):
        if i >= 16: a(f"s_waitcnt lgkmcnt({min(7, 31 - i)})")
        mfma32(a, ACC, WL+4*i, WL+4*(i-8), ACC)
        if i + 8 < 32: rd(i + 8)
    a("s_branch b_fin")
    a.label("b_slowtail")
    for d in range(1, 4):
        if d > 1:
            lds_wait(a, C_OF + 4*d, 8, 5, 51, sleep=0)
            for i in range(8*d, 8*d + 8): rd(i)
        for i in range(8*d + (NE if d == 1 else 0), 8*d + 8):
            a(f"s_waitcnt lgkmcnt({8*d + 7 - i})")
            mfma32(a, ACC, WL+4*i, WL+4*(i-8), ACC)
    a.label("b_fin")
    cvt8(a, 28, ACC); cvt8(a, 32, ACC+8)
    a("buffer_store_dwordx4 v[28:31], v4, s[28:31], s47 offen " + VAR.get("sta", "nt"))
    a("buffer_store_dwordx4 v[32:35], v4, s[28:31], s47 offen offset:32 " + VAR.get("sta", "nt"))
    if DIAG:
        if "tfine" in VAR: st.stamp()
        a("s_waitcnt vmcnt(0)")
        st.stamp()
        st.dump(None, 0)

def kernel():
    a = Asm(); n = NAME + "_kernel"
    a.label(n)
    a("s_cmp_ge_u32 s2, 256")
    a("s_cbranch_scc1 k_exit")
    load_ptrs(a)
    sta = Stamps(a, DIAG, real='--cyc' not in sys.argv); stb = Stamps(a, DIAG, real='--cyc' not in sys.argv)
    sta.stamp(); stb.n = sta.n
    if "cpf" in VAR:
        a("s_getpc_b64 s[28:29]")
        a("v_lshlrev_b32 v3, 7, v0")
        a(f"v_cmp_gt_u32 vcc, {int(VAR['cpf'])}, v0")
        a("s_and_saveexec_b64 s[30:31], vcc")
        a("s_cbranch_execz k_nopf")
        a("global_load_dword v167, v3, s[28:29]")
        a.label("k_nopf")
        a("s_mov_b64 exec, s[30:31]")
    a("v_and_b32 v1, 63, v0")
    a("v_lshrrev_b32 v2, 6, v0")
    a("v_readfirstlane_b32 s26, v2")
    a("s_and_b32 s27, s2, 7")
    a("s_lshr_b32 s3, s2, 3")
    if MAP81:
        a("s_lshl_b32 s40, s27, 3")
        a("s_lshr_b32 s41, s3, 2")
        a("s_add_u32 s40, s40, s41")
        a("s_and_b32 s41, s3, 3")
    else:
        a("s_lshr_b32 s40, s27, 1")
        a("s_lshl_b32 s40, s40, 4")
        a("s_lshr_b32 s41, s3, 1")
        a("s_add_u32 s40, s40, s41")
        a("s_and_b32 s41, s27, 1")
        a("s_lshl_b32 s41, s41, 1")
        a("s_and_b32 s27, s3, 1")
        a("s_add_u32 s41, s41, s27")
    a("s_lshl_b32 s27, s41, 1")
    a("s_and_b32 s51, s40, 1")
    a("s_add_u32 s27, s27, s51")
    a("v_and_b32 v6, 31, v1")
    a("v_lshrrev_b32 v7, 5, v1")
    a("v_lshlrev_b32 v9, 4, v1")
    a(f"v_mov_b32 v10, {L_CNT}")
    a("v_mov_b32 v11, 1")
    a("s_waitcnt lgkmcnt(0)")
    srd(a, 36, P_WS, W_USED)
    a("s_cmp_lt_u32 s26, 4")
    a("s_cbranch_scc1 role_b")
    role_a(a, sta)
    a.label("role_b")
    role_b(a, stb)
    a.label("k_exit")
    a("s_endpgm")
    return (n, a, 256, 768, LDS_SIZE, 168)

if __name__ == "__main__":
    write_file(sys.argv[1], [kernel()])
```

```python
import sys
from common import *
DIAG = "--diag" in sys.argv
VAR = dict((x[2:].split("=")+[1])[:2] for x in sys.argv if x.startswith("-V"))

W_KV = 0
W_F1 = 0x20000
W_F2 = 0x28000
W_F3 = 0x30000
W_EP = 0x3F000
W_OA = 1 << 20
W_OB = 3 << 20
W_HALO = 5 << 20
W_OF = 10 << 20
W_USED = 16 << 20
L_XA = 16384
L_WK = 0
WQ_SLOT = [49664 + 16384*(i % 6) for i in range(8)]
L_GB = 89600
GB_W, GB_X, GB_SZ = 0, 24576, 32896
L_COMB = 131072
L_QX = 155392
L_BEX = 155392
L_CNT = 163584
LDS_SIZE = 163840
C_BB, C_ST, C_EX, C_XA, C_QB, C_QC, C_QD, C_XD = 4, 16, 40, 72, 76, 92, 96, 100
C_ISS, C_QR = 8, 12
C_PR, C_CB, C_OF = 104, 112, 144
L_CB = 0
L_OA = 24576
BIAS = VAR.get("bias", "0xc2c80000")
VSC = 40
MAP81 = 'map24' not in VAR
XP = 1040
TAGC = 0x9E3779B9 - (1 << 32)
SPIN = 40000

def cvt8(a, dst, src):
    for i in range(4):
        a(f"v_cvt_pk_bf16_f32 v{dst+i}, v{src+2*i}, v{src+2*i+1}")

def tr_base32(a, dst, tmp):
    a(f"v_lshlrev_b32 v{dst}, 9, v7")
    a(f"v_bfe_u32 v{tmp}, v1, 2, 2")
    a(f"v_lshl_add_u32 v{dst}, v{tmp}, 6, v{dst}")
    a(f"v_bfe_u32 v{tmp}, v1, 4, 1")
    a(f"v_lshl_add_u32 v{dst}, v{tmp}, 5, v{dst}")
    a(f"v_and_b32 v{tmp}, 3, v1")
    a(f"v_lshl_add_u32 v{dst}, v{tmp}, 3, v{dst}")

def tr_base_wo(a, dst, tmp):
    a(f"v_lshlrev_b32 v{dst}, 8, v7")
    a(f"v_bfe_u32 v{tmp}, v1, 2, 2")
    a(f"v_lshl_add_u32 v{dst}, v{tmp}, 6, v{dst}")
    a(f"v_bfe_u32 v{tmp}, v1, 4, 1")
    a(f"v_lshl_add_u32 v{dst}, v{tmp}, 5, v{dst}")
    a(f"v_and_b32 v{tmp}, 1, v1")
    a(f"v_lshl_add_u32 v{dst}, v{tmp}, 4, v{dst}")
    a(f"v_bfe_u32 v{tmp}, v1, 1, 1")
    a(f"v_lshl_add_u32 v{dst}, v{tmp}, 3, v{dst}")

def lds_signal(a, off, addr="v10"):
    a("s_mov_b64 exec, 1")
    a(f"ds_add_u32 {addr}, v11 offset:{off}")
    a("s_mov_b64 exec, -1")
def lds_wait(a, off, val, tmp, stmp, addr="v10", sleep=1):
    l = a.newlabel("lw"); d = a.newlabel("lwd")
    a.label(l)
    a(f"ds_read_b32 v{tmp}, {addr} offset:{off}")
    a("s_waitcnt lgkmcnt(0)")
    a(f"v_readfirstlane_b32 s{stmp}, v{tmp}")
    a(f"s_cmp_ge_u32 s{stmp}, {val}")
    a(f"s_cbranch_scc1 {d}")
    if sleep: a(f"s_sleep {sleep}")
    a(f"s_branch {l}")
    a.label(d)
def bbar(a, tmp=5):
    a("s_add_u32 s58, s58, 4")
    lds_signal(a, C_BB)
    lds_wait(a, C_BB, "s58", tmp, 51, sleep=2)

def poll_flags(a, voff, soff, nl, t, sleep=2, width=4):
    l = a.newlabel("pf"); d = a.newlabel("pfd")
    a(f"s_mov_b32 s63, {SPIN}")
    a(f"s_mov_b64 exec, {(1 << nl) - 1}")
    a.label(l)
    if width == 4:
        a(f"buffer_load_dwordx4 {vr(t,4)}, v{voff}, s[36:39], {soff} offen sc1")
        a("s_waitcnt vmcnt(0)")
        for i in range(4): a(f"v_xor_b32 v{t+i}, s62, v{t+i}")
        a(f"v_or3_b32 v{t}, v{t}, v{t+1}, v{t+2}")
        a(f"v_or_b32 v{t}, v{t}, v{t+3}")
    else:
        a(f"buffer_load_dword v{t}, v{voff}, s[36:39], {soff} offen sc1")
        a("s_waitcnt vmcnt(0)")
        a(f"v_xor_b32 v{t}, s62, v{t}")
    a(f"v_cmp_ne_u32 vcc, 0, v{t}")
    a("s_nop 1")
    a(f"s_cbranch_vccz {d}")
    a(f"s_sleep {sleep}")
    a("s_sub_u32 s63, s63, 1")
    a("s_cmp_lg_u32 s63, 0")
    a(f"s_cbranch_scc1 {l}")
    a.label(d)
    a("s_mov_b64 exec, -1")

def store_flag(a, soff, t):
    a(f"v_mov_b32 v{t}, s62")
    a(f"v_mov_b32 v{t+1}, 0")
    a("s_mov_b64 exec, 1")
    a(f"buffer_store_dword v{t}, v{t+1}, s[36:39], {soff} offen sc1")
    a("s_mov_b64 exec, -1")

def rowmax16(a, dst, S, init=None):
    if init is None:
        a(f"v_max3_f32 v{dst}, v{S}, v{S+1}, v{S+2}")
        for i in range(3, 15, 2): a(f"v_max3_f32 v{dst}, v{dst}, v{S+i}, v{S+i+1}")
        a(f"v_max_f32 v{dst}, v{dst}, v{S+15}")
    else:
        for i in range(0, 16, 2): a(f"v_max3_f32 v{dst}, v{dst}, v{S+i}, v{S+i+1}")
def xhalf_max(a, dst, tmp):
    a(f"v_mov_b32 v{tmp}, v{dst}")
    a(f"v_permlane32_swap_b32 v{dst}, v{tmp}")
    a(f"v_max_f32 v{dst}, v{dst}, v{tmp}")

def kv_dma(a, sreg, n):
    for q in range(n):
        if (q & 3) == 0:
            a(f"s_mov_b32 m0, s{sreg}")
            a("s_lshl_b32 s51, s3, 12")
            a(f"s_add_u32 s51, s51, s{sreg}")
            a("s_and_b32 s51, s51, 0x1ffff")
        a(f"buffer_load_dwordx4 v9, s[36:39], s51 offen offset:{(q&3)*1024} sc1 lds")
        if (q & 3) == 3 and q + 1 < n: a(f"s_add_u32 s{sreg}, s{sreg}, 4096")

def kv_job(a, st=None):
    X = 24; W = 88
    lv = a.newlabel("kv_v"); ld = a.newlabel("kv_d")
    def reads(s):
        a(f"ds_read_b128 {vr(X+4*s,4)}, v14 offset:{s*64}")
        for t in range(2):
            a(f"ds_read_b64_tr_b16 {vr(W+4*s+2*t,2)}, v15 offset:{L_WK + s*1024 + t*128}")
    a("s_cmp_eq_u32 s45, 0")
    a(f"s_cbranch_scc0 {lv}")
    for which in range(2):
        if which: a.label(lv)
        for s in range(4): reads(s)
        for s in range(16):
            if s + 4 < 16:
                reads(s + 4); a("s_waitcnt lgkmcnt(12)")
            else:
                a(f"s_waitcnt lgkmcnt({3*(15-s)})")
            if which == 0: mfma16(a, 20, W+4*s, X+4*s, "0" if s == 0 else 20)
            else:          mfma16(a, 20, X+4*s, W+4*s, "0" if s == 0 else 20)
        if not which: a(f"s_branch {ld}")
    a.label(ld)
    lds_signal(a, C_XD)
    if st: st.stamp()
    a("s_cmp_eq_u32 s45, 0")
    a(f"s_cselect_b32 s51, 1.0, {hex((127 + VSC) << 23)}")
    for i in range(4): a(f"v_mul_f32 v{20+i}, s51, v{20+i}")
    a("v_cvt_pk_bf16_f32 v18, v20, v21")
    a("v_cvt_pk_bf16_f32 v19, v22, v23")
    a("buffer_store_dwordx2 v[18:19], v16, s[36:39], s52 offen sc1")
    a("s_waitcnt vmcnt(0)")
    store_flag(a, "s53", 18)

def kv_setup(a):
    a("v_and_b32 v12, 15, v1")
    a("v_lshrrev_b32 v13, 4, v1")
    a(f"v_mul_u32_u24 v14, {XP}, v12")
    a("v_lshl_add_u32 v14, v13, 4, v14")
    a(f"s_mul_i32 s51, s46, {16*XP}")
    a(f"s_add_u32 s51, s51, {L_XA}")
    a("v_add_u32 v14, s51, v14")
    a("v_lshlrev_b32 v15, 8, v13")
    a("v_lshl_add_u32 v15, v12, 3, v15")
    a("v_and_b32 v16, 1, v13")
    a("s_cmp_eq_u32 s45, 0")
    a("s_cselect_b32 s51, 9, 8")
    a("s_cselect_b32 s52, 8, 9")
    a("s_lshl_b32 s52, s46, s52")
    a("s_lshl_b32 s53, s45, 10")
    a("s_add_u32 s52, s52, s53")
    a("s_lshl_b32 s53, s40, 11")
    a("s_add_u32 s52, s52, s53")
    a("v_lshlrev_b32 v16, s51, v16")
    a("v_lshl_add_u32 v16, v12, 4, v16")
    a("v_lshrrev_b32 v17, 1, v13")
    a("v_lshl_add_u32 v16, v17, 3, v16")
    a("s_lshl_b32 s53, s40, 7")
    a("s_lshl_b32 s54, s41, 2")
    a("s_add_u32 s53, s53, s54")
    a(f"s_add_u32 s53, s53, {W_F1}")

def stouch_setup(a, slot, bw, bx):
    a("s_lshr_b32 s51, s3, 2")
    a(f"s_lshl_b32 s54, {slot}, 3")
    a("s_add_u32 s51, s51, s54")
    a("s_lshl_b32 s51, s51, 10")
    a("s_lshl_b32 s54, s27, 7")
    a("s_add_u32 s51, s51, s54")
    a(f"s_add_u32 s{bw}, s{P_BWQKV}, s51")
    a(f"s_addc_u32 s{bw+1}, s{P_BWQKV+1}, 0")
    a(f"s_add_u32 s{bw+2}, s{bw}, {24*32768}")
    a(f"s_addc_u32 s{bw+3}, s{bw+1}, 0")
    a("s_lshr_b32 s51, s40, 1")
    a("s_lshl_b32 s51, s51, 16")
    a("s_and_b32 s54, s3, 3")
    a("s_lshl_b32 s54, s54, 14")
    a("s_add_u32 s51, s51, s54")
    a(f"s_lshl_b32 s54, {slot}, 12")
    a("s_add_u32 s51, s51, s54")
    a(f"s_add_u32 s{bx}, s{P_BX}, s51")
    a(f"s_addc_u32 s{bx+1}, s{P_BX+1}, 0")
def stouch_list(chunks, bw, bx):
    l = []
    for c in chunks:
        for r in range(4): l.append((f"s[{bx}:{bx+1}]", r*1024 + c*128))
        for i in range(6):
            m = c*6 + i
            l.append((f"s[{bw}:{bw+1}]", m*32768) if m < 24 else (f"s[{bw+2}:{bw+3}]", (m-24)*32768))
    return l

def role_a(a, st):
    FINE = "fine" in VAR
    class F:
        def stamp(self):
            if FINE: st0.stamp()
    st0 = st; fs = F()
    if FINE:
        class N:
            n = 0
            def stamp(self): pass
            def dump(self, *x): st0.dump(*x)
        st = N()
    a("s_sub_u32 s59, s26, 4")
    a("s_and_b32 s42, s59, 3")
    a("s_lshr_b32 s43, s59, 2")
    srd(a, 28, P_AX, 2 << 20)
    a("s_lshr_b32 s46, s41, 1")
    for k in range(2):
        if k: a("s_xor_b32 s46, s46, 1")
        a("s_lshl_b32 s49, s46, 4")
        a("s_lshl_b32 s48, s59, 1")
        a("s_add_u32 s49, s49, s48")
        a("s_lshl_b32 s48, s40, 5")
        a("s_add_u32 s48, s48, s49")
        a("s_lshl_b32 s48, s48, 10")
        a(f"s_mul_i32 s49, s49, {XP}")
        for q in range(2):
            a(f"s_add_u32 m0, s49, {L_XA + q*XP - q*1024}")
            a(f"buffer_load_dwordx4 v9, s[28:31], s48 offen offset:{q*1024} lds")
    if "nobar0" not in VAR: a("s_barrier")
    srd(a, 32, P_AWQ, 512 * 1024)
    S0, S1, O0, O1, C0, C1, P0, P1, Q0, Q1, KB, VB = 16, 32, 48, 64, 80, 96, 112, 120, 128, 132, 136, 144
    a(f"s_bfe_u32 s55, s3, {0x30002 if MAP81 else 0x30001}")
    a("s_cmp_eq_u32 s43, 0")
    a("s_cbranch_scc0 a_kh1")
    def early_init():
        for i in range(32): a(f"v_mov_b32 v{O0+i}, 0")
        a("s_lshl_b32 s56, s43, 11")
        a("v_add_u32 v2, s56, v9")
        a("v_lshlrev_b32 v3, 8, v7")
        a("v_lshl_add_u32 v3, v6, 4, v3")
        a("v_add_u32 v3, s56, v3")
        a("s_mov_b32 s60, 0x0000ffff")
        a("s_mov_b32 s61, 0x0000ffff")
        a("v_and_b32 v14, 27, v6")
        a("v_cmp_eq_u32 vcc, 16, v14")
        a(f"v_mov_b32 v13, {hex(((127 + VSC) << 7) * 0x10001)}")
        a("v_cndmask_b32 v14, 0, v13, vcc")
        for i in range(8): a(f"v_mov_b32 v{VB+i}, v14")
    XF = 16; WF = 144; ACC = 152
    a(f"v_mul_u32_u24 v4, {XP}, v6")
    a("v_lshl_add_u32 v4, v7, 4, v4")
    a("v_lshlrev_b32 v8, 11, v7")
    a("v_bfe_u32 v5, v1, 2, 2")
    a("v_lshl_add_u32 v8, v5, 8, v8")
    a("v_xor_b32 v5, s42, v5")
    a("v_lshl_add_u32 v8, v5, 6, v8")
    a("v_bfe_u32 v5, v1, 4, 1")
    a("v_lshl_add_u32 v8, v5, 5, v8")
    a("v_and_b32 v5, 3, v1")
    a("v_lshl_add_u32 v8, v5, 3, v8")
    a(f"v_add_u32 v8, 49664, v8")
    a(f"v_add_u32 v15, {3*16384}, v8")
    a("s_waitcnt vmcnt(2) lgkmcnt(0)")
    a("s_barrier")
    st.stamp()
    a("s_waitcnt vmcnt(0)")
    lds_signal(a, C_XA)
    fs.stamp()
    lds_wait(a, C_XA, 8, 12, 51)
    if "nohold" not in VAR: lds_wait(a, C_XD, 1, 12, 51, sleep=1)
    fs.stamp()
    def xload(i):
        a(f"s_add_u32 s51, s55, {i}")
        a("s_and_b32 s51, s51, 7")
        a("s_lshl_b32 s51, s51, 7")
        a("v_add_u32 v5, s51, v4")
        for sp in range(4):
            a(f"ds_read_b128 {vr(XF+16*i+4*sp,4)}, v5 offset:{L_XA + sp*32}")
    for i in range(6): xload(i)
    st.stamp()
    def wreg(st_): return XF + 4*((st_ - 8) % 32)
    def qread(st_):
        i = st_ >> 2; sp = st_ & 3; sl = i % 6
        for t in range(2):
            a(f"ds_read_b64_tr_b16 {vr(wreg(st_)+2*t,2)}, {'v8' if sl < 3 else 'v15'} offset:{(sl%3)*16384 + sp*4096 + t*1024}")
    fs.stamp()
    lds_wait(a, C_QB + 0, 4, 12, 51, sleep=0)
    fs.stamp()
    for k in range(8): qread(k)
    lds_signal(a, C_QC)
    for grp in range(4):
        if grp < 3:
            lds_wait(a, C_QB + 4*(grp+1), 4, 12, 51, sleep=0)
            fs.stamp()
        if grp == 3: early_init()
        for k in range(8):
            st_ = 8*grp + k
            if grp == 3: a(f"s_waitcnt lgkmcnt({min(15, 2*(7-k) + 1) if not FINE else 0})")
            mfma32(a, ACC, wreg(st_), XF+4*st_, "0" if st_ == 0 else ACC)
            if grp < 3: qread(st_ + 8)
        if grp == 0:
            xload(6); xload(7)
            lds_signal(a, C_XD)
        if grp == 2: lds_signal(a, C_QD)
    st.stamp()
    a(f"s_mov_b32 s51, {CSCALE}")
    a("s_lshl_b32 s53, s42, 11")
    a(f"s_add_u32 s53, s53, {L_QX}")
    a("v_add_u32 v12, s53, v9")
    a("s_lshl_b32 s53, s42, 2")
    a("v_add_u32 v13, s53, v10")
    for i in range(16): a(f"v_mul_f32 v{ACC+i}, s51, v{ACC+i}")
    cvt8(a, Q1, ACC); cvt8(a, Q0, ACC+8)
    a(f"ds_write_b128 v12, {vr(Q1,4)}")
    a(f"ds_write_b128 v12, {vr(Q0,4)} offset:1024")
    lds_signal(a, C_EX, "v13")
    fs.stamp()
    a("s_branch a_join")
    a.label("a_kh1")
    st.n -= 3
    if FINE: st0.n = 1
    a("v_lshrrev_b32 v4, 4, v1")
    a("v_bfe_u32 v5, v1, 2, 2")
    a("v_xor_b32 v5, v5, v4")
    a("v_lshlrev_b32 v3, 10, v4")
    a("v_lshl_add_u32 v3, v5, 6, v3")
    a("v_and_b32 v5, 3, v1")
    a("v_lshl_add_u32 v3, v5, 4, v3")
    a("s_lshl_b32 s48, s42, 14")
    a("s_lshl_b32 s51, s41, 8")
    a("s_add_u32 s48, s48, s51")
    a("s_lshl_b32 s49, s42, 12")
    def op_q(i):
        a(f"s_add_u32 s51, s55, {i}")
        a("s_and_b32 s51, s51, 7")
        a("s_lshl_b32 s51, s51, 16")
        a("s_add_u32 s51, s51, s48")
        for q in range(4):
            a(f"s_add_u32 m0, s49, {WQ_SLOT[i] + q*1024}")
            if q: a("s_add_u32 s51, s51, 4096")
            a("buffer_load_dwordx4 v3, s[32:35], s51 offen lds")
    NPRE = 2
    for i in range(NPRE): op_q(i)
    a("s_waitcnt vmcnt(10) lgkmcnt(0)")
    a("s_barrier")
    st.stamp()
    a("s_waitcnt vmcnt(8)")
    fs.stamp()
    lds_signal(a, C_XA)
    if "nohold" not in VAR: lds_wait(a, C_XD, 1, 12, 51, sleep=1)
    op_q(2); op_q(3)
    a("s_waitcnt vmcnt(8)")
    fs.stamp()
    lds_signal(a, C_QB + 0)
    op_q(4); op_q(5)
    a("s_waitcnt vmcnt(8)")
    fs.stamp()
    lds_signal(a, C_QB + 4)
    lds_wait(a, C_QC, 4, 12, 51, sleep=0)
    fs.stamp()
    op_q(6); op_q(7)
    fs.stamp()
    lds_signal(a, C_ISS)
    a("s_waitcnt vmcnt(8)")
    fs.stamp()
    lds_signal(a, C_QB + 8)
    a("s_waitcnt vmcnt(0)")
    fs.stamp()
    lds_signal(a, C_QB + 12)
    st.stamp()
    early_init()
    a("s_lshl_b32 s53, s42, 11")
    a(f"s_add_u32 s53, s53, {L_QX}")
    a("v_add_u32 v15, s53, v9")
    a("s_lshl_b32 s53, s42, 2")
    a("v_add_u32 v13, s53, v10")
    lds_wait(a, C_EX, 1, 12, 51, "v13")
    a(f"ds_read_b128 {vr(Q0,4)}, v15")
    a(f"ds_read_b128 {vr(Q1,4)}, v15 offset:1024")
    fs.stamp()
    lds_signal(a, C_QR)
    st.stamp()
    a.label("a_join")
    def tail_setup():
        a("s_xor_b32 s52, s59, 4")
        a("s_mul_i32 s53, s59, 3072")
        a(f"v_add_u32 v160, s53, v9")
        a("s_mul_i32 s53, s52, 3072")
        a(f"v_add_u32 v161, s53, v9")
        a("s_lshl_b32 s53, s59, 2")
        a("v_add_u32 v162, s53, v10")
        a("s_lshl_b32 s53, s52, 2")
        a("v_add_u32 v163, s53, v10")
        a("s_lshl_b32 s57, s42, 1")
        a("s_add_u32 s57, s57, s43")
        a("s_lshl_b32 s58, s40, 5")
        a("s_lshl_b32 s53, s41, 3")
        a("s_add_u32 s53, s53, s58")
        a("s_add_u32 s53, s53, s57")
        a("s_lshl_b32 s53, s53, 10")
        a(f"s_add_u32 s44, s53, {W_OA}")
        a("s_lshl_b32 s57, s57, 10")
        a(f"s_add_u32 s57, s57, {L_OA}")
        a("v_add_u32 v164, s57, v9")
        a(f"s_add_u32 s48, s44, {W_OF - W_OA}")
        a("s_lshl_b32 s57, s59, 10")
        a(f"s_add_u32 s57, s57, {L_OA}")
        a("v_add_u32 v165, s57, v9")
        for d in range(1, 4):
            a(f"s_add_u32 s51, s41, {d}")
            a("s_and_b32 s51, s51, 3")
            a("s_lshl_b32 s51, s51, 3")
            a("s_add_u32 s51, s51, s58")
            a("s_add_u32 s51, s51, s59")
            a("s_lshl_b32 s51, s51, 10")
            a(f"s_add_u32 s{44+d}, s51, {W_OA}")
    for i in range(8, 16): a(f"v_mov_b32 v{VB+i}, v14")
    for i in range(4): a(f"v_mov_b32 v{P1+4+i}, 0")
    st.stamp()
    lds_wait(a, C_ST + 0, 4, 12, 51, sleep=0)
    if FINE: st0.n = 12
    fs.stamp()
    def kvread(b, off):
        a(f"ds_read_b128 {vr(KB+4*b,4)}, v2 offset:{off}")
        a("s_mov_b64 exec, s[60:61]")
        a(f"ds_read_b128 {vr(VB+8*b,4)}, v3 offset:{off+1024}")
        a(f"ds_read_b128 {vr(VB+8*b+4,4)}, v3 offset:{off+1536}")
        a("s_mov_b64 exec, -1")
    a(f"ds_read_b128 {vr(P0,4)}, v9")
    DEEP = "shallow" not in VAR
    def kread(b, off): a(f"ds_read_b128 {vr(KB+4*b,4)}, v2 offset:{off}")
    def vread(b, off):
        a("s_mov_b64 exec, s[60:61]")
        a(f"ds_read_b128 {vr(VB+8*b,4)}, v3 offset:{off+1024}")
        a(f"ds_read_b128 {vr(VB+8*b+4,4)}, v3 offset:{off+1536}")
        a("s_mov_b64 exec, -1")
    kvread(0, 0)
    if DEEP: kread(1, 4096)
    a(f"s_waitcnt lgkmcnt({4 if DEEP else 3})" if not DIAG else "s_waitcnt lgkmcnt(0)")
    mfma32(a, S0, P0, Q0, "0")
    mfma32(a, S1, P0, Q1, "0")
    for S, C in ((S0, C0), (S1, C1)):
        rowmax16(a, 12, S)
        xhalf_max(a, 12, 13)
        a(f"v_sub_f32 v{C}, {BIAS}, v12")
        for i in range(1, 16): a(f"v_mov_b32 v{C+i}, v{C}")
        if S == S0:
            a("s_waitcnt lgkmcnt(0)")
            mfma32(a, S0, KB, Q0, C0)
    st.stamp()
    a("s_mov_b32 s50, 0")
    a(f"s_setprio {VAR.get('ap0', 3)}")
    if DIAG: a("s_waitcnt lgkmcnt(0)")
    a(".p2align 6")
    for _ in range(int(VAR.get("shift", 0))): a("s_nop 0")
    a.label("a_loop")
    def E(S, lo, hi):
        for i in range(lo, hi): a(f"v_exp_f32{VAR.get('enc', '')} v{S+i}, v{S+i}")
    def half(S, P, O, Vx, pvy, snext, w1, post, post2=(), w2=None):
        E(S, 0, 2)
        mfma32(a, *pvy)
        for x in post: x()
        E(S, 2, 8)
        if w1: a("s_waitcnt lgkmcnt(0)")
        mfma32(a, *snext)
        for x in post2: x()
        cvt8(a, P, S)
        E(S, 8, 12)
        if w2 is not None: a(f"s_waitcnt lgkmcnt({w2})")
        mfma32(a, O, Vx, P, O)
        E(S, 12, 16)
        cvt8(a, P+4, S+8)
    HK = {0: [("w", 4)], 1: [("w", 8)], 3: [("p", 2)], 4: [("w", 12)], 5: [("p", 1)], 6: [("p", 0)]}
    VAR.setdefault("pr", "4,6,7")
    if "pr" in VAR:
        for k in list(HK): HK[k] = [x for x in HK[k] if x[0] != "p"]
        for lvl, it in zip((2, 1, 0), VAR["pr"].split(",")): HK.setdefault(int(it), []).append(("p", lvl))
    if "ap0" in VAR: HK = {0: [("w", 4)], 1: [("w", 8)], 3: [("p", 1)], 4: [("w", 12)], 6: [("p", 0)]}
    def hooks():
        a("s_bitcmp1_b32 s50, 2")
        a("s_cbranch_scc1 a_hk_hi")
        a("s_branch a_hk_lo")
        a.label("a_hk_done")
    for t in range(4):
        b = t & 1; nb = b ^ 1
        if DEEP:
            post = [lambda: vread(nb, (t+1)*4096)]
            if t == 2: post = [hooks] + post
            half(S0, P0, O0, VB+8*b, (O1, VB+8*nb+4, P1+4, O1), (S1, KB+4*b, Q1, C1), False, post, [lambda: kread(b, (t+2)*4096)], 3)
            half(S1, P1, O1, VB+8*b, (O0, VB+8*b+4, P0+4, O0), (S0, KB+4*nb, Q0, C0), False, [])
            continue
        post = [lambda: kvread(nb, (t+1)*4096)]
        if t == 3: post = [hooks] + post
        half(S0, P0, O0, VB+8*b, (O1, VB+8*nb+4, P1+4, O1), (S1, KB+4*b, Q1, C1), False, post)
        half(S1, P1, O1, VB+8*b, (O0, VB+8*b+4, P0+4, O0), (S0, KB+4*nb, Q0, C0), True, [])
    a("v_add_u32 v2, 16384, v2")
    a("v_add_u32 v3, 16384, v3")
    a("s_add_u32 s50, s50, 1")
    a("s_cmp_lt_u32 s50, 8")
    a("s_cbranch_scc1 a_loop")
    mfma32(a, O1, VB+8+4, P1+4, O1)
    st.stamp()
    for i in range(2): a(f"ds_write_b128 v160, {vr(O0+4*i,4)} offset:{L_CB + i*1024}")
    a(f"ds_write_b32 v160, v{O0+8} offset:{L_CB + 2048}")
    lds_signal(a, C_CB, "v162")
    a("s_setprio 3")
    lds_wait(a, C_CB, 1, 12, 51, "v163", sleep=int(VAR.get("cbsleep", 0)))
    if "tfine" in VAR: st.stamp()
    for i in range(2): a(f"ds_read_b128 {vr(S0+4*i,4)}, v161 offset:{L_CB + i*1024}")
    a(f"ds_read_b32 v{S0+8}, v161 offset:{L_CB + 2048}")
    a("s_mov_b32 s51, 0x7b800000")
    a(f"s_mov_b32 s53, {hex((127 - 85) << 23)}")
    a("s_waitcnt lgkmcnt(0)")
    a(f"v_add_f32 v{O1+8}, v{O1+8}, v{S0+8}")
    a(f"v_rcp_f32 v14, v{O1+8}")
    for i in range(8): a(f"v_add_f32 v{O1+i}, v{O1+i}, v{S0+i}")
    a(f"v_add_f32 v12, abs(v{O1}), abs(v{O1+1})")
    a(f"v_add_f32 v13, abs(v{O1+2}), abs(v{O1+3})")
    for i in range(4, 8, 2):
        a(f"v_add_f32 v12, v12, abs(v{O1+i})")
        a(f"v_add_f32 v13, v13, abs(v{O1+i+1})")
    a("v_add_f32 v12, v12, v13")
    a(f"v_add_f32 v13, v12, v{O1+8}")
    a("v_cmp_ngt_f32 vcc, s51, v13")
    a("v_cmp_gt_f32 s[64:65], s53, v12")
    a("s_or_b64 vcc, vcc, s[64:65]")
    if "forcefb" in VAR: a("s_mov_b64 vcc, -1")
    a("s_cbranch_vccnz a_fallback")
    a.label("a_norm")
    for i in range(8): a(f"v_mul_f32 v{O1+i}, v{O1+i}, v14")
    cvt8(a, P0, O1)
    for i in range(4): a(f"v_min_u32 v{P0+i}, -2, v{P0+i}")
    if "nofast" not in VAR: a(f"buffer_store_dwordx4 {vr(P0,4)}, v9, s[36:39], s48 offen " + VAR.get("fst", ""))
    a(f"ds_write_b128 v164, {vr(P0,4)}")
    lds_signal(a, C_OF)
    st.stamp()
    a(f"s_mov_b32 s63, {SPIN}")
    a("s_mov_b32 s50, 0")
    a.label("a_poll")
    a(f"s_cmp_lt_u32 s63, {SPIN - int(VAR.get('fastn', 12))}")
    a("s_cselect_b32 s51, s63, 0")
    a("s_bitcmp1_b32 s51, 0")
    a(f"s_cselect_b32 s51, 0, {W_OF - W_OA}")
    a("v_add_u32 v13, s51, v9")
    for d in range(1, 4):
        a(f"buffer_load_dwordx4 {vr(S0+4*(d-1),4)}, v13, s[36:39], s{44+d} offen sc1")
    a("s_sub_u32 s63, s63, 1")
    for d in range(1, 4):
        r = S0 + 4*(d-1)
        nx = a.newlabel("pn")
        a(f"s_waitcnt vmcnt({3-d})")
        a(f"s_bitcmp1_b32 s50, {d}")
        a(f"s_cbranch_scc1 {nx}")
        a(f"v_max3_u32 v12, v{r}, v{r+1}, v{r+2}")
        a(f"v_max_u32 v12, v12, v{r+3}")
        a("v_cmp_eq_u32 vcc, -1, v12")
        a("s_cmp_eq_u32 s63, 0")
        a("s_cselect_b64 vcc, 0, vcc")
        a(f"s_cbranch_vccnz {nx}")
        a(f"ds_write_b128 v165, {vr(r,4)} offset:{d*8192}")
        lds_signal(a, C_OF + 4*d)
        a(f"s_bitset1_b32 s50, {d}")
        a.label(nx)
    a("s_cmp_eq_u32 s50, 14")
    a("s_cbranch_scc1 a_got")
    ls = a.newlabel("sl")
    a(f"s_cmp_eq_u32 s63, {SPIN - int(VAR.get('slown', 4))}")
    a(f"s_cbranch_scc0 {ls}")
    a(f"buffer_store_dwordx4 {vr(P0,4)}, v9, s[36:39], s44 offen sc1")
    a.label(ls)
    if int(VAR.get('tsleep', 0)): a(f"s_sleep {VAR.get('tsleep', 0)}")
    a("s_branch a_poll")
    a.label("a_got")
    if "xnoslow" not in VAR: a(f"buffer_store_dwordx4 {vr(P0,4)}, v9, s[36:39], s44 offen sc1")
    st.stamp()
    if "tfine" in VAR:
        a("s_waitcnt lgkmcnt(0)")
        a(f"s_sub_u32 s72, {SPIN}, s63")
        a("s_add_u32 s72, s72, s70")
    st.dump(None, 0)
    a("s_endpgm")
    def pretouch():
        a(f"v_lshlrev_b32 v13, 7, v1")
        a(f"v_add_u32 v13, {W_OF - W_OA}, v13")
        a("s_mov_b64 exec, 0xff")
        for d in range(1, 4): a(f"buffer_load_dword v166, v13, s[36:39], s{44+d} offen sc1")
        a("s_mov_b64 exec, -1")
    HK[3] = HK.get(3, []) + [("sig", C_PR)]
    HK[2] = [x for x in HK.get(2, []) if x[0] == "p"] + [("w", 8), ("f", tail_setup)]
    HK[1] = [x for x in HK[1] if x[0] == "p"]
    HK[7] = [x for x in HK.get(7, []) if x[0] == "p"] + [("w", 16), ("w8", C_PR)] + ([("f", pretouch)] if "nopre" not in VAR else [])
    for nm, rng in (("a_hk_lo", range(0, 4)), ("a_hk_hi", range(4, 8))):
        a.label(nm)
        for i in rng:
            if i not in HK: continue
            nx = a.newlabel("hk")
            a(f"s_cmp_eq_u32 s50, {i}")
            a(f"s_cbranch_scc0 {nx}")
            for kind, v in HK[i]:
                if kind == "w": lds_wait(a, C_ST + v, 4, 12, 51)
                elif kind == "sig": lds_signal(a, v)
                elif kind == "f": v()
                elif kind == "w8": lds_wait(a, v, 8, 12, 51)
                elif kind == "s":
                    a("s_cmp_eq_u32 s43, 0")
                    a("s_cbranch_scc0 a_hk_done")
                    a("s_waitcnt vmcnt(0)")
                    lds_signal(a, C_ST + v)
                else: a(f"s_setprio {v}")
            a("s_branch a_hk_done")
            a.label(nx)
        a("s_branch a_hk_done")
    a.label("a_fallback")
    a("v_mov_b32 v12, 0xff800000")
    a("s_mov_b32 s50, 0")
    a.label("a_fb1")
    a(f"buffer_load_dwordx4 {vr(KB,4)}, v9, s[36:39], s50 offen sc1")
    a("s_waitcnt vmcnt(0)")
    mfma32(a, S0, KB, Q1, "0")
    a("s_add_u32 s50, s50, 2048")
    rowmax16(a, 12, S0, init=True)
    a("s_cmp_lt_u32 s50, 0x20000")
    a("s_cbranch_scc1 a_fb1")
    xhalf_max(a, 12, 13)
    a(f"v_sub_f32 v{C0}, 0, v12")
    for i in range(1, 16): a(f"v_mov_b32 v{C0+i}, v{C0}")
    for i in range(16): a(f"v_mov_b32 v{O1+i}, 0")
    a("v_lshlrev_b32 v3, 8, v7")
    a("v_lshl_add_u32 v3, v6, 4, v3")
    a("s_mov_b32 s50, 0")
    a.label("a_fb2")
    a(f"buffer_load_dwordx4 {vr(KB,4)}, v9, s[36:39], s50 offen sc1")
    a("s_mov_b64 exec, s[60:61]")
    a(f"buffer_load_dwordx4 {vr(VB,4)}, v3, s[36:39], s50 offen offset:1024 sc1")
    a(f"buffer_load_dwordx4 {vr(VB+4,4)}, v3, s[36:39], s50 offen offset:1536 sc1")
    a("s_mov_b64 exec, -1")
    a("s_waitcnt vmcnt(0)")
    mfma32(a, S0, KB, Q1, C0)
    a("s_add_u32 s50, s50, 2048")
    E(S0, 0, 16)
    cvt8(a, P0, S0); cvt8(a, P0+4, S0+8)
    mfma32(a, O1, VB, P0, O1)
    mfma32(a, O1, VB+4, P0+4, O1)
    a("s_cmp_lt_u32 s50, 0x20000")
    a("s_cbranch_scc1 a_fb2")
    a(f"v_rcp_f32 v14, v{O1+8}")
    a("s_branch a_norm")

def role_b(a, st):
    a("s_setprio 3")
    a("s_and_b32 s45, s41, 1")
    a("s_lshr_b32 s46, s41, 1")
    a("s_cmp_eq_u32 s45, 0")
    a(f"s_cselect_b32 s28, s{P_AWK}, s{P_AWV}")
    a(f"s_cselect_b32 s29, s{P_AWK+1}, s{P_AWV+1}")
    a("s_mov_b32 s30, 16384")
    a("s_mov_b32 s31, 0x20000")
    a("s_lshl_b32 s51, s26, 12")
    a(f"s_add_u32 m0, s51, {L_WK}")
    for q in range(4):
        a(f"buffer_load_dwordx4 v9, s[28:31], s51 offen offset:{q*1024} lds")
    a(f"v_mov_b32 v18, {W_EP}")
    a("buffer_load_dword v19, v18, s[36:39], 0 offen sc1")
    if "nobar0" not in VAR: a("s_barrier")
    a("s_mov_b32 s58, 0")
    a("s_lshr_b32 s44, s40, 1")
    a("s_and_b32 s42, s26, 1")
    a("s_lshr_b32 s43, s26, 1")
    srd(a, 28, P_BX, 2 << 20)
    srd(a, 32, P_BWQKV, 512 * 3072)
    a("v_lshrrev_b32 v12, 3, v1")
    a("v_and_b32 v13, 7, v1")
    a("v_bfe_u32 v14, v1, 4, 1")
    a("v_lshlrev_b32 v14, 2, v14")
    a("v_xor_b32 v14, v14, v13")
    a("v_mul_u32_u24 v3, 3072, v12")
    a("v_lshl_add_u32 v3, v14, 4, v3")
    a("v_lshlrev_b32 v4, 10, v12")
    a("v_lshl_add_u32 v4, v14, 4, v4")
    a(f"s_mul_i32 s64, s26, {16*3072}")
    a("s_lshl_b32 s51, s27, 7")
    a("s_add_u32 s64, s64, s51")
    a("s_lshl_b32 s65, s44, 16")
    a("s_lshl_b32 s51, s26, 14")
    a("s_add_u32 s65, s65, s51")
    if MAP81:
        a("s_lshr_b32 s67, s3, 3")
        a("s_lshl_b32 s67, s67, 1")
        a("s_add_u32 s67, s67, s3")
    else:
        a("s_lshr_b32 s67, s3, 2")
        a("s_lshl_b32 s51, s3, 1")
        a("s_add_u32 s67, s67, s51")
    a("s_and_b32 s67, s67, 7")
    a("s_mul_i32 s56, s26, 6144")
    a(f"s_add_u32 s56, s56, {L_GB + GB_W}")
    a("s_mul_i32 s57, s26, 2080")
    a(f"s_add_u32 s57, s57, {L_GB + GB_X}")
    def issue_ops(buf):
        o = buf * GB_SZ
        def pre():
            a(f"s_mul_i32 s48, s67, {64*3072}")
            a("s_add_u32 s48, s48, s64")
            a(f"s_add_u32 s47, s48, {8*3072}")
            a("s_lshl_b32 s49, s67, 7")
            a("s_add_u32 s49, s49, s65")
            a("s_add_u32 s66, s49, 8192")
            a("s_add_u32 s67, s67, 1")
            a("s_and_b32 s67, s67, 7")
        ops = [pre]
        for q in range(2):
            def fx(q=q):
                a(f"s_add_u32 m0, s57, {o + q*1040}")
                a(f"buffer_load_dwordx4 v4, s[28:31], {'s66' if q else 's49'} offen lds")
            ops.append(fx)
        for gq in range(2):
            for t in range(3):
                def f(gq=gq, t=t):
                    if t == 0: a(f"s_add_u32 m0, s56, {o + gq*3072}")
                    a(f"buffer_load_dwordx4 v3, s[32:35], {'s47' if gq else 's48'} offen offset:{t*1024} lds")
                ops.append(f)
        return ops
    BST = VAR.get("bstart", "st4")
    if BST == "early":
        for f in issue_ops(0): f()
    lk = a.newlabel("nokv")
    a("v_lshl_add_u32 v5, v1, 2, v10")
    a("v_mov_b32 v12, 0")
    a("ds_write_b32 v5, v12")
    kv_setup(a)
    a("s_waitcnt vmcnt(0) lgkmcnt(0)")
    a("v_readfirstlane_b32 s62, v19")
    a(f"s_add_u32 s62, s62, {TAGC}")
    a("s_barrier")
    a("s_cmp_eq_u32 s26, 3")
    a(f"s_cbranch_scc0 {lk}")
    kv_job(a, st if "fine" in VAR else None)
    a.label(lk)
    st.stamp()
    a("s_mov_b32 s45, s27")
    a("v_mul_u32_u24 v8, 3072, v7")
    a("v_bfe_u32 v14, v1, 2, 2")
    a("v_lshl_add_u32 v8, v14, 7, v8")
    a("v_bfe_u32 v14, v1, 3, 1")
    a("v_xor_b32 v14, s42, v14")
    a("v_lshl_add_u32 v8, v14, 6, v8")
    a("v_bfe_u32 v14, v1, 4, 1")
    a("v_lshl_add_u32 v8, v14, 5, v8")
    a("v_and_b32 v14, 3, v1")
    a("v_lshl_add_u32 v8, v14, 3, v8")
    a(f"v_add_u32 v8, {L_GB + GB_W}, v8")
    XM = 152
    a("v_bfe_u32 v14, v1, 1, 1")
    a("v_lshlrev_b32 v14, 2, v14")
    a("v_or_b32 v14, v14, v7")
    a("v_lshlrev_b32 v14, 4, v14")
    a("v_and_b32 v15, 7, v1")
    a("v_lshl_add_u32 v14, v15, 7, v14")
    a("v_xor_b32 v15, 64, v14")
    a("v_lshrrev_b32 v16, 3, v6")
    a("v_mul_u32_u24 v16, 1040, v16")
    a("s_mul_i32 s51, s43, 4160")
    a(f"s_add_u32 s51, s51, {L_GB + GB_X}")
    a(f"v_add3_u32 v{XM}, v14, v16, s51")
    a(f"v_add3_u32 v{XM+1}, v15, v16, s51")
    ACC = 20; WF = 84; XF = 108
    for i in range(48): a(f"v_mov_b32 v{ACC+i}, 0")
    for i in range(16): a(f"v_mov_b32 v{WF+12+i if i < 12 else XF+4+i-12}, 0")
    MM = 124; MH = 132
    a("v_lshlrev_b32 v5, 2, v7")
    a("v_sub_u32 v5, v6, v5")
    a("v_add_u32 v5, 18, v5")
    a("v_mov_b32 v14, 0x5555")
    a("v_mov_b32 v15, 0")
    a("v_lshlrev_b64 v[14:15], v5, v[14:15]")
    a("s_or_b32 s51, s44, s43")
    a("s_cmp_eq_u32 s51, 0")
    a("s_cselect_b32 s51, 0, -1")
    a("v_and_b32 v14, s51, v14")
    a("v_not_b32 v14, v14")
    a("v_not_b32 v15, v15")
    for r in range(16):
        idx = 8*(r >> 2) + (r & 3)
        a(f"v_bfe_i32 v{MM+r}, v15, {idx}, 1")
        a(f"v_lshlrev_b32 v{MM+r}, 23, v{MM+r}")
        if r >= 8:
            a(f"v_bfe_i32 v{MH+r}, v14, {idx}, 1")
            a(f"v_lshlrev_b32 v{MH+r}, 23, v{MH+r}")
    def read_ops(buf, sp, fb):
        r = []
        for t3 in range(3):
            for t in range(2):
                r.append(f"ds_read_b64_tr_b16 {vr(WF+12*fb+4*t3+2*t,2)}, v8 offset:{buf*GB_SZ + sp*6144 + t3*1024 + t*512}")
        r.insert(2, f"ds_read_b128 {vr(XF+4*fb,4)}, v{XM+(sp>>1)} offset:{buf*GB_SZ + (sp&1)*32}")
        return r
    def mm(fb, k):
        w = WF + 12*fb; x = XF + 4*fb
        if "nomm" in VAR: return
        if k == 0: mfma32(a, ACC, w, x, ACC)
        elif k == 1: mfma32(a, ACC+16, w+4, x, ACC+16)
        else: mfma32(a, ACC+32, x, w+8, ACC+32)
    a("v_lshrrev_b32 v15, 1, v1")
    a("v_lshlrev_b32 v15, 3, v15")
    a("v_and_b32 v12, 1, v1")
    a("v_add_u32 v15, v15, v12")
    a("s_add_u32 s51, s26, s3")
    a("s_lshl_b32 s51, s51, 1")
    a("v_add_u32 v15, s51, v15")
    a("v_and_b32 v15, 63, v15")
    a("v_lshlrev_b32 v15, 7, v15")
    a(f"s_mov_b32 s54, {W_F1}")
    lds_wait(a, C_XD, 1, 5, 51, sleep=2)
    PG = VAR.get("pgate", "qb8")
    if PG == "iss": lds_wait(a, C_ISS, 4, 5, 51, sleep=1)
    if PG.startswith("qb"): lds_wait(a, C_QB + int(PG[2:]), 4, 5, 51, sleep=1)
    st.stamp()
    poll_flags(a, 15, "s54", 16, 16, sleep=int(VAR.get("psleep", 4)))
    st.stamp()
    for k in range(5):
        if k == 1: lds_wait(a, C_XD, 5, 5, 51)
        if k == 3: lds_wait(a, C_QD, 4, 5, 51)
        a("s_lshl_b32 s53, s26, 12")
        a(f"s_add_u32 s53, s53, {k*16384}")
        kv_dma(a, 53, 4)
        if k == 0:
            a("s_waitcnt vmcnt(0)")
            lds_signal(a, C_ST + 0)
    a("s_waitcnt vmcnt(8)")
    lds_signal(a, C_ST + 4)
    a("s_cmp_eq_u32 s43, 0")
    a(f"s_cselect_b32 s4, s{P_BWO}, s{P_AWO}")
    a(f"s_cselect_b32 s5, s{P_BWO+1}, s{P_AWO+1}")
    a("s_mov_b32 s6, 0x80000")
    a("s_mov_b32 s7, 0x20000")
    a("s_lshl_b32 s51, s3, 1")
    a("s_add_u32 s51, s51, s42")
    a("s_lshl_b32 s51, s51, 13")
    if MAP81: a("v_lshlrev_b32 v14, 7, v1")
    else:
        a("s_lshr_b32 s54, s41, 1")
        a("s_lshl_b32 s54, s54, 9")
        a("s_add_u32 s51, s51, s54")
        a("v_lshrrev_b32 v14, 2, v6")
        a("v_lshlrev_b32 v14, 10, v14")
        a("v_and_b32 v15, 3, v1")
        a("v_lshl_add_u32 v14, v15, 7, v14")
    a("buffer_load_dword v160, v14, s[4:7], s51 offen")
    for f in issue_ops(0): f()
    a("s_waitcnt vmcnt(9)")
    lds_signal(a, C_ST + 8)
    a(f"s_setprio {VAR.get('bprio', 3)}")
    st.stamp()
    a("s_mov_b32 s50, 0")
    if "nogemm" in VAR: a("s_branch b_gend")
    a.label("b_loop")
    for buf in range(2):
        mm(1, 0)
        a("s_waitcnt vmcnt(0)")
        a("s_add_u32 s58, s58, 4")
        lds_signal(a, C_BB)
        mm(1, 1)
        ops = issue_ops(buf ^ 1)
        if buf == 1:
            a("s_cmp_eq_u32 s50, 3")
            a("s_cselect_b32 s64, 0x7f000000, s64")
            a("s_cselect_b32 s65, 0x7f000000, s65")
            for r in (56, 57): a(f"s_cselect_b32 s{r}, 0x30000, s{r}")
        ops[0]()
        lds_wait(a, C_BB, "s58", 5, 51, sleep=int(VAR.get("bsleep", 0)))
        for x in read_ops(buf, 0, 0): a(x)
        mm(1, 2)
        oi = 1
        for _ in range(3): ops[oi](); oi += 1
        for sp in range(3):
            for x in read_ops(buf, sp+1, (sp+1) & 1): a(x)
            a("s_waitcnt lgkmcnt(7)")
            for k in range(3):
                mm(sp & 1, k)
                for _ in range(2):
                    if oi < len(ops): ops[oi](); oi += 1
        a("s_waitcnt lgkmcnt(0)")
    a("s_add_u32 s50, s50, 1")
    a("s_cmp_lt_u32 s50, 4")
    a("s_cbranch_scc1 b_loop")
    a.label("b_gend")
    a("s_add_u32 s58, s58, 4")
    lds_signal(a, C_BB)
    for k in range(3): mm(1, k)
    a("s_setprio 3")
    lds_wait(a, C_BB, "s58", 5, 51, sleep=0)
    a("s_mul_i32 s54, s26, 12288")
    a("s_add_u32 s54, s54, 81920")
    kv_dma(a, 54, 12)
    st.stamp()
    QF = 84; KF = 92; VF = 100; KH = 108; VH = 116
    cvt8(a, KF, ACC+16); cvt8(a, KF+4, ACC+24)
    cvt8(a, VF, ACC+32); cvt8(a, VF+4, ACC+40)
    a("s_mul_i32 s51, s42, 3072")
    a(f"s_add_u32 s51, s51, {L_BEX}")
    a("v_add_u32 v13, s51, v9")
    a("s_lshl_b32 s52, s44, 3")
    a("s_add_u32 s52, s52, s45")
    a("s_lshl_b32 s53, s52, 1")
    a("s_add_u32 s53, s53, s42")
    a("s_mul_i32 s53, s53, 3072")
    a(f"s_add_u32 s53, s53, {W_HALO}")
    a("s_lshl_b32 s52, s52, 7")
    a("s_lshl_b32 s51, s42, 2")
    a("s_add_u32 s52, s52, s51")
    a(f"s_add_u32 s52, s52, {W_F2}")
    l1 = a.newlabel("b_w1"); l2 = a.newlabel("b_w2")
    a("s_cmp_eq_u32 s43, 0")
    a(f"s_cbranch_scc0 {l1}")
    lds_wait(a, C_QR, 4, 5, 51, sleep=2)
    a(f"ds_write_b128 v13, {vr(KF,4)}")
    a(f"ds_write_b128 v13, {vr(KF+4,4)} offset:1024")
    a(f"ds_write_b128 v13, {vr(VF+4,4)} offset:2048")
    a("s_waitcnt vmcnt(0)")
    a(f"s_branch {l2}")
    a.label(l1)
    a(f"buffer_store_dwordx4 {vr(KF,4)}, v9, s[36:39], s53 offen sc1")
    a(f"buffer_store_dwordx4 {vr(KF+4,4)}, v9, s[36:39], s53 offen offset:1024 sc1")
    a(f"buffer_store_dwordx4 {vr(VF+4,4)}, v9, s[36:39], s53 offen offset:2048 sc1")
    a("s_waitcnt vmcnt(0)")
    store_flag(a, "s52", 14)
    a.label(l2)
    a("s_waitcnt vmcnt(1)")
    lds_signal(a, C_ST + 12)
    bbar(a)
    l1 = a.newlabel("b_x1"); l2 = a.newlabel("b_x2")
    a("s_or_b32 s51, s44, 0")
    a("s_cselect_b32 s51, s43, 1")
    a("s_cmp_eq_u32 s51, 0")
    a(f"s_cbranch_scc0 {l1}")
    a(f"s_sub_u32 s52, s52, {8*128}")
    a(f"s_sub_u32 s53, s53, {16*3072}")
    a("v_mov_b32 v5, 0")
    poll_flags(a, 5, "s52", 1, 14, sleep=6, width=1)
    a(f"buffer_load_dwordx4 {vr(KH,4)}, v9, s[36:39], s53 offen sc1")
    a(f"buffer_load_dwordx4 {vr(KH+4,4)}, v9, s[36:39], s53 offen offset:1024 sc1")
    a(f"buffer_load_dwordx4 {vr(VH,4)}, v9, s[36:39], s53 offen offset:2048 sc1")
    a("s_waitcnt vmcnt(0)")
    a(f"s_branch {l2}")
    a.label(l1)
    a(f"ds_read_b128 {vr(KH,4)}, v13")
    a(f"ds_read_b128 {vr(KH+4,4)}, v13 offset:1024")
    a(f"ds_read_b128 {vr(VH,4)}, v13 offset:2048")
    a.label(l2)
    lsn = a.newlabel("nosn")
    a("s_and_b32 s51, s40, 1")
    a("s_cmp_eq_u32 s51, s43")
    a(f"s_cbranch_scc0 {lsn}")
    a("s_lshl_b32 s51, s40, 2")
    a("s_add_u32 s51, s51, s41")
    a("s_lshl_b32 s51, s51, 1")
    a("s_add_u32 s51, s51, s42")
    a("s_lshl_b32 s51, s51, 12")
    a(f"s_add_u32 s51, s51, {W_OA}")
    for i in range(4): a(f"v_mov_b32 v{120+i}, -1")
    for i in range(4 if "xnoslow" not in VAR else 0): a(f"buffer_store_dwordx4 v[120:123], v9, s[36:39], s51 offen offset:{i*1024} sc1")
    a(f"s_add_u32 s51, s51, {W_OF - W_OA}")
    for i in range(4): a(f"buffer_store_dwordx4 v[120:123], v9, s[36:39], s51 offen offset:{i*1024} sc1")
    a.label(lsn)
    cvt8(a, QF, ACC); cvt8(a, QF+4, ACC+8)
    a("s_lshl_b32 s52, s44, 1")
    a("s_add_u32 s52, s52, s43")
    a("s_lshl_b32 s55, s52, 4")
    a("s_lshl_b32 s53, s45, 1")
    a("s_add_u32 s53, s53, s42")
    a("s_add_u32 s55, s55, s53")
    a("s_lshl_b32 s55, s55, 11")
    a(f"s_add_u32 s55, s55, {W_OB}")
    a("s_lshl_b32 s57, s52, 9")
    a("s_lshr_b32 s51, s53, 2")
    a("s_lshl_b32 s51, s51, 7")
    a("s_add_u32 s57, s57, s51")
    a("s_and_b32 s51, s53, 3")
    a("s_lshl_b32 s51, s51, 2")
    a("s_add_u32 s57, s57, s51")
    a(f"s_add_u32 s57, s57, {W_F3}")
    a("s_waitcnt lgkmcnt(0)")
    SM = 20; SH = 36; O = 52; PP = 68; T = 152
    a(f"s_mov_b32 s46, {CSCALE}")
    for hd in range(2 if "nolocal" not in VAR else 0):
        mfma32(a, SM, KF+4*hd, QF+4*hd, MM)
        mfma32(a, SH, KH+4*hd, QF+4*hd, MH)
        vals = [SM+i for i in range(16)] + [SH+8+i for i in range(8)]
        a(f"v_max3_f32 v{T}, v{vals[0]}, v{vals[1]}, v{vals[2]}")
        for i in range(3, 23, 2):
            a(f"v_max3_f32 v{T}, v{T}, v{vals[i]}, v{vals[i+1]}")
        a(f"v_max_f32 v{T}, v{T}, v{vals[23]}")
        xhalf_max(a, T, T+1)
        a(f"v_mul_f32 v{T}, s46, v{T}")
        for v in vals: a(f"v_fma_f32 v{v}, v{v}, s46, -v{T}")
        for v in vals: a(f"v_exp_f32 v{v}, v{v}")
        a(f"v_add_f32 v{T+2}, v{vals[0]}, v{vals[1]}")
        for v in vals[2:]: a(f"v_add_f32 v{T+2}, v{T+2}, v{v}")
        cvt8(a, PP, SM); cvt8(a, PP+4, SM+8); cvt8(a, PP+8, SH+8)
        a(f"v_mov_b32 v{T+3}, v{T+2}")
        a(f"v_permlane32_swap_b32 v{T+2}, v{T+3}")
        mfma32(a, O, VF, PP, "0")
        mfma32(a, O, VF+4, PP+4, O)
        mfma32(a, O, VH, PP+8, O)
        a(f"v_add_f32 v{T+2}, v{T+2}, v{T+3}")
        a(f"v_rcp_f32 v{T+2}, v{T+2}")
        for i in range(8): a(f"v_mul_f32 v{O+8*hd+i}, v{O+8*hd+i}, v{T+2}")
        cvt8(a, T+4+4*hd, O+8*hd)
        a(f"buffer_store_dwordx4 {vr(T+4+4*hd,4)}, v9, s[36:39], s55 offen offset:{hd*1024} sc1")
    a("s_waitcnt vmcnt(0)")
    store_flag(a, "s57", 12)
    st.stamp()
    srd(a, 32, P_BWO, 512 * 1024)
    srd(a, 28, P_OUT, 4 << 20)
    a("s_lshl_b32 s47, s41, 8")
    a("s_lshl_b32 s51, s26, 6")
    a("s_add_u32 s47, s47, s51")
    a("v_lshrrev_b32 v3, 2, v1")
    a("v_lshlrev_b32 v3, 10, v3")
    a("v_and_b32 v4, 3, v1")
    a("v_lshl_add_u32 v3, v4, 4, v3")
    a("v_add_u32 v3, s47, v3")
    tr_base_wo(a, 8, 4)
    a("s_mul_i32 s56, s26, 7168")
    a(f"s_add_u32 s56, s56, {L_COMB}")
    a("v_add_u32 v8, s56, v8")
    a("v_lshlrev_b32 v4, 11, v6")
    a("v_lshl_add_u32 v4, v7, 4, v4")
    a("s_lshl_b32 s51, s40, 16")
    a("s_add_u32 s47, s47, s51")
    ACC = 12; OB = 28; WL = 40
    a("s_mov_b32 s48, 0")
    a("s_mov_b32 s50, 0")
    a.label("b_stage")
    bbar(a)
    R = 7
    def wissue(i):
        a(f"s_add_u32 m0, s56, {(i%R)*1024}")
        a(f"buffer_load_dwordx4 v3, s[32:35], s48 offen lds")
        a("s_add_u32 s48, s48, 16384")
        a("s_and_b32 s48, s48, 0x7ffff")
    for i in range(R): wissue(i)
    for i in range(32):
        a(f"s_waitcnt vmcnt({R-1 if i == 0 else min(R-2, 31-i)})")
        r = WL + 4*i
        for t in range(2): a(f"ds_read_b64_tr_b16 {vr(r+2*t,2)}, v8 offset:{(i%R)*1024 + t*512}")
        if i >= 1 and i + R - 1 < 32:
            a("s_waitcnt lgkmcnt(2)")
            wissue(i + R - 1)
    a("s_waitcnt lgkmcnt(0)")
    a("s_cmp_eq_u32 s50, 1")
    a("s_cbranch_scc1 b_tail")
    def run(lo, hi, addr, off0):
        o = lambda i: (i - off0) * 1024
        for i in range(lo, min(lo+2, hi)): a(f"ds_read_b128 {vr(OB+4*(i%3),4)}, {addr} offset:{o(i)}")
        for i in range(lo, hi):
            if i + 2 < hi:
                a(f"ds_read_b128 {vr(OB+4*((i+2)%3),4)}, {addr} offset:{o(i+2)}")
                a("s_waitcnt lgkmcnt(2)")
            else:
                a(f"s_waitcnt lgkmcnt({hi-1-i})")
            mfma32(a, ACC, WL+4*i, OB+4*(i%3), "0" if i == 0 else ACC)
    a("v_lshlrev_b32 v5, 7, v1")
    a("s_lshl_b32 s57, s40, 9")
    a(f"s_add_u32 s57, s57, {W_F3}")
    poll_flags(a, 5, "s57", 4, 28, sleep=8)
    lds_signal(a, C_ST + 16)
    st.stamp()
    a("s_lshl_b32 s49, s40, 15")
    a("s_lshl_b32 s51, s26, 12")
    a("s_add_u32 s49, s49, s51")
    a(f"s_add_u32 s49, s49, {W_OB}")
    a(f"s_add_u32 s46, s51, {L_COMB}")
    a(f"v_add_u32 v0, {L_COMB}, v9")
    for rnd in range(2):
        bbar(a)
        a("s_mov_b32 m0, s46")
        for q in range(4):
            a(f"buffer_load_dwordx4 v9, s[36:39], s49 offen offset:{q*1024} sc1 lds")
        a("s_add_u32 s49, s49, 16384")
        a("s_waitcnt vmcnt(0)")
        bbar(a)
        if "noop" not in VAR: run(16*rnd, 16*rnd+16, "v0", 16*rnd)
    cvt8(a, 28, ACC); cvt8(a, 32, ACC+8)
    a("buffer_store_dwordx4 v[28:31], v4, s[28:31], s47 offen offset:1024 " + VAR.get("stb", "nt"))
    a("buffer_store_dwordx4 v[32:35], v4, s[28:31], s47 offen offset:1056 " + VAR.get("stb", "nt"))
    srd(a, 32, P_AWO, 512 * 1024)
    a("s_lshl_b32 s48, s41, 17")
    a("s_mov_b32 s50, 1")
    st.stamp()
    a("s_branch b_stage")
    a.label("b_tail")
    st.stamp()
    le = a.newlabel("ep")
    a("s_or_b32 s51, s2, s26")
    a("s_cmp_eq_u32 s51, 0")
    a(f"s_cbranch_scc0 {le}")
    a(f"s_mov_b32 s51, {W_EP}")
    store_flag(a, "s51", 28)
    a.label(le)
    a(f"v_add_u32 v0, {L_OA}, v9")
    lds_wait(a, C_CB + 0, 1, 5, 51, sleep=16)
    def rd(i): a(f"ds_read_b128 {vr(WL+4*(i-8),4)}, v0 offset:{i*1024}")
    lds_wait(a, C_OF, 8, 5, 51, sleep=0)
    if "tfine" in VAR: st.n = 5; st.stamp(); a("s_waitcnt lgkmcnt(0)")
    run(0, 8, "v0", 0)
    lds_wait(a, C_OF + 4, 8, 5, 51, sleep=0)
    if "tfine" in VAR: st.stamp(); a("s_waitcnt lgkmcnt(0)")
    for i in range(8, 16): rd(i)
    NE = int(VAR.get("ne", 3))
    for i in range(8, 8 + NE):
        a(f"s_waitcnt lgkmcnt({15 - i})")
        mfma32(a, ACC, WL+4*i, WL+4*(i-8), ACC)
        if i == 8: a(f"ds_read_b64 v[28:29], v10 offset:{C_OF + 8}")
    a("s_waitcnt lgkmcnt(0)")
    a("v_min_u32 v28, v28, v29")
    a("v_readfirstlane_b32 s51, v28")
    a("s_cmp_ge_u32 s51, 8")
    a("s_cbranch_scc0 b_slowtail")
    for i in range(8, 8 + NE): rd(i + 8)
    for i in range(8 + NE, 32):
        if i >= 16: a(f"s_waitcnt lgkmcnt({min(7, 31 - i)})")
        mfma32(a, ACC, WL+4*i, WL+4*(i-8), ACC)
        if i + 8 < 32: rd(i + 8)
    a("s_branch b_fin")
    a.label("b_slowtail")
    for d in range(1, 4):
        if d > 1:
            lds_wait(a, C_OF + 4*d, 8, 5, 51, sleep=0)
            for i in range(8*d, 8*d + 8): rd(i)
        for i in range(8*d + (NE if d == 1 else 0), 8*d + 8):
            a(f"s_waitcnt lgkmcnt({8*d + 7 - i})")
            mfma32(a, ACC, WL+4*i, WL+4*(i-8), ACC)
    a.label("b_fin")
    cvt8(a, 28, ACC); cvt8(a, 32, ACC+8)
    a("buffer_store_dwordx4 v[28:31], v4, s[28:31], s47 offen " + VAR.get("sta", "nt"))
    a("buffer_store_dwordx4 v[32:35], v4, s[28:31], s47 offen offset:32 " + VAR.get("sta", "nt"))
    if DIAG:
        if "tfine" in VAR: st.stamp()
        a("s_waitcnt vmcnt(0)")
        st.stamp()
        st.dump(None, 0)

def kernel():
    a = Asm(); n = NAME + "_kernel"
    a.label(n)
    a("s_cmp_ge_u32 s2, 256")
    a("s_cbranch_scc1 k_exit")
    load_ptrs(a)
    sta = Stamps(a, DIAG, real='--cyc' not in sys.argv); stb = Stamps(a, DIAG, real='--cyc' not in sys.argv)
    sta.stamp(); stb.n = sta.n
    a("v_and_b32 v1, 63, v0")
    a("v_lshrrev_b32 v2, 6, v0")
    a("v_readfirstlane_b32 s26, v2")
    a("s_and_b32 s27, s2, 7")
    a("s_lshr_b32 s3, s2, 3")
    if MAP81:
        a("s_lshl_b32 s40, s27, 3")
        a("s_lshr_b32 s41, s3, 2")
        a("s_add_u32 s40, s40, s41")
        a("s_and_b32 s41, s3, 3")
    else:
        a("s_lshr_b32 s40, s27, 1")
        a("s_lshl_b32 s40, s40, 4")
        a("s_lshr_b32 s41, s3, 1")
        a("s_add_u32 s40, s40, s41")
        a("s_and_b32 s41, s27, 1")
        a("s_lshl_b32 s41, s41, 1")
        a("s_and_b32 s27, s3, 1")
        a("s_add_u32 s41, s41, s27")
    a("s_lshl_b32 s27, s41, 1")
    a("s_and_b32 s51, s40, 1")
    a("s_add_u32 s27, s27, s51")
    a("v_and_b32 v6, 31, v1")
    a("v_lshrrev_b32 v7, 5, v1")
    a("v_lshlrev_b32 v9, 4, v1")
    a(f"v_mov_b32 v10, {L_CNT}")
    a("v_mov_b32 v11, 1")
    a("s_waitcnt lgkmcnt(0)")
    srd(a, 36, P_WS, W_USED)
    a("s_cmp_lt_u32 s26, 4")
    a("s_cbranch_scc1 role_b")
    role_a(a, sta)
    a.label("role_b")
    role_b(a, stb)
    a.label("k_exit")
    a("s_endpgm")
    return (n, a, 256, 768, LDS_SIZE, 168)

if __name__ == "__main__":
    write_file(sys.argv[1], [kernel()])
```

```python
import sys
from common import *
DIAG = "--diag" in sys.argv
VAR = dict((x[2:].split("=")+[1])[:2] for x in sys.argv if x.startswith("-V"))

W_KV = 0
W_F1 = 0x20000
W_F2 = 0x28000
W_F3 = 0x30000
W_EP = 0x3F000
W_KF = 0x40000
W_OA = 1 << 20
W_OB = 3 << 20
W_HALO = 5 << 20
W_OF = 10 << 20
W_USED = 16 << 20
L_XA = 16384
L_WK = 0
WQ_SLOT = [49664 + 16384*i for i in range(6)] + [16384, 32768]
L_GB = 89600
GB_W, GB_X, GB_SZ = 0, 24576, 32896
L_COMB = 131072
L_QX = 155392
L_BEX = 155392
L_CNT = 163584
LDS_SIZE = 163840
C_BB, C_ST, C_EX, C_XA, C_QB, C_QC, C_QD, C_XD = 4, 16, 40, 72, 76, 92, 96, 100
C_ISS, C_QR = 8, 12
C_PR, C_CB, C_OF = 104, 112, 144
L_CB = 0
L_OA = 24576
BIAS = VAR.get("bias", "0xc2c80000")
VSC = 40
MAP81 = 'map24' not in VAR
XP = 1040
TAGC = 0x9E3779B9 - (1 << 32)
SPIN = 40000

def cvt8(a, dst, src):
    for i in range(4):
        a(f"v_cvt_pk_bf16_f32 v{dst+i}, v{src+2*i}, v{src+2*i+1}")

def tr_base32(a, dst, tmp):
    a(f"v_lshlrev_b32 v{dst}, 9, v7")
    a(f"v_bfe_u32 v{tmp}, v1, 2, 2")
    a(f"v_lshl_add_u32 v{dst}, v{tmp}, 6, v{dst}")
    a(f"v_bfe_u32 v{tmp}, v1, 4, 1")
    a(f"v_lshl_add_u32 v{dst}, v{tmp}, 5, v{dst}")
    a(f"v_and_b32 v{tmp}, 3, v1")
    a(f"v_lshl_add_u32 v{dst}, v{tmp}, 3, v{dst}")

def tr_base_wo(a, dst, tmp):
    a(f"v_lshlrev_b32 v{dst}, 8, v7")
    a(f"v_bfe_u32 v{tmp}, v1, 2, 2")
    a(f"v_lshl_add_u32 v{dst}, v{tmp}, 6, v{dst}")
    a(f"v_bfe_u32 v{tmp}, v1, 4, 1")
    a(f"v_lshl_add_u32 v{dst}, v{tmp}, 5, v{dst}")
    a(f"v_and_b32 v{tmp}, 1, v1")
    a(f"v_lshl_add_u32 v{dst}, v{tmp}, 4, v{dst}")
    a(f"v_bfe_u32 v{tmp}, v1, 1, 1")
    a(f"v_lshl_add_u32 v{dst}, v{tmp}, 3, v{dst}")

def lds_signal(a, off, addr="v10"):
    a("s_mov_b64 exec, 1")
    a(f"ds_add_u32 {addr}, v11 offset:{off}")
    a("s_mov_b64 exec, -1")
def lds_wait(a, off, val, tmp, stmp, addr="v10", sleep=1):
    l = a.newlabel("lw"); d = a.newlabel("lwd")
    a.label(l)
    a(f"ds_read_b32 v{tmp}, {addr} offset:{off}")
    a("s_waitcnt lgkmcnt(0)")
    a(f"v_readfirstlane_b32 s{stmp}, v{tmp}")
    a(f"s_cmp_ge_u32 s{stmp}, {val}")
    a(f"s_cbranch_scc1 {d}")
    if sleep: a(f"s_sleep {sleep}")
    a(f"s_branch {l}")
    a.label(d)
def bbar(a, tmp=5):
    a("s_add_u32 s58, s58, 4")
    lds_signal(a, C_BB)
    lds_wait(a, C_BB, "s58", tmp, 51, sleep=2)

def poll_flags(a, voff, soff, nl, t, sleep=2, width=4):
    l = a.newlabel("pf"); d = a.newlabel("pfd")
    a(f"s_mov_b32 s63, {SPIN}")
    a(f"s_mov_b64 exec, {(1 << nl) - 1}")
    a.label(l)
    if width == 4:
        a(f"buffer_load_dwordx4 {vr(t,4)}, v{voff}, s[36:39], {soff} offen sc1")
        a("s_waitcnt vmcnt(0)")
        for i in range(4): a(f"v_xor_b32 v{t+i}, s62, v{t+i}")
        a(f"v_or3_b32 v{t}, v{t}, v{t+1}, v{t+2}")
        a(f"v_or_b32 v{t}, v{t}, v{t+3}")
    else:
        a(f"buffer_load_dword v{t}, v{voff}, s[36:39], {soff} offen sc1")
        a("s_waitcnt vmcnt(0)")
        a(f"v_xor_b32 v{t}, s62, v{t}")
    a(f"v_cmp_ne_u32 vcc, 0, v{t}")
    a("s_nop 1")
    a(f"s_cbranch_vccz {d}")
    a(f"s_sleep {sleep}")
    a("s_sub_u32 s63, s63, 1")
    a("s_cmp_lg_u32 s63, 0")
    a(f"s_cbranch_scc1 {l}")
    a.label(d)
    a("s_mov_b64 exec, -1")

def store_flag(a, soff, t):
    a(f"v_mov_b32 v{t}, s62")
    a(f"v_mov_b32 v{t+1}, 0")
    a("s_mov_b64 exec, 1")
    a(f"buffer_store_dword v{t}, v{t+1}, s[36:39], {soff} offen sc1")
    a("s_mov_b64 exec, -1")

def rowmax16(a, dst, S, init=None):
    if init is None:
        a(f"v_max3_f32 v{dst}, v{S}, v{S+1}, v{S+2}")
        for i in range(3, 15, 2): a(f"v_max3_f32 v{dst}, v{dst}, v{S+i}, v{S+i+1}")
        a(f"v_max_f32 v{dst}, v{dst}, v{S+15}")
    else:
        for i in range(0, 16, 2): a(f"v_max3_f32 v{dst}, v{dst}, v{S+i}, v{S+i+1}")
def xhalf_max(a, dst, tmp):
    a(f"v_mov_b32 v{tmp}, v{dst}")
    a(f"v_permlane32_swap_b32 v{dst}, v{tmp}")
    a(f"v_max_f32 v{dst}, v{dst}, v{tmp}")

def kv_dma(a, sreg, n, first=False):
    for q in range(n):
        if (q & 3) == 0:
            a(f"s_mov_b32 m0, s{sreg}")
            a(f"s_lshr_b32 s51, s{sreg}, 12")
            if not first:
                a("s_add_u32 s51, s51, s59")
                a("s_cmp_ge_u32 s51, 32")
                a("s_cselect_b32 s52, 28, 0")
                a("s_sub_u32 s51, s51, s52")
            a("s_add_u32 s51, s51, s55")
            a("s_and_b32 s51, s51, 31")
            a("s_lshl_b32 s51, s51, 12")
        a(f"buffer_load_dwordx4 v9, s[36:39], s51 offen offset:{(q&3)*1024} sc1 lds")
        if (q & 3) == 3 and q + 1 < n: a(f"s_add_u32 s{sreg}, s{sreg}, 4096")

def kv_job(a, st=None):
    X = 24; W = 88
    lv = a.newlabel("kv_v"); ld = a.newlabel("kv_d")
    def reads(s):
        a(f"ds_read_b128 {vr(X+4*s,4)}, v14 offset:{s*64}")
        for t in range(2):
            a(f"ds_read_b64_tr_b16 {vr(W+4*s+2*t,2)}, v15 offset:{L_WK + s*1024 + t*128}")
    a("s_cmp_eq_u32 s45, 0")
    a(f"s_cbranch_scc0 {lv}")
    for which in range(2):
        if which: a.label(lv)
        for s in range(4): reads(s)
        for s in range(16):
            if s + 4 < 16:
                reads(s + 4); a("s_waitcnt lgkmcnt(12)")
            else:
                a(f"s_waitcnt lgkmcnt({3*(15-s)})")
            if which == 0: mfma16(a, 20, W+4*s, X+4*s, "0" if s == 0 else 20)
            else:          mfma16(a, 20, X+4*s, W+4*s, "0" if s == 0 else 20)
        if not which: a(f"s_branch {ld}")
    a.label(ld)
def kv_store(a):
    a("s_cmp_eq_u32 s45, 0")
    a(f"s_cselect_b32 s51, 1.0, {hex((127 + VSC) << 23)}")
    for i in range(4): a(f"v_mul_f32 v{20+i}, s51, v{20+i}")
    a("v_cvt_pk_bf16_f32 v156, v20, v21")
    a("v_cvt_pk_bf16_f32 v157, v22, v23")
    a("v_xor_b32 v158, s62, v156")
    a("v_xor_b32 v159, s62, v157")
    if "nokvfast" not in VAR: a("buffer_store_dwordx4 v[156:159], v17, s[36:39], s54 offen")
    a("buffer_store_dwordx2 v[156:157], v16, s[36:39], s52 offen sc1")
def kv_flag(a):
    a("s_waitcnt vmcnt(0)")
    store_flag(a, "s53", 18)

def kv_setup(a):
    a("v_and_b32 v12, 15, v1")
    a("v_lshrrev_b32 v13, 4, v1")
    a(f"v_mul_u32_u24 v14, {XP}, v12")
    a("v_lshl_add_u32 v14, v13, 4, v14")
    a(f"s_mul_i32 s51, s46, {16*XP}")
    a(f"s_add_u32 s51, s51, {L_XA}")
    a("v_add_u32 v14, s51, v14")
    a("v_lshlrev_b32 v15, 8, v13")
    a("v_lshl_add_u32 v15, v12, 3, v15")
    a("v_and_b32 v16, 1, v13")
    a("s_cmp_eq_u32 s45, 0")
    a("s_cselect_b32 s51, 9, 8")
    a("s_cselect_b32 s52, 8, 9")
    a("s_lshl_b32 s52, s46, s52")
    a("s_lshl_b32 s53, s45, 10")
    a("s_add_u32 s52, s52, s53")
    a("s_lshl_b32 s53, s40, 11")
    a("s_add_u32 s52, s52, s53")
    a("v_lshlrev_b32 v16, s51, v16")
    a("v_lshl_add_u32 v16, v12, 4, v16")
    a("v_lshrrev_b32 v17, 1, v13")
    a("v_lshl_add_u32 v16, v17, 3, v16")
    a("s_lshl_b32 s53, s40, 7")
    a("s_lshl_b32 s54, s41, 2")
    a("s_add_u32 s53, s53, s54")
    a(f"s_add_u32 s53, s53, {W_F1}")
    a("v_lshlrev_b32 v17, 1, v16")
    a("s_lshl_b32 s54, s52, 1")
    a(f"s_add_u32 s54, s54, {W_KF}")

def stouch_setup(a, slot, bw, bx):
    a("s_lshr_b32 s51, s3, 2")
    a(f"s_lshl_b32 s54, {slot}, 3")
    a("s_add_u32 s51, s51, s54")
    a("s_lshl_b32 s51, s51, 10")
    a("s_lshl_b32 s54, s27, 7")
    a("s_add_u32 s51, s51, s54")
    a(f"s_add_u32 s{bw}, s{P_BWQKV}, s51")
    a(f"s_addc_u32 s{bw+1}, s{P_BWQKV+1}, 0")
    a(f"s_add_u32 s{bw+2}, s{bw}, {24*32768}")
    a(f"s_addc_u32 s{bw+3}, s{bw+1}, 0")
    a("s_lshr_b32 s51, s40, 1")
    a("s_lshl_b32 s51, s51, 16")
    a("s_and_b32 s54, s3, 3")
    a("s_lshl_b32 s54, s54, 14")
    a("s_add_u32 s51, s51, s54")
    a(f"s_lshl_b32 s54, {slot}, 12")
    a("s_add_u32 s51, s51, s54")
    a(f"s_add_u32 s{bx}, s{P_BX}, s51")
    a(f"s_addc_u32 s{bx+1}, s{P_BX+1}, 0")
def stouch_list(chunks, bw, bx):
    l = []
    for c in chunks:
        for r in range(4): l.append((f"s[{bx}:{bx+1}]", r*1024 + c*128))
        for i in range(6):
            m = c*6 + i
            l.append((f"s[{bw}:{bw+1}]", m*32768) if m < 24 else (f"s[{bw+2}:{bw+3}]", (m-24)*32768))
    return l

def role_a(a, st):
    FINE = "fine" in VAR
    class F:
        def stamp(self):
            if FINE: st0.stamp()
    st0 = st; fs = F()
    if FINE:
        class N:
            n = 0
            def stamp(self): pass
            def dump(self, *x): st0.dump(*x)
        st = N()
    srd(a, 32, P_AWQ, 512 * 1024)
    S0, S1, O0, O1, C0, C1, P0, P1, Q0, Q1, KB, VB = 16, 32, 48, 64, 80, 96, 112, 120, 128, 132, 136, 144
    a(f"s_bfe_u32 s55, s3, {0x30002 if MAP81 else 0x30001}")
    a("s_cmp_eq_u32 s43, 0")
    a("s_cbranch_scc0 a_kh1")
    def early_init():
        for i in range(32): a(f"v_mov_b32 v{O0+i}, 0")
        a("s_lshl_b32 s56, s43, 11")
        a("v_add_u32 v2, s56, v9")
        a("v_lshlrev_b32 v3, 8, v7")
        a("v_lshl_add_u32 v3, v6, 4, v3")
        a("v_add_u32 v3, s56, v3")
        a("s_mov_b32 s60, 0x0000ffff")
        a("s_mov_b32 s61, 0x0000ffff")
        a("v_and_b32 v14, 27, v6")
        a("v_cmp_eq_u32 vcc, 16, v14")
        a(f"v_mov_b32 v13, {hex(((127 + VSC) << 7) * 0x10001)}")
        a("v_cndmask_b32 v14, 0, v13, vcc")
        for i in range(8): a(f"v_mov_b32 v{VB+i}, v14")
    XF = 16; WF = 144; ACC = 152
    a(f"v_mul_u32_u24 v4, {XP}, v6")
    a("v_lshl_add_u32 v4, v7, 4, v4")
    a("v_lshlrev_b32 v8, 11, v7")
    a("v_bfe_u32 v5, v1, 2, 2")
    a("v_lshl_add_u32 v8, v5, 8, v8")
    a("v_xor_b32 v5, s42, v5")
    a("v_lshl_add_u32 v8, v5, 6, v8")
    a("v_bfe_u32 v5, v1, 4, 1")
    a("v_lshl_add_u32 v8, v5, 5, v8")
    a("v_and_b32 v5, 3, v1")
    a("v_lshl_add_u32 v8, v5, 3, v8")
    a(f"s_waitcnt vmcnt({0 if 'merge' in VAR else 2}) lgkmcnt(0)")
    a("s_barrier")
    st.stamp()
    if "merge" not in VAR:
        a("s_waitcnt vmcnt(0)")
        a("s_barrier")
    fs.stamp()
    def xload(i):
        a(f"s_add_u32 s51, s55, {i}")
        a("s_and_b32 s51, s51, 7")
        a("s_lshl_b32 s51, s51, 7")
        a("v_add_u32 v5, s51, v4")
        for sp in range(4):
            a(f"ds_read_b128 {vr(XF+16*i+4*sp,4)}, v5 offset:{L_XA + sp*32}")
    for i in range(8): xload(i)
    a("v_add_u32 v5, 16384, v8")
    a("v_add_u32 v15, 115200, v8")
    a("v_add_u32 v8, 66048, v8")
    st.stamp(); fs.stamp()
    a("s_waitcnt lgkmcnt(0)")
    wmap = {}
    free = [144, 148]
    def qread(st_):
        i = st_ >> 2; sp = st_ & 3; sl = WQ_SLOT[i]
        r = free.pop(0); wmap[st_] = r
        base, off = ("v5", sl - 16384) if sl < 66048 else (("v8", sl - 66048) if sl < 115200 else ("v15", sl - 115200))
        for t in range(2):
            a(f"ds_read_b64_tr_b16 {vr(r+2*t,2)}, {base} offset:{off + sp*4096 + t*1024}")
    nr = 0; avail = 0; pend = []
    LEAD = int(VAR.get("lead", 4))
    for st_ in range(32):
        if avail < 32 and (st_ >= avail - LEAD):
            a("s_barrier")
            if FINE: fs.stamp(); a("s_waitcnt lgkmcnt(0)"); pend = []
            avail += 8
        while nr < avail and free and len(pend) <= 12:
            qread(nr); pend += [nr, nr]; nr += 1
            if nr == 32: lds_signal(a, C_QD); pend += [99]
        if st_ in pend:
            k = len(pend) - 1 - max(i for i, x in enumerate(pend) if x == st_)
            a(f"s_waitcnt lgkmcnt({k})")
            pend = pend[len(pend)-k:] if k else []
        mfma32(a, ACC, wmap[st_], XF+4*st_, "0" if st_ == 0 else ACC)
        for r in (wmap[st_], XF+4*st_):
            if not (48 <= r < 80) and (r < 144 or st_ < 6): free.append(r)
        if st_ == 17: early_init()
    st.stamp()
    a(f"s_mov_b32 s51, {CSCALE}")
    a("s_lshl_b32 s53, s42, 11")
    a(f"s_add_u32 s53, s53, {L_QX}")
    a("v_add_u32 v12, s53, v9")
    a("s_lshl_b32 s53, s42, 2")
    a("v_add_u32 v13, s53, v10")
    for i in range(16): a(f"v_mul_f32 v{ACC+i}, s51, v{ACC+i}")
    cvt8(a, Q1, ACC); cvt8(a, Q0, ACC+8)
    a(f"ds_write_b128 v12, {vr(Q1,4)}")
    a(f"ds_write_b128 v12, {vr(Q0,4)} offset:1024")
    lds_signal(a, C_EX, "v13")
    fs.stamp()
    a("s_branch a_join")
    a.label("a_kh1")
    st.n -= 3
    if FINE: st0.n = 1
    a("v_lshrrev_b32 v4, 4, v1")
    a("v_bfe_u32 v5, v1, 2, 2")
    a("v_xor_b32 v5, v5, v4")
    a("v_lshlrev_b32 v3, 10, v4")
    a("v_lshl_add_u32 v3, v5, 6, v3")
    a("v_and_b32 v5, 3, v1")
    a("v_lshl_add_u32 v3, v5, 4, v3")
    a("s_lshl_b32 s48, s42, 14")
    a("s_lshl_b32 s51, s41, 8")
    a("s_add_u32 s48, s48, s51")
    a("s_lshl_b32 s49, s42, 12")
    def op_q(i):
        a(f"s_add_u32 s51, s55, {i}")
        a("s_and_b32 s51, s51, 7")
        a("s_lshl_b32 s51, s51, 16")
        a("s_add_u32 s51, s51, s48")
        for q in range(4):
            a(f"s_add_u32 m0, s49, {WQ_SLOT[i] + q*1024}")
            if q: a("s_add_u32 s51, s51, 4096")
            a("buffer_load_dwordx4 v3, s[32:35], s51 offen lds")
    NPRE = int(VAR.get('npre', 2))
    for i in range(NPRE): op_q(i)
    MERGE = "merge" in VAR
    a(f"s_waitcnt vmcnt({4*NPRE + (0 if MERGE else 2)}) lgkmcnt(0)")
    a("s_barrier")
    st.stamp()
    if not MERGE:
        a(f"s_waitcnt vmcnt({4*NPRE})")
        a("s_barrier")
    fs.stamp()
    nxt = NPRE
    for gq in range(3):
        lim = 6 if gq == 0 else 8
        for _ in range(2):
            if nxt < lim: op_q(nxt); nxt += 1
        a(f"s_waitcnt vmcnt({4*(nxt - 2*gq - 2)})")
        fs.stamp()
        a("s_barrier")
    a("s_waitcnt vmcnt(0)")
    fs.stamp()
    a("s_barrier")
    st.stamp()
    early_init()
    a("s_lshl_b32 s53, s42, 11")
    a(f"s_add_u32 s53, s53, {L_QX}")
    a("v_add_u32 v15, s53, v9")
    a("s_lshl_b32 s53, s42, 2")
    a("v_add_u32 v13, s53, v10")
    lds_wait(a, C_EX, 1, 12, 51, "v13")
    a(f"ds_read_b128 {vr(Q0,4)}, v15")
    a(f"ds_read_b128 {vr(Q1,4)}, v15 offset:1024")
    fs.stamp()
    lds_signal(a, C_QR)
    st.stamp()
    a.label("a_join")
    def tail_setup():
        a("s_xor_b32 s52, s59, 4")
        a("s_mul_i32 s53, s59, 3072")
        a(f"v_add_u32 v160, s53, v9")
        a("s_mul_i32 s53, s52, 3072")
        a(f"v_add_u32 v161, s53, v9")
        a("s_lshl_b32 s53, s59, 2")
        a("v_add_u32 v162, s53, v10")
        a("s_lshl_b32 s53, s52, 2")
        a("v_add_u32 v163, s53, v10")
        a("s_lshl_b32 s57, s42, 1")
        a("s_add_u32 s57, s57, s43")
        a("s_lshl_b32 s58, s40, 5")
        a("s_lshl_b32 s53, s41, 3")
        a("s_add_u32 s53, s53, s58")
        a("s_add_u32 s53, s53, s57")
        a("s_lshl_b32 s53, s53, 10")
        a(f"s_add_u32 s44, s53, {W_OA}")
        a("s_lshl_b32 s57, s57, 10")
        a(f"s_add_u32 s57, s57, {L_OA}")
        a("v_add_u32 v164, s57, v9")
        a(f"s_add_u32 s48, s44, {W_OF - W_OA}")
        a("s_lshl_b32 s57, s59, 10")
        a(f"s_add_u32 s57, s57, {L_OA}")
        a("v_add_u32 v165, s57, v9")
        for d in range(1, 4):
            a(f"s_add_u32 s51, s41, {d}")
            a("s_and_b32 s51, s51, 3")
            a("s_lshl_b32 s51, s51, 3")
            a("s_add_u32 s51, s51, s58")
            a("s_add_u32 s51, s51, s59")
            a("s_lshl_b32 s51, s51, 10")
            a(f"s_add_u32 s{44+d}, s51, {W_OA}")
    for i in range(8, 16): a(f"v_mov_b32 v{VB+i}, v14")
    for i in range(4): a(f"v_mov_b32 v{P1+4+i}, 0")
    st.stamp()
    lds_wait(a, C_ST + 0, 4, 12, 51, sleep=0)
    if FINE: st0.n = 12
    fs.stamp()
    def kvread(b, off):
        a(f"ds_read_b128 {vr(KB+4*b,4)}, v2 offset:{off}")
        a("s_mov_b64 exec, s[60:61]")
        a(f"ds_read_b128 {vr(VB+8*b,4)}, v3 offset:{off+1024}")
        a(f"ds_read_b128 {vr(VB+8*b+4,4)}, v3 offset:{off+1536}")
        a("s_mov_b64 exec, -1")
    a(f"ds_read_b128 {vr(P0,4)}, v9")
    DEEP = "shallow" not in VAR
    def kread(b, off): a(f"ds_read_b128 {vr(KB+4*b,4)}, v2 offset:{off}")
    def vread(b, off):
        a("s_mov_b64 exec, s[60:61]")
        a(f"ds_read_b128 {vr(VB+8*b,4)}, v3 offset:{off+1024}")
        a(f"ds_read_b128 {vr(VB+8*b+4,4)}, v3 offset:{off+1536}")
        a("s_mov_b64 exec, -1")
    kvread(0, 0)
    if DEEP: kread(1, 4096)
    a(f"s_waitcnt lgkmcnt({4 if DEEP else 3})" if not DIAG else "s_waitcnt lgkmcnt(0)")
    mfma32(a, S0, P0, Q0, "0")
    mfma32(a, S1, P0, Q1, "0")
    for S, C in ((S0, C0), (S1, C1)):
        rowmax16(a, 12, S)
        xhalf_max(a, 12, 13)
        a(f"v_sub_f32 v{C}, {BIAS}, v12")
        for i in range(1, 16): a(f"v_mov_b32 v{C+i}, v{C}")
        if S == S0:
            a("s_waitcnt lgkmcnt(0)")
            mfma32(a, S0, KB, Q0, C0)
    st.stamp()
    a("s_mov_b32 s50, 0")
    a(f"s_setprio {VAR.get('ap0', 3)}")
    if DIAG: a("s_waitcnt lgkmcnt(0)")
    a(".p2align 6")
    for _ in range(int(VAR.get("shift", 0))): a("s_nop 0")
    a.label("a_loop")
    def E(S, lo, hi):
        for i in range(lo, hi): a(f"v_exp_f32{VAR.get('enc', '')} v{S+i}, v{S+i}")
    def half(S, P, O, Vx, pvy, snext, w1, post, post2=(), w2=None):
        E(S, 0, 2)
        mfma32(a, *pvy)
        for x in post: x()
        E(S, 2, 8)
        if w1: a("s_waitcnt lgkmcnt(0)")
        mfma32(a, *snext)
        for x in post2: x()
        cvt8(a, P, S)
        E(S, 8, 12)
        if w2 is not None: a(f"s_waitcnt lgkmcnt({w2})")
        mfma32(a, O, Vx, P, O)
        E(S, 12, 16)
        cvt8(a, P+4, S+8)
    HK = {0: [("w", 4)], 1: [("w", 8)], 3: [("p", 2)], 4: [("w", 12)], 5: [("p", 1)], 6: [("p", 0)]}
    VAR.setdefault("pr", "4,6,7")
    if "pr" in VAR:
        for k in list(HK): HK[k] = [x for x in HK[k] if x[0] != "p"]
        for lvl, it in zip((2, 1, 0), VAR["pr"].split(",")): HK.setdefault(int(it), []).append(("p", lvl))
    if "ap0" in VAR: HK = {0: [("w", 4)], 1: [("w", 8)], 3: [("p", 1)], 4: [("w", 12)], 6: [("p", 0)]}
    def hooks():
        a("s_bitcmp1_b32 s50, 2")
        a("s_cbranch_scc1 a_hk_hi")
        a("s_branch a_hk_lo")
        a.label("a_hk_done")
    for t in range(4):
        b = t & 1; nb = b ^ 1
        if DEEP:
            post = [lambda: vread(nb, (t+1)*4096)]
            if t == 2: post = [hooks] + post
            half(S0, P0, O0, VB+8*b, (O1, VB+8*nb+4, P1+4, O1), (S1, KB+4*b, Q1, C1), False, post, [lambda: kread(b, (t+2)*4096)], 3)
            half(S1, P1, O1, VB+8*b, (O0, VB+8*b+4, P0+4, O0), (S0, KB+4*nb, Q0, C0), False, [])
            continue
        post = [lambda: kvread(nb, (t+1)*4096)]
        if t == 3: post = [hooks] + post
        half(S0, P0, O0, VB+8*b, (O1, VB+8*nb+4, P1+4, O1), (S1, KB+4*b, Q1, C1), False, post)
        half(S1, P1, O1, VB+8*b, (O0, VB+8*b+4, P0+4, O0), (S0, KB+4*nb, Q0, C0), True, [])
    a("v_add_u32 v2, 16384, v2")
    a("v_add_u32 v3, 16384, v3")
    a("s_add_u32 s50, s50, 1")
    a("s_cmp_lt_u32 s50, 8")
    a("s_cbranch_scc1 a_loop")
    mfma32(a, O1, VB+8+4, P1+4, O1)
    st.stamp()
    for i in range(2): a(f"ds_write_b128 v160, {vr(O0+4*i,4)} offset:{L_CB + i*1024}")
    a(f"ds_write_b32 v160, v{O0+8} offset:{L_CB + 2048}")
    lds_signal(a, C_CB, "v162")
    a("s_setprio 3")
    lds_wait(a, C_CB, 1, 12, 51, "v163", sleep=int(VAR.get("cbsleep", 0)))
    if "tfine" in VAR: st.stamp()
    for i in range(2): a(f"ds_read_b128 {vr(S0+4*i,4)}, v161 offset:{L_CB + i*1024}")
    a(f"ds_read_b32 v{S0+8}, v161 offset:{L_CB + 2048}")
    a("s_mov_b32 s51, 0x7b800000")
    a(f"s_mov_b32 s53, {hex((127 - 85) << 23)}")
    a("s_waitcnt lgkmcnt(0)")
    a(f"v_add_f32 v{O1+8}, v{O1+8}, v{S0+8}")
    a(f"v_rcp_f32 v14, v{O1+8}")
    for i in range(8): a(f"v_add_f32 v{O1+i}, v{O1+i}, v{S0+i}")
    a(f"v_add_f32 v12, abs(v{O1}), abs(v{O1+1})")
    a(f"v_add_f32 v13, abs(v{O1+2}), abs(v{O1+3})")
    for i in range(4, 8, 2):
        a(f"v_add_f32 v12, v12, abs(v{O1+i})")
        a(f"v_add_f32 v13, v13, abs(v{O1+i+1})")
    a("v_add_f32 v12, v12, v13")
    a(f"v_add_f32 v13, v12, v{O1+8}")
    a("v_cmp_ngt_f32 vcc, s51, v13")
    a("v_cmp_gt_f32 s[64:65], s53, v12")
    a("s_or_b64 vcc, vcc, s[64:65]")
    if "forcefb" in VAR: a("s_mov_b64 vcc, -1")
    a("s_cbranch_vccnz a_fallback")
    a.label("a_norm")
    for i in range(8): a(f"v_mul_f32 v{O1+i}, v{O1+i}, v14")
    cvt8(a, P0, O1)
    for i in range(4): a(f"v_min_u32 v{P0+i}, -2, v{P0+i}")
    if "nofast" not in VAR: a(f"buffer_store_dwordx4 {vr(P0,4)}, v9, s[36:39], s48 offen " + VAR.get("fst", ""))
    lds_wait(a, C_ST + 20, 4, 12, 51, sleep=0)
    a(f"ds_write_b128 v164, {vr(P0,4)}")
    lds_signal(a, C_OF)
    st.stamp()
    a(f"s_mov_b32 s63, {SPIN}")
    a("s_mov_b32 s50, 0")
    a.label("a_poll")
    a(f"s_cmp_lt_u32 s63, {SPIN - int(VAR.get('fastn', 12))}")
    a("s_cselect_b32 s51, s63, 0")
    a("s_bitcmp1_b32 s51, 0")
    a(f"s_cselect_b32 s51, 0, {W_OF - W_OA}")
    a("v_add_u32 v13, s51, v9")
    for d in range(1, 4):
        a(f"buffer_load_dwordx4 {vr(S0+4*(d-1),4)}, v13, s[36:39], s{44+d} offen sc1")
    a("s_sub_u32 s63, s63, 1")
    for d in range(1, 4):
        r = S0 + 4*(d-1)
        nx = a.newlabel("pn")
        a(f"s_waitcnt vmcnt({3-d})")
        a(f"s_bitcmp1_b32 s50, {d}")
        a(f"s_cbranch_scc1 {nx}")
        a(f"v_max3_u32 v12, v{r}, v{r+1}, v{r+2}")
        a(f"v_max_u32 v12, v12, v{r+3}")
        a("v_cmp_eq_u32 vcc, -1, v12")
        a("s_cmp_eq_u32 s63, 0")
        a("s_cselect_b64 vcc, 0, vcc")
        a(f"s_cbranch_vccnz {nx}")
        a(f"ds_write_b128 v165, {vr(r,4)} offset:{d*8192}")
        lds_signal(a, C_OF + 4*d)
        a(f"s_bitset1_b32 s50, {d}")
        a.label(nx)
    a("s_cmp_eq_u32 s50, 14")
    a("s_cbranch_scc1 a_got")
    ls = a.newlabel("sl")
    a(f"s_cmp_eq_u32 s63, {SPIN - int(VAR.get('slown', 4))}")
    a(f"s_cbranch_scc0 {ls}")
    a(f"buffer_store_dwordx4 {vr(P0,4)}, v9, s[36:39], s44 offen sc1")
    a.label(ls)
    if int(VAR.get('tsleep', 0)): a(f"s_sleep {VAR.get('tsleep', 0)}")
    a("s_branch a_poll")
    a.label("a_got")
    if "xnoslow" not in VAR: a(f"buffer_store_dwordx4 {vr(P0,4)}, v9, s[36:39], s44 offen sc1")
    st.stamp()
    if "tfine" in VAR:
        a("s_waitcnt lgkmcnt(0)")
        a(f"s_sub_u32 s72, {SPIN}, s63")
        a("s_add_u32 s72, s72, s70")
    st.dump(None, 0)
    a("s_endpgm")
    def pretouch():
        a(f"v_lshlrev_b32 v13, 7, v1")
        a(f"v_add_u32 v13, {W_OF - W_OA}, v13")
        a("s_mov_b64 exec, 0xff")
        for d in range(1, 4): a(f"buffer_load_dword v166, v13, s[36:39], s{44+d} offen sc1")
        a("s_mov_b64 exec, -1")
    HK[3] = HK.get(3, []) + [("sig", C_PR)]
    HK[2] = [x for x in HK.get(2, []) if x[0] == "p"] + [("f", tail_setup)]
    HK[7] = [x for x in HK.get(7, []) if x[0] == "p"] + [("w", 16), ("w8", C_PR)] + ([("f", pretouch)] if "nopre" not in VAR else [])
    for nm, rng in (("a_hk_lo", range(0, 4)), ("a_hk_hi", range(4, 8))):
        a.label(nm)
        for i in rng:
            if i not in HK: continue
            nx = a.newlabel("hk")
            a(f"s_cmp_eq_u32 s50, {i}")
            a(f"s_cbranch_scc0 {nx}")
            for kind, v in HK[i]:
                if kind == "w": lds_wait(a, C_ST + v, 4, 12, 51)
                elif kind == "sig": lds_signal(a, v)
                elif kind == "f": v()
                elif kind == "w8": lds_wait(a, v, 8, 12, 51)
                elif kind == "s":
                    a("s_cmp_eq_u32 s43, 0")
                    a("s_cbranch_scc0 a_hk_done")
                    a("s_waitcnt vmcnt(0)")
                    lds_signal(a, C_ST + v)
                else: a(f"s_setprio {v}")
            a("s_branch a_hk_done")
            a.label(nx)
        a("s_branch a_hk_done")
    a.label("a_fallback")
    a("v_mov_b32 v12, 0xff800000")
    a("s_mov_b32 s50, 0")
    a.label("a_fb1")
    a(f"buffer_load_dwordx4 {vr(KB,4)}, v9, s[36:39], s50 offen sc1")
    a("s_waitcnt vmcnt(0)")
    mfma32(a, S0, KB, Q1, "0")
    a("s_add_u32 s50, s50, 2048")
    rowmax16(a, 12, S0, init=True)
    a("s_cmp_lt_u32 s50, 0x20000")
    a("s_cbranch_scc1 a_fb1")
    xhalf_max(a, 12, 13)
    a(f"v_sub_f32 v{C0}, 0, v12")
    for i in range(1, 16): a(f"v_mov_b32 v{C0+i}, v{C0}")
    for i in range(16): a(f"v_mov_b32 v{O1+i}, 0")
    a("v_lshlrev_b32 v3, 8, v7")
    a("v_lshl_add_u32 v3, v6, 4, v3")
    a("s_mov_b32 s50, 0")
    a.label("a_fb2")
    a(f"buffer_load_dwordx4 {vr(KB,4)}, v9, s[36:39], s50 offen sc1")
    a("s_mov_b64 exec, s[60:61]")
    a(f"buffer_load_dwordx4 {vr(VB,4)}, v3, s[36:39], s50 offen offset:1024 sc1")
    a(f"buffer_load_dwordx4 {vr(VB+4,4)}, v3, s[36:39], s50 offen offset:1536 sc1")
    a("s_mov_b64 exec, -1")
    a("s_waitcnt vmcnt(0)")
    mfma32(a, S0, KB, Q1, C0)
    a("s_add_u32 s50, s50, 2048")
    E(S0, 0, 16)
    cvt8(a, P0, S0); cvt8(a, P0+4, S0+8)
    mfma32(a, O1, VB, P0, O1)
    mfma32(a, O1, VB+4, P0+4, O1)
    a("s_cmp_lt_u32 s50, 0x20000")
    a("s_cbranch_scc1 a_fb2")
    a(f"v_rcp_f32 v14, v{O1+8}")
    a("s_branch a_norm")

def role_b(a, st):
    a("s_mov_b32 s58, 0")
    a("s_lshr_b32 s44, s40, 1")
    a("s_and_b32 s42, s26, 1")
    a("s_lshr_b32 s43, s26, 1")
    srd(a, 28, P_BX, 2 << 20)
    srd(a, 32, P_BWQKV, 512 * 3072)
    a("v_lshrrev_b32 v12, 3, v1")
    a("v_and_b32 v13, 7, v1")
    a("v_bfe_u32 v14, v1, 4, 1")
    a("v_lshlrev_b32 v14, 2, v14")
    a("v_xor_b32 v14, v14, v13")
    a("v_mul_u32_u24 v3, 3072, v12")
    a("v_lshl_add_u32 v3, v14, 4, v3")
    a("v_lshlrev_b32 v4, 10, v12")
    a("v_lshl_add_u32 v4, v14, 4, v4")
    a(f"s_mul_i32 s64, s26, {16*3072}")
    a("s_lshl_b32 s51, s27, 7")
    a("s_add_u32 s64, s64, s51")
    a("s_lshl_b32 s65, s44, 16")
    a("s_lshl_b32 s51, s26, 14")
    a("s_add_u32 s65, s65, s51")
    if MAP81:
        a("s_lshr_b32 s67, s3, 3")
        a("s_lshl_b32 s67, s67, 1")
        a("s_add_u32 s67, s67, s3")
    else:
        a("s_lshr_b32 s67, s3, 2")
        a("s_lshl_b32 s51, s3, 1")
        a("s_add_u32 s67, s67, s51")
    a("s_and_b32 s67, s67, 7")
    a("s_mul_i32 s56, s26, 6144")
    a(f"s_add_u32 s56, s56, {L_GB + GB_W}")
    a("s_mul_i32 s57, s26, 2080")
    a(f"s_add_u32 s57, s57, {L_GB + GB_X}")
    def issue_ops(buf):
        o = buf * GB_SZ
        def pre():
            a(f"s_mul_i32 s48, s67, {64*3072}")
            a("s_add_u32 s48, s48, s64")
            a(f"s_add_u32 s47, s48, {8*3072}")
            a("s_lshl_b32 s49, s67, 7")
            a("s_add_u32 s49, s49, s65")
            a("s_add_u32 s66, s49, 8192")
            a("s_add_u32 s67, s67, 1")
            a("s_and_b32 s67, s67, 7")
        ops = [pre]
        for q in range(2):
            def fx(q=q):
                a(f"s_add_u32 m0, s57, {o + q*1040}")
                a(f"buffer_load_dwordx4 v4, s[28:31], {'s66' if q else 's49'} offen lds")
            ops.append(fx)
        for gq in range(2):
            for t in range(3):
                def f(gq=gq, t=t):
                    if t == 0: a(f"s_add_u32 m0, s56, {o + gq*3072}")
                    a(f"buffer_load_dwordx4 v3, s[32:35], {'s47' if gq else 's48'} offen offset:{t*1024} lds")
                ops.append(f)
        return ops
    BST = VAR.get("bstart", "st4")
    if BST == "early":
        for f in issue_ops(0): f()
    lk = a.newlabel("nokv")
    a("v_lshl_add_u32 v5, v1, 2, v10")
    a("v_mov_b32 v12, 0")
    a("ds_write_b32 v5, v12")
    kv_setup(a)
    a("s_waitcnt vmcnt(0) lgkmcnt(0)")
    a("v_readfirstlane_b32 s62, v19")
    a(f"s_add_u32 s62, s62, {TAGC}")
    a("s_barrier")
    a("s_cmp_eq_u32 s26, 3")
    a(f"s_cbranch_scc0 {lk}")
    kv_job(a)
    if "merge" not in VAR: a("s_barrier")
    kv_store(a)
    lk2 = a.newlabel("kvs")
    a(f"s_branch {lk2}")
    a.label(lk)
    if "merge" not in VAR: a("s_barrier")
    a.label(lk2)
    a("s_mov_b32 s45, s27")
    a("v_mul_u32_u24 v8, 3072, v7")
    a("v_bfe_u32 v14, v1, 2, 2")
    a("v_lshl_add_u32 v8, v14, 7, v8")
    a("v_bfe_u32 v14, v1, 3, 1")
    a("v_xor_b32 v14, s42, v14")
    a("v_lshl_add_u32 v8, v14, 6, v8")
    a("v_bfe_u32 v14, v1, 4, 1")
    a("v_lshl_add_u32 v8, v14, 5, v8")
    a("v_and_b32 v14, 3, v1")
    a("v_lshl_add_u32 v8, v14, 3, v8")
    a(f"v_add_u32 v8, {L_GB + GB_W}, v8")
    XM = 152
    a("v_bfe_u32 v14, v1, 1, 1")
    a("v_lshlrev_b32 v14, 2, v14")
    a("v_or_b32 v14, v14, v7")
    a("v_lshlrev_b32 v14, 4, v14")
    a("v_and_b32 v15, 7, v1")
    a("v_lshl_add_u32 v14, v15, 7, v14")
    a("v_xor_b32 v15, 64, v14")
    a("v_lshrrev_b32 v16, 3, v6")
    a("v_mul_u32_u24 v16, 1040, v16")
    a("s_mul_i32 s51, s43, 4160")
    a(f"s_add_u32 s51, s51, {L_GB + GB_X}")
    a(f"v_add3_u32 v{XM}, v14, v16, s51")
    a(f"v_add3_u32 v{XM+1}, v15, v16, s51")
    ACC = 20; WF = 84; XF = 108
    for i in range(48): a(f"v_mov_b32 v{ACC+i}, 0")
    for i in range(16): a(f"v_mov_b32 v{WF+12+i if i < 12 else XF+4+i-12}, 0")
    a("s_barrier")
    lk3 = a.newlabel("kvf")
    a("s_cmp_eq_u32 s26, 3")
    a(f"s_cbranch_scc0 {lk3}")
    kv_flag(a)
    a.label(lk3)
    st.stamp()
    a("s_barrier")
    MM = 124; MH = 132
    a("v_lshlrev_b32 v5, 2, v7")
    a("v_sub_u32 v5, v6, v5")
    a("v_add_u32 v5, 18, v5")
    a("v_mov_b32 v14, 0x5555")
    a("v_mov_b32 v15, 0")
    a("v_lshlrev_b64 v[14:15], v5, v[14:15]")
    a("s_or_b32 s51, s44, s43")
    a("s_cmp_eq_u32 s51, 0")
    a("s_cselect_b32 s51, 0, -1")
    a("v_and_b32 v14, s51, v14")
    a("v_not_b32 v14, v14")
    a("v_not_b32 v15, v15")
    for r in range(16):
        idx = 8*(r >> 2) + (r & 3)
        a(f"v_bfe_i32 v{MM+r}, v15, {idx}, 1")
        a(f"v_lshlrev_b32 v{MM+r}, 23, v{MM+r}")
        if r >= 8:
            a(f"v_bfe_i32 v{MH+r}, v14, {idx}, 1")
            a(f"v_lshlrev_b32 v{MH+r}, 23, v{MH+r}")
    def read_ops(buf, sp, fb):
        r = []
        for t3 in range(3):
            for t in range(2):
                r.append(f"ds_read_b64_tr_b16 {vr(WF+12*fb+4*t3+2*t,2)}, v8 offset:{buf*GB_SZ + sp*6144 + t3*1024 + t*512}")
        r.insert(2, f"ds_read_b128 {vr(XF+4*fb,4)}, v{XM+(sp>>1)} offset:{buf*GB_SZ + (sp&1)*32}")
        return r
    def mm(fb, k):
        w = WF + 12*fb; x = XF + 4*fb
        if "nomm" in VAR: return
        if k == 0: mfma32(a, ACC, w, x, ACC)
        elif k == 1: mfma32(a, ACC+16, w+4, x, ACC+16)
        else: mfma32(a, ACC+32, x, w+8, ACC+32)
    a("s_lshr_b32 s55, s40, 3")
    a("s_lshl_b32 s55, s55, 2")
    a("s_cmp_ge_u32 s3, 28")
    a("s_cselect_b32 s51, 28, 0")
    a("s_sub_u32 s59, s3, s51")
    a("s_add_u32 s53, s55, s26")
    a("s_lshl_b32 s53, s53, 13")
    a(f"s_add_u32 s53, s53, {W_KF}")
    a("s_add_u32 s52, s53, 4096")
    a("s_lshl_b32 s51, s26, 12")
    a("v_lshlrev_b32 v13, 3, v1")
    a("v_add_u32 v13, s51, v13")
    FQ = [68, 72, 76, 80, 84, 88, 92, 108]
    def kf_loads():
        for i, r in enumerate(FQ):
            a(f"buffer_load_dwordx4 {vr(r,4)}, v9, s[36:39], {'s53' if i < 4 else 's52'} offen offset:{(i&3)*1024} sc1")
    a(f"s_mov_b32 s63, {int(VAR.get('kfn', 3))}")
    a("s_mov_b32 s46, 0")
    a("s_barrier")
    kf_loads()
    a("s_barrier")
    st.stamp()
    a.label("b_kf")
    a("v_mov_b32 v14, 0")
    for i, r in enumerate(FQ):
        a(f"s_waitcnt vmcnt({7-i})")
        a(f"ds_write_b64 v13, {vr(r,2)} offset:{L_WK + i*512}")
        a(f"v_xor_b32 v15, v{r}, v{r+2}")
        a(f"v_xor_b32 v16, v{r+1}, v{r+3}")
        a("v_xor_b32 v15, s62, v15")
        a("v_xor_b32 v16, s62, v16")
        a("v_or3_b32 v14, v14, v15, v16")
    a("v_cmp_ne_u32 vcc, 0, v14")
    a("s_nop 1")
    a("s_cbranch_vccz b_kf_ok")
    a("s_sub_u32 s63, s63, 1")
    a("s_cbranch_scc1 b_kf_done")
    kf_loads()
    a("s_branch b_kf")
    a.label("b_kf_ok")
    lds_signal(a, C_ST + 0)
    a("s_mov_b32 s46, 1")
    a.label("b_kf_done")
    st.stamp()
    a("v_lshlrev_b32 v15, 7, v1")
    a("s_lshl_b32 s54, s26, 11")
    a(f"s_add_u32 s54, s54, {W_F1}")
    poll_flags(a, 15, "s54", 16, 16, sleep=int(VAR.get("psleep", 4)))
    bbar(a)
    lf = a.newlabel("kfok")
    a("s_cmp_eq_u32 s46, 1")
    a(f"s_cbranch_scc1 {lf}")
    a("s_lshl_b32 s53, s26, 12")
    kv_dma(a, 53, 4, first=True)
    a("s_waitcnt vmcnt(0)")
    lds_signal(a, C_ST + 0)
    a.label(lf)
    lds_wait(a, C_QD, 4, 5, 51)
    for k in range(1, 5):
        a("s_lshl_b32 s53, s26, 12")
        a(f"s_add_u32 s53, s53, {k*16384}")
        kv_dma(a, 53, 4)
        if k == 2:
            a("s_waitcnt vmcnt(4)")
            lds_signal(a, C_ST + 4)
    a("s_cmp_eq_u32 s43, 0")
    a(f"s_cselect_b32 s4, s{P_BWO}, s{P_AWO}")
    a(f"s_cselect_b32 s5, s{P_BWO+1}, s{P_AWO+1}")
    a("s_mov_b32 s6, 0x80000")
    a("s_mov_b32 s7, 0x20000")
    a("s_lshl_b32 s51, s3, 1")
    a("s_add_u32 s51, s51, s42")
    a("s_lshl_b32 s51, s51, 13")
    if MAP81: a("v_lshlrev_b32 v14, 7, v1")
    else:
        a("s_lshr_b32 s54, s41, 1")
        a("s_lshl_b32 s54, s54, 9")
        a("s_add_u32 s51, s51, s54")
        a("v_lshrrev_b32 v14, 2, v6")
        a("v_lshlrev_b32 v14, 10, v14")
        a("v_and_b32 v15, 3, v1")
        a("v_lshl_add_u32 v14, v15, 7, v14")
    a("buffer_load_dword v160, v14, s[4:7], s51 offen")
    for f in issue_ops(0): f()
    a("s_waitcnt vmcnt(9)")
    lds_signal(a, C_ST + 8)
    a(f"s_setprio {VAR.get('bprio', 3)}")
    st.stamp()
    a("s_mov_b32 s50, 0")
    if "nogemm" in VAR: a("s_branch b_gend")
    a.label("b_loop")
    for buf in range(2):
        mm(1, 0)
        a("s_waitcnt vmcnt(0)")
        a("s_add_u32 s58, s58, 4")
        lds_signal(a, C_BB)
        mm(1, 1)
        ops = issue_ops(buf ^ 1)
        if buf == 1:
            a("s_cmp_eq_u32 s50, 3")
            a("s_cselect_b32 s64, 0x7f000000, s64")
            a("s_cselect_b32 s65, 0x7f000000, s65")
            for r in (56, 57): a(f"s_cselect_b32 s{r}, 0x30000, s{r}")
        ops[0]()
        lds_wait(a, C_BB, "s58", 5, 51, sleep=int(VAR.get("bsleep", 0)))
        for x in read_ops(buf, 0, 0): a(x)
        mm(1, 2)
        oi = 1
        for _ in range(3): ops[oi](); oi += 1
        for sp in range(3):
            for x in read_ops(buf, sp+1, (sp+1) & 1): a(x)
            a("s_waitcnt lgkmcnt(7)")
            for k in range(3):
                mm(sp & 1, k)
                for _ in range(2):
                    if oi < len(ops): ops[oi](); oi += 1
        a("s_waitcnt lgkmcnt(0)")
    a("s_add_u32 s50, s50, 1")
    a("s_cmp_lt_u32 s50, 4")
    a("s_cbranch_scc1 b_loop")
    a.label("b_gend")
    for k in range(3): mm(1, k)
    a("s_setprio 3")
    st.stamp()
    QF = 84; KF = 92; VF = 100; KH = 108; VH = 116
    cvt8(a, KF, ACC+16); cvt8(a, KF+4, ACC+24)
    cvt8(a, VF, ACC+32); cvt8(a, VF+4, ACC+40)
    a("s_mul_i32 s51, s42, 3072")
    a(f"s_add_u32 s51, s51, {L_BEX}")
    a("v_add_u32 v13, s51, v9")
    a("s_lshl_b32 s52, s44, 3")
    a("s_add_u32 s52, s52, s45")
    a("s_lshl_b32 s53, s52, 1")
    a("s_add_u32 s53, s53, s42")
    a("s_mul_i32 s53, s53, 3072")
    a(f"s_add_u32 s53, s53, {W_HALO}")
    a("s_lshl_b32 s52, s52, 7")
    a("s_lshl_b32 s51, s42, 2")
    a("s_add_u32 s52, s52, s51")
    a(f"s_add_u32 s52, s52, {W_F2}")
    l1 = a.newlabel("b_w1"); l2 = a.newlabel("b_w2")
    a("s_cmp_eq_u32 s43, 0")
    a(f"s_cbranch_scc0 {l1}")
    lds_wait(a, C_QR, 4, 5, 51, sleep=2)
    a(f"ds_write_b128 v13, {vr(KF,4)}")
    a(f"ds_write_b128 v13, {vr(KF+4,4)} offset:1024")
    a(f"ds_write_b128 v13, {vr(VF+4,4)} offset:2048")
    a(f"s_branch {l2}")
    a.label(l1)
    a(f"buffer_store_dwordx4 {vr(KF,4)}, v9, s[36:39], s53 offen sc1")
    a(f"buffer_store_dwordx4 {vr(KF+4,4)}, v9, s[36:39], s53 offen offset:1024 sc1")
    a(f"buffer_store_dwordx4 {vr(VF+4,4)}, v9, s[36:39], s53 offen offset:2048 sc1")
    a("s_waitcnt vmcnt(0)")
    store_flag(a, "s52", 14)
    a.label(l2)
    bbar(a)
    a("s_mov_b32 s60, s52")
    a("s_mul_i32 s54, s26, 12288")
    a("s_add_u32 s54, s54, 81920")
    kv_dma(a, 54, 12)
    a("s_mov_b32 s52, s60")
    l1 = a.newlabel("b_x1"); l2 = a.newlabel("b_x2")
    a("s_or_b32 s51, s44, 0")
    a("s_cselect_b32 s51, s43, 1")
    a("s_cmp_eq_u32 s51, 0")
    a(f"s_cbranch_scc0 {l1}")
    a(f"s_sub_u32 s52, s52, {8*128}")
    a(f"s_sub_u32 s53, s53, {16*3072}")
    a("v_mov_b32 v5, 0")
    poll_flags(a, 5, "s52", 1, 14, sleep=6, width=1)
    a(f"buffer_load_dwordx4 {vr(KH,4)}, v9, s[36:39], s53 offen sc1")
    a(f"buffer_load_dwordx4 {vr(KH+4,4)}, v9, s[36:39], s53 offen offset:1024 sc1")
    a(f"buffer_load_dwordx4 {vr(VH,4)}, v9, s[36:39], s53 offen offset:2048 sc1")
    a("s_waitcnt vmcnt(0)")
    a(f"s_branch {l2}")
    a.label(l1)
    a(f"ds_read_b128 {vr(KH,4)}, v13")
    a(f"ds_read_b128 {vr(KH+4,4)}, v13 offset:1024")
    a(f"ds_read_b128 {vr(VH,4)}, v13 offset:2048")
    a.label(l2)
    lsn = a.newlabel("nosn")
    a("s_and_b32 s51, s40, 1")
    a("s_cmp_eq_u32 s51, s43")
    a(f"s_cbranch_scc0 {lsn}")
    a("s_lshl_b32 s51, s40, 2")
    a("s_add_u32 s51, s51, s41")
    a("s_lshl_b32 s51, s51, 1")
    a("s_add_u32 s51, s51, s42")
    a("s_lshl_b32 s51, s51, 12")
    a(f"s_add_u32 s51, s51, {W_OA}")
    for i in range(4): a(f"v_mov_b32 v{120+i}, -1")
    for i in range(4 if "xnoslow" not in VAR else 0): a(f"buffer_store_dwordx4 v[120:123], v9, s[36:39], s51 offen offset:{i*1024} sc1")
    a(f"s_add_u32 s51, s51, {W_OF - W_OA}")
    for i in range(4): a(f"buffer_store_dwordx4 v[120:123], v9, s[36:39], s51 offen offset:{i*1024} sc1")
    a.label(lsn)
    cvt8(a, QF, ACC); cvt8(a, QF+4, ACC+8)
    a("s_lshl_b32 s52, s44, 1")
    a("s_add_u32 s52, s52, s43")
    a("s_lshl_b32 s55, s52, 4")
    a("s_lshl_b32 s53, s45, 1")
    a("s_add_u32 s53, s53, s42")
    a("s_add_u32 s55, s55, s53")
    a("s_lshl_b32 s55, s55, 11")
    a(f"s_add_u32 s55, s55, {W_OB}")
    a("s_lshl_b32 s57, s52, 9")
    a("s_lshr_b32 s51, s53, 2")
    a("s_lshl_b32 s51, s51, 7")
    a("s_add_u32 s57, s57, s51")
    a("s_and_b32 s51, s53, 3")
    a("s_lshl_b32 s51, s51, 2")
    a("s_add_u32 s57, s57, s51")
    a(f"s_add_u32 s57, s57, {W_F3}")
    a("s_waitcnt lgkmcnt(0)")
    SM = 20; SH = 36; O = 52; PP = 68; T = 152
    a(f"s_mov_b32 s46, {CSCALE}")
    for hd in range(2 if "nolocal" not in VAR else 0):
        mfma32(a, SM, KF+4*hd, QF+4*hd, MM)
        mfma32(a, SH, KH+4*hd, QF+4*hd, MH)
        if hd == 1:
            a("s_waitcnt vmcnt(1)")
            lds_signal(a, C_ST + 12)
        vals = [SM+i for i in range(16)] + [SH+8+i for i in range(8)]
        a(f"v_max3_f32 v{T}, v{vals[0]}, v{vals[1]}, v{vals[2]}")
        for i in range(3, 23, 2):
            a(f"v_max3_f32 v{T}, v{T}, v{vals[i]}, v{vals[i+1]}")
        a(f"v_max_f32 v{T}, v{T}, v{vals[23]}")
        xhalf_max(a, T, T+1)
        a(f"v_mul_f32 v{T}, s46, v{T}")
        for v in vals: a(f"v_fma_f32 v{v}, v{v}, s46, -v{T}")
        for v in vals: a(f"v_exp_f32 v{v}, v{v}")
        a(f"v_add_f32 v{T+2}, v{vals[0]}, v{vals[1]}")
        for v in vals[2:]: a(f"v_add_f32 v{T+2}, v{T+2}, v{v}")
        cvt8(a, PP, SM); cvt8(a, PP+4, SM+8); cvt8(a, PP+8, SH+8)
        a(f"v_mov_b32 v{T+3}, v{T+2}")
        a(f"v_permlane32_swap_b32 v{T+2}, v{T+3}")
        mfma32(a, O, VF, PP, "0")
        mfma32(a, O, VF+4, PP+4, O)
        mfma32(a, O, VH, PP+8, O)
        a(f"v_add_f32 v{T+2}, v{T+2}, v{T+3}")
        a(f"v_rcp_f32 v{T+2}, v{T+2}")
        for i in range(8): a(f"v_mul_f32 v{O+8*hd+i}, v{O+8*hd+i}, v{T+2}")
        cvt8(a, T+4+4*hd, O+8*hd)
        a(f"buffer_store_dwordx4 {vr(T+4+4*hd,4)}, v9, s[36:39], s55 offen offset:{hd*1024} sc1")
    a("s_waitcnt vmcnt(0)")
    store_flag(a, "s57", 12)
    st.stamp()
    srd(a, 32, P_BWO, 512 * 1024)
    srd(a, 28, P_OUT, 4 << 20)
    a("s_lshl_b32 s47, s41, 8")
    a("s_lshl_b32 s51, s26, 6")
    a("s_add_u32 s47, s47, s51")
    a("v_lshrrev_b32 v3, 2, v1")
    a("v_lshlrev_b32 v3, 10, v3")
    a("v_and_b32 v4, 3, v1")
    a("v_lshl_add_u32 v3, v4, 4, v3")
    a("v_add_u32 v3, s47, v3")
    tr_base_wo(a, 8, 4)
    a("s_mul_i32 s56, s26, 7168")
    a(f"s_add_u32 s56, s56, {L_COMB}")
    a("v_add_u32 v8, s56, v8")
    a("v_lshlrev_b32 v4, 11, v6")
    a("v_lshl_add_u32 v4, v7, 4, v4")
    a("s_lshl_b32 s51, s40, 16")
    a("s_add_u32 s47, s47, s51")
    ACC = 12; OB = 28; WL = 40
    a("s_mov_b32 s48, 0")
    bbar(a)
    R = 7
    def wissue(i):
        a(f"s_add_u32 m0, s56, {(i%R)*1024}")
        a(f"buffer_load_dwordx4 v3, s[32:35], s48 offen lds")
        a("s_add_u32 s48, s48, 16384")
        a("s_and_b32 s48, s48, 0x7ffff")
    def trr(i):
        for t in range(2): a(f"ds_read_b64_tr_b16 {vr(WL+4*i+2*t,2)}, v8 offset:{(i%R)*1024 + t*512}")
    for i in range(R): wissue(i)
    for i in range(32):
        a(f"s_waitcnt vmcnt({R-1 if i == 0 else min(R-2, 31-i)})")
        trr(i)
        if i >= 1 and i + R - 1 < 32:
            a("s_waitcnt lgkmcnt(2)")
            wissue(i + R - 1)
    def run(lo, hi, addr, off0):
        o = lambda i: (i - off0) * 1024
        for i in range(lo, min(lo+2, hi)): a(f"ds_read_b128 {vr(OB+4*(i%3),4)}, {addr} offset:{o(i)}")
        for i in range(lo, hi):
            if i + 2 < hi:
                a(f"ds_read_b128 {vr(OB+4*((i+2)%3),4)}, {addr} offset:{o(i+2)}")
                a("s_waitcnt lgkmcnt(2)")
            else:
                a(f"s_waitcnt lgkmcnt({hi-1-i})")
            mfma32(a, ACC, WL+4*i, OB+4*(i%3), "0" if i == 0 else ACC)
    a("v_lshlrev_b32 v5, 7, v1")
    a("s_lshl_b32 s57, s40, 9")
    a(f"s_add_u32 s57, s57, {W_F3}")
    poll_flags(a, 5, "s57", 4, 28, sleep=8)
    lds_signal(a, C_ST + 16)
    st.stamp()
    lds_wait(a, C_PR, 8, 5, 51, sleep=8)
    a("s_lshl_b32 s49, s40, 15")
    a("s_lshl_b32 s51, s26, 13")
    a("s_add_u32 s49, s49, s51")
    a(f"s_add_u32 s49, s49, {W_OB}")
    a(f"s_add_u32 s46, s51, {L_OA}")
    for q in range(8):
        if (q & 3) == 0:
            a(f"s_add_u32 m0, s46, {q*1024}")
            if q: a("s_add_u32 s49, s49, 4096")
        a(f"buffer_load_dwordx4 v9, s[36:39], s49 offen offset:{(q&3)*1024} sc1 lds")
    srd(a, 32, P_AWO, 512 * 1024)
    a("s_lshl_b32 s48, s41, 17")
    for i in range(R): wissue(i)
    a(f"v_add_u32 v0, {L_OA}, v9")
    a(f"s_waitcnt vmcnt({R})")
    bbar(a)
    def ord_(i): a(f"ds_read_b128 {vr(OB+4*(i%3),4)}, v0 offset:{i*1024}")
    ord_(0); ord_(1)
    q = ["o0", "o1"]
    def lw(tag):
        k = len(q) - 1 - max(j for j, x in enumerate(q) if x == tag)
        a(f"s_waitcnt lgkmcnt({k})")
        del q[:len(q)-k]
    for i in range(32):
        if i + 2 < 32: ord_(i + 2); q.append(f"o{i+2}")
        if i == 29: lds_signal(a, C_ST + 20); q.append("sig")
        if f"o{i}" in q: lw(f"o{i}")
        mfma32(a, ACC, WL+4*i, OB+4*(i%3), "0" if i == 0 else ACC)
        if i >= 2 and i + R - 2 < 32:
            if f"t{i-2}" in q: lw(f"t{i-2}")
            wissue(i + R - 2)
        issued = min(31, max(R - 1, i + R - 2))
        a(f"s_waitcnt vmcnt({issued - i})")
        trr(i); q += [f"t{i}", f"t{i}"]
    cvt8(a, 28, ACC); cvt8(a, 32, ACC+8)
    a("buffer_store_dwordx4 v[28:31], v4, s[28:31], s47 offen offset:1024 " + VAR.get("stb", "nt"))
    a("buffer_store_dwordx4 v[32:35], v4, s[28:31], s47 offen offset:1056 " + VAR.get("stb", "nt"))
    st.stamp()
    a.label("b_tail")
    st.stamp()
    le = a.newlabel("ep")
    a("s_or_b32 s51, s2, s26")
    a("s_cmp_eq_u32 s51, 0")
    a(f"s_cbranch_scc0 {le}")
    a(f"s_mov_b32 s51, {W_EP}")
    store_flag(a, "s51", 28)
    a.label(le)
    a(f"v_add_u32 v0, {L_OA}, v9")
    lds_wait(a, C_CB + 0, 1, 5, 51, sleep=16)
    def rd(i): a(f"ds_read_b128 {vr(WL+4*(i-8),4)}, v0 offset:{i*1024}")
    lds_wait(a, C_OF, 8, 5, 51, sleep=0)
    if "tfine" in VAR: st.n = 5; st.stamp(); a("s_waitcnt lgkmcnt(0)")
    run(0, 8, "v0", 0)
    lds_wait(a, C_OF + 4, 8, 5, 51, sleep=0)
    if "tfine" in VAR: st.stamp(); a("s_waitcnt lgkmcnt(0)")
    for i in range(8, 16): rd(i)
    NE = int(VAR.get("ne", 3))
    for i in range(8, 8 + NE):
        a(f"s_waitcnt lgkmcnt({15 - i})")
        mfma32(a, ACC, WL+4*i, WL+4*(i-8), ACC)
        if i == 8: a(f"ds_read_b64 v[28:29], v10 offset:{C_OF + 8}")
    a("s_waitcnt lgkmcnt(0)")
    a("v_min_u32 v28, v28, v29")
    a("v_readfirstlane_b32 s51, v28")
    a("s_cmp_ge_u32 s51, 8")
    a("s_cbranch_scc0 b_slowtail")
    for i in range(8, 8 + NE): rd(i + 8)
    for i in range(8 + NE, 32):
        if i >= 16: a(f"s_waitcnt lgkmcnt({min(7, 31 - i)})")
        mfma32(a, ACC, WL+4*i, WL+4*(i-8), ACC)
        if i + 8 < 32: rd(i + 8)
    a.label("b_fin")
    cvt8(a, 28, ACC); cvt8(a, 32, ACC+8)
    a("buffer_store_dwordx4 v[28:31], v4, s[28:31], s47 offen " + VAR.get("sta", "nt"))
    a("buffer_store_dwordx4 v[32:35], v4, s[28:31], s47 offen offset:32 " + VAR.get("sta", "nt"))
    if DIAG:
        if "tfine" in VAR: st.stamp()
        a("s_waitcnt vmcnt(0)")
        st.stamp()
        st.dump(None, 0)
    a("s_endpgm")
    a.label("b_slowtail")
    for d in range(1, 4):
        if d > 1:
            lds_wait(a, C_OF + 4*d, 8, 5, 51, sleep=0)
            for i in range(8*d, 8*d + 8): rd(i)
        for i in range(8*d + (NE if d == 1 else 0), 8*d + 8):
            a(f"s_waitcnt lgkmcnt({8*d + 7 - i})")
            mfma32(a, ACC, WL+4*i, WL+4*(i-8), ACC)
    a("s_branch b_fin")

def pre_a(a):
    a("s_sub_u32 s59, s26, 4")
    a("s_and_b32 s42, s59, 3")
    a("s_lshr_b32 s43, s59, 2")
    a("s_lshr_b32 s46, s41, 1")
    a("s_lshl_b32 s49, s46, 4")
    a("s_lshl_b32 s48, s59, 1")
    a("s_add_u32 s49, s49, s48")
    a("s_xor_b32 s51, s49, 16")
    a("s_lshl_b32 s52, s40, 5")
    a("s_add_u32 s48, s52, s49")
    a("s_lshl_b32 s48, s48, 10")
    a("s_xor_b32 s50, s48, 16384")
    a(f"s_mul_i32 s49, s49, {XP}")
    a(f"s_mul_i32 s51, s51, {XP}")
    a("s_mov_b32 s30, 0x200000")
    a("s_mov_b32 s31, 0x20000")
    a(f"s_add_u32 m0, s49, {L_XA}")
    a("s_waitcnt lgkmcnt(0)")
    a(f"s_mov_b32 s28, s{P_AX}")
    a(f"s_mov_b32 s29, s{P_AX+1}")
    for k, (so, lb) in enumerate((("s48", "s49"), ("s50", "s51"))):
        for q in range(2):
            if k or q: a(f"s_add_u32 m0, {lb}, {L_XA + q*XP - q*1024}")
            a(f"buffer_load_dwordx4 v9, s[28:31], {so} offen offset:{q*1024} lds")
    srd(a, 36, P_WS, W_USED)
def pre_b(a):
    a("s_setprio 3")
    a("s_and_b32 s45, s41, 1")
    a("s_lshr_b32 s46, s41, 1")
    a("s_mov_b32 s30, 16384")
    a("s_mov_b32 s31, 0x20000")
    a("s_lshl_b32 s51, s26, 12")
    a(f"s_add_u32 m0, s51, {L_WK}")
    a(f"v_mov_b32 v18, {W_EP}")
    a("s_cmp_eq_u32 s45, 0")
    a("s_waitcnt lgkmcnt(0)")
    a(f"s_cselect_b32 s28, s{P_AWK}, s{P_AWV}")
    a(f"s_cselect_b32 s29, s{P_AWK+1}, s{P_AWV+1}")
    for q in range(4):
        a(f"buffer_load_dwordx4 v9, s[28:31], s51 offen offset:{q*1024} lds")
    srd(a, 36, P_WS, W_USED)
    a("buffer_load_dword v19, v18, s[36:39], 0 offen sc1")

def kernel():
    a = Asm(); n = NAME + "_kernel"
    a.label(n)
    a("s_cmp_ge_u32 s2, 256")
    a("s_cbranch_scc1 k_exit")
    load_ptrs(a)
    sta = Stamps(a, DIAG, real='--cyc' not in sys.argv); stb = Stamps(a, DIAG, real='--cyc' not in sys.argv)
    sta.stamp(); stb.n = sta.n
    VAR.setdefault("cpf", 164)
    if int(VAR["cpf"]):
        a("s_getpc_b64 s[32:33]")
        a("v_lshlrev_b32 v3, 7, v0")
        a(f"v_cmp_gt_u32 vcc, {int(VAR['cpf'])}, v0")
        a("s_and_saveexec_b64 s[34:35], vcc")
        a("s_cbranch_execz k_nopf")
        a("global_load_dword v167, v3, s[32:33]")
        a.label("k_nopf")
        a("s_mov_b64 exec, s[34:35]")
    a("v_and_b32 v1, 63, v0")
    a("v_lshrrev_b32 v2, 6, v0")
    a("v_readfirstlane_b32 s26, v2")
    a("s_and_b32 s27, s2, 7")
    a("s_lshr_b32 s3, s2, 3")
    if MAP81:
        a("s_lshl_b32 s40, s27, 3")
        a("s_lshr_b32 s41, s3, 2")
        a("s_add_u32 s40, s40, s41")
        a("s_and_b32 s41, s3, 3")
    else:
        a("s_lshr_b32 s40, s27, 1")
        a("s_lshl_b32 s40, s40, 4")
        a("s_lshr_b32 s41, s3, 1")
        a("s_add_u32 s40, s40, s41")
        a("s_and_b32 s41, s27, 1")
        a("s_lshl_b32 s41, s41, 1")
        a("s_and_b32 s27, s3, 1")
        a("s_add_u32 s41, s41, s27")
    a("s_lshl_b32 s27, s41, 1")
    a("s_and_b32 s51, s40, 1")
    a("s_add_u32 s27, s27, s51")
    a("v_and_b32 v6, 31, v1")
    a("v_lshrrev_b32 v7, 5, v1")
    a("v_lshlrev_b32 v9, 4, v1")
    a(f"v_mov_b32 v10, {L_CNT}")
    a("v_mov_b32 v11, 1")
    a("s_cmp_lt_u32 s26, 4")
    a("s_cbranch_scc0 pre_a")
    pre_b(a)
    a("s_barrier")
    a("s_branch role_b")
    a.label("pre_a")
    pre_a(a)
    a("s_barrier")
    role_a(a, sta)
    a.label("role_b")
    role_b(a, stb)
    a.label("k_exit")
    a("s_endpgm")
    return (n, a, 256, 768, LDS_SIZE, 168)

if __name__ == "__main__":
    write_file(sys.argv[1], [kernel()])
```

```python
import sys
from common import *
DIAG = "--diag" in sys.argv
VAR = dict((x[2:].split("=")+[1])[:2] for x in sys.argv if x.startswith("-V"))

W_KV = 0
W_F1 = 0x20000
W_F2 = 0x28000
W_F3 = 0x30000
W_EP = 0x3F000
W_KF = 0x40000
W_OA = 1 << 20
W_OB = 3 << 20
W_HALO = 5 << 20
W_OF = 10 << 20
W_USED = 16 << 20
L_XA = 16384
L_WK = 0
WQ_SLOT = [49664 + 16384*i for i in range(6)] + [16384, 32768]
L_GB = 89600
GB_W, GB_X, GB_SZ = 0, 24576, 32896
L_COMB = 131072
L_QX = 155392
L_BEX = 155392
L_CNT = 163584
LDS_SIZE = 163840
C_BB, C_ST, C_EX, C_XA, C_QB, C_QC, C_QD, C_XD = 4, 16, 40, 72, 76, 92, 96, 100
C_ISS, C_QR = 8, 12
C_PR, C_CB, C_OF = 104, 112, 144
L_CB = 0
L_OA = 24576
BIAS = VAR.get("bias", "0xc2c80000")
VSC = 40
MAP81 = 'map24' not in VAR
XP = 1040
TAGC = 0x9E3779B9 - (1 << 32)
SPIN = 40000

def cvt8(a, dst, src):
    for i in range(4):
        a(f"v_cvt_pk_bf16_f32 v{dst+i}, v{src+2*i}, v{src+2*i+1}")

def tr_base32(a, dst, tmp):
    a(f"v_lshlrev_b32 v{dst}, 9, v7")
    a(f"v_bfe_u32 v{tmp}, v1, 2, 2")
    a(f"v_lshl_add_u32 v{dst}, v{tmp}, 6, v{dst}")
    a(f"v_bfe_u32 v{tmp}, v1, 4, 1")
    a(f"v_lshl_add_u32 v{dst}, v{tmp}, 5, v{dst}")
    a(f"v_and_b32 v{tmp}, 3, v1")
    a(f"v_lshl_add_u32 v{dst}, v{tmp}, 3, v{dst}")

def tr_base_wo(a, dst, tmp):
    a(f"v_lshlrev_b32 v{dst}, 8, v7")
    a(f"v_bfe_u32 v{tmp}, v1, 2, 2")
    a(f"v_lshl_add_u32 v{dst}, v{tmp}, 6, v{dst}")
    a(f"v_bfe_u32 v{tmp}, v1, 4, 1")
    a(f"v_lshl_add_u32 v{dst}, v{tmp}, 5, v{dst}")
    a(f"v_and_b32 v{tmp}, 1, v1")
    a(f"v_lshl_add_u32 v{dst}, v{tmp}, 4, v{dst}")
    a(f"v_bfe_u32 v{tmp}, v1, 1, 1")
    a(f"v_lshl_add_u32 v{dst}, v{tmp}, 3, v{dst}")

def lds_signal(a, off, addr="v10"):
    a("s_mov_b64 exec, 1")
    a(f"ds_add_u32 {addr}, v11 offset:{off}")
    a("s_mov_b64 exec, -1")
def lds_wait(a, off, val, tmp, stmp, addr="v10", sleep=1):
    l = a.newlabel("lw"); d = a.newlabel("lwd")
    a.label(l)
    a(f"ds_read_b32 v{tmp}, {addr} offset:{off}")
    a("s_waitcnt lgkmcnt(0)")
    a(f"v_readfirstlane_b32 s{stmp}, v{tmp}")
    a(f"s_cmp_ge_u32 s{stmp}, {val}")
    a(f"s_cbranch_scc1 {d}")
    if sleep: a(f"s_sleep {sleep}")
    a(f"s_branch {l}")
    a.label(d)
def bbar(a, tmp=5):
    a("s_add_u32 s58, s58, 4")
    lds_signal(a, C_BB)
    lds_wait(a, C_BB, "s58", tmp, 51, sleep=2)

def poll_flags(a, voff, soff, nl, t, sleep=2, width=4):
    l = a.newlabel("pf"); d = a.newlabel("pfd")
    a(f"s_mov_b32 s63, {SPIN}")
    a(f"s_mov_b64 exec, {(1 << nl) - 1}")
    a.label(l)
    if width == 4:
        a(f"buffer_load_dwordx4 {vr(t,4)}, v{voff}, s[36:39], {soff} offen sc1")
        a("s_waitcnt vmcnt(0)")
        for i in range(4): a(f"v_xor_b32 v{t+i}, s62, v{t+i}")
        a(f"v_or3_b32 v{t}, v{t}, v{t+1}, v{t+2}")
        a(f"v_or_b32 v{t}, v{t}, v{t+3}")
    else:
        a(f"buffer_load_dword v{t}, v{voff}, s[36:39], {soff} offen sc1")
        a("s_waitcnt vmcnt(0)")
        a(f"v_xor_b32 v{t}, s62, v{t}")
    a(f"v_cmp_ne_u32 vcc, 0, v{t}")
    a("s_nop 1")
    a(f"s_cbranch_vccz {d}")
    a(f"s_sleep {sleep}")
    a("s_sub_u32 s63, s63, 1")
    a("s_cmp_lg_u32 s63, 0")
    a(f"s_cbranch_scc1 {l}")
    a.label(d)
    a("s_mov_b64 exec, -1")

def store_flag(a, soff, t):
    a(f"v_mov_b32 v{t}, s62")
    a(f"v_mov_b32 v{t+1}, 0")
    a("s_mov_b64 exec, 1")
    a(f"buffer_store_dword v{t}, v{t+1}, s[36:39], {soff} offen sc1")
    a("s_mov_b64 exec, -1")

def rowmax16(a, dst, S, init=None):
    if init is None:
        a(f"v_max3_f32 v{dst}, v{S}, v{S+1}, v{S+2}")
        for i in range(3, 15, 2): a(f"v_max3_f32 v{dst}, v{dst}, v{S+i}, v{S+i+1}")
        a(f"v_max_f32 v{dst}, v{dst}, v{S+15}")
    else:
        for i in range(0, 16, 2): a(f"v_max3_f32 v{dst}, v{dst}, v{S+i}, v{S+i+1}")
def xhalf_max(a, dst, tmp):
    a(f"v_mov_b32 v{tmp}, v{dst}")
    a(f"v_permlane32_swap_b32 v{dst}, v{tmp}")
    a(f"v_max_f32 v{dst}, v{dst}, v{tmp}")

def kv_dma(a, sreg, n, first=False):
    for q in range(n):
        if (q & 3) == 0:
            a(f"s_mov_b32 m0, s{sreg}")
            a(f"s_lshr_b32 s51, s{sreg}, 12")
            if not first:
                a("s_add_u32 s51, s51, s59")
                a("s_cmp_ge_u32 s51, 32")
                a("s_cselect_b32 s52, 28, 0")
                a("s_sub_u32 s51, s51, s52")
            a("s_add_u32 s51, s51, s55")
            a("s_and_b32 s51, s51, 31")
            a("s_lshl_b32 s51, s51, 12")
        a(f"buffer_load_dwordx4 v9, s[36:39], s51 offen offset:{(q&3)*1024} sc1 lds")
        if (q & 3) == 3 and q + 1 < n: a(f"s_add_u32 s{sreg}, s{sreg}, 4096")

def kv_job(a, st=None):
    X = 24; W = 88
    lv = a.newlabel("kv_v"); ld = a.newlabel("kv_d")
    def reads(s):
        a(f"ds_read_b128 {vr(X+4*s,4)}, v14 offset:{s*64}")
        for t in range(2):
            a(f"ds_read_b64_tr_b16 {vr(W+4*s+2*t,2)}, v15 offset:{L_WK + s*1024 + t*128}")
    for s in range(4): reads(s)
    for s in range(16):
        if s + 4 < 16:
            reads(s + 4); a("s_waitcnt lgkmcnt(12)")
        else:
            a(f"s_waitcnt lgkmcnt({3*(15-s)})")
        mfma16(a, 20, W+4*s, X+4*s, "0" if s == 0 else 20)
        mfma16(a, 152, X+4*s, W+4*s, "0" if s == 0 else 152)
def kv_store(a):
    a("s_cmp_eq_u32 s45, 0")
    a("s_cselect_b64 vcc, -1, 0")
    a(f"s_mov_b32 s51, {hex((127 + VSC) << 23)}")
    for i in range(4): a(f"v_mul_f32 v{152+i}, s51, v{152+i}")
    for i in range(4): a(f"v_cndmask_b32 v{20+i}, v{152+i}, v{20+i}, vcc")
    a("v_cvt_pk_bf16_f32 v156, v20, v21")
    a("v_cvt_pk_bf16_f32 v157, v22, v23")
    a("v_xor_b32 v158, s62, v156")
    a("v_xor_b32 v159, s62, v157")
    if "nokvfast" not in VAR: a("buffer_store_dwordx4 v[156:159], v17, s[36:39], s54 offen")
    a("buffer_store_dwordx2 v[156:157], v16, s[36:39], s52 offen sc1")
def kv_flag(a):
    a("s_waitcnt vmcnt(0)")
    store_flag(a, "s53", 18)

def kv_setup(a):
    a("v_and_b32 v12, 15, v1")
    a("v_lshrrev_b32 v13, 4, v1")
    a(f"v_mul_u32_u24 v14, {XP}, v12")
    a("v_lshl_add_u32 v14, v13, 4, v14")
    a(f"s_mul_i32 s51, s46, {16*XP}")
    a(f"s_add_u32 s51, s51, {L_XA}")
    a("v_add_u32 v14, s51, v14")
    a("v_lshlrev_b32 v15, 8, v13")
    a("v_lshl_add_u32 v15, v12, 3, v15")
    a("v_and_b32 v16, 1, v13")
    a("s_cmp_eq_u32 s45, 0")
    a("s_cselect_b32 s51, 9, 8")
    a("s_cselect_b32 s52, 8, 9")
    a("s_lshl_b32 s52, s46, s52")
    a("s_lshl_b32 s53, s45, 10")
    a("s_add_u32 s52, s52, s53")
    a("s_lshl_b32 s53, s40, 11")
    a("s_add_u32 s52, s52, s53")
    a("v_lshlrev_b32 v16, s51, v16")
    a("v_lshl_add_u32 v16, v12, 4, v16")
    a("v_lshrrev_b32 v17, 1, v13")
    a("v_lshl_add_u32 v16, v17, 3, v16")
    a("s_lshl_b32 s53, s40, 7")
    a("s_lshl_b32 s54, s41, 2")
    a("s_add_u32 s53, s53, s54")
    a(f"s_add_u32 s53, s53, {W_F1}")
    a("v_lshlrev_b32 v17, 1, v16")
    a("s_lshl_b32 s54, s52, 1")
    a(f"s_add_u32 s54, s54, {W_KF}")

def stouch_setup(a, slot, bw, bx):
    a("s_lshr_b32 s51, s3, 2")
    a(f"s_lshl_b32 s54, {slot}, 3")
    a("s_add_u32 s51, s51, s54")
    a("s_lshl_b32 s51, s51, 10")
    a("s_lshl_b32 s54, s27, 7")
    a("s_add_u32 s51, s51, s54")
    a(f"s_add_u32 s{bw}, s{P_BWQKV}, s51")
    a(f"s_addc_u32 s{bw+1}, s{P_BWQKV+1}, 0")
    a(f"s_add_u32 s{bw+2}, s{bw}, {24*32768}")
    a(f"s_addc_u32 s{bw+3}, s{bw+1}, 0")
    a("s_lshr_b32 s51, s40, 1")
    a("s_lshl_b32 s51, s51, 16")
    a("s_and_b32 s54, s3, 3")
    a("s_lshl_b32 s54, s54, 14")
    a("s_add_u32 s51, s51, s54")
    a(f"s_lshl_b32 s54, {slot}, 12")
    a("s_add_u32 s51, s51, s54")
    a(f"s_add_u32 s{bx}, s{P_BX}, s51")
    a(f"s_addc_u32 s{bx+1}, s{P_BX+1}, 0")
def stouch_list(chunks, bw, bx):
    l = []
    for c in chunks:
        for r in range(4): l.append((f"s[{bx}:{bx+1}]", r*1024 + c*128))
        for i in range(6):
            m = c*6 + i
            l.append((f"s[{bw}:{bw+1}]", m*32768) if m < 24 else (f"s[{bw+2}:{bw+3}]", (m-24)*32768))
    return l

def role_a(a, st):
    FINE = "fine" in VAR
    class F:
        def stamp(self):
            if FINE: st0.stamp()
    st0 = st; fs = F()
    if FINE:
        class N:
            n = 0
            def stamp(self): pass
            def dump(self, *x): st0.dump(*x)
        st = N()
    srd(a, 32, P_AWQ, 512 * 1024)
    S0, S1, O0, O1, C0, C1, P0, P1, Q0, Q1, KB, VB = 16, 32, 48, 64, 80, 96, 112, 120, 128, 132, 136, 144
    a(f"s_bfe_u32 s55, s3, {0x30002 if MAP81 else 0x30001}")
    a("s_cmp_eq_u32 s43, 0")
    a("s_cbranch_scc1 a_kh0")
    a.label("sec_kh0")
    a.label("a_kh0")
    def early_init():
        for i in range(32): a(f"v_mov_b32 v{O0+i}, 0")
        a("s_lshl_b32 s56, s43, 11")
        a("v_add_u32 v2, s56, v9")
        a("v_lshlrev_b32 v3, 8, v7")
        a("v_lshl_add_u32 v3, v6, 4, v3")
        a("v_add_u32 v3, s56, v3")
        a("s_mov_b32 s60, 0x0000ffff")
        a("s_mov_b32 s61, 0x0000ffff")
        a("v_and_b32 v14, 27, v6")
        a("v_cmp_eq_u32 vcc, 16, v14")
        a(f"v_mov_b32 v13, {hex(((127 + VSC) << 7) * 0x10001)}")
        a("v_cndmask_b32 v14, 0, v13, vcc")
        for i in range(8): a(f"v_mov_b32 v{VB+i}, v14")
    XF = 16; WF = 144; ACC = 152
    a(f"v_mul_u32_u24 v4, {XP}, v6")
    a("v_lshl_add_u32 v4, v7, 4, v4")
    a("v_lshlrev_b32 v8, 11, v7")
    a("v_bfe_u32 v5, v1, 2, 2")
    a("v_lshl_add_u32 v8, v5, 8, v8")
    a("v_xor_b32 v5, s42, v5")
    a("v_lshl_add_u32 v8, v5, 6, v8")
    a("v_bfe_u32 v5, v1, 4, 1")
    a("v_lshl_add_u32 v8, v5, 5, v8")
    a("v_and_b32 v5, 3, v1")
    a("v_lshl_add_u32 v8, v5, 3, v8")
    a(f"s_waitcnt vmcnt({0 if 'merge' in VAR else 2}) lgkmcnt(0)")
    a("s_barrier")
    st.stamp()
    if "merge" not in VAR:
        a("s_waitcnt vmcnt(0)")
        a("s_barrier")
    fs.stamp()
    def xload(i):
        a(f"s_add_u32 s51, s55, {i}")
        a("s_and_b32 s51, s51, 7")
        a("s_lshl_b32 s51, s51, 7")
        a("v_add_u32 v5, s51, v4")
        for sp in range(4):
            a(f"ds_read_b128 {vr(XF+16*i+4*sp,4)}, v5 offset:{L_XA + sp*32}")
    for i in range(8): xload(i)
    a("v_add_u32 v5, 16384, v8")
    a("v_add_u32 v15, 115200, v8")
    a("v_add_u32 v8, 66048, v8")
    st.stamp(); fs.stamp()
    a("s_waitcnt lgkmcnt(0)")
    wmap = {}
    free = [144, 148]
    def qread(st_):
        i = st_ >> 2; sp = st_ & 3; sl = WQ_SLOT[i]
        r = free.pop(0); wmap[st_] = r
        base, off = ("v5", sl - 16384) if sl < 66048 else (("v8", sl - 66048) if sl < 115200 else ("v15", sl - 115200))
        for t in range(2):
            a(f"ds_read_b64_tr_b16 {vr(r+2*t,2)}, {base} offset:{off + sp*4096 + t*1024}")
    nr = 0; avail = 0; pend = []
    LEAD = int(VAR.get("lead", 4))
    for st_ in range(32):
        if avail < 32 and (st_ >= avail - LEAD):
            a("s_barrier")
            if FINE: fs.stamp(); a("s_waitcnt lgkmcnt(0)"); pend = []
            avail += 8
        while nr < avail and free and len(pend) <= 12:
            qread(nr); pend += [nr, nr]; nr += 1
            if nr == 32: lds_signal(a, C_QD); pend += [99]
        if st_ in pend:
            k = len(pend) - 1 - max(i for i, x in enumerate(pend) if x == st_)
            a(f"s_waitcnt lgkmcnt({k})")
            pend = pend[len(pend)-k:] if k else []
        mfma32(a, ACC, wmap[st_], XF+4*st_, "0" if st_ == 0 else ACC)
        for r in (wmap[st_], XF+4*st_):
            if not (48 <= r < 80) and (r < 144 or st_ < 6): free.append(r)
        if st_ == 17: early_init()
    st.stamp()
    a(f"s_mov_b32 s51, {CSCALE}")
    a("s_lshl_b32 s53, s42, 11")
    a(f"s_add_u32 s53, s53, {L_QX}")
    a("v_add_u32 v12, s53, v9")
    a("s_lshl_b32 s53, s42, 2")
    a("v_add_u32 v13, s53, v10")
    for i in range(16): a(f"v_mul_f32 v{ACC+i}, s51, v{ACC+i}")
    cvt8(a, Q1, ACC); cvt8(a, Q0, ACC+8)
    a(f"ds_write_b128 v12, {vr(Q1,4)}")
    a(f"ds_write_b128 v12, {vr(Q0,4)} offset:1024")
    lds_signal(a, C_EX, "v13")
    fs.stamp()
    a.label("a_kh1")
    st.n -= 3
    if FINE: st0.n = 1
    a("v_lshrrev_b32 v4, 4, v1")
    a("v_bfe_u32 v5, v1, 2, 2")
    a("v_xor_b32 v5, v5, v4")
    a("v_lshlrev_b32 v3, 10, v4")
    a("v_lshl_add_u32 v3, v5, 6, v3")
    a("v_and_b32 v5, 3, v1")
    a("v_lshl_add_u32 v3, v5, 4, v3")
    a("s_lshl_b32 s48, s42, 14")
    a("s_lshl_b32 s51, s41, 8")
    a("s_add_u32 s48, s48, s51")
    a("s_lshl_b32 s49, s42, 12")
    def op_q(i):
        a(f"s_add_u32 s51, s55, {i}")
        a("s_and_b32 s51, s51, 7")
        a("s_lshl_b32 s51, s51, 16")
        a("s_add_u32 s51, s51, s48")
        for q in range(4):
            a(f"s_add_u32 m0, s49, {WQ_SLOT[i] + q*1024}")
            if q: a("s_add_u32 s51, s51, 4096")
            a("buffer_load_dwordx4 v3, s[32:35], s51 offen lds")
    NPRE = int(VAR.get('npre', 2))
    for i in range(NPRE): op_q(i)
    MERGE = "merge" in VAR
    a(f"s_waitcnt vmcnt({4*NPRE + (0 if MERGE else 2)}) lgkmcnt(0)")
    a("s_barrier")
    st.stamp()
    if not MERGE:
        a(f"s_waitcnt vmcnt({4*NPRE})")
        a("s_barrier")
    fs.stamp()
    nxt = NPRE
    for gq in range(3):
        lim = 6 if gq == 0 else 8
        for _ in range(2):
            if nxt < lim: op_q(nxt); nxt += 1
        a(f"s_waitcnt vmcnt({4*(nxt - 2*gq - 2)})")
        fs.stamp()
        a("s_barrier")
    a("s_waitcnt vmcnt(0)")
    fs.stamp()
    a("s_barrier")
    st.stamp()
    early_init()
    a("s_lshl_b32 s53, s42, 11")
    a(f"s_add_u32 s53, s53, {L_QX}")
    a("v_add_u32 v15, s53, v9")
    a("s_lshl_b32 s53, s42, 2")
    a("v_add_u32 v13, s53, v10")
    lds_wait(a, C_EX, 1, 12, 51, "v13")
    a(f"ds_read_b128 {vr(Q0,4)}, v15")
    a(f"ds_read_b128 {vr(Q1,4)}, v15 offset:1024")
    fs.stamp()
    lds_signal(a, C_QR)
    st.stamp()
    a("s_branch a_join")
    a.label("a_join")
    def tail_setup():
        a("s_xor_b32 s52, s59, 4")
        a("s_mul_i32 s53, s59, 3072")
        a(f"v_add_u32 v160, s53, v9")
        a("s_mul_i32 s53, s52, 3072")
        a(f"v_add_u32 v161, s53, v9")
        a("s_lshl_b32 s53, s59, 2")
        a("v_add_u32 v162, s53, v10")
        a("s_lshl_b32 s53, s52, 2")
        a("v_add_u32 v163, s53, v10")
        a("s_lshl_b32 s57, s42, 1")
        a("s_add_u32 s57, s57, s43")
        a("s_lshl_b32 s58, s40, 5")
        a("s_lshl_b32 s53, s41, 3")
        a("s_add_u32 s53, s53, s58")
        a("s_add_u32 s53, s53, s57")
        a("s_lshl_b32 s53, s53, 10")
        a(f"s_add_u32 s44, s53, {W_OA}")
        a("s_lshl_b32 s57, s57, 10")
        a(f"s_add_u32 s57, s57, {L_OA}")
        a("v_add_u32 v164, s57, v9")
        a(f"s_add_u32 s48, s44, {W_OF - W_OA}")
        a("s_lshl_b32 s57, s59, 10")
        a(f"s_add_u32 s57, s57, {L_OA}")
        a("v_add_u32 v165, s57, v9")
        for d in range(1, 4):
            a(f"s_add_u32 s51, s41, {d}")
            a("s_and_b32 s51, s51, 3")
            a("s_lshl_b32 s51, s51, 3")
            a("s_add_u32 s51, s51, s58")
            a("s_add_u32 s51, s51, s59")
            a("s_lshl_b32 s51, s51, 10")
            a(f"s_add_u32 s{44+d}, s51, {W_OA}")
    for i in range(8, 16): a(f"v_mov_b32 v{VB+i}, v14")
    for i in range(4): a(f"v_mov_b32 v{P1+4+i}, 0")
    st.stamp()
    lds_wait(a, C_ST + 0, 4, 12, 51, sleep=0)
    if FINE: st0.n = 12
    fs.stamp()
    def kvread(b, off):
        a(f"ds_read_b128 {vr(KB+4*b,4)}, v2 offset:{off}")
        a("s_mov_b64 exec, s[60:61]")
        a(f"ds_read_b128 {vr(VB+8*b,4)}, v3 offset:{off+1024}")
        a(f"ds_read_b128 {vr(VB+8*b+4,4)}, v3 offset:{off+1536}")
        a("s_mov_b64 exec, -1")
    a(f"ds_read_b128 {vr(P0,4)}, v9")
    DEEP = "shallow" not in VAR
    def kread(b, off): a(f"ds_read_b128 {vr(KB+4*b,4)}, v2 offset:{off}")
    def vread(b, off):
        a("s_mov_b64 exec, s[60:61]")
        a(f"ds_read_b128 {vr(VB+8*b,4)}, v3 offset:{off+1024}")
        a(f"ds_read_b128 {vr(VB+8*b+4,4)}, v3 offset:{off+1536}")
        a("s_mov_b64 exec, -1")
    kvread(0, 0)
    if DEEP: kread(1, 4096)
    a(f"s_waitcnt lgkmcnt({4 if DEEP else 3})" if not DIAG else "s_waitcnt lgkmcnt(0)")
    mfma32(a, S0, P0, Q0, "0")
    mfma32(a, S1, P0, Q1, "0")
    for S, C in ((S0, C0), (S1, C1)):
        rowmax16(a, 12, S)
        xhalf_max(a, 12, 13)
        a(f"v_sub_f32 v{C}, {BIAS}, v12")
        for i in range(1, 16): a(f"v_mov_b32 v{C+i}, v{C}")
        if S == S0:
            a("s_waitcnt lgkmcnt(0)")
            mfma32(a, S0, KB, Q0, C0)
    st.stamp()
    a("s_mov_b32 s50, 0")
    a(f"s_setprio {VAR.get('ap0', 3)}")
    if DIAG: a("s_waitcnt lgkmcnt(0)")
    a(".p2align 6")
    for _ in range(int(VAR.get("shift", 0))): a("s_nop 0")
    a.label("a_loop")
    def E(S, lo, hi):
        for i in range(lo, hi): a(f"v_exp_f32{VAR.get('enc', '')} v{S+i}, v{S+i}")
    def half(S, P, O, Vx, pvy, snext, w1, post, post2=(), w2=None):
        E(S, 0, 2)
        mfma32(a, *pvy)
        for x in post: x()
        E(S, 2, 8)
        if w1: a("s_waitcnt lgkmcnt(0)")
        mfma32(a, *snext)
        for x in post2: x()
        cvt8(a, P, S)
        E(S, 8, 12)
        if w2 is not None: a(f"s_waitcnt lgkmcnt({w2})")
        mfma32(a, O, Vx, P, O)
        E(S, 12, 16)
        cvt8(a, P+4, S+8)
    HK = {0: [("w", 4)], 1: [("w", 8)], 3: [("p", 2)], 4: [("w", 12)], 5: [("p", 1)], 6: [("p", 0)]}
    VAR.setdefault("pr", "4,6,7")
    if "pr" in VAR:
        for k in list(HK): HK[k] = [x for x in HK[k] if x[0] != "p"]
        for lvl, it in zip((2, 1, 0), VAR["pr"].split(",")): HK.setdefault(int(it), []).append(("p", lvl))
    if "ap0" in VAR: HK = {0: [("w", 4)], 1: [("w", 8)], 3: [("p", 1)], 4: [("w", 12)], 6: [("p", 0)]}
    def hooks():
        a("s_bitcmp1_b32 s50, 2")
        a("s_cbranch_scc1 a_hk_hi")
        a("s_branch a_hk_lo")
        a.label("a_hk_done")
    for t in range(4):
        b = t & 1; nb = b ^ 1
        if DEEP:
            post = [lambda: vread(nb, (t+1)*4096)]
            if t == 2: post = [hooks] + post
            half(S0, P0, O0, VB+8*b, (O1, VB+8*nb+4, P1+4, O1), (S1, KB+4*b, Q1, C1), False, post, [lambda: kread(b, (t+2)*4096)], 3)
            half(S1, P1, O1, VB+8*b, (O0, VB+8*b+4, P0+4, O0), (S0, KB+4*nb, Q0, C0), False, [])
            continue
        post = [lambda: kvread(nb, (t+1)*4096)]
        if t == 3: post = [hooks] + post
        half(S0, P0, O0, VB+8*b, (O1, VB+8*nb+4, P1+4, O1), (S1, KB+4*b, Q1, C1), False, post)
        half(S1, P1, O1, VB+8*b, (O0, VB+8*b+4, P0+4, O0), (S0, KB+4*nb, Q0, C0), True, [])
    a("v_add_u32 v2, 16384, v2")
    a("v_add_u32 v3, 16384, v3")
    a("s_add_u32 s50, s50, 1")
    a("s_cmp_lt_u32 s50, 8")
    a("s_cbranch_scc1 a_loop")
    mfma32(a, O1, VB+8+4, P1+4, O1)
    st.stamp()
    for i in range(2): a(f"ds_write_b128 v160, {vr(O0+4*i,4)} offset:{L_CB + i*1024}")
    a(f"ds_write_b32 v160, v{O0+8} offset:{L_CB + 2048}")
    lds_signal(a, C_CB, "v162")
    a("s_setprio 3")
    lds_wait(a, C_CB, 1, 12, 51, "v163", sleep=int(VAR.get("cbsleep", 0)))
    if "tfine" in VAR: st.stamp()
    for i in range(2): a(f"ds_read_b128 {vr(S0+4*i,4)}, v161 offset:{L_CB + i*1024}")
    a(f"ds_read_b32 v{S0+8}, v161 offset:{L_CB + 2048}")
    a("s_mov_b32 s51, 0x7b800000")
    a(f"s_mov_b32 s53, {hex((127 - 85) << 23)}")
    a("s_waitcnt lgkmcnt(0)")
    a(f"v_add_f32 v{O1+8}, v{O1+8}, v{S0+8}")
    a(f"v_rcp_f32 v14, v{O1+8}")
    for i in range(8): a(f"v_add_f32 v{O1+i}, v{O1+i}, v{S0+i}")
    a(f"v_add_f32 v12, abs(v{O1}), abs(v{O1+1})")
    a(f"v_add_f32 v13, abs(v{O1+2}), abs(v{O1+3})")
    for i in range(4, 8, 2):
        a(f"v_add_f32 v12, v12, abs(v{O1+i})")
        a(f"v_add_f32 v13, v13, abs(v{O1+i+1})")
    a("v_add_f32 v12, v12, v13")
    a(f"v_add_f32 v13, v12, v{O1+8}")
    a("v_cmp_ngt_f32 vcc, s51, v13")
    a("v_cmp_gt_f32 s[64:65], s53, v12")
    a("s_or_b64 vcc, vcc, s[64:65]")
    if "forcefb" in VAR: a("s_mov_b64 vcc, -1")
    a("s_cbranch_vccnz a_fallback")
    a.label("a_norm")
    for i in range(8): a(f"v_mul_f32 v{O1+i}, v{O1+i}, v14")
    cvt8(a, P0, O1)
    for i in range(4): a(f"v_min_u32 v{P0+i}, -2, v{P0+i}")
    if "nofast" not in VAR: a(f"buffer_store_dwordx4 {vr(P0,4)}, v9, s[36:39], s48 offen " + VAR.get("fst", ""))
    lds_wait(a, C_ST + 20, 4, 12, 51, sleep=0)
    a(f"ds_write_b128 v164, {vr(P0,4)}")
    lds_signal(a, C_OF)
    st.stamp()
    a(f"s_mov_b32 s63, {SPIN}")
    a("s_mov_b32 s50, 0")
    a.label("a_poll")
    a(f"s_cmp_lt_u32 s63, {SPIN - int(VAR.get('fastn', 12))}")
    a("s_cselect_b32 s51, s63, 0")
    a("s_bitcmp1_b32 s51, 0")
    a(f"s_cselect_b32 s51, 0, {W_OF - W_OA}")
    a("v_add_u32 v13, s51, v9")
    for d in range(1, 4):
        a(f"buffer_load_dwordx4 {vr(S0+4*(d-1),4)}, v13, s[36:39], s{44+d} offen sc1")
    a("s_sub_u32 s63, s63, 1")
    for d in range(1, 4):
        r = S0 + 4*(d-1)
        nx = a.newlabel("pn")
        a(f"s_waitcnt vmcnt({3-d})")
        a(f"s_bitcmp1_b32 s50, {d}")
        a(f"s_cbranch_scc1 {nx}")
        a(f"v_max3_u32 v12, v{r}, v{r+1}, v{r+2}")
        a(f"v_max_u32 v12, v12, v{r+3}")
        a("v_cmp_eq_u32 vcc, -1, v12")
        a("s_cmp_eq_u32 s63, 0")
        a("s_cselect_b64 vcc, 0, vcc")
        a(f"s_cbranch_vccnz {nx}")
        a(f"ds_write_b128 v165, {vr(r,4)} offset:{d*8192}")
        lds_signal(a, C_OF + 4*d)
        a(f"s_bitset1_b32 s50, {d}")
        a.label(nx)
    a("s_cmp_eq_u32 s50, 14")
    a("s_cbranch_scc1 a_got")
    ls = a.newlabel("sl")
    a(f"s_cmp_eq_u32 s63, {SPIN - int(VAR.get('slown', 4))}")
    a(f"s_cbranch_scc0 {ls}")
    a(f"buffer_store_dwordx4 {vr(P0,4)}, v9, s[36:39], s44 offen sc1")
    a.label(ls)
    if int(VAR.get('tsleep', 0)): a(f"s_sleep {VAR.get('tsleep', 0)}")
    a("s_branch a_poll")
    a.label("a_got")
    if "xnoslow" not in VAR: a(f"buffer_store_dwordx4 {vr(P0,4)}, v9, s[36:39], s44 offen sc1")
    st.stamp()
    if "tfine" in VAR:
        a("s_waitcnt lgkmcnt(0)")
        a(f"s_sub_u32 s72, {SPIN}, s63")
        a("s_add_u32 s72, s72, s70")
    st.dump(None, 0)
    a("s_endpgm")
    def pretouch():
        a(f"v_lshlrev_b32 v13, 7, v1")
        a(f"v_add_u32 v13, {W_OF - W_OA}, v13")
        a("s_mov_b64 exec, 0xff")
        for d in range(1, 4): a(f"buffer_load_dword v166, v13, s[36:39], s{44+d} offen sc1")
        a("s_mov_b64 exec, -1")
    HK[3] = HK.get(3, []) + [("sig", C_PR)]
    HK[2] = [x for x in HK.get(2, []) if x[0] == "p"] + [("f", tail_setup)]
    HK[7] = [x for x in HK.get(7, []) if x[0] == "p"] + [("w", 16), ("w8", C_PR)] + ([("f", pretouch)] if "nopre" not in VAR else [])
    for nm, rng in (("a_hk_lo", range(0, 4)), ("a_hk_hi", range(4, 8))):
        a.label(nm)
        for i in rng:
            if i not in HK: continue
            nx = a.newlabel("hk")
            a(f"s_cmp_eq_u32 s50, {i}")
            a(f"s_cbranch_scc0 {nx}")
            for kind, v in HK[i]:
                if kind == "w": lds_wait(a, C_ST + v, 4, 12, 51)
                elif kind == "sig": lds_signal(a, v)
                elif kind == "f": v()
                elif kind == "w8": lds_wait(a, v, 8, 12, 51)
                elif kind == "s":
                    a("s_cmp_eq_u32 s43, 0")
                    a("s_cbranch_scc0 a_hk_done")
                    a("s_waitcnt vmcnt(0)")
                    lds_signal(a, C_ST + v)
                else: a(f"s_setprio {v}")
            a("s_branch a_hk_done")
            a.label(nx)
        a("s_branch a_hk_done")
    a.label("a_fallback")
    a("v_mov_b32 v12, 0xff800000")
    a("s_mov_b32 s50, 0")
    a.label("a_fb1")
    a(f"buffer_load_dwordx4 {vr(KB,4)}, v9, s[36:39], s50 offen sc1")
    a("s_waitcnt vmcnt(0)")
    mfma32(a, S0, KB, Q1, "0")
    a("s_add_u32 s50, s50, 2048")
    rowmax16(a, 12, S0, init=True)
    a("s_cmp_lt_u32 s50, 0x20000")
    a("s_cbranch_scc1 a_fb1")
    xhalf_max(a, 12, 13)
    a(f"v_sub_f32 v{C0}, 0, v12")
    for i in range(1, 16): a(f"v_mov_b32 v{C0+i}, v{C0}")
    for i in range(16): a(f"v_mov_b32 v{O1+i}, 0")
    a("v_lshlrev_b32 v3, 8, v7")
    a("v_lshl_add_u32 v3, v6, 4, v3")
    a("s_mov_b32 s50, 0")
    a.label("a_fb2")
    a(f"buffer_load_dwordx4 {vr(KB,4)}, v9, s[36:39], s50 offen sc1")
    a("s_mov_b64 exec, s[60:61]")
    a(f"buffer_load_dwordx4 {vr(VB,4)}, v3, s[36:39], s50 offen offset:1024 sc1")
    a(f"buffer_load_dwordx4 {vr(VB+4,4)}, v3, s[36:39], s50 offen offset:1536 sc1")
    a("s_mov_b64 exec, -1")
    a("s_waitcnt vmcnt(0)")
    mfma32(a, S0, KB, Q1, C0)
    a("s_add_u32 s50, s50, 2048")
    E(S0, 0, 16)
    cvt8(a, P0, S0); cvt8(a, P0+4, S0+8)
    mfma32(a, O1, VB, P0, O1)
    mfma32(a, O1, VB+4, P0+4, O1)
    a("s_cmp_lt_u32 s50, 0x20000")
    a("s_cbranch_scc1 a_fb2")
    a(f"v_rcp_f32 v14, v{O1+8}")
    a("s_branch a_norm")

def role_b(a, st):
    def issue_ops(buf):
        o = buf * GB_SZ
        def pre():
            a(f"s_mul_i32 s48, s67, {64*3072}")
            a("s_add_u32 s48, s48, s64")
            a(f"s_add_u32 s47, s48, {8*3072}")
            a("s_lshl_b32 s49, s67, 7")
            a("s_add_u32 s49, s49, s65")
            a("s_add_u32 s66, s49, 8192")
            a("s_add_u32 s67, s67, 1")
            a("s_and_b32 s67, s67, 7")
        ops = [pre]
        for q in range(2):
            def fx(q=q):
                a(f"s_add_u32 m0, s57, {o + q*1040}")
                a(f"buffer_load_dwordx4 v4, s[28:31], {'s66' if q else 's49'} offen lds")
            ops.append(fx)
        for gq in range(2):
            for t in range(3):
                def f(gq=gq, t=t):
                    if t == 0: a(f"s_add_u32 m0, s56, {o + gq*3072}")
                    a(f"buffer_load_dwordx4 v3, s[32:35], {'s47' if gq else 's48'} offen offset:{t*1024} lds")
                ops.append(f)
        return ops
    BST = VAR.get("bstart", "st4")
    if BST == "early":
        for f in issue_ops(0): f()
    lk = a.newlabel("nokv")
    a("v_lshl_add_u32 v5, v1, 2, v10")
    a("v_mov_b32 v12, 0")
    a("ds_write_b32 v5, v12")
    kv_setup(a)
    a("s_waitcnt vmcnt(0) lgkmcnt(0)")
    a("v_readfirstlane_b32 s62, v19")
    a(f"s_add_u32 s62, s62, {TAGC}")
    a("s_barrier")
    a("s_cmp_eq_u32 s26, 3")
    a(f"s_cbranch_scc0 {lk}")
    kv_job(a)
    if "merge" not in VAR: a("s_barrier")
    kv_store(a)
    lk2 = a.newlabel("kvs")
    a(f"s_branch {lk2}")
    a.label(lk)
    if "merge" not in VAR: a("s_barrier")
    a.label(lk2)
    a("s_mov_b32 s45, s27")
    a("s_mov_b32 s58, 0")
    a("s_lshr_b32 s44, s40, 1")
    a("s_and_b32 s42, s26, 1")
    a("s_lshr_b32 s43, s26, 1")
    srd(a, 28, P_BX, 2 << 20)
    srd(a, 32, P_BWQKV, 512 * 3072)
    a("v_lshrrev_b32 v12, 3, v1")
    a("v_and_b32 v13, 7, v1")
    a("v_bfe_u32 v14, v1, 4, 1")
    a("v_lshlrev_b32 v14, 2, v14")
    a("v_xor_b32 v14, v14, v13")
    a("v_mul_u32_u24 v3, 3072, v12")
    a("v_lshl_add_u32 v3, v14, 4, v3")
    a("v_lshlrev_b32 v4, 10, v12")
    a("v_lshl_add_u32 v4, v14, 4, v4")
    a(f"s_mul_i32 s64, s26, {16*3072}")
    a("s_lshl_b32 s51, s27, 7")
    a("s_add_u32 s64, s64, s51")
    a("s_lshl_b32 s65, s44, 16")
    a("s_lshl_b32 s51, s26, 14")
    a("s_add_u32 s65, s65, s51")
    if MAP81:
        a("s_lshr_b32 s67, s3, 3")
        a("s_lshl_b32 s67, s67, 1")
        a("s_add_u32 s67, s67, s3")
    else:
        a("s_lshr_b32 s67, s3, 2")
        a("s_lshl_b32 s51, s3, 1")
        a("s_add_u32 s67, s67, s51")
    a("s_and_b32 s67, s67, 7")
    a("s_mul_i32 s56, s26, 6144")
    a(f"s_add_u32 s56, s56, {L_GB + GB_W}")
    a("s_mul_i32 s57, s26, 2080")
    a(f"s_add_u32 s57, s57, {L_GB + GB_X}")
    a("v_mul_u32_u24 v8, 3072, v7")
    a("v_bfe_u32 v14, v1, 2, 2")
    a("v_lshl_add_u32 v8, v14, 7, v8")
    a("v_bfe_u32 v14, v1, 3, 1")
    a("v_xor_b32 v14, s42, v14")
    a("v_lshl_add_u32 v8, v14, 6, v8")
    a("v_bfe_u32 v14, v1, 4, 1")
    a("v_lshl_add_u32 v8, v14, 5, v8")
    a("v_and_b32 v14, 3, v1")
    a("v_lshl_add_u32 v8, v14, 3, v8")
    a(f"v_add_u32 v8, {L_GB + GB_W}, v8")
    XM = 152
    a("v_bfe_u32 v14, v1, 1, 1")
    a("v_lshlrev_b32 v14, 2, v14")
    a("v_or_b32 v14, v14, v7")
    a("v_lshlrev_b32 v14, 4, v14")
    a("v_and_b32 v15, 7, v1")
    a("v_lshl_add_u32 v14, v15, 7, v14")
    a("v_xor_b32 v15, 64, v14")
    a("v_lshrrev_b32 v16, 3, v6")
    a("v_mul_u32_u24 v16, 1040, v16")
    a("s_mul_i32 s51, s43, 4160")
    a(f"s_add_u32 s51, s51, {L_GB + GB_X}")
    a(f"v_add3_u32 v{XM}, v14, v16, s51")
    a(f"v_add3_u32 v{XM+1}, v15, v16, s51")
    ACC = 20; WF = 84; XF = 108
    for i in range(48): a(f"v_mov_b32 v{ACC+i}, 0")
    for i in range(16): a(f"v_mov_b32 v{WF+12+i if i < 12 else XF+4+i-12}, 0")
    a("s_barrier")
    lk3 = a.newlabel("kvf")
    a("s_cmp_eq_u32 s26, 3")
    a(f"s_cbranch_scc0 {lk3}")
    kv_flag(a)
    a.label(lk3)
    st.stamp()
    a("s_barrier")
    MM = 124; MH = 132
    a("v_lshlrev_b32 v5, 2, v7")
    a("v_sub_u32 v5, v6, v5")
    a("v_add_u32 v5, 18, v5")
    a("v_mov_b32 v14, 0x5555")
    a("v_mov_b32 v15, 0")
    a("v_lshlrev_b64 v[14:15], v5, v[14:15]")
    a("s_or_b32 s51, s44, s43")
    a("s_cmp_eq_u32 s51, 0")
    a("s_cselect_b32 s51, 0, -1")
    a("v_and_b32 v14, s51, v14")
    a("v_not_b32 v14, v14")
    a("v_not_b32 v15, v15")
    for r in range(16):
        idx = 8*(r >> 2) + (r & 3)
        a(f"v_bfe_i32 v{MM+r}, v15, {idx}, 1")
        a(f"v_lshlrev_b32 v{MM+r}, 23, v{MM+r}")
        if r >= 8:
            a(f"v_bfe_i32 v{MH+r}, v14, {idx}, 1")
            a(f"v_lshlrev_b32 v{MH+r}, 23, v{MH+r}")
    def read_ops(buf, sp, fb):
        r = []
        for t3 in range(3):
            for t in range(2):
                r.append(f"ds_read_b64_tr_b16 {vr(WF+12*fb+4*t3+2*t,2)}, v8 offset:{buf*GB_SZ + sp*6144 + t3*1024 + t*512}")
        r.insert(2, f"ds_read_b128 {vr(XF+4*fb,4)}, v{XM+(sp>>1)} offset:{buf*GB_SZ + (sp&1)*32}")
        return r
    def mm(fb, k):
        w = WF + 12*fb; x = XF + 4*fb
        if "nomm" in VAR: return
        if k == 0: mfma32(a, ACC, w, x, ACC)
        elif k == 1: mfma32(a, ACC+16, w+4, x, ACC+16)
        else: mfma32(a, ACC+32, x, w+8, ACC+32)
    a("s_lshr_b32 s55, s40, 3")
    a("s_lshl_b32 s55, s55, 2")
    a("s_cmp_ge_u32 s3, 28")
    a("s_cselect_b32 s51, 28, 0")
    a("s_sub_u32 s59, s3, s51")
    a("s_add_u32 s53, s55, s26")
    a("s_lshl_b32 s53, s53, 13")
    a(f"s_add_u32 s53, s53, {W_KF}")
    a("s_add_u32 s52, s53, 4096")
    a("s_lshl_b32 s51, s26, 12")
    a("v_lshlrev_b32 v13, 3, v1")
    a("v_add_u32 v13, s51, v13")
    FQ = [68, 72, 76, 80, 84, 88, 92, 108]
    def kf_loads():
        for i, r in enumerate(FQ):
            a(f"buffer_load_dwordx4 {vr(r,4)}, v9, s[36:39], {'s53' if i < 4 else 's52'} offen offset:{(i&3)*1024} sc1")
    a(f"s_mov_b32 s63, {int(VAR.get('kfn', 3))}")
    a("s_mov_b32 s46, 0")
    a("s_barrier")
    kf_loads()
    a("s_barrier")
    st.stamp()
    a.label("b_kf")
    a("v_mov_b32 v14, 0")
    for i, r in enumerate(FQ):
        a(f"s_waitcnt vmcnt({7-i})")
        a(f"ds_write_b64 v13, {vr(r,2)} offset:{L_WK + i*512}")
        a(f"v_xor_b32 v15, v{r}, v{r+2}")
        a(f"v_xor_b32 v16, v{r+1}, v{r+3}")
        a("v_xor_b32 v15, s62, v15")
        a("v_xor_b32 v16, s62, v16")
        a("v_or3_b32 v14, v14, v15, v16")
    a("v_cmp_ne_u32 vcc, 0, v14")
    a("s_nop 1")
    a("s_cbranch_vccz b_kf_ok")
    a("s_sub_u32 s63, s63, 1")
    a("s_cbranch_scc1 b_kf_done")
    kf_loads()
    a("s_branch b_kf")
    a.label("b_kf_ok")
    lds_signal(a, C_ST + 0)
    a("s_mov_b32 s46, 1")
    a.label("b_kf_done")
    st.stamp()
    a("v_lshlrev_b32 v15, 7, v1")
    a("s_lshl_b32 s54, s26, 11")
    a(f"s_add_u32 s54, s54, {W_F1}")
    poll_flags(a, 15, "s54", 16, 16, sleep=int(VAR.get("psleep", 4)))
    bbar(a)
    lf = a.newlabel("kfok")
    a("s_cmp_eq_u32 s46, 1")
    a(f"s_cbranch_scc1 {lf}")
    a("s_lshl_b32 s53, s26, 12")
    kv_dma(a, 53, 4, first=True)
    a("s_waitcnt vmcnt(0)")
    lds_signal(a, C_ST + 0)
    a.label(lf)
    lds_wait(a, C_QD, 4, 5, 51)
    for k in range(1, 5):
        a("s_lshl_b32 s53, s26, 12")
        a(f"s_add_u32 s53, s53, {k*16384}")
        kv_dma(a, 53, 4)
        if k == 2:
            a("s_waitcnt vmcnt(4)")
            lds_signal(a, C_ST + 4)
    a("s_cmp_eq_u32 s43, 0")
    a(f"s_cselect_b32 s4, s{P_BWO}, s{P_AWO}")
    a(f"s_cselect_b32 s5, s{P_BWO+1}, s{P_AWO+1}")
    a("s_mov_b32 s6, 0x80000")
    a("s_mov_b32 s7, 0x20000")
    a("s_lshl_b32 s51, s3, 1")
    a("s_add_u32 s51, s51, s42")
    a("s_lshl_b32 s51, s51, 13")
    if MAP81: a("v_lshlrev_b32 v14, 7, v1")
    else:
        a("s_lshr_b32 s54, s41, 1")
        a("s_lshl_b32 s54, s54, 9")
        a("s_add_u32 s51, s51, s54")
        a("v_lshrrev_b32 v14, 2, v6")
        a("v_lshlrev_b32 v14, 10, v14")
        a("v_and_b32 v15, 3, v1")
        a("v_lshl_add_u32 v14, v15, 7, v14")
    a("buffer_load_dword v160, v14, s[4:7], s51 offen")
    for f in issue_ops(0): f()
    a("s_waitcnt vmcnt(9)")
    lds_signal(a, C_ST + 8)
    a(f"s_setprio {VAR.get('bprio', 3)}")
    st.stamp()
    a("s_mov_b32 s50, 0")
    a("s_branch b_loop")
    a.label("b_loop")
    for buf in range(2):
        mm(1, 0)
        a("s_waitcnt vmcnt(0)")
        a("s_add_u32 s58, s58, 4")
        lds_signal(a, C_BB)
        mm(1, 1)
        ops = issue_ops(buf ^ 1)
        if buf == 1:
            a("s_cmp_eq_u32 s50, 3")
            a("s_cselect_b32 s64, 0x7f000000, s64")
            a("s_cselect_b32 s65, 0x7f000000, s65")
            for r in (56, 57): a(f"s_cselect_b32 s{r}, 0x30000, s{r}")
        ops[0]()
        lds_wait(a, C_BB, "s58", 5, 51, sleep=int(VAR.get("bsleep", 0)))
        for x in read_ops(buf, 0, 0): a(x)
        mm(1, 2)
        oi = 1
        for _ in range(3): ops[oi](); oi += 1
        for sp in range(3):
            for x in read_ops(buf, sp+1, (sp+1) & 1): a(x)
            a("s_waitcnt lgkmcnt(7)")
            for k in range(3):
                mm(sp & 1, k)
                for _ in range(2):
                    if oi < len(ops): ops[oi](); oi += 1
        a("s_waitcnt lgkmcnt(0)")
    a("s_add_u32 s50, s50, 1")
    a("s_cmp_lt_u32 s50, 4")
    a("s_cbranch_scc1 b_loop")
    a.label("b_gend")
    for k in range(3): mm(1, k)
    a("s_setprio 3")
    st.stamp()
    QF = 84; KF = 92; VF = 100; KH = 108; VH = 116
    cvt8(a, KF, ACC+16); cvt8(a, KF+4, ACC+24)
    cvt8(a, VF, ACC+32); cvt8(a, VF+4, ACC+40)
    a("s_mul_i32 s51, s42, 3072")
    a(f"s_add_u32 s51, s51, {L_BEX}")
    a("v_add_u32 v13, s51, v9")
    a("s_lshl_b32 s52, s44, 3")
    a("s_add_u32 s52, s52, s45")
    a("s_lshl_b32 s53, s52, 1")
    a("s_add_u32 s53, s53, s42")
    a("s_mul_i32 s53, s53, 3072")
    a(f"s_add_u32 s53, s53, {W_HALO}")
    a("s_lshl_b32 s52, s52, 7")
    a("s_lshl_b32 s51, s42, 2")
    a("s_add_u32 s52, s52, s51")
    a(f"s_add_u32 s52, s52, {W_F2}")
    l1 = a.newlabel("b_w1"); l2 = a.newlabel("b_w2")
    a("s_cmp_eq_u32 s43, 0")
    a(f"s_cbranch_scc0 {l1}")
    lds_wait(a, C_QR, 4, 5, 51, sleep=2)
    a(f"ds_write_b128 v13, {vr(KF,4)}")
    a(f"ds_write_b128 v13, {vr(KF+4,4)} offset:1024")
    a(f"ds_write_b128 v13, {vr(VF+4,4)} offset:2048")
    a(f"s_branch {l2}")
    a.label(l1)
    a(f"buffer_store_dwordx4 {vr(KF,4)}, v9, s[36:39], s53 offen sc1")
    a(f"buffer_store_dwordx4 {vr(KF+4,4)}, v9, s[36:39], s53 offen offset:1024 sc1")
    a(f"buffer_store_dwordx4 {vr(VF+4,4)}, v9, s[36:39], s53 offen offset:2048 sc1")
    a("s_waitcnt vmcnt(0)")
    store_flag(a, "s52", 14)
    a.label(l2)
    bbar(a)
    a("s_mov_b32 s60, s52")
    a("s_mul_i32 s54, s26, 12288")
    a("s_add_u32 s54, s54, 81920")
    kv_dma(a, 54, 12)
    a("s_mov_b32 s52, s60")
    l1 = a.newlabel("b_x1"); l2 = a.newlabel("b_x2")
    a("s_or_b32 s51, s44, 0")
    a("s_cselect_b32 s51, s43, 1")
    a("s_cmp_eq_u32 s51, 0")
    a(f"s_cbranch_scc0 {l1}")
    a(f"s_sub_u32 s52, s52, {8*128}")
    a(f"s_sub_u32 s53, s53, {16*3072}")
    a("v_mov_b32 v5, 0")
    poll_flags(a, 5, "s52", 1, 14, sleep=6, width=1)
    a(f"buffer_load_dwordx4 {vr(KH,4)}, v9, s[36:39], s53 offen sc1")
    a(f"buffer_load_dwordx4 {vr(KH+4,4)}, v9, s[36:39], s53 offen offset:1024 sc1")
    a(f"buffer_load_dwordx4 {vr(VH,4)}, v9, s[36:39], s53 offen offset:2048 sc1")
    a("s_waitcnt vmcnt(0)")
    a(f"s_branch {l2}")
    a.label(l1)
    a(f"ds_read_b128 {vr(KH,4)}, v13")
    a(f"ds_read_b128 {vr(KH+4,4)}, v13 offset:1024")
    a(f"ds_read_b128 {vr(VH,4)}, v13 offset:2048")
    a.label(l2)
    lsn = a.newlabel("nosn")
    a("s_and_b32 s51, s40, 1")
    a("s_cmp_eq_u32 s51, s43")
    a(f"s_cbranch_scc0 {lsn}")
    a("s_lshl_b32 s51, s40, 2")
    a("s_add_u32 s51, s51, s41")
    a("s_lshl_b32 s51, s51, 1")
    a("s_add_u32 s51, s51, s42")
    a("s_lshl_b32 s51, s51, 12")
    a(f"s_add_u32 s51, s51, {W_OA}")
    for i in range(4): a(f"v_mov_b32 v{120+i}, -1")
    for i in range(4 if "xnoslow" not in VAR else 0): a(f"buffer_store_dwordx4 v[120:123], v9, s[36:39], s51 offen offset:{i*1024} sc1")
    a(f"s_add_u32 s51, s51, {W_OF - W_OA}")
    for i in range(4): a(f"buffer_store_dwordx4 v[120:123], v9, s[36:39], s51 offen offset:{i*1024} sc1")
    a.label(lsn)
    cvt8(a, QF, ACC); cvt8(a, QF+4, ACC+8)
    a("s_lshl_b32 s52, s44, 1")
    a("s_add_u32 s52, s52, s43")
    a("s_lshl_b32 s55, s52, 4")
    a("s_lshl_b32 s53, s45, 1")
    a("s_add_u32 s53, s53, s42")
    a("s_add_u32 s55, s55, s53")
    a("s_lshl_b32 s55, s55, 11")
    a(f"s_add_u32 s55, s55, {W_OB}")
    a("s_lshl_b32 s57, s52, 9")
    a("s_lshr_b32 s51, s53, 2")
    a("s_lshl_b32 s51, s51, 7")
    a("s_add_u32 s57, s57, s51")
    a("s_and_b32 s51, s53, 3")
    a("s_lshl_b32 s51, s51, 2")
    a("s_add_u32 s57, s57, s51")
    a(f"s_add_u32 s57, s57, {W_F3}")
    a("s_waitcnt lgkmcnt(0)")
    SM = 20; SH = 36; O = 52; PP = 68; T = 152
    a(f"s_mov_b32 s46, {CSCALE}")
    for hd in range(2 if "nolocal" not in VAR else 0):
        mfma32(a, SM, KF+4*hd, QF+4*hd, MM)
        mfma32(a, SH, KH+4*hd, QF+4*hd, MH)
        if hd == 1:
            a("s_waitcnt vmcnt(1)")
            lds_signal(a, C_ST + 12)
        vals = [SM+i for i in range(16)] + [SH+8+i for i in range(8)]
        a(f"v_max3_f32 v{T}, v{vals[0]}, v{vals[1]}, v{vals[2]}")
        for i in range(3, 23, 2):
            a(f"v_max3_f32 v{T}, v{T}, v{vals[i]}, v{vals[i+1]}")
        a(f"v_max_f32 v{T}, v{T}, v{vals[23]}")
        xhalf_max(a, T, T+1)
        a(f"v_mul_f32 v{T}, s46, v{T}")
        for v in vals: a(f"v_fma_f32 v{v}, v{v}, s46, -v{T}")
        for v in vals: a(f"v_exp_f32 v{v}, v{v}")
        a(f"v_add_f32 v{T+2}, v{vals[0]}, v{vals[1]}")
        for v in vals[2:]: a(f"v_add_f32 v{T+2}, v{T+2}, v{v}")
        cvt8(a, PP, SM); cvt8(a, PP+4, SM+8); cvt8(a, PP+8, SH+8)
        a(f"v_mov_b32 v{T+3}, v{T+2}")
        a(f"v_permlane32_swap_b32 v{T+2}, v{T+3}")
        mfma32(a, O, VF, PP, "0")
        mfma32(a, O, VF+4, PP+4, O)
        mfma32(a, O, VH, PP+8, O)
        a(f"v_add_f32 v{T+2}, v{T+2}, v{T+3}")
        a(f"v_rcp_f32 v{T+2}, v{T+2}")
        for i in range(8): a(f"v_mul_f32 v{O+8*hd+i}, v{O+8*hd+i}, v{T+2}")
        cvt8(a, T+4+4*hd, O+8*hd)
        a(f"buffer_store_dwordx4 {vr(T+4+4*hd,4)}, v9, s[36:39], s55 offen offset:{hd*1024} sc1")
    a("s_waitcnt vmcnt(0)")
    store_flag(a, "s57", 12)
    st.stamp()
    srd(a, 32, P_BWO, 512 * 1024)
    srd(a, 28, P_OUT, 4 << 20)
    a("s_lshl_b32 s47, s41, 8")
    a("s_lshl_b32 s51, s26, 6")
    a("s_add_u32 s47, s47, s51")
    a("v_lshrrev_b32 v3, 2, v1")
    a("v_lshlrev_b32 v3, 10, v3")
    a("v_and_b32 v4, 3, v1")
    a("v_lshl_add_u32 v3, v4, 4, v3")
    a("v_add_u32 v3, s47, v3")
    tr_base_wo(a, 8, 4)
    a("s_mul_i32 s56, s26, 7168")
    a(f"s_add_u32 s56, s56, {L_COMB}")
    a("v_add_u32 v8, s56, v8")
    a("v_lshlrev_b32 v4, 11, v6")
    a("v_lshl_add_u32 v4, v7, 4, v4")
    a("s_lshl_b32 s51, s40, 16")
    a("s_add_u32 s47, s47, s51")
    ACC = 12; OB = 28; WL = 40
    a("s_mov_b32 s48, 0")
    bbar(a)
    R = 7
    def wissue(i):
        a(f"s_add_u32 m0, s56, {(i%R)*1024}")
        a(f"buffer_load_dwordx4 v3, s[32:35], s48 offen lds")
        a("s_add_u32 s48, s48, 16384")
        a("s_and_b32 s48, s48, 0x7ffff")
    def trr(i):
        for t in range(2): a(f"ds_read_b64_tr_b16 {vr(WL+4*i+2*t,2)}, v8 offset:{(i%R)*1024 + t*512}")
    for i in range(R): wissue(i)
    for i in range(32):
        a(f"s_waitcnt vmcnt({R-1 if i == 0 else min(R-2, 31-i)})")
        trr(i)
        if i >= 1 and i + R - 1 < 32:
            a("s_waitcnt lgkmcnt(2)")
            wissue(i + R - 1)
    def run(lo, hi, addr, off0):
        o = lambda i: (i - off0) * 1024
        for i in range(lo, min(lo+2, hi)): a(f"ds_read_b128 {vr(OB+4*(i%3),4)}, {addr} offset:{o(i)}")
        for i in range(lo, hi):
            if i + 2 < hi:
                a(f"ds_read_b128 {vr(OB+4*((i+2)%3),4)}, {addr} offset:{o(i+2)}")
                a("s_waitcnt lgkmcnt(2)")
            else:
                a(f"s_waitcnt lgkmcnt({hi-1-i})")
            mfma32(a, ACC, WL+4*i, OB+4*(i%3), "0" if i == 0 else ACC)
    a("v_lshlrev_b32 v5, 7, v1")
    a("s_lshl_b32 s57, s40, 9")
    a(f"s_add_u32 s57, s57, {W_F3}")
    poll_flags(a, 5, "s57", 4, 28, sleep=8)
    lds_signal(a, C_ST + 16)
    st.stamp()
    lds_wait(a, C_PR, 8, 5, 51, sleep=8)
    a("s_lshl_b32 s49, s40, 15")
    a("s_lshl_b32 s51, s26, 13")
    a("s_add_u32 s49, s49, s51")
    a(f"s_add_u32 s49, s49, {W_OB}")
    a(f"s_add_u32 s46, s51, {L_OA}")
    for q in range(8):
        if (q & 3) == 0:
            a(f"s_add_u32 m0, s46, {q*1024}")
            if q: a("s_add_u32 s49, s49, 4096")
        a(f"buffer_load_dwordx4 v9, s[36:39], s49 offen offset:{(q&3)*1024} sc1 lds")
    srd(a, 32, P_AWO, 512 * 1024)
    a("s_lshl_b32 s48, s41, 17")
    for i in range(R): wissue(i)
    a(f"v_add_u32 v0, {L_OA}, v9")
    a(f"s_waitcnt vmcnt({R})")
    bbar(a)
    def ord_(i): a(f"ds_read_b128 {vr(OB+4*(i%3),4)}, v0 offset:{i*1024}")
    ord_(0); ord_(1)
    q = ["o0", "o1"]
    def lw(tag):
        k = len(q) - 1 - max(j for j, x in enumerate(q) if x == tag)
        a(f"s_waitcnt lgkmcnt({k})")
        del q[:len(q)-k]
    for i in range(32):
        if i + 2 < 32: ord_(i + 2); q.append(f"o{i+2}")
        if i == 29: lds_signal(a, C_ST + 20); q.append("sig")
        if f"o{i}" in q: lw(f"o{i}")
        mfma32(a, ACC, WL+4*i, OB+4*(i%3), "0" if i == 0 else ACC)
        if i >= 2 and i + R - 2 < 32:
            if f"t{i-2}" in q: lw(f"t{i-2}")
            wissue(i + R - 2)
        issued = min(31, max(R - 1, i + R - 2))
        a(f"s_waitcnt vmcnt({issued - i})")
        trr(i); q += [f"t{i}", f"t{i}"]
    cvt8(a, 28, ACC); cvt8(a, 32, ACC+8)
    a("buffer_store_dwordx4 v[28:31], v4, s[28:31], s47 offen offset:1024 " + VAR.get("stb", "nt"))
    a("buffer_store_dwordx4 v[32:35], v4, s[28:31], s47 offen offset:1056 " + VAR.get("stb", "nt"))
    st.stamp()
    a.label("b_tail")
    st.stamp()
    le = a.newlabel("ep")
    a("s_or_b32 s51, s2, s26")
    a("s_cmp_eq_u32 s51, 0")
    a(f"s_cbranch_scc0 {le}")
    a(f"s_mov_b32 s51, {W_EP}")
    store_flag(a, "s51", 28)
    a.label(le)
    a(f"v_add_u32 v0, {L_OA}, v9")
    lds_wait(a, C_CB + 0, 1, 5, 51, sleep=16)
    def rd(i): a(f"ds_read_b128 {vr(WL+4*(i-8),4)}, v0 offset:{i*1024}")
    lds_wait(a, C_OF, 8, 5, 51, sleep=0)
    if "tfine" in VAR: st.n = 5; st.stamp(); a("s_waitcnt lgkmcnt(0)")
    run(0, 8, "v0", 0)
    lds_wait(a, C_OF + 4, 8, 5, 51, sleep=0)
    if "tfine" in VAR: st.stamp(); a("s_waitcnt lgkmcnt(0)")
    for i in range(8, 16): rd(i)
    NE = int(VAR.get("ne", 3))
    for i in range(8, 8 + NE):
        a(f"s_waitcnt lgkmcnt({15 - i})")
        mfma32(a, ACC, WL+4*i, WL+4*(i-8), ACC)
        if i == 8: a(f"ds_read_b64 v[28:29], v10 offset:{C_OF + 8}")
    a("s_waitcnt lgkmcnt(0)")
    a("v_min_u32 v28, v28, v29")
    a("v_readfirstlane_b32 s51, v28")
    a("s_cmp_ge_u32 s51, 8")
    a("s_cbranch_scc0 b_slowtail")
    for i in range(8, 8 + NE): rd(i + 8)
    for i in range(8 + NE, 32):
        if i >= 16: a(f"s_waitcnt lgkmcnt({min(7, 31 - i)})")
        mfma32(a, ACC, WL+4*i, WL+4*(i-8), ACC)
        if i + 8 < 32: rd(i + 8)
    a.label("b_fin")
    cvt8(a, 28, ACC); cvt8(a, 32, ACC+8)
    a("buffer_store_dwordx4 v[28:31], v4, s[28:31], s47 offen " + VAR.get("sta", "nt"))
    a("buffer_store_dwordx4 v[32:35], v4, s[28:31], s47 offen offset:32 " + VAR.get("sta", "nt"))
    if DIAG:
        if "tfine" in VAR: st.stamp()
        a("s_waitcnt vmcnt(0)")
        st.stamp()
        st.dump(None, 0)
    a("s_endpgm")
    a.label("b_slowtail")
    for d in range(1, 4):
        if d > 1:
            lds_wait(a, C_OF + 4*d, 8, 5, 51, sleep=0)
            for i in range(8*d, 8*d + 8): rd(i)
        for i in range(8*d + (NE if d == 1 else 0), 8*d + 8):
            a(f"s_waitcnt lgkmcnt({8*d + 7 - i})")
            mfma32(a, ACC, WL+4*i, WL+4*(i-8), ACC)
    a("s_branch b_fin")

def pre_a(a):
    a("s_sub_u32 s59, s26, 4")
    a("s_and_b32 s42, s59, 3")
    a("s_lshr_b32 s43, s59, 2")
    a("s_lshr_b32 s46, s41, 1")
    a("s_lshl_b32 s49, s46, 4")
    a("s_lshl_b32 s48, s59, 1")
    a("s_add_u32 s49, s49, s48")
    a("s_xor_b32 s51, s49, 16")
    a("s_lshl_b32 s52, s40, 5")
    a("s_add_u32 s48, s52, s49")
    a("s_lshl_b32 s48, s48, 10")
    a("s_xor_b32 s50, s48, 16384")
    a(f"s_mul_i32 s49, s49, {XP}")
    a(f"s_mul_i32 s51, s51, {XP}")
    a("s_mov_b32 s30, 0x200000")
    a("s_mov_b32 s31, 0x20000")
    a(f"s_add_u32 m0, s49, {L_XA}")
    a("s_waitcnt lgkmcnt(0)")
    a(f"s_mov_b32 s28, s{P_AX}")
    a(f"s_mov_b32 s29, s{P_AX+1}")
    for k, (so, lb) in enumerate((("s48", "s49"), ("s50", "s51"))):
        for q in range(2):
            if k or q: a(f"s_add_u32 m0, {lb}, {L_XA + q*XP - q*1024}")
            a(f"buffer_load_dwordx4 v9, s[28:31], {so} offen offset:{q*1024} lds")
    srd(a, 36, P_WS, W_USED)
def pre_b(a):
    a("s_setprio 3")
    a("s_and_b32 s45, s41, 1")
    a("s_lshr_b32 s46, s41, 1")
    a("s_mov_b32 s30, 16384")
    a("s_mov_b32 s31, 0x20000")
    a("s_lshl_b32 s51, s26, 12")
    a(f"s_add_u32 m0, s51, {L_WK}")
    a(f"v_mov_b32 v18, {W_EP}")
    a("s_cmp_eq_u32 s45, 0")
    a("s_waitcnt lgkmcnt(0)")
    a(f"s_cselect_b32 s28, s{P_AWK}, s{P_AWV}")
    a(f"s_cselect_b32 s29, s{P_AWK+1}, s{P_AWV+1}")
    for q in range(4):
        a(f"buffer_load_dwordx4 v9, s[28:31], s51 offen offset:{q*1024} lds")
    srd(a, 36, P_WS, W_USED)
    a("buffer_load_dword v19, v18, s[36:39], 0 offen sc1")

def kernel():
    a = Asm(); n = NAME + "_kernel"
    a.label(n)
    a("s_cmp_ge_u32 s2, 256")
    a("s_cbranch_scc1 k_exit")
    load_ptrs(a)
    sta = Stamps(a, DIAG, real='--cyc' not in sys.argv); stb = Stamps(a, DIAG, real='--cyc' not in sys.argv)
    sta.stamp(); stb.n = sta.n
    VAR.setdefault("cpf", 160)
    if int(VAR["cpf"]):
        a("s_getpc_b64 s[32:33]")
        a("v_lshlrev_b32 v3, 7, v0")
        a(f"v_cmp_gt_u32 vcc, {int(VAR['cpf'])}, v0")
        a("s_and_saveexec_b64 s[34:35], vcc")
        a("s_cbranch_execz k_nopf")
        a("global_load_dword v167, v3, s[32:33]")
        a.label("k_nopf")
        a("s_mov_b64 exec, s[34:35]")
    a("v_and_b32 v1, 63, v0")
    a("v_lshrrev_b32 v2, 6, v0")
    a("v_readfirstlane_b32 s26, v2")
    a("s_and_b32 s27, s2, 7")
    a("s_lshr_b32 s3, s2, 3")
    if MAP81:
        a("s_lshl_b32 s40, s27, 3")
        a("s_lshr_b32 s41, s3, 2")
        a("s_add_u32 s40, s40, s41")
        a("s_and_b32 s41, s3, 3")
    else:
        a("s_lshr_b32 s40, s27, 1")
        a("s_lshl_b32 s40, s40, 4")
        a("s_lshr_b32 s41, s3, 1")
        a("s_add_u32 s40, s40, s41")
        a("s_and_b32 s41, s27, 1")
        a("s_lshl_b32 s41, s41, 1")
        a("s_and_b32 s27, s3, 1")
        a("s_add_u32 s41, s41, s27")
    a("s_lshl_b32 s27, s41, 1")
    a("s_and_b32 s51, s40, 1")
    a("s_add_u32 s27, s27, s51")
    a("v_and_b32 v6, 31, v1")
    a("v_lshrrev_b32 v7, 5, v1")
    a("v_lshlrev_b32 v9, 4, v1")
    a(f"v_mov_b32 v10, {L_CNT}")
    a("v_mov_b32 v11, 1")
    a("s_cmp_lt_u32 s26, 4")
    a("s_cbranch_scc0 pre_a")
    pre_b(a)
    a("s_barrier")
    a("s_branch role_b")
    a.label("pre_a")
    pre_a(a)
    a("s_barrier")
    role_a(a, sta)
    a.label("role_b")
    role_b(a, stb)
    a.label("k_exit")
    a("s_endpgm")
    idx = {x.label: i for i, x in enumerate(a.ins) if x.label}
    I = a.ins
    head = I[:idx["sec_kh0"]]; kh0 = I[idx["sec_kh0"]:idx["a_kh1"]]; kh1 = I[idx["a_kh1"]:idx["a_join"]]
    rest_a = I[idx["a_join"]:idx["role_b"]]; b_early = I[idx["role_b"]:idx["b_loop"]]; rest_b = I[idx["b_loop"]:]
    a.ins = head + kh1 + b_early + kh0 + rest_a + rest_b
    return (n, a, 256, 768, LDS_SIZE, 168)

if __name__ == "__main__":
    write_file(sys.argv[1], [kernel()])
```

```python
import sys
from common import *
DIAG = "--diag" in sys.argv
VAR = dict((x[2:].split("=")+[1])[:2] for x in sys.argv if x.startswith("-V"))

W_KV = 0
W_F1 = 0x20000
W_F2 = 0x28000
W_F3 = 0x30000
W_EP = 0x3F000
W_KF = 0x40000
W_OA = 1 << 20
W_OB = 3 << 20
W_HALO = 5 << 20
W_OF = 10 << 20
W_USED = 16 << 20
L_XA = 16384
L_WK = 0
WQ_SLOT = [49664 + 16384*i for i in range(6)] + [16384, 32768]
L_GB = 97792
GB_W, GB_X, GB_SZ = 0, 24576, 32896
L_COMB = 131072
L_QX = 155392
L_BEX = 155648
L_CNT = 163584
LDS_SIZE = 163840
C_BB, C_ST, C_EX, C_XA, C_QB, C_QC, C_QD, C_XD = 4, 16, 40, 72, 76, 92, 96, 100
C_ISS, C_QR = 8, 12
C_PR, C_CB, C_OF = 104, 112, 144
L_CB = 0
L_OB = 24576
L_OA = 65536
C_PR2 = 108
BIAS = VAR.get("bias", "0xc2c80000")
VSC = 40
MAP81 = 'map24' not in VAR
XP = 1040
TAGC = 0x9E3779B9 - (1 << 32)
SPIN = 40000

def cvt8(a, dst, src):
    for i in range(4):
        a(f"v_cvt_pk_bf16_f32 v{dst+i}, v{src+2*i}, v{src+2*i+1}")

def tr_base32(a, dst, tmp):
    a(f"v_lshlrev_b32 v{dst}, 9, v7")
    a(f"v_bfe_u32 v{tmp}, v1, 2, 2")
    a(f"v_lshl_add_u32 v{dst}, v{tmp}, 6, v{dst}")
    a(f"v_bfe_u32 v{tmp}, v1, 4, 1")
    a(f"v_lshl_add_u32 v{dst}, v{tmp}, 5, v{dst}")
    a(f"v_and_b32 v{tmp}, 3, v1")
    a(f"v_lshl_add_u32 v{dst}, v{tmp}, 3, v{dst}")

def tr_base_wo(a, dst, tmp):
    a(f"v_lshlrev_b32 v{dst}, 8, v7")
    a(f"v_bfe_u32 v{tmp}, v1, 2, 2")
    a(f"v_lshl_add_u32 v{dst}, v{tmp}, 6, v{dst}")
    a(f"v_bfe_u32 v{tmp}, v1, 4, 1")
    a(f"v_lshl_add_u32 v{dst}, v{tmp}, 5, v{dst}")
    a(f"v_and_b32 v{tmp}, 1, v1")
    a(f"v_lshl_add_u32 v{dst}, v{tmp}, 4, v{dst}")
    a(f"v_bfe_u32 v{tmp}, v1, 1, 1")
    a(f"v_lshl_add_u32 v{dst}, v{tmp}, 3, v{dst}")

def lds_signal(a, off, addr="v10"):
    a("s_mov_b64 exec, 1")
    a(f"ds_add_u32 {addr}, v11 offset:{off}")
    a("s_mov_b64 exec, -1")
def lds_wait(a, off, val, tmp, stmp, addr="v10", sleep=1):
    l = a.newlabel("lw"); d = a.newlabel("lwd")
    a.label(l)
    a(f"ds_read_b32 v{tmp}, {addr} offset:{off}")
    a("s_waitcnt lgkmcnt(0)")
    a(f"v_readfirstlane_b32 s{stmp}, v{tmp}")
    a(f"s_cmp_ge_u32 s{stmp}, {val}")
    a(f"s_cbranch_scc1 {d}")
    if sleep: a(f"s_sleep {sleep}")
    a(f"s_branch {l}")
    a.label(d)
def bbar(a, tmp=5):
    a("s_add_u32 s58, s58, 4")
    lds_signal(a, C_BB)
    lds_wait(a, C_BB, "s58", tmp, 51, sleep=2)

def poll_flags(a, voff, soff, nl, t, sleep=2, width=4):
    l = a.newlabel("pf"); d = a.newlabel("pfd")
    a(f"s_mov_b32 s63, {SPIN}")
    a(f"s_mov_b64 exec, {(1 << nl) - 1}")
    a.label(l)
    if width == 4:
        a(f"buffer_load_dwordx4 {vr(t,4)}, v{voff}, s[36:39], {soff} offen sc1")
        a("s_waitcnt vmcnt(0)")
        for i in range(4): a(f"v_xor_b32 v{t+i}, s62, v{t+i}")
        a(f"v_or3_b32 v{t}, v{t}, v{t+1}, v{t+2}")
        a(f"v_or_b32 v{t}, v{t}, v{t+3}")
    else:
        a(f"buffer_load_dword v{t}, v{voff}, s[36:39], {soff} offen sc1")
        a("s_waitcnt vmcnt(0)")
        a(f"v_xor_b32 v{t}, s62, v{t}")
    a(f"v_cmp_ne_u32 vcc, 0, v{t}")
    a("s_nop 1")
    a(f"s_cbranch_vccz {d}")
    a(f"s_sleep {sleep}")
    a("s_sub_u32 s63, s63, 1")
    a("s_cmp_lg_u32 s63, 0")
    a(f"s_cbranch_scc1 {l}")
    a.label(d)
    a("s_mov_b64 exec, -1")

def store_flag(a, soff, t):
    a(f"v_mov_b32 v{t}, s62")
    a(f"v_mov_b32 v{t+1}, 0")
    a("s_mov_b64 exec, 1")
    a(f"buffer_store_dword v{t}, v{t+1}, s[36:39], {soff} offen sc1")
    a("s_mov_b64 exec, -1")

def rowmax16(a, dst, S, init=None):
    if init is None:
        a(f"v_max3_f32 v{dst}, v{S}, v{S+1}, v{S+2}")
        for i in range(3, 15, 2): a(f"v_max3_f32 v{dst}, v{dst}, v{S+i}, v{S+i+1}")
        a(f"v_max_f32 v{dst}, v{dst}, v{S+15}")
    else:
        for i in range(0, 16, 2): a(f"v_max3_f32 v{dst}, v{dst}, v{S+i}, v{S+i+1}")
def xhalf_max(a, dst, tmp):
    a(f"v_mov_b32 v{tmp}, v{dst}")
    a(f"v_permlane32_swap_b32 v{dst}, v{tmp}")
    a(f"v_max_f32 v{dst}, v{dst}, v{tmp}")

def kv_dma(a, sreg, n, first=False, only=None):
    for q in range(n):
        if (q & 3) == 0:
            a(f"s_mov_b32 m0, s{sreg}")
            a(f"s_lshr_b32 s51, s{sreg}, 12")
            if not first:
                a("s_add_u32 s51, s51, s59")
                a("s_cmp_ge_u32 s51, 32")
                a("s_cselect_b32 s52, 28, 0")
                a("s_sub_u32 s51, s51, s52")
            a("s_add_u32 s51, s51, s55")
            a("s_and_b32 s51, s51, 31")
            a("s_lshl_b32 s51, s51, 12")
        if only is None or q in only: a(f"buffer_load_dwordx4 v9, s[36:39], s51 offen offset:{(q&3)*1024} sc1 lds")
        if (q & 3) == 3 and q + 1 < n: a(f"s_add_u32 s{sreg}, s{sreg}, 4096")

def kv_job(a, st=None):
    X = 24; W = 88
    lv = a.newlabel("kv_v"); ld = a.newlabel("kv_d")
    def reads(s):
        a(f"ds_read_b128 {vr(X+4*s,4)}, v14 offset:{s*64}")
        for t in range(2):
            a(f"ds_read_b64_tr_b16 {vr(W+4*s+2*t,2)}, v15 offset:{L_WK + s*1024 + t*128}")
    a("s_cmp_eq_u32 s45, 0")
    a(f"s_cbranch_scc0 {lv}")
    for which in range(2):
        if which: a.label(lv)
        for s in range(4): reads(s)
        for s in range(16):
            if s + 4 < 16:
                reads(s + 4); a("s_waitcnt lgkmcnt(12)")
            else:
                a(f"s_waitcnt lgkmcnt({3*(15-s)})")
            if which == 0: mfma16(a, 20, W+4*s, X+4*s, "0" if s == 0 else 20)
            else:          mfma16(a, 20, X+4*s, W+4*s, "0" if s == 0 else 20)
        if not which: a(f"s_branch {ld}")
    a.label(ld)
def kv_store(a):
    a("s_cmp_eq_u32 s45, 0")
    a(f"s_cselect_b32 s51, 1.0, {hex((127 + VSC) << 23)}")
    for i in range(4): a(f"v_mul_f32 v{20+i}, s51, v{20+i}")
    a("v_cvt_pk_bf16_f32 v156, v20, v21")
    a("v_cvt_pk_bf16_f32 v157, v22, v23")
    a("v_xor_b32 v158, s62, v156")
    a("v_xor_b32 v159, s62, v157")
    if "nokvfast" not in VAR: a("buffer_store_dwordx4 v[156:159], v17, s[36:39], s54 offen")
    a("buffer_store_dwordx2 v[156:157], v16, s[36:39], s52 offen sc1")
def kv_flag(a):
    a("s_waitcnt vmcnt(0)")
    store_flag(a, "s53", 18)

def kv_setup(a):
    a("v_and_b32 v12, 15, v1")
    a("v_lshrrev_b32 v13, 4, v1")
    a(f"v_mul_u32_u24 v14, {XP}, v12")
    a("v_lshl_add_u32 v14, v13, 4, v14")
    a(f"s_mul_i32 s51, s46, {16*XP}")
    a(f"s_add_u32 s51, s51, {L_XA}")
    a("v_add_u32 v14, s51, v14")
    a("v_lshlrev_b32 v15, 8, v13")
    a("v_lshl_add_u32 v15, v12, 3, v15")
    a("v_and_b32 v16, 1, v13")
    a("s_cmp_eq_u32 s45, 0")
    a("s_cselect_b32 s51, 9, 8")
    a("s_cselect_b32 s52, 8, 9")
    a("s_lshl_b32 s52, s46, s52")
    a("s_lshl_b32 s53, s45, 10")
    a("s_add_u32 s52, s52, s53")
    a("s_lshl_b32 s53, s40, 11")
    a("s_add_u32 s52, s52, s53")
    a("v_lshlrev_b32 v16, s51, v16")
    a("v_lshl_add_u32 v16, v12, 4, v16")
    a("v_lshrrev_b32 v17, 1, v13")
    a("v_lshl_add_u32 v16, v17, 3, v16")
    a("s_lshl_b32 s53, s40, 7")
    a("s_lshl_b32 s54, s41, 2")
    a("s_add_u32 s53, s53, s54")
    a(f"s_add_u32 s53, s53, {W_F1}")
    a("v_lshlrev_b32 v17, 1, v16")
    a("s_lshl_b32 s54, s52, 1")
    a(f"s_add_u32 s54, s54, {W_KF}")

def stouch_setup(a, slot, bw, bx):
    a("s_lshr_b32 s51, s3, 2")
    a(f"s_lshl_b32 s54, {slot}, 3")
    a("s_add_u32 s51, s51, s54")
    a("s_lshl_b32 s51, s51, 10")
    a("s_lshl_b32 s54, s27, 7")
    a("s_add_u32 s51, s51, s54")
    a(f"s_add_u32 s{bw}, s{P_BWQKV}, s51")
    a(f"s_addc_u32 s{bw+1}, s{P_BWQKV+1}, 0")
    a(f"s_add_u32 s{bw+2}, s{bw}, {24*32768}")
    a(f"s_addc_u32 s{bw+3}, s{bw+1}, 0")
    a("s_lshr_b32 s51, s40, 1")
    a("s_lshl_b32 s51, s51, 16")
    a("s_and_b32 s54, s3, 3")
    a("s_lshl_b32 s54, s54, 14")
    a("s_add_u32 s51, s51, s54")
    a(f"s_lshl_b32 s54, {slot}, 12")
    a("s_add_u32 s51, s51, s54")
    a(f"s_add_u32 s{bx}, s{P_BX}, s51")
    a(f"s_addc_u32 s{bx+1}, s{P_BX+1}, 0")
def stouch_list(chunks, bw, bx):
    l = []
    for c in chunks:
        for r in range(4): l.append((f"s[{bx}:{bx+1}]", r*1024 + c*128))
        for i in range(6):
            m = c*6 + i
            l.append((f"s[{bw}:{bw+1}]", m*32768) if m < 24 else (f"s[{bw+2}:{bw+3}]", (m-24)*32768))
    return l

def role_a(a, st):
    FINE = "fine" in VAR
    class F:
        def stamp(self):
            if FINE: st0.stamp()
    st0 = st; fs = F()
    if FINE:
        class N:
            n = 0
            def stamp(self): pass
            def dump(self, *x): st0.dump(*x)
        st = N()
    srd(a, 32, P_AWQ, 512 * 1024)
    S0, S1, O0, O1, C0, C1, P0, P1, Q0, Q1, KB, VB = 16, 32, 48, 64, 80, 96, 112, 120, 128, 132, 136, 144
    a(f"s_bfe_u32 s55, s3, {0x30002 if MAP81 else 0x30001}")
    a("s_cmp_eq_u32 s43, 0")
    a("s_cbranch_scc0 a_kh1")
    def early_init():
        for i in range(32): a(f"v_mov_b32 v{O0+i}, 0")
        a("s_lshl_b32 s56, s43, 11")
        a("v_add_u32 v2, s56, v9")
        a("v_lshlrev_b32 v3, 8, v7")
        a("v_lshl_add_u32 v3, v6, 4, v3")
        a("v_add_u32 v3, s56, v3")
        a("s_mov_b32 s60, 0x0000ffff")
        a("s_mov_b32 s61, 0x0000ffff")
        a("v_and_b32 v14, 27, v6")
        a("v_cmp_eq_u32 vcc, 16, v14")
        a(f"v_mov_b32 v13, {hex(((127 + VSC) << 7) * 0x10001)}")
        a("v_cndmask_b32 v14, 0, v13, vcc")
        for i in range(8): a(f"v_mov_b32 v{VB+i}, v14")
    XF = 16; WF = 144; ACC = 152
    a(f"v_mul_u32_u24 v4, {XP}, v6")
    a("v_lshl_add_u32 v4, v7, 4, v4")
    a("v_lshlrev_b32 v8, 11, v7")
    a("v_bfe_u32 v5, v1, 2, 2")
    a("v_lshl_add_u32 v8, v5, 8, v8")
    a("v_xor_b32 v5, s42, v5")
    a("v_lshl_add_u32 v8, v5, 6, v8")
    a("v_bfe_u32 v5, v1, 4, 1")
    a("v_lshl_add_u32 v8, v5, 5, v8")
    a("v_and_b32 v5, 3, v1")
    a("v_lshl_add_u32 v8, v5, 3, v8")
    a(f"s_waitcnt vmcnt({0 if 'merge' in VAR else 2}) lgkmcnt(0)")
    a("s_barrier")
    st.stamp()
    if "merge" not in VAR:
        a("s_waitcnt vmcnt(0)")
        a("s_barrier")
    fs.stamp()
    def xload(i):
        a(f"s_add_u32 s51, s55, {i}")
        a("s_and_b32 s51, s51, 7")
        a("s_lshl_b32 s51, s51, 7")
        a("v_add_u32 v5, s51, v4")
        for sp in range(4):
            a(f"ds_read_b128 {vr(XF+16*i+4*sp,4)}, v5 offset:{L_XA + sp*32}")
    for i in range(8): xload(i)
    a("v_add_u32 v5, 16384, v8")
    a("v_add_u32 v15, 115200, v8")
    a("v_add_u32 v8, 66048, v8")
    st.stamp(); fs.stamp()
    a("s_waitcnt lgkmcnt(0)")
    wmap = {}
    free = [144, 148]
    def qread(st_):
        i = st_ >> 2; sp = st_ & 3; sl = WQ_SLOT[i]
        r = free.pop(0); wmap[st_] = r
        base, off = ("v5", sl - 16384) if sl < 66048 else (("v8", sl - 66048) if sl < 115200 else ("v15", sl - 115200))
        for t in range(2):
            a(f"ds_read_b64_tr_b16 {vr(r+2*t,2)}, {base} offset:{off + sp*4096 + t*1024}")
    nr = 0; avail = 0; pend = []
    LEAD = int(VAR.get("lead", 4))
    for st_ in range(32):
        if avail < 32 and (st_ >= avail - LEAD):
            a("s_barrier")
            if FINE: fs.stamp(); a("s_waitcnt lgkmcnt(0)"); pend = []
            avail += 8
        while nr < avail and free and len(pend) <= 12:
            qread(nr); pend += [nr, nr]; nr += 1
            if nr == 32: lds_signal(a, C_QD); pend += [99]
        if st_ in pend:
            k = len(pend) - 1 - max(i for i, x in enumerate(pend) if x == st_)
            a(f"s_waitcnt lgkmcnt({k})")
            pend = pend[len(pend)-k:] if k else []
        mfma32(a, ACC, wmap[st_], XF+4*st_, "0" if st_ == 0 else ACC)
        for r in (wmap[st_], XF+4*st_):
            if not (48 <= r < 80) and (r < 144 or st_ < 6): free.append(r)
        if st_ == 17: early_init()
    st.stamp()
    a(f"s_mov_b32 s51, {CSCALE}")
    a("s_lshl_b32 s53, s42, 11")
    a(f"s_add_u32 s53, s53, {L_QX}")
    a("v_add_u32 v12, s53, v9")
    a("s_lshl_b32 s53, s42, 2")
    a("v_add_u32 v13, s53, v10")
    for i in range(16): a(f"v_mul_f32 v{ACC+i}, s51, v{ACC+i}")
    cvt8(a, Q1, ACC); cvt8(a, Q0, ACC+8)
    a(f"ds_write_b128 v12, {vr(Q1,4)}")
    a(f"ds_write_b128 v12, {vr(Q0,4)} offset:1024")
    lds_signal(a, C_EX, "v13")
    fs.stamp()
    a("s_branch a_join")
    a.label("a_kh1")
    st.n -= 3
    if FINE: st0.n = 1
    a("v_lshrrev_b32 v4, 4, v1")
    a("v_bfe_u32 v5, v1, 2, 2")
    a("v_xor_b32 v5, v5, v4")
    a("v_lshlrev_b32 v3, 10, v4")
    a("v_lshl_add_u32 v3, v5, 6, v3")
    a("v_and_b32 v5, 3, v1")
    a("v_lshl_add_u32 v3, v5, 4, v3")
    a("s_lshl_b32 s48, s42, 14")
    a("s_lshl_b32 s51, s41, 8")
    a("s_add_u32 s48, s48, s51")
    a("s_lshl_b32 s49, s42, 12")
    def op_q(i):
        a(f"s_add_u32 s51, s55, {i}")
        a("s_and_b32 s51, s51, 7")
        a("s_lshl_b32 s51, s51, 16")
        a("s_add_u32 s51, s51, s48")
        for q in range(4):
            a(f"s_add_u32 m0, s49, {WQ_SLOT[i] + q*1024}")
            if q: a("s_add_u32 s51, s51, 4096")
            a("buffer_load_dwordx4 v3, s[32:35], s51 offen lds")
    NPRE = int(VAR.get('npre', 2))
    for i in range(NPRE): op_q(i)
    MERGE = "merge" in VAR
    a(f"s_waitcnt vmcnt({4*NPRE + (0 if MERGE else 2)}) lgkmcnt(0)")
    a("s_barrier")
    st.stamp()
    if not MERGE:
        a(f"s_waitcnt vmcnt({4*NPRE})")
        a("s_barrier")
    fs.stamp()
    nxt = NPRE
    for gq in range(3):
        lim = 6 if gq == 0 else 8
        for _ in range(2):
            if nxt < lim: op_q(nxt); nxt += 1
        a(f"s_waitcnt vmcnt({4*(nxt - 2*gq - 2)})")
        fs.stamp()
        a("s_barrier")
    a("s_waitcnt vmcnt(0)")
    fs.stamp()
    a("s_barrier")
    st.stamp()
    early_init()
    a("s_lshl_b32 s53, s42, 11")
    a(f"s_add_u32 s53, s53, {L_QX}")
    a("v_add_u32 v15, s53, v9")
    a("s_lshl_b32 s53, s42, 2")
    a("v_add_u32 v13, s53, v10")
    lds_wait(a, C_EX, 1, 12, 51, "v13")
    a(f"ds_read_b128 {vr(Q0,4)}, v15")
    a(f"ds_read_b128 {vr(Q1,4)}, v15 offset:1024")
    fs.stamp()
    lds_signal(a, C_QR)
    st.stamp()
    a.label("a_join")
    def tail_setup():
        a("s_xor_b32 s52, s59, 4")
        a("s_mul_i32 s53, s59, 3072")
        a(f"v_add_u32 v160, s53, v9")
        a("s_mul_i32 s53, s52, 3072")
        a(f"v_add_u32 v161, s53, v9")
        a("s_lshl_b32 s53, s59, 2")
        a("v_add_u32 v162, s53, v10")
        a("s_lshl_b32 s53, s52, 2")
        a("v_add_u32 v163, s53, v10")
        a("s_lshl_b32 s57, s42, 1")
        a("s_add_u32 s57, s57, s43")
        a("s_lshl_b32 s58, s40, 5")
        a("s_lshl_b32 s53, s41, 3")
        a("s_add_u32 s53, s53, s58")
        a("s_add_u32 s53, s53, s57")
        a("s_lshl_b32 s53, s53, 10")
        a(f"s_add_u32 s44, s53, {W_OA}")
        a("s_lshl_b32 s57, s57, 10")
        a(f"s_add_u32 s57, s57, {L_OA}")
        a("v_add_u32 v164, s57, v9")
        a(f"s_add_u32 s48, s44, {W_OF - W_OA}")
        a("s_lshl_b32 s57, s59, 10")
        a(f"s_add_u32 s57, s57, {L_OA}")
        a("v_add_u32 v165, s57, v9")
        for d in range(1, 4):
            a(f"s_add_u32 s51, s41, {d}")
            a("s_and_b32 s51, s51, 3")
            a("s_lshl_b32 s51, s51, 3")
            a("s_add_u32 s51, s51, s58")
            a("s_add_u32 s51, s51, s59")
            a("s_lshl_b32 s51, s51, 10")
            a(f"s_add_u32 s{44+d}, s51, {W_OA}")
    for i in range(8, 16): a(f"v_mov_b32 v{VB+i}, v14")
    for i in range(4): a(f"v_mov_b32 v{P1+4+i}, 0")
    st.stamp()
    lds_wait(a, C_ST + 0, 4, 12, 51, sleep=0)
    if FINE: st0.n = 12
    fs.stamp()
    def kvread(b, off):
        a(f"ds_read_b128 {vr(KB+4*b,4)}, v2 offset:{off}")
        a("s_mov_b64 exec, s[60:61]")
        a(f"ds_read_b128 {vr(VB+8*b,4)}, v3 offset:{off+1024}")
        a(f"ds_read_b128 {vr(VB+8*b+4,4)}, v3 offset:{off+1536}")
        a("s_mov_b64 exec, -1")
    a(f"ds_read_b128 {vr(P0,4)}, v9")
    DEEP = "shallow" not in VAR
    def kread(b, off):
        if "nods" not in VAR: a(f"ds_read_b128 {vr(KB+4*b,4)}, v2 offset:{off}")
    def vread(b, off):
        if "nods" in VAR: return
        if "noex" not in VAR: a("s_mov_b64 exec, s[60:61]")
        a(f"ds_read_b128 {vr(VB+8*b,4)}, v3 offset:{off+1024}")
        a(f"ds_read_b128 {vr(VB+8*b+4,4)}, v3 offset:{off+1536}")
        if "noex" not in VAR: a("s_mov_b64 exec, -1")
    kvread(0, 0)
    if DEEP: kread(1, 4096)
    a(f"s_waitcnt lgkmcnt({4 if DEEP else 3})" if not DIAG else "s_waitcnt lgkmcnt(0)")
    mfma32(a, S0, P0, Q0, "0")
    mfma32(a, S1, P0, Q1, "0")
    for S, C in ((S0, C0), (S1, C1)):
        rowmax16(a, 12, S)
        xhalf_max(a, 12, 13)
        a(f"v_sub_f32 v{C}, {BIAS}, v12")
        for i in range(1, 16): a(f"v_mov_b32 v{C+i}, v{C}")
        if S == S0:
            a("s_waitcnt lgkmcnt(0)")
            mfma32(a, S0, KB, Q0, C0)
    st.stamp()
    a("s_mov_b32 s50, 0")
    a(f"s_setprio {VAR.get('ap0', 3)}")
    if DIAG: a("s_waitcnt lgkmcnt(0)")
    a(".p2align 6")
    for _ in range(int(VAR.get("shift", 0))): a("s_nop 0")
    a.label("a_loop")
    def E(S, lo, hi):
        for i in range(lo, hi): a(f"v_exp_f32{VAR.get('enc', '')} v{S+i}, v{S+i}")
    def half(S, P, O, Vx, pvy, snext, w1, post, post2=(), w2=None):
        E(S, 0, 2)
        mfma32(a, *pvy)
        for x in post: x()
        E(S, 2, 8)
        if w1: a("s_waitcnt lgkmcnt(0)")
        mfma32(a, *snext)
        for x in post2: x()
        cvt8(a, P, S)
        E(S, 8, 12)
        if w2 is not None: a(f"s_waitcnt lgkmcnt({w2})")
        mfma32(a, O, Vx, P, O)
        E(S, 12, 16)
        cvt8(a, P+4, S+8)
    HK = {0: [("w", 4)], 1: [("w", 8)], 3: [("p", 2)], 5: [("w", 12)]}
    for k in list(HK): HK[k] = [x for x in HK[k] if x[0] != "p"]
    PR0 = dict(zip(map(int, VAR.get("pr0", "3,5,6").split(",")), (2, 1, 0)))
    PR1 = dict(zip(map(int, VAR.get("pr1", "4,6,7").split(",")), (2, 1, 0)))
    for it in range(8):
        if it in PR0 or it in PR1: HK[it] = [("p", (PR0.get(it), PR1.get(it)))] + HK.get(it, [])
    if "ap0" in VAR: HK = {0: [("w", 4)], 1: [("w", 8)], 3: [("p", 1)], 4: [("w", 12)], 6: [("p", 0)]}
    def hooks():
        a("s_bitcmp1_b32 s50, 2")
        a("s_cbranch_scc1 a_hk_hi")
        a("s_branch a_hk_lo")
        a.label("a_hk_done")
    for t in range(4):
        b = t & 1; nb = b ^ 1
        if DEEP:
            post = [lambda: vread(nb, (t+1)*4096)]
            if t == 2: post = [hooks] + post
            half(S0, P0, O0, VB+8*b, (O1, VB+8*nb+4, P1+4, O1), (S1, KB+4*b, Q1, C1), False, post, [lambda: kread(b, (t+2)*4096)], 3)
            half(S1, P1, O1, VB+8*b, (O0, VB+8*b+4, P0+4, O0), (S0, KB+4*nb, Q0, C0), False, [])
            continue
        post = [lambda: kvread(nb, (t+1)*4096)]
        if t == 3: post = [hooks] + post
        half(S0, P0, O0, VB+8*b, (O1, VB+8*nb+4, P1+4, O1), (S1, KB+4*b, Q1, C1), False, post)
        half(S1, P1, O1, VB+8*b, (O0, VB+8*b+4, P0+4, O0), (S0, KB+4*nb, Q0, C0), True, [])
    a("v_add_u32 v2, 16384, v2")
    a("v_add_u32 v3, 16384, v3")
    a("s_add_u32 s50, s50, 1")
    a("s_cmp_lt_u32 s50, 8")
    a("s_cbranch_scc1 a_loop")
    mfma32(a, O1, VB+8+4, P1+4, O1)
    st.stamp()
    for i in range(2): a(f"ds_write_b128 v160, {vr(O0+4*i,4)} offset:{L_CB + i*1024}")
    a(f"ds_write_b32 v160, v{O0+8} offset:{L_CB + 2048}")
    lds_signal(a, C_CB, "v162")
    a("s_setprio 3")
    lds_wait(a, C_CB, 1, 12, 51, "v163", sleep=int(VAR.get("cbsleep", 0)))
    if "tfine" in VAR: st.stamp()
    for i in range(2): a(f"ds_read_b128 {vr(S0+4*i,4)}, v161 offset:{L_CB + i*1024}")
    a(f"ds_read_b32 v{S0+8}, v161 offset:{L_CB + 2048}")
    a("s_mov_b32 s51, 0x7b800000")
    a(f"s_mov_b32 s53, {hex((127 - 85) << 23)}")
    a("s_waitcnt lgkmcnt(0)")
    a(f"v_add_f32 v{O1+8}, v{O1+8}, v{S0+8}")
    a(f"v_rcp_f32 v14, v{O1+8}")
    for i in range(8): a(f"v_add_f32 v{O1+i}, v{O1+i}, v{S0+i}")
    a(f"v_add_f32 v12, abs(v{O1}), abs(v{O1+1})")
    a(f"v_add_f32 v13, abs(v{O1+2}), abs(v{O1+3})")
    for i in range(4, 8, 2):
        a(f"v_add_f32 v12, v12, abs(v{O1+i})")
        a(f"v_add_f32 v13, v13, abs(v{O1+i+1})")
    a("v_add_f32 v12, v12, v13")
    a(f"v_add_f32 v13, v12, v{O1+8}")
    a("v_cmp_ngt_f32 vcc, s51, v13")
    a("v_cmp_gt_f32 s[64:65], s53, v12")
    a("s_or_b64 vcc, vcc, s[64:65]")
    if "forcefb" in VAR: a("s_mov_b64 vcc, -1")
    if "bidle" in VAR: a("s_mov_b64 vcc, 0")
    a("s_cbranch_vccnz a_fallback")
    a.label("a_norm")
    for i in range(8): a(f"v_mul_f32 v{O1+i}, v{O1+i}, v14")
    cvt8(a, P0, O1)
    for i in range(4): a(f"v_min_u32 v{P0+i}, -2, v{P0+i}")
    if "nofast" not in VAR: a(f"buffer_store_dwordx4 {vr(P0,4)}, v9, s[36:39], s48 offen " + VAR.get("fst", ""))
    a(f"ds_write_b128 v164, {vr(P0,4)}")
    lds_signal(a, C_OF)
    st.stamp()
    a(f"s_mov_b32 s63, {SPIN}")
    a("s_mov_b32 s50, 0")
    a.label("a_poll")
    a(f"s_cmp_lt_u32 s63, {SPIN - int(VAR.get('fastn', 12))}")
    a("s_cselect_b32 s51, s63, 0")
    a("s_bitcmp1_b32 s51, 0")
    a(f"s_cselect_b32 s51, 0, {W_OF - W_OA}")
    a("v_add_u32 v13, s51, v9")
    for d in range(1, 4):
        a(f"buffer_load_dwordx4 {vr(S0+4*(d-1),4)}, v13, s[36:39], s{44+d} offen sc1")
    a("s_sub_u32 s63, s63, 1")
    for d in range(1, 4):
        r = S0 + 4*(d-1)
        nx = a.newlabel("pn")
        a(f"s_waitcnt vmcnt({3-d})")
        a(f"s_bitcmp1_b32 s50, {d}")
        a(f"s_cbranch_scc1 {nx}")
        a(f"v_max3_u32 v12, v{r}, v{r+1}, v{r+2}")
        a(f"v_max_u32 v12, v12, v{r+3}")
        a("v_cmp_eq_u32 vcc, -1, v12")
        a("s_cmp_eq_u32 s63, 0")
        a("s_cselect_b64 vcc, 0, vcc")
        a(f"s_cbranch_vccnz {nx}")
        a(f"ds_write_b128 v165, {vr(r,4)} offset:{d*8192}")
        lds_signal(a, C_OF + 4*d)
        a(f"s_bitset1_b32 s50, {d}")
        a.label(nx)
    a("s_cmp_eq_u32 s50, 14")
    a("s_cbranch_scc1 a_got")
    ls = a.newlabel("sl")
    a(f"s_cmp_eq_u32 s63, {SPIN - int(VAR.get('slown', 4))}")
    a(f"s_cbranch_scc0 {ls}")
    a(f"buffer_store_dwordx4 {vr(P0,4)}, v9, s[36:39], s44 offen sc1")
    a.label(ls)
    if int(VAR.get('tsleep', 0)): a(f"s_sleep {VAR.get('tsleep', 0)}")
    a("s_branch a_poll")
    a.label("a_got")
    if "xnoslow" not in VAR: a(f"buffer_store_dwordx4 {vr(P0,4)}, v9, s[36:39], s44 offen sc1")
    st.stamp()
    if "tfine" in VAR:
        a("s_waitcnt lgkmcnt(0)")
        a(f"s_sub_u32 s72, {SPIN}, s63")
        a("s_add_u32 s72, s72, s70")
    st.dump(None, 0)
    a("s_endpgm")
    def pretouch():
        a(f"v_lshlrev_b32 v13, 7, v1")
        a(f"v_add_u32 v13, {W_OF - W_OA}, v13")
        a("s_mov_b64 exec, 0xff")
        for d in range(1, 4): a(f"buffer_load_dword v166, v13, s[36:39], s{44+d} offen sc1")
        a("s_mov_b64 exec, -1")
    HK[3] = HK.get(3, []) + [("sig", C_PR)]
    HK[6] = HK.get(6, []) + [("sig", C_PR2)]
    HK[2] = [x for x in HK.get(2, []) if x[0] == "p"] + [("f", tail_setup)]
    HK[7] = [x for x in HK.get(7, []) if x[0] == "p"] + [("w", 16), ("w8", C_PR2)] + ([("f", pretouch)] if "nopre" not in VAR else [])
    for nm, rng in (("a_hk_lo", range(0, 4)), ("a_hk_hi", range(4, 8))):
        a.label(nm)
        for i in rng:
            if i not in HK: continue
            nx = a.newlabel("hk")
            a(f"s_cmp_eq_u32 s50, {i}")
            a(f"s_cbranch_scc0 {nx}")
            for kind, v in HK[i]:
                if kind == "w":
                    if "hkt" in VAR:
                        a("s_memtime s[4:5]")
                    lds_wait(a, C_ST + v, 4, 12, 51)
                    if "hkt" in VAR:
                        a("s_memtime s[6:7]")
                        a("s_waitcnt lgkmcnt(0)")
                        a("s_sub_u32 s6, s6, s4")
                        a(f"s_add_u32 s{72 + 2*(v//4 - 1)}, s70, s6")
                elif kind == "sig": lds_signal(a, v)
                elif kind == "f": v()
                elif kind == "w8": lds_wait(a, v, 8, 12, 51)
                elif kind == "s":
                    a("s_cmp_eq_u32 s43, 0")
                    a("s_cbranch_scc0 a_hk_done")
                    a("s_waitcnt vmcnt(0)")
                    lds_signal(a, C_ST + v)
                elif v[0] == v[1]: a(f"s_setprio {v[0]}")
                else:
                    for kh_, lv in enumerate(v):
                        if lv is None: continue
                        lp = a.newlabel("pp")
                        a(f"s_cmp_eq_u32 s43, {kh_}")
                        a(f"s_cbranch_scc0 {lp}")
                        a(f"s_setprio {lv}")
                        a.label(lp)
            a("s_branch a_hk_done")
            a.label(nx)
        a("s_branch a_hk_done")
    a.label("a_fallback")
    a("v_mov_b32 v12, 0xff800000")
    a("s_mov_b32 s50, 0")
    a.label("a_fb1")
    a(f"buffer_load_dwordx4 {vr(KB,4)}, v9, s[36:39], s50 offen sc1")
    a("s_waitcnt vmcnt(0)")
    mfma32(a, S0, KB, Q1, "0")
    a("s_add_u32 s50, s50, 2048")
    rowmax16(a, 12, S0, init=True)
    a("s_cmp_lt_u32 s50, 0x20000")
    a("s_cbranch_scc1 a_fb1")
    xhalf_max(a, 12, 13)
    a(f"v_sub_f32 v{C0}, 0, v12")
    for i in range(1, 16): a(f"v_mov_b32 v{C0+i}, v{C0}")
    for i in range(16): a(f"v_mov_b32 v{O1+i}, 0")
    a("v_lshlrev_b32 v3, 8, v7")
    a("v_lshl_add_u32 v3, v6, 4, v3")
    a("s_mov_b32 s50, 0")
    a.label("a_fb2")
    a(f"buffer_load_dwordx4 {vr(KB,4)}, v9, s[36:39], s50 offen sc1")
    a("s_mov_b64 exec, s[60:61]")
    a(f"buffer_load_dwordx4 {vr(VB,4)}, v3, s[36:39], s50 offen offset:1024 sc1")
    a(f"buffer_load_dwordx4 {vr(VB+4,4)}, v3, s[36:39], s50 offen offset:1536 sc1")
    a("s_mov_b64 exec, -1")
    a("s_waitcnt vmcnt(0)")
    mfma32(a, S0, KB, Q1, C0)
    a("s_add_u32 s50, s50, 2048")
    E(S0, 0, 16)
    cvt8(a, P0, S0); cvt8(a, P0+4, S0+8)
    mfma32(a, O1, VB, P0, O1)
    mfma32(a, O1, VB+4, P0+4, O1)
    a("s_cmp_lt_u32 s50, 0x20000")
    a("s_cbranch_scc1 a_fb2")
    a(f"v_rcp_f32 v14, v{O1+8}")
    a("s_branch a_norm")

def role_b(a, st):
    a("s_mov_b32 s58, 0")
    a("s_lshr_b32 s44, s40, 1")
    a("s_and_b32 s42, s26, 1")
    a("s_lshr_b32 s43, s26, 1")
    srd(a, 28, P_BX, 2 << 20)
    srd(a, 32, P_BWQKV, 512 * 3072)
    a("v_lshrrev_b32 v12, 3, v1")
    a("v_and_b32 v13, 7, v1")
    a("v_bfe_u32 v14, v1, 4, 1")
    a("v_lshlrev_b32 v14, 2, v14")
    a("v_xor_b32 v14, v14, v13")
    a("v_mul_u32_u24 v3, 3072, v12")
    a("v_lshl_add_u32 v3, v14, 4, v3")
    a("v_lshlrev_b32 v4, 10, v12")
    a("v_lshl_add_u32 v4, v14, 4, v4")
    a(f"s_mul_i32 s64, s26, {16*3072}")
    a("s_lshl_b32 s51, s27, 7")
    a("s_add_u32 s64, s64, s51")
    a("s_lshl_b32 s65, s44, 16")
    a("s_lshl_b32 s51, s26, 14")
    a("s_add_u32 s65, s65, s51")
    if MAP81:
        a("s_lshr_b32 s67, s3, 3")
        a("s_lshl_b32 s67, s67, 1")
        a("s_add_u32 s67, s67, s3")
    else:
        a("s_lshr_b32 s67, s3, 2")
        a("s_lshl_b32 s51, s3, 1")
        a("s_add_u32 s67, s67, s51")
    a("s_and_b32 s67, s67, 7")
    a("s_mul_i32 s56, s26, 6144")
    a(f"s_add_u32 s56, s56, {L_GB + GB_W}")
    a("s_mul_i32 s57, s26, 2080")
    a(f"s_add_u32 s57, s57, {L_GB + GB_X}")
    INLOOP = [False]
    def issue_ops(buf):
        o = buf * GB_SZ
        def pre():
            a(f"s_mul_i32 s48, s67, {64*3072}")
            a("s_add_u32 s48, s48, s64")
            a(f"s_add_u32 s47, s48, {8*3072}")
            a("s_lshl_b32 s49, s67, 7")
            a("s_add_u32 s49, s49, s65")
            a("s_add_u32 s66, s49, 8192")
            a("s_add_u32 s67, s67, 1")
            a("s_and_b32 s67, s67, 7")
        ops = [pre]
        for q in range(2):
            def fx(q=q):
                a(f"s_add_u32 m0, s57, {o + q*1040}")
                a(f"buffer_load_dwordx4 v4, s[28:31], {'s66' if q else 's49'} offen lds")
            ops.append(fx)
        for gq in range(2):
            for t in range(3):
                def f(gq=gq, t=t):
                    if t == 0: a(f"s_add_u32 m0, s56, {o + gq*3072}")
                    a(f"buffer_load_dwordx4 v3, s[32:35], {'s47' if gq else 's48'} offen offset:{t*1024} lds")
                ops.append(f)
        if "gnodma" in VAR and INLOOP[0]: return [lambda: None] * 8 + [lambda: a("s_sleep 10")]
        return ops
    BST = VAR.get("bstart", "st4")
    if BST == "early":
        for f in issue_ops(0): f()
    lk = a.newlabel("nokv")
    a("v_lshl_add_u32 v5, v1, 2, v10")
    a("v_mov_b32 v12, 0")
    a("ds_write_b32 v5, v12")
    kv_setup(a)
    a("s_waitcnt vmcnt(0) lgkmcnt(0)")
    a("v_readfirstlane_b32 s62, v19")
    a(f"s_add_u32 s62, s62, {TAGC}")
    a("s_barrier")
    a("s_cmp_eq_u32 s26, 3")
    a(f"s_cbranch_scc0 {lk}")
    kv_job(a)
    if "merge" not in VAR: a("s_barrier")
    kv_store(a)
    lk2 = a.newlabel("kvs")
    a(f"s_branch {lk2}")
    a.label(lk)
    if "merge" not in VAR: a("s_barrier")
    a.label(lk2)
    a("s_mov_b32 s45, s27")
    a("v_mul_u32_u24 v8, 3072, v7")
    a("v_bfe_u32 v14, v1, 2, 2")
    a("v_lshl_add_u32 v8, v14, 7, v8")
    a("v_bfe_u32 v14, v1, 3, 1")
    a("v_xor_b32 v14, s42, v14")
    a("v_lshl_add_u32 v8, v14, 6, v8")
    a("v_bfe_u32 v14, v1, 4, 1")
    a("v_lshl_add_u32 v8, v14, 5, v8")
    a("v_and_b32 v14, 3, v1")
    a("v_lshl_add_u32 v8, v14, 3, v8")
    a(f"v_add_u32 v8, {L_GB + GB_W}, v8")
    XM = 152
    a("v_bfe_u32 v14, v1, 1, 1")
    a("v_lshlrev_b32 v14, 2, v14")
    a("v_or_b32 v14, v14, v7")
    a("v_lshlrev_b32 v14, 4, v14")
    a("v_and_b32 v15, 7, v1")
    a("v_lshl_add_u32 v14, v15, 7, v14")
    a("v_xor_b32 v15, 64, v14")
    a("v_lshrrev_b32 v16, 3, v6")
    a("v_mul_u32_u24 v16, 1040, v16")
    a("s_mul_i32 s51, s43, 4160")
    a(f"s_add_u32 s51, s51, {L_GB + GB_X}")
    a(f"v_add3_u32 v{XM}, v14, v16, s51")
    a(f"v_add3_u32 v{XM+1}, v15, v16, s51")
    ACC = 20; WF = 84; XF = 108
    for i in range(48): a(f"v_mov_b32 v{ACC+i}, 0")
    for i in range(16): a(f"v_mov_b32 v{WF+12+i if i < 12 else XF+4+i-12}, 0")
    a("s_barrier")
    lk3 = a.newlabel("kvf")
    a("s_cmp_eq_u32 s26, 3")
    a(f"s_cbranch_scc0 {lk3}")
    kv_flag(a)
    a.label(lk3)
    st.stamp()
    a("s_barrier")
    LW, LG, LP, LS = 124, 125, 126, 128
    a("s_mul_i32 s51, s26, 6144")
    a(f"s_add_u32 s51, s51, {L_COMB}")
    a(f"v_mul_u32_u24 v14, 192, v6")
    a(f"v_add_u32 v14, s51, v14")
    a(f"v_lshl_add_u32 v{LW}, v7, 4, v14")
    a("v_lshlrev_b32 v15, 3, v7")
    a("v_sub_u32 v15, v6, v15")
    a("v_add_u32 v15, 10, v15")
    a(f"v_lshl_add_u32 v{LG}, v15, 2, v14")
    a(f"v_add_u32 v{LP}, s51, v9")
    a("v_lshlrev_b32 v14, 4, v6")
    a("v_add_u32 v14, s51, v14")
    for i in range(4):
        a(f"v_add_u32 v16, {2*i}, v15")
        a("v_lshrrev_b32 v17, 4, v16")
        a(f"v_lshl_add_u32 v{LS+i}, v17, 10, v14")
        a("v_bfe_u32 v17, v16, 2, 1")
        a(f"v_lshl_add_u32 v{LS+i}, v17, 9, v{LS+i}")
        a("v_bfe_u32 v17, v16, 3, 1")
        a(f"v_lshl_add_u32 v{LS+i}, v17, 3, v{LS+i}")
        a("v_and_b32 v17, 3, v16")
        a(f"v_lshl_add_u32 v{LS+i}, v17, 1, v{LS+i}")
    ZR = 132
    for i in range(4): a(f"v_mov_b32 v{ZR+i}, 0")
    def read_ops(buf, sp, fb):
        r = []
        for t3 in range(3):
            for t in range(2):
                r.append(f"ds_read_b64_tr_b16 {vr(WF+12*fb+4*t3+2*t,2)}, v8 offset:{buf*GB_SZ + sp*6144 + t3*1024 + t*512}")
        r.insert(2, f"ds_read_b128 {vr(XF+4*fb,4)}, v{XM+(sp>>1)} offset:{buf*GB_SZ + (sp&1)*32}")
        if "gnoreads" in VAR: return []
        return r
    def mm(fb, k):
        w = WF + 12*fb; x = XF + 4*fb
        if "nomm" in VAR: return
        if k == 0: mfma32(a, ACC, w, x, ACC)
        elif k == 1: mfma32(a, ACC+16, w+4, x, ACC+16)
        else: mfma32(a, ACC+32, x, w+8, ACC+32)
    a("s_lshr_b32 s55, s40, 3")
    a("s_lshl_b32 s55, s55, 2")
    a("s_cmp_ge_u32 s3, 28")
    a("s_cselect_b32 s51, 28, 0")
    a("s_sub_u32 s59, s3, s51")
    a("s_add_u32 s53, s55, s26")
    a("s_lshl_b32 s53, s53, 13")
    a(f"s_add_u32 s53, s53, {W_KF}")
    a("s_add_u32 s52, s53, 4096")
    a("s_lshl_b32 s51, s26, 12")
    a("v_lshlrev_b32 v13, 3, v1")
    a("v_add_u32 v13, s51, v13")
    FQ = [68, 72, 76, 80, 84, 88, 92, 108]
    def kf_loads():
        for i, r in enumerate(FQ):
            a(f"buffer_load_dwordx4 {vr(r,4)}, v9, s[36:39], {'s53' if i < 4 else 's52'} offen offset:{(i&3)*1024} sc1")
    a(f"s_mov_b32 s63, {int(VAR.get('kfn', 3))}")
    a("s_mov_b32 s46, 0")
    a("s_barrier")
    kf_loads()
    a("s_barrier")
    st.stamp()
    a.label("b_kf")
    a("v_mov_b32 v14, 0")
    for i, r in enumerate(FQ):
        a(f"s_waitcnt vmcnt({7-i})")
        a(f"ds_write_b64 v13, {vr(r,2)} offset:{L_WK + i*512}")
        a(f"v_xor_b32 v15, v{r}, v{r+2}")
        a(f"v_xor_b32 v16, v{r+1}, v{r+3}")
        a("v_xor_b32 v15, s62, v15")
        a("v_xor_b32 v16, s62, v16")
        a("v_or3_b32 v14, v14, v15, v16")
    a("v_cmp_ne_u32 vcc, 0, v14")
    a("s_nop 1")
    a("s_cbranch_vccz b_kf_ok")
    a("s_sub_u32 s63, s63, 1")
    a("s_cbranch_scc1 b_kf_done")
    kf_loads()
    a("s_branch b_kf")
    a.label("b_kf_ok")
    lds_signal(a, C_ST + 0)
    a("s_mov_b32 s46, 1")
    a.label("b_kf_done")
    st.stamp()
    if "c0early" in VAR:
        lds_wait(a, C_QD, 4, 5, 51)
        for f in issue_ops(0): f()
    a("v_lshlrev_b32 v15, 7, v1")
    a("s_lshl_b32 s54, s26, 11")
    a(f"s_add_u32 s54, s54, {W_F1}")
    poll_flags(a, 15, "s54", 16, 16, sleep=int(VAR.get("psleep", 4)))
    bbar(a)
    lf = a.newlabel("kfok")
    a("s_cmp_eq_u32 s46, 1")
    a(f"s_cbranch_scc1 {lf}")
    a("s_lshl_b32 s53, s26, 12")
    kv_dma(a, 53, 4, first=True)
    a("s_waitcnt vmcnt(0)")
    lds_signal(a, C_ST + 0)
    a.label(lf)
    lds_wait(a, C_QD, 4, 5, 51)
    for k in range(1, 6):
        a("s_lshl_b32 s53, s26, 12")
        a(f"s_add_u32 s53, s53, {k*16384}")
        kv_dma(a, 53, 4)
        if k == 2:
            a("s_waitcnt vmcnt(4)")
            lds_signal(a, C_ST + 4)
    a("s_cmp_eq_u32 s43, 0")
    a(f"s_cselect_b32 s4, s{P_BWO}, s{P_AWO}")
    a(f"s_cselect_b32 s5, s{P_BWO+1}, s{P_AWO+1}")
    a("s_mov_b32 s6, 0x80000")
    a("s_mov_b32 s7, 0x20000")
    a("s_lshl_b32 s51, s3, 1")
    a("s_add_u32 s51, s51, s42")
    a("s_lshl_b32 s51, s51, 13")
    if MAP81: a("v_lshlrev_b32 v14, 7, v1")
    else:
        a("s_lshr_b32 s54, s41, 1")
        a("s_lshl_b32 s54, s54, 9")
        a("s_add_u32 s51, s51, s54")
        a("v_lshrrev_b32 v14, 2, v6")
        a("v_lshlrev_b32 v14, 10, v14")
        a("v_and_b32 v15, 3, v1")
        a("v_lshl_add_u32 v14, v15, 7, v14")
    a("buffer_load_dword v160, v14, s[4:7], s51 offen")
    lds_wait(a, C_QR, 4, 5, 51, sleep=2)
    for f in issue_ops(1): f()
    a(f"s_waitcnt vmcnt({1 if 'c0early' in VAR else 9})")
    lds_signal(a, C_ST + 8)
    a(f"s_setprio {VAR.get('bprio', 3)}")
    st.stamp()
    a("s_mov_b32 s50, 0")
    if "bidle" in VAR:
        a("s_waitcnt vmcnt(0)")
        bbar(a)
        a("s_mul_i32 s54, s26, 12288")
        a("s_add_u32 s54, s54, 81920")
        kv_dma(a, 54, 12)
        a("s_waitcnt vmcnt(0)")
        for c_ in (12, 16, 20): lds_signal(a, C_ST + c_)
        srd(a, 28, P_OUT, 4 << 20)
        a("s_mov_b32 s47, 0")
        a("s_branch b_tail")
    if "nogemm" in VAR: a("s_branch b_gend")
    INLOOP[0] = True
    a.label("b_loop")
    for buf in (1, 0):
        mm(1, 0)
        a("s_waitcnt vmcnt(0)")
        a("s_add_u32 s58, s58, 4")
        lds_signal(a, C_BB)
        mm(1, 1)
        ops = issue_ops(buf ^ 1)
        if buf == 0:
            a("s_cmp_eq_u32 s50, 3")
            a("s_cselect_b32 s64, 0x7f000000, s64")
            a("s_cselect_b32 s65, 0x7f000000, s65")
            for r in (56, 57): a(f"s_cselect_b32 s{r}, 0x30000, s{r}")
        ops[0]()
        lds_wait(a, C_BB, "s58", 5, 51, sleep=int(VAR.get("bsleep", 0)))
        for x in read_ops(buf, 0, 0): a(x)
        mm(1, 2)
        oi = 1
        for _ in range(3): ops[oi](); oi += 1
        for sp in range(3):
            for x in read_ops(buf, sp+1, (sp+1) & 1): a(x)
            a("s_waitcnt lgkmcnt(7)")
            for k in range(3):
                mm(sp & 1, k)
                for _ in range(2):
                    if oi < len(ops): ops[oi](); oi += 1
        a("s_waitcnt lgkmcnt(0)")
    a("s_add_u32 s50, s50, 1")
    a("s_cmp_lt_u32 s50, 4")
    a("s_cbranch_scc1 b_loop")
    a.label("b_gend")
    a("s_add_u32 s58, s58, 4")
    lds_signal(a, C_BB)
    for k in range(3): mm(1, k)
    lds_wait(a, C_BB, "s58", 5, 51, sleep=0)
    a(f"s_mov_b32 s54, {23*4096}")
    kv_dma(a, 54, 4, only=(3,))
    a("s_lshl_b32 s54, s26, 13")
    a("s_add_u32 s54, s54, 98304")
    kv_dma(a, 54, 8)
    st.stamp()
    QF = 84; KF = 92; VF = 100; KH = 108; VH = 116
    cvt8(a, KF, ACC+16); cvt8(a, KF+4, ACC+24)
    cvt8(a, VF, ACC+32); cvt8(a, VF+4, ACC+40)
    a("s_mul_i32 s51, s42, 3072")
    a(f"s_add_u32 s51, s51, {L_BEX}")
    a("v_add_u32 v13, s51, v9")
    a("s_lshl_b32 s52, s44, 3")
    a("s_add_u32 s52, s52, s45")
    a("s_lshl_b32 s53, s52, 1")
    a("s_add_u32 s53, s53, s42")
    a("s_mul_i32 s53, s53, 3072")
    a(f"s_add_u32 s53, s53, {W_HALO}")
    a("s_lshl_b32 s52, s52, 7")
    a("s_lshl_b32 s51, s42, 2")
    a("s_add_u32 s52, s52, s51")
    a(f"s_add_u32 s52, s52, {W_F2}")
    l1 = a.newlabel("b_w1"); l2 = a.newlabel("b_w2")
    a("s_cmp_eq_u32 s43, 0")
    a(f"s_cbranch_scc0 {l1}")
    a(f"ds_write_b128 v13, {vr(KF,4)}")
    a(f"ds_write_b128 v13, {vr(KF+4,4)} offset:1024")
    a(f"ds_write_b128 v13, {vr(VF+4,4)} offset:2048")
    a("s_waitcnt vmcnt(0)")
    a(f"s_branch {l2}")
    a.label(l1)
    a(f"buffer_store_dwordx4 {vr(KF,4)}, v9, s[36:39], s53 offen sc1")
    a(f"buffer_store_dwordx4 {vr(KF+4,4)}, v9, s[36:39], s53 offen offset:1024 sc1")
    a(f"buffer_store_dwordx4 {vr(VF+4,4)}, v9, s[36:39], s53 offen offset:2048 sc1")
    a("s_waitcnt vmcnt(0)")
    store_flag(a, "s52", 14)
    a.label(l2)
    cvt8(a, QF, ACC); cvt8(a, QF+4, ACC+8)
    a("s_waitcnt vmcnt(1)")
    lds_signal(a, C_ST + 12)
    bbar(a)
    l1 = a.newlabel("b_x1"); l2 = a.newlabel("b_x2")
    a("s_or_b32 s51, s44, 0")
    a("s_cselect_b32 s51, s43, 1")
    a("s_cmp_eq_u32 s51, 0")
    a(f"s_cbranch_scc0 {l1}")
    a(f"s_sub_u32 s52, s52, {8*128}")
    a(f"s_sub_u32 s53, s53, {16*3072}")
    a("v_mov_b32 v5, 0")
    poll_flags(a, 5, "s52", 1, 14, sleep=6, width=1)
    a(f"buffer_load_dwordx4 {vr(KH,4)}, v9, s[36:39], s53 offen sc1")
    a(f"buffer_load_dwordx4 {vr(KH+4,4)}, v9, s[36:39], s53 offen offset:1024 sc1")
    a(f"buffer_load_dwordx4 {vr(VH,4)}, v9, s[36:39], s53 offen offset:2048 sc1")
    a("s_waitcnt vmcnt(0)")
    a(f"s_branch {l2}")
    a.label(l1)
    a(f"ds_read_b128 {vr(KH,4)}, v13")
    a(f"ds_read_b128 {vr(KH+4,4)}, v13 offset:1024")
    a(f"ds_read_b128 {vr(VH,4)}, v13 offset:2048")
    a.label(l2)
    lsn = a.newlabel("nosn")
    a("s_and_b32 s51, s40, 1")
    a("s_cmp_eq_u32 s51, s43")
    a(f"s_cbranch_scc0 {lsn}")
    a("s_lshl_b32 s51, s40, 2")
    a("s_add_u32 s51, s51, s41")
    a("s_lshl_b32 s51, s51, 1")
    a("s_add_u32 s51, s51, s42")
    a("s_lshl_b32 s51, s51, 12")
    a(f"s_add_u32 s51, s51, {W_OA}")
    for i in range(4): a(f"v_mov_b32 v{120+i}, -1")
    for i in range(4 if "xnoslow" not in VAR else 0): a(f"buffer_store_dwordx4 v[120:123], v9, s[36:39], s51 offen offset:{i*1024} sc1")
    a(f"s_add_u32 s51, s51, {W_OF - W_OA}")
    for i in range(4): a(f"buffer_store_dwordx4 v[120:123], v9, s[36:39], s51 offen offset:{i*1024} sc1")
    a.label(lsn)
    a("s_lshl_b32 s52, s44, 1")
    a("s_add_u32 s52, s52, s43")
    a("s_lshl_b32 s55, s52, 4")
    a("s_lshl_b32 s53, s45, 1")
    a("s_add_u32 s53, s53, s42")
    a("s_add_u32 s55, s55, s53")
    a("s_lshl_b32 s55, s55, 11")
    a(f"s_add_u32 s55, s55, {W_OB}")
    a("s_lshl_b32 s57, s52, 9")
    a("s_lshr_b32 s51, s53, 2")
    a("s_lshl_b32 s51, s51, 7")
    a("s_add_u32 s57, s57, s51")
    a("s_and_b32 s51, s53, 3")
    a("s_lshl_b32 s51, s51, 2")
    a("s_add_u32 s57, s57, s51")
    a(f"s_add_u32 s57, s57, {W_F3}")
    a("s_waitcnt lgkmcnt(0)")
    SM = 20; SH = 36; O = 52; PP = 68; T = 152
    a(f"s_mov_b32 s46, {CSCALE}")
    a("s_or_b32 s60, s44, s43")
    G = 136
    for hd in range(2 if "nolocal" not in VAR else 0):
        sm = SM + 32*hd; sh = sm + 16
        mfma32(a, sm, KF+4*hd, QF+4*hd, "0")
        mfma32(a, sh, KH+4*hd, QF+4*hd, "0")
    lz = a.newlabel("fz")
    a("s_cmp_eq_u32 s60, 0")
    a(f"s_cbranch_scc0 {lz}")
    for hd in range(2):
        for i in range(8): a(f"v_mov_b32 v{SM+32*hd+24+i}, 0xff800000")
    a.label(lz)
    for hd in range(2 if "nolocal" not in VAR else 0):
        sm = SM + 32*hd; sh = sm + 16
        for g_ in range(2): a(f"ds_write_b128 v{LW}, {vr(sh+8+4*g_,4)} offset:{32*g_}")
        for g_ in range(4): a(f"ds_write_b128 v{LW}, {vr(sm+4*g_,4)} offset:{64 + 32*g_}")
        for i in range(4): a(f"ds_read_b32 v{G+4*hd+i}, v{LG} offset:{8*i}")
    for hd in range(2 if "nolocal" not in VAR else 0):
        g0 = G + 4*hd; t = T + 4*hd
        if hd == 0:
            for f in range(6): a(f"ds_write_b128 v{LP}, {vr(ZR,4)} offset:{f*1024}")
        a(f"s_waitcnt lgkmcnt({15 if hd == 0 else 4})")
        if hd == 0: a("s_waitcnt lgkmcnt(6)")
        a(f"v_max3_f32 v{t}, v{g0}, v{g0+1}, v{g0+2}")
        a(f"v_max_f32 v{t}, v{t}, v{g0+3}")
        xhalf_max(a, t, t+1)
        a(f"v_mul_f32 v{t}, s46, v{t}")
        for i in range(4): a(f"v_fma_f32 v{g0+i}, v{g0+i}, s46, -v{t}")
        for i in range(4): a(f"v_exp_f32 v{g0+i}, v{g0+i}")
        a(f"v_add_f32 v{t}, v{g0}, v{g0+1}")
        a(f"v_add_f32 v{t+1}, v{g0+2}, v{g0+3}")
        a(f"v_add_f32 v{t}, v{t}, v{t+1}")
        a(f"v_mov_b32 v{t+1}, v{t}")
        a(f"v_permlane32_swap_b32 v{t}, v{t+1}")
        a(f"v_add_f32 v{t}, v{t}, v{t+1}")
        a(f"v_rcp_f32 v{t}, v{t}")
        for i in range(4): a(f"v_mul_f32 v{g0+i}, v{g0+i}, v{t}")
        a(f"v_cvt_pk_bf16_f32 v{t+2}, v{g0}, v{g0+1}")
        a(f"v_cvt_pk_bf16_f32 v{t+3}, v{g0+2}, v{g0+3}")
        for i in range(4):
            a(f"ds_write_b16{'_d16_hi' if i & 1 else ''} v{LS+i}, v{t+2+(i>>1)} offset:{hd*3072}")
    for hd in range(2 if "nolocal" not in VAR else 0):
        for f in range(3): a(f"ds_read_b128 {vr(SM+12*hd+4*f,4)}, v{LP} offset:{hd*3072 + f*1024}")
    for hd in range(2 if "nolocal" not in VAR else 0):
        o = 52 + 16*hd; p = SM + 12*hd
        a(f"s_waitcnt lgkmcnt({3 - 3*hd})")
        mfma32(a, o, VH, p, "0")
        mfma32(a, o, VF, p+4, o)
        mfma32(a, o, VF+4, p+8, o)
    for hd in range(2 if "nolocal" not in VAR else 0):
        o = 52 + 16*hd
        cvt8(a, G+4*hd, o+8*hd)
        a(f"buffer_store_dwordx4 {vr(G+4*hd,4)}, v9, s[36:39], s55 offen offset:{hd*1024} sc1")
    a("s_waitcnt vmcnt(0)")
    store_flag(a, "s57", 12)
    st.stamp()
    srd(a, 32, P_BWO, 512 * 1024)
    srd(a, 28, P_OUT, 4 << 20)
    a("s_lshl_b32 s47, s41, 8")
    a("s_lshl_b32 s51, s26, 6")
    a("s_add_u32 s47, s47, s51")
    a("v_lshrrev_b32 v3, 2, v1")
    a("v_lshlrev_b32 v3, 10, v3")
    a("v_and_b32 v4, 3, v1")
    a("v_lshl_add_u32 v3, v4, 4, v3")
    a("v_add_u32 v3, s47, v3")
    tr_base_wo(a, 8, 4)
    a("s_mul_i32 s56, s26, 7168")
    a(f"s_add_u32 s56, s56, {L_COMB}")
    a("v_add_u32 v8, s56, v8")
    a("v_lshlrev_b32 v4, 11, v6")
    a("v_lshl_add_u32 v4, v7, 4, v4")
    a("s_lshl_b32 s51, s40, 16")
    a("s_add_u32 s47, s47, s51")
    ACC = 12; OB = 28; WL = 40
    a("s_mov_b32 s48, 0")
    bbar(a)
    R = 7
    def wissue(i):
        a(f"s_add_u32 m0, s56, {(i%R)*1024}")
        a(f"buffer_load_dwordx4 v3, s[32:35], s48 offen lds")
        a("s_add_u32 s48, s48, 16384")
        a("s_and_b32 s48, s48, 0x7ffff")
    def trr(i):
        for t in range(2): a(f"ds_read_b64_tr_b16 {vr(WL+4*i+2*t,2)}, v8 offset:{(i%R)*1024 + t*512}")
    for i in range(R): wissue(i)
    for i in range(32):
        a(f"s_waitcnt vmcnt({R-1 if i == 0 else min(R-2, 31-i)})")
        trr(i)
        if i >= 1 and i + R - 1 < 32:
            a("s_waitcnt lgkmcnt(2)")
            wissue(i + R - 1)
    def run(lo, hi, addr, off0):
        o = lambda i: (i - off0) * 1024
        for i in range(lo, min(lo+2, hi)): a(f"ds_read_b128 {vr(OB+4*(i%3),4)}, {addr} offset:{o(i)}")
        for i in range(lo, hi):
            if i + 2 < hi:
                a(f"ds_read_b128 {vr(OB+4*((i+2)%3),4)}, {addr} offset:{o(i+2)}")
                a("s_waitcnt lgkmcnt(2)")
            else:
                a(f"s_waitcnt lgkmcnt({hi-1-i})")
            mfma32(a, ACC, WL+4*i, OB+4*(i%3), "0" if i == 0 else ACC)
    a("v_lshlrev_b32 v5, 7, v1")
    a("s_lshl_b32 s57, s40, 9")
    a(f"s_add_u32 s57, s57, {W_F3}")
    poll_flags(a, 5, "s57", 4, 28, sleep=8)
    lds_signal(a, C_ST + 16)
    st.stamp()
    lds_wait(a, C_PR, 8, 5, 51, sleep=8)
    a("s_lshl_b32 s49, s40, 15")
    a("s_lshl_b32 s51, s26, 13")
    a("s_add_u32 s49, s49, s51")
    a(f"s_add_u32 s49, s49, {W_OB}")
    a(f"s_add_u32 s46, s51, {L_OB}")
    for q in range(8):
        if (q & 3) == 0:
            a(f"s_add_u32 m0, s46, {q*1024}")
            if q: a("s_add_u32 s49, s49, 4096")
        a(f"buffer_load_dwordx4 v9, s[36:39], s49 offen offset:{(q&3)*1024} sc1 lds")
    srd(a, 32, P_AWO, 512 * 1024)
    a("s_lshl_b32 s48, s41, 17")
    for i in range(R): wissue(i)
    a(f"v_add_u32 v0, {L_OB}, v9")
    a(f"s_waitcnt vmcnt({R})")
    bbar(a)
    def ord_(i): a(f"ds_read_b128 {vr(OB+4*(i%3),4)}, v0 offset:{i*1024}")
    ord_(0); ord_(1)
    q = ["o0", "o1"]
    def lw(tag):
        k = len(q) - 1 - max(j for j, x in enumerate(q) if x == tag)
        a(f"s_waitcnt lgkmcnt({k})")
        del q[:len(q)-k]
    for i in range(32):
        if i + 2 < 32: ord_(i + 2); q.append(f"o{i+2}")
        if f"o{i}" in q: lw(f"o{i}")
        mfma32(a, ACC, WL+4*i, OB+4*(i%3), "0" if i == 0 else ACC)
        if i >= 2 and i + R - 2 < 32:
            if f"t{i-2}" in q: lw(f"t{i-2}")
            wissue(i + R - 2)
        issued = min(31, max(R - 1, i + R - 2))
        a(f"s_waitcnt vmcnt({issued - i})")
        trr(i); q += [f"t{i}", f"t{i}"]
    cvt8(a, 28, ACC); cvt8(a, 32, ACC+8)
    a("buffer_store_dwordx4 v[28:31], v4, s[28:31], s47 offen offset:1024 " + VAR.get("stb", "nt"))
    a("buffer_store_dwordx4 v[32:35], v4, s[28:31], s47 offen offset:1056 " + VAR.get("stb", "nt"))
    st.stamp()
    a.label("b_tail")
    st.stamp()
    le = a.newlabel("ep")
    a("s_or_b32 s51, s2, s26")
    a("s_cmp_eq_u32 s51, 0")
    a(f"s_cbranch_scc0 {le}")
    a(f"s_mov_b32 s51, {W_EP}")
    store_flag(a, "s51", 28)
    a.label(le)
    a(f"v_add_u32 v0, {L_OA}, v9")
    lds_wait(a, C_CB + 0, 1, 5, 51, sleep=16)
    def rd(i): a(f"ds_read_b128 {vr(WL+4*(i-8),4)}, v0 offset:{i*1024}")
    lds_wait(a, C_OF, 8, 5, 51, sleep=0)
    if "tfine" in VAR: st.n = 5; st.stamp(); a("s_waitcnt lgkmcnt(0)")
    run(0, 8, "v0", 0)
    lds_wait(a, C_OF + 4, 8, 5, 51, sleep=0)
    if "tfine" in VAR: st.stamp(); a("s_waitcnt lgkmcnt(0)")
    for i in range(8, 16): rd(i)
    NE = int(VAR.get("ne", 3))
    for i in range(8, 8 + NE):
        a(f"s_waitcnt lgkmcnt({15 - i})")
        mfma32(a, ACC, WL+4*i, WL+4*(i-8), ACC)
        if i == 8: a(f"ds_read_b64 v[28:29], v10 offset:{C_OF + 8}")
    a("s_waitcnt lgkmcnt(0)")
    a("v_min_u32 v28, v28, v29")
    a("v_readfirstlane_b32 s51, v28")
    a("s_cmp_ge_u32 s51, 8")
    a("s_cbranch_scc0 b_slowtail")
    for i in range(8, 8 + NE): rd(i + 8)
    for i in range(8 + NE, 32):
        if i >= 16: a(f"s_waitcnt lgkmcnt({min(7, 31 - i)})")
        mfma32(a, ACC, WL+4*i, WL+4*(i-8), ACC)
        if i + 8 < 32: rd(i + 8)
    a.label("b_fin")
    cvt8(a, 28, ACC); cvt8(a, 32, ACC+8)
    a("buffer_store_dwordx4 v[28:31], v4, s[28:31], s47 offen " + VAR.get("sta", "nt"))
    a("buffer_store_dwordx4 v[32:35], v4, s[28:31], s47 offen offset:32 " + VAR.get("sta", "nt"))
    if DIAG:
        if "tfine" in VAR: st.stamp()
        a("s_waitcnt vmcnt(0)")
        st.stamp()
        st.dump(None, 0)
    a("s_endpgm")
    a.label("b_slowtail")
    for d in range(1, 4):
        if d > 1:
            lds_wait(a, C_OF + 4*d, 8, 5, 51, sleep=0)
            for i in range(8*d, 8*d + 8): rd(i)
        for i in range(8*d + (NE if d == 1 else 0), 8*d + 8):
            a(f"s_waitcnt lgkmcnt({8*d + 7 - i})")
            mfma32(a, ACC, WL+4*i, WL+4*(i-8), ACC)
    a("s_branch b_fin")

def pre_a(a):
    a("s_sub_u32 s59, s26, 4")
    a("s_and_b32 s42, s59, 3")
    a("s_lshr_b32 s43, s59, 2")
    a("s_lshr_b32 s46, s41, 1")
    a("s_lshl_b32 s49, s46, 4")
    a("s_lshl_b32 s48, s59, 1")
    a("s_add_u32 s49, s49, s48")
    a("s_xor_b32 s51, s49, 16")
    a("s_lshl_b32 s52, s40, 5")
    a("s_add_u32 s48, s52, s49")
    a("s_lshl_b32 s48, s48, 10")
    a("s_xor_b32 s50, s48, 16384")
    a(f"s_mul_i32 s49, s49, {XP}")
    a(f"s_mul_i32 s51, s51, {XP}")
    a("s_mov_b32 s30, 0x200000")
    a("s_mov_b32 s31, 0x20000")
    a(f"s_add_u32 m0, s49, {L_XA}")
    a("s_waitcnt lgkmcnt(0)")
    a(f"s_mov_b32 s28, s{P_AX}")
    a(f"s_mov_b32 s29, s{P_AX+1}")
    for k, (so, lb) in enumerate((("s48", "s49"), ("s50", "s51"))):
        for q in range(2):
            if k or q: a(f"s_add_u32 m0, {lb}, {L_XA + q*XP - q*1024}")
            a(f"buffer_load_dwordx4 v9, s[28:31], {so} offen offset:{q*1024} lds")
    srd(a, 36, P_WS, W_USED)
def pre_b(a):
    a("s_setprio 3")
    a("s_and_b32 s45, s41, 1")
    a("s_lshr_b32 s46, s41, 1")
    a("s_mov_b32 s30, 16384")
    a("s_mov_b32 s31, 0x20000")
    a("s_lshl_b32 s51, s26, 12")
    a(f"s_add_u32 m0, s51, {L_WK}")
    a(f"v_mov_b32 v18, {W_EP}")
    a("s_cmp_eq_u32 s45, 0")
    a("s_waitcnt lgkmcnt(0)")
    a(f"s_cselect_b32 s28, s{P_AWK}, s{P_AWV}")
    a(f"s_cselect_b32 s29, s{P_AWK+1}, s{P_AWV+1}")
    for q in range(4):
        a(f"buffer_load_dwordx4 v9, s[28:31], s51 offen offset:{q*1024} lds")
    srd(a, 36, P_WS, W_USED)
    a("buffer_load_dword v19, v18, s[36:39], 0 offen sc1")

def kernel():
    a = Asm(); n = NAME + "_kernel"
    a.label(n)
    a("s_cmp_ge_u32 s2, 256")
    a("s_cbranch_scc1 k_exit")
    load_ptrs(a)
    sta = Stamps(a, DIAG, real='--cyc' not in sys.argv); stb = Stamps(a, DIAG, real='--cyc' not in sys.argv)
    sta.stamp(); stb.n = sta.n
    VAR.setdefault("cpf", 162)
    if int(VAR["cpf"]):
        a("s_getpc_b64 s[32:33]")
        a("v_lshlrev_b32 v3, 7, v0")
        a(f"v_cmp_gt_u32 vcc, {int(VAR['cpf'])}, v0")
        a("s_and_saveexec_b64 s[34:35], vcc")
        a("s_cbranch_execz k_nopf")
        a("global_load_dword v167, v3, s[32:33]")
        a.label("k_nopf")
        a("s_mov_b64 exec, s[34:35]")
    a("v_and_b32 v1, 63, v0")
    a("v_lshrrev_b32 v2, 6, v0")
    a("v_readfirstlane_b32 s26, v2")
    a("s_and_b32 s27, s2, 7")
    a("s_lshr_b32 s3, s2, 3")
    if MAP81:
        a("s_lshl_b32 s40, s27, 3")
        a("s_lshr_b32 s41, s3, 2")
        a("s_add_u32 s40, s40, s41")
        a("s_and_b32 s41, s3, 3")
    else:
        a("s_lshr_b32 s40, s27, 1")
        a("s_lshl_b32 s40, s40, 4")
        a("s_lshr_b32 s41, s3, 1")
        a("s_add_u32 s40, s40, s41")
        a("s_and_b32 s41, s27, 1")
        a("s_lshl_b32 s41, s41, 1")
        a("s_and_b32 s27, s3, 1")
        a("s_add_u32 s41, s41, s27")
    a("s_lshl_b32 s27, s41, 1")
    a("s_and_b32 s51, s40, 1")
    a("s_add_u32 s27, s27, s51")
    a("v_and_b32 v6, 31, v1")
    a("v_lshrrev_b32 v7, 5, v1")
    a("v_lshlrev_b32 v9, 4, v1")
    a(f"v_mov_b32 v10, {L_CNT}")
    a("v_mov_b32 v11, 1")
    a("s_cmp_lt_u32 s26, 4")
    a("s_cbranch_scc0 pre_a")
    pre_b(a)
    a("s_barrier")
    a("s_branch role_b")
    a.label("pre_a")
    pre_a(a)
    a("s_barrier")
    role_a(a, sta)
    a.label("role_b")
    role_b(a, stb)
    a.label("k_exit")
    a("s_endpgm")
    return (n, a, 256, 768, LDS_SIZE, 168)

if __name__ == "__main__":
    write_file(sys.argv[1], [kernel()])
```

```python
import sys
from common import *
DIAG = "--diag" in sys.argv
VAR = dict((x[2:].split("=")+[1])[:2] for x in sys.argv if x.startswith("-V"))

W_KV = 0
W_F1 = 0x20000
W_F2 = 0x28000
W_F4 = 0x24000
W_F3 = 0x30000
W_EP = 0x3F000
W_KF = 0x40000
W_OA = 1 << 20
W_OB = 3 << 20
W_HALO = 5 << 20
W_OF = 10 << 20
W_TO = 14 << 20
W_USED = 16 << 20
L_XA = 16384
L_WK = 0
WQ_SLOT = [49664 + 16384*i for i in range(6)] + [16384, 32768]
L_GB = 97792
GB_W, GB_X, GB_SZ = 0, 24576, 32896
L_COMB = 131072
L_QX = 155392
L_BEX = 155648
L_CNT = 163584
LDS_SIZE = 163840
C_BB, C_ST, C_EX, C_XA, C_QB, C_QC, C_QD, C_XD = 4, 16, 40, 72, 76, 92, 96, 100
C_ISS, C_QR = 8, 12
C_PR, C_CB, C_OF = 104, 112, 144
L_CB = 0
L_OB = 24576
L_OA = 65536
C_PR2 = 108
BIAS = VAR.get("bias", "0xc2c80000")
VSC = 40
MAP81 = 'map24' not in VAR
XP = 1040
TAGC = 0x9E3779B9 - (1 << 32)
SPIN = 40000

def cvt8(a, dst, src):
    for i in range(4):
        a(f"v_cvt_pk_bf16_f32 v{dst+i}, v{src+2*i}, v{src+2*i+1}")

def tr_base32(a, dst, tmp):
    a(f"v_lshlrev_b32 v{dst}, 9, v7")
    a(f"v_bfe_u32 v{tmp}, v1, 2, 2")
    a(f"v_lshl_add_u32 v{dst}, v{tmp}, 6, v{dst}")
    a(f"v_bfe_u32 v{tmp}, v1, 4, 1")
    a(f"v_lshl_add_u32 v{dst}, v{tmp}, 5, v{dst}")
    a(f"v_and_b32 v{tmp}, 3, v1")
    a(f"v_lshl_add_u32 v{dst}, v{tmp}, 3, v{dst}")

def tr_base_wo(a, dst, tmp):
    a(f"v_lshlrev_b32 v{dst}, 8, v7")
    a(f"v_bfe_u32 v{tmp}, v1, 2, 2")
    a(f"v_lshl_add_u32 v{dst}, v{tmp}, 6, v{dst}")
    a(f"v_bfe_u32 v{tmp}, v1, 4, 1")
    a(f"v_lshl_add_u32 v{dst}, v{tmp}, 5, v{dst}")
    a(f"v_and_b32 v{tmp}, 1, v1")
    a(f"v_lshl_add_u32 v{dst}, v{tmp}, 4, v{dst}")
    a(f"v_bfe_u32 v{tmp}, v1, 1, 1")
    a(f"v_lshl_add_u32 v{dst}, v{tmp}, 3, v{dst}")

def lds_signal(a, off, addr="v10"):
    a("s_mov_b64 exec, 1")
    a(f"ds_add_u32 {addr}, v11 offset:{off}")
    a("s_mov_b64 exec, -1")
def lds_wait(a, off, val, tmp, stmp, addr="v10", sleep=1):
    l = a.newlabel("lw"); d = a.newlabel("lwd")
    a.label(l)
    a(f"ds_read_b32 v{tmp}, {addr} offset:{off}")
    a("s_waitcnt lgkmcnt(0)")
    a(f"v_readfirstlane_b32 s{stmp}, v{tmp}")
    a(f"s_cmp_ge_u32 s{stmp}, {val}")
    a(f"s_cbranch_scc1 {d}")
    if sleep: a(f"s_sleep {sleep}")
    a(f"s_branch {l}")
    a.label(d)
def bbar(a, tmp=5):
    a("s_add_u32 s58, s58, 4")
    lds_signal(a, C_BB)
    lds_wait(a, C_BB, "s58", tmp, 51, sleep=2)

def poll_flags(a, voff, soff, nl, t, sleep=2, width=4):
    l = a.newlabel("pf"); d = a.newlabel("pfd")
    a(f"s_mov_b32 s63, {SPIN}")
    if nl < 64: a(f"s_mov_b64 exec, {(1 << nl) - 1}")
    a.label(l)
    if width == 4:
        a(f"buffer_load_dwordx4 {vr(t,4)}, v{voff}, s[36:39], {soff} offen sc1")
        a("s_waitcnt vmcnt(0)")
        for i in range(4): a(f"v_xor_b32 v{t+i}, s62, v{t+i}")
        a(f"v_or3_b32 v{t}, v{t}, v{t+1}, v{t+2}")
        a(f"v_or_b32 v{t}, v{t}, v{t+3}")
    else:
        a(f"buffer_load_dword v{t}, v{voff}, s[36:39], {soff} offen sc1")
        a("s_waitcnt vmcnt(0)")
        a(f"v_xor_b32 v{t}, s62, v{t}")
    a(f"v_cmp_ne_u32 vcc, 0, v{t}")
    a("s_nop 1")
    a(f"s_cbranch_vccz {d}")
    a(f"s_sleep {sleep}")
    a("s_sub_u32 s63, s63, 1")
    a("s_cmp_lg_u32 s63, 0")
    a(f"s_cbranch_scc1 {l}")
    a.label(d)
    a("s_mov_b64 exec, -1")

def store_flag(a, soff, t):
    a(f"v_mov_b32 v{t}, s62")
    a(f"v_mov_b32 v{t+1}, 0")
    a("s_mov_b64 exec, 1")
    a(f"buffer_store_dword v{t}, v{t+1}, s[36:39], {soff} offen sc1")
    a("s_mov_b64 exec, -1")

def rowmax16(a, dst, S, init=None):
    if init is None:
        a(f"v_max3_f32 v{dst}, v{S}, v{S+1}, v{S+2}")
        for i in range(3, 15, 2): a(f"v_max3_f32 v{dst}, v{dst}, v{S+i}, v{S+i+1}")
        a(f"v_max_f32 v{dst}, v{dst}, v{S+15}")
    else:
        for i in range(0, 16, 2): a(f"v_max3_f32 v{dst}, v{dst}, v{S+i}, v{S+i+1}")
def xhalf_max(a, dst, tmp):
    a(f"v_mov_b32 v{tmp}, v{dst}")
    a(f"v_permlane32_swap_b32 v{dst}, v{tmp}")
    a(f"v_max_f32 v{dst}, v{dst}, v{tmp}")

def kv_dma(a, sreg, n, first=False, only=None):
    for q in range(n):
        if (q & 3) == 0:
            a(f"s_mov_b32 m0, s{sreg}")
            a(f"s_lshr_b32 s51, s{sreg}, 12")
            if not first:
                a("s_add_u32 s51, s51, s59")
                a("s_cmp_ge_u32 s51, 32")
                a("s_cselect_b32 s52, 28, 0")
                a("s_sub_u32 s51, s51, s52")
            a("s_add_u32 s51, s51, s55")
            a("s_and_b32 s51, s51, 31")
            a("s_lshl_b32 s51, s51, 12")
        if only is None or q in only: a(f"buffer_load_dwordx4 v9, s[36:39], s51 offen offset:{(q&3)*1024} sc1 lds")
        if (q & 3) == 3 and q + 1 < n: a(f"s_add_u32 s{sreg}, s{sreg}, 4096")

def kv_job(a, st=None):
    X = 24; W = 88
    lv = a.newlabel("kv_v"); ld = a.newlabel("kv_d")
    def reads(s):
        a(f"ds_read_b128 {vr(X+4*s,4)}, v14 offset:{s*64}")
        for t in range(2):
            a(f"ds_read_b64_tr_b16 {vr(W+4*s+2*t,2)}, v15 offset:{L_WK + s*1024 + t*128}")
    a("s_cmp_eq_u32 s45, 0")
    a(f"s_cbranch_scc0 {lv}")
    for which in range(2):
        if which: a.label(lv)
        for s in range(4): reads(s)
        for s in range(16):
            if s + 4 < 16:
                reads(s + 4); a("s_waitcnt lgkmcnt(12)")
            else:
                a(f"s_waitcnt lgkmcnt({3*(15-s)})")
            if which == 0: mfma16(a, 20, W+4*s, X+4*s, "0" if s == 0 else 20)
            else:          mfma16(a, 20, X+4*s, W+4*s, "0" if s == 0 else 20)
        if not which: a(f"s_branch {ld}")
    a.label(ld)
def kv_store(a):
    a("s_cmp_eq_u32 s45, 0")
    a(f"s_cselect_b32 s51, 1.0, {hex((127 + VSC) << 23)}")
    for i in range(4): a(f"v_mul_f32 v{20+i}, s51, v{20+i}")
    a("v_cvt_pk_bf16_f32 v156, v20, v21")
    a("v_cvt_pk_bf16_f32 v157, v22, v23")
    a("v_xor_b32 v158, s62, v156")
    a("v_xor_b32 v159, s62, v157")
    if "nokvfast" not in VAR: a("buffer_store_dwordx4 v[156:159], v17, s[36:39], s54 offen")
    a("buffer_store_dwordx2 v[156:157], v16, s[36:39], s52 offen sc1")
def kv_flag(a):
    a("s_waitcnt vmcnt(0)")
    store_flag(a, "s53", 18)

def kv_setup(a):
    a("v_and_b32 v12, 15, v1")
    a("v_lshrrev_b32 v13, 4, v1")
    a(f"v_mul_u32_u24 v14, {XP}, v12")
    a("v_lshl_add_u32 v14, v13, 4, v14")
    a(f"s_mul_i32 s51, s46, {16*XP}")
    a(f"s_add_u32 s51, s51, {L_XA}")
    a("v_add_u32 v14, s51, v14")
    a("v_lshlrev_b32 v15, 8, v13")
    a("v_lshl_add_u32 v15, v12, 3, v15")
    a("v_and_b32 v16, 1, v13")
    a("s_cmp_eq_u32 s45, 0")
    a("s_cselect_b32 s51, 9, 8")
    a("s_cselect_b32 s52, 8, 9")
    a("s_lshl_b32 s52, s46, s52")
    a("s_lshl_b32 s53, s45, 10")
    a("s_add_u32 s52, s52, s53")
    a("s_lshl_b32 s53, s40, 11")
    a("s_add_u32 s52, s52, s53")
    a("v_lshlrev_b32 v16, s51, v16")
    a("v_lshl_add_u32 v16, v12, 4, v16")
    a("v_lshrrev_b32 v17, 1, v13")
    a("v_lshl_add_u32 v16, v17, 3, v16")
    a("s_lshl_b32 s53, s40, 7")
    a("s_lshl_b32 s54, s41, 2")
    a("s_add_u32 s53, s53, s54")
    a(f"s_add_u32 s53, s53, {W_F1}")
    a("v_lshlrev_b32 v17, 1, v16")
    a("s_lshl_b32 s54, s52, 1")
    a(f"s_add_u32 s54, s54, {W_KF}")

def stouch_setup(a, slot, bw, bx):
    a("s_lshr_b32 s51, s3, 2")
    a(f"s_lshl_b32 s54, {slot}, 3")
    a("s_add_u32 s51, s51, s54")
    a("s_lshl_b32 s51, s51, 10")
    a("s_lshl_b32 s54, s27, 7")
    a("s_add_u32 s51, s51, s54")
    a(f"s_add_u32 s{bw}, s{P_BWQKV}, s51")
    a(f"s_addc_u32 s{bw+1}, s{P_BWQKV+1}, 0")
    a(f"s_add_u32 s{bw+2}, s{bw}, {24*32768}")
    a(f"s_addc_u32 s{bw+3}, s{bw+1}, 0")
    a("s_lshr_b32 s51, s40, 1")
    a("s_lshl_b32 s51, s51, 16")
    a("s_and_b32 s54, s3, 3")
    a("s_lshl_b32 s54, s54, 14")
    a("s_add_u32 s51, s51, s54")
    a(f"s_lshl_b32 s54, {slot}, 12")
    a("s_add_u32 s51, s51, s54")
    a(f"s_add_u32 s{bx}, s{P_BX}, s51")
    a(f"s_addc_u32 s{bx+1}, s{P_BX+1}, 0")
def stouch_list(chunks, bw, bx):
    l = []
    for c in chunks:
        for r in range(4): l.append((f"s[{bx}:{bx+1}]", r*1024 + c*128))
        for i in range(6):
            m = c*6 + i
            l.append((f"s[{bw}:{bw+1}]", m*32768) if m < 24 else (f"s[{bw+2}:{bw+3}]", (m-24)*32768))
    return l

def role_a(a, st):
    FINE = "fine" in VAR
    class F:
        def stamp(self):
            if FINE: st0.stamp()
    st0 = st; fs = F()
    if FINE:
        class N:
            n = 0
            def stamp(self): pass
            def dump(self, *x): st0.dump(*x)
        st = N()
    srd(a, 32, P_AWQ, 512 * 1024)
    S0, S1, O0, O1, C0, C1, P0, P1, Q0, Q1, KB, VB = 16, 32, 48, 64, 80, 96, 112, 120, 128, 132, 136, 144
    a(f"s_bfe_u32 s55, s3, {0x30002 if MAP81 else 0x30001}")
    a("s_cmp_eq_u32 s43, 0")
    a("s_cbranch_scc0 a_kh1")
    def early_init():
        for i in range(32): a(f"v_mov_b32 v{O0+i}, 0")
        a("s_lshl_b32 s56, s43, 11")
        a("v_add_u32 v2, s56, v9")
        a("v_lshlrev_b32 v3, 8, v7")
        a("v_lshl_add_u32 v3, v6, 4, v3")
        a("v_add_u32 v3, s56, v3")
        a("s_mov_b32 s60, 0x0000ffff")
        a("s_mov_b32 s61, 0x0000ffff")
        a("v_and_b32 v14, 27, v6")
        a("v_cmp_eq_u32 vcc, 16, v14")
        a(f"v_mov_b32 v13, {hex(((127 + VSC) << 7) * 0x10001)}")
        a("v_cndmask_b32 v14, 0, v13, vcc")
        for i in range(8): a(f"v_mov_b32 v{VB+i}, v14")
    XF = 16; WF = 144; ACC = 152
    a(f"v_mul_u32_u24 v4, {XP}, v6")
    a("v_lshl_add_u32 v4, v7, 4, v4")
    a("v_lshlrev_b32 v8, 11, v7")
    a("v_bfe_u32 v5, v1, 2, 2")
    a("v_lshl_add_u32 v8, v5, 8, v8")
    a("v_xor_b32 v5, s42, v5")
    a("v_lshl_add_u32 v8, v5, 6, v8")
    a("v_bfe_u32 v5, v1, 4, 1")
    a("v_lshl_add_u32 v8, v5, 5, v8")
    a("v_and_b32 v5, 3, v1")
    a("v_lshl_add_u32 v8, v5, 3, v8")
    a(f"s_waitcnt vmcnt({0 if 'merge' in VAR else 2}) lgkmcnt(0)")
    a("s_barrier")
    st.stamp()
    if "merge" not in VAR:
        a("s_waitcnt vmcnt(0)")
        a("s_barrier")
    fs.stamp()
    def xload(i):
        a(f"s_add_u32 s51, s55, {i}")
        a("s_and_b32 s51, s51, 7")
        a("s_lshl_b32 s51, s51, 7")
        a("v_add_u32 v5, s51, v4")
        for sp in range(4):
            a(f"ds_read_b128 {vr(XF+16*i+4*sp,4)}, v5 offset:{L_XA + sp*32}")
    for i in range(8): xload(i)
    a("v_add_u32 v5, 16384, v8")
    a("v_add_u32 v15, 115200, v8")
    a("v_add_u32 v8, 66048, v8")
    st.stamp(); fs.stamp()
    a("s_waitcnt lgkmcnt(0)")
    wmap = {}
    free = [144, 148]
    def qread(st_):
        i = st_ >> 2; sp = st_ & 3; sl = WQ_SLOT[i]
        r = free.pop(0); wmap[st_] = r
        base, off = ("v5", sl - 16384) if sl < 66048 else (("v8", sl - 66048) if sl < 115200 else ("v15", sl - 115200))
        for t in range(2):
            a(f"ds_read_b64_tr_b16 {vr(r+2*t,2)}, {base} offset:{off + sp*4096 + t*1024}")
    nr = 0; avail = 0; pend = []
    LEAD = int(VAR.get("lead", 4))
    for st_ in range(32):
        if avail < 32 and (st_ >= avail - LEAD):
            a("s_barrier")
            if FINE: fs.stamp(); a("s_waitcnt lgkmcnt(0)"); pend = []
            avail += 8
        while nr < avail and free and len(pend) <= 12:
            qread(nr); pend += [nr, nr]; nr += 1
            if nr == 32: lds_signal(a, C_QD); pend += [99]
        if st_ in pend:
            k = len(pend) - 1 - max(i for i, x in enumerate(pend) if x == st_)
            a(f"s_waitcnt lgkmcnt({k})")
            pend = pend[len(pend)-k:] if k else []
        mfma32(a, ACC, wmap[st_], XF+4*st_, "0" if st_ == 0 else ACC)
        for r in (wmap[st_], XF+4*st_):
            if not (48 <= r < 80) and (r < 144 or st_ < 6): free.append(r)
        if st_ == 17: early_init()
    st.stamp()
    a(f"s_mov_b32 s51, {CSCALE}")
    a("s_lshl_b32 s53, s42, 11")
    a(f"s_add_u32 s53, s53, {L_QX}")
    a("v_add_u32 v12, s53, v9")
    a("s_lshl_b32 s53, s42, 2")
    a("v_add_u32 v13, s53, v10")
    for i in range(16): a(f"v_mul_f32 v{ACC+i}, s51, v{ACC+i}")
    cvt8(a, Q1, ACC); cvt8(a, Q0, ACC+8)
    a(f"ds_write_b128 v12, {vr(Q1,4)}")
    a(f"ds_write_b128 v12, {vr(Q0,4)} offset:1024")
    lds_signal(a, C_EX, "v13")
    fs.stamp()
    a("s_branch a_join")
    a.label("a_kh1")
    st.n -= 3
    if FINE: st0.n = 1
    a("v_lshrrev_b32 v4, 4, v1")
    a("v_bfe_u32 v5, v1, 2, 2")
    a("v_xor_b32 v5, v5, v4")
    a("v_lshlrev_b32 v3, 10, v4")
    a("v_lshl_add_u32 v3, v5, 6, v3")
    a("v_and_b32 v5, 3, v1")
    a("v_lshl_add_u32 v3, v5, 4, v3")
    a("s_lshl_b32 s48, s42, 14")
    a("s_lshl_b32 s51, s41, 8")
    a("s_add_u32 s48, s48, s51")
    a("s_lshl_b32 s49, s42, 12")
    def op_q(i):
        a(f"s_add_u32 s51, s55, {i}")
        a("s_and_b32 s51, s51, 7")
        a("s_lshl_b32 s51, s51, 16")
        a("s_add_u32 s51, s51, s48")
        for q in range(4):
            a(f"s_add_u32 m0, s49, {WQ_SLOT[i] + q*1024}")
            if q: a("s_add_u32 s51, s51, 4096")
            a("buffer_load_dwordx4 v3, s[32:35], s51 offen lds")
    NPRE = int(VAR.get('npre', 2))
    for i in range(NPRE): op_q(i)
    MERGE = "merge" in VAR
    a(f"s_waitcnt vmcnt({4*NPRE + (0 if MERGE else 2)}) lgkmcnt(0)")
    a("s_barrier")
    st.stamp()
    if not MERGE:
        a(f"s_waitcnt vmcnt({4*NPRE})")
        a("s_barrier")
    fs.stamp()
    nxt = NPRE
    for gq in range(3):
        lim = 6 if gq == 0 else 8
        for _ in range(2):
            if nxt < lim: op_q(nxt); nxt += 1
        a(f"s_waitcnt vmcnt({4*(nxt - 2*gq - 2)})")
        fs.stamp()
        a("s_barrier")
    a("s_waitcnt vmcnt(0)")
    fs.stamp()
    a("s_barrier")
    st.stamp()
    early_init()
    a("s_lshl_b32 s53, s42, 11")
    a(f"s_add_u32 s53, s53, {L_QX}")
    a("v_add_u32 v15, s53, v9")
    a("s_lshl_b32 s53, s42, 2")
    a("v_add_u32 v13, s53, v10")
    lds_wait(a, C_EX, 1, 12, 51, "v13")
    a(f"ds_read_b128 {vr(Q0,4)}, v15")
    a(f"ds_read_b128 {vr(Q1,4)}, v15 offset:1024")
    fs.stamp()
    lds_signal(a, C_QR)
    st.stamp()
    a.label("a_join")
    def tail_setup():
        a("s_xor_b32 s52, s59, 4")
        a("s_mul_i32 s53, s59, 3072")
        a(f"v_add_u32 v160, s53, v9")
        a("s_mul_i32 s53, s52, 3072")
        a(f"v_add_u32 v161, s53, v9")
        a("s_lshl_b32 s53, s59, 2")
        a("v_add_u32 v162, s53, v10")
        a("s_lshl_b32 s53, s52, 2")
        a("v_add_u32 v163, s53, v10")
        a("s_lshl_b32 s57, s42, 1")
        a("s_add_u32 s57, s57, s43")
        a("s_lshl_b32 s58, s40, 5")
        a("s_lshl_b32 s53, s41, 3")
        a("s_add_u32 s53, s53, s58")
        a("s_add_u32 s53, s53, s57")
        a("s_lshl_b32 s53, s53, 10")
        a(f"s_add_u32 s44, s53, {W_OA}")
        a("s_lshl_b32 s57, s57, 10")
        a(f"s_add_u32 s57, s57, {L_OA}")
        a("v_add_u32 v164, s57, v9")
        a(f"s_add_u32 s48, s44, {W_OF - W_OA}")
        a("s_lshl_b32 s57, s59, 10")
        a(f"s_add_u32 s57, s57, {L_OA}")
        a("v_add_u32 v165, s57, v9")
        for d in range(1, 4):
            a(f"s_add_u32 s51, s41, {d}")
            a("s_and_b32 s51, s51, 3")
            a("s_lshl_b32 s51, s51, 3")
            a("s_add_u32 s51, s51, s58")
            a("s_add_u32 s51, s51, s59")
            a("s_lshl_b32 s51, s51, 10")
            a(f"s_add_u32 s{44+d}, s51, {W_OA}")
    for i in range(8, 16): a(f"v_mov_b32 v{VB+i}, v14")
    for i in range(4): a(f"v_mov_b32 v{P1+4+i}, 0")
    st.stamp()
    lds_wait(a, C_ST + 0, 4, 12, 51, sleep=0)
    if FINE: st0.n = 12
    fs.stamp()
    def kvread(b, off):
        a(f"ds_read_b128 {vr(KB+4*b,4)}, v2 offset:{off}")
        a("s_mov_b64 exec, s[60:61]")
        a(f"ds_read_b128 {vr(VB+8*b,4)}, v3 offset:{off+1024}")
        a(f"ds_read_b128 {vr(VB+8*b+4,4)}, v3 offset:{off+1536}")
        a("s_mov_b64 exec, -1")
    a(f"ds_read_b128 {vr(P0,4)}, v9")
    DEEP = "shallow" not in VAR
    def kread(b, off):
        if "nods" not in VAR: a(f"ds_read_b128 {vr(KB+4*b,4)}, v2 offset:{off}")
    def vread(b, off):
        if "nods" in VAR: return
        if "noex" not in VAR: a("s_mov_b64 exec, s[60:61]")
        a(f"ds_read_b128 {vr(VB+8*b,4)}, v3 offset:{off+1024}")
        a(f"ds_read_b128 {vr(VB+8*b+4,4)}, v3 offset:{off+1536}")
        if "noex" not in VAR: a("s_mov_b64 exec, -1")
    kvread(0, 0)
    if DEEP: kread(1, 4096)
    a(f"s_waitcnt lgkmcnt({4 if DEEP else 3})" if not DIAG else "s_waitcnt lgkmcnt(0)")
    mfma32(a, S0, P0, Q0, "0")
    mfma32(a, S1, P0, Q1, "0")
    for S, C in ((S0, C0), (S1, C1)):
        rowmax16(a, 12, S)
        xhalf_max(a, 12, 13)
        a(f"v_sub_f32 v{C}, {BIAS}, v12")
        for i in range(1, 16): a(f"v_mov_b32 v{C+i}, v{C}")
        if S == S0:
            a("s_waitcnt lgkmcnt(0)")
            mfma32(a, S0, KB, Q0, C0)
    st.stamp()
    a("s_mov_b32 s50, 0")
    a(f"s_setprio {VAR.get('ap0', 3)}")
    if DIAG: a("s_waitcnt lgkmcnt(0)")
    a(".p2align 6")
    for _ in range(int(VAR.get("shift", 0))): a("s_nop 0")
    a.label("a_loop")
    def E(S, lo, hi):
        for i in range(lo, hi): a(f"v_exp_f32{VAR.get('enc', '')} v{S+i}, v{S+i}")
    def half(S, P, O, Vx, pvy, snext, w1, post, post2=(), w2=None):
        E(S, 0, 2)
        mfma32(a, *pvy)
        for x in post: x()
        E(S, 2, 8)
        if w1: a("s_waitcnt lgkmcnt(0)")
        mfma32(a, *snext)
        for x in post2: x()
        cvt8(a, P, S)
        E(S, 8, 12)
        if w2 is not None: a(f"s_waitcnt lgkmcnt({w2})")
        mfma32(a, O, Vx, P, O)
        E(S, 12, 16)
        cvt8(a, P+4, S+8)
    HK = {0: [("w", 4)], 1: [("w", 8)], 3: [("p", 2)], 5: [("w", 12)]}
    for k in list(HK): HK[k] = [x for x in HK[k] if x[0] != "p"]
    PR0 = dict(zip(map(int, VAR.get("pr0", "3,5,6").split(",")), (2, 1, 0)))
    PR1 = dict(zip(map(int, VAR.get("pr1", "4,6,7").split(",")), (2, 1, 0)))
    for it in range(8):
        if it in PR0 or it in PR1: HK[it] = [("p", (PR0.get(it), PR1.get(it)))] + HK.get(it, [])
    if "ap0" in VAR: HK = {0: [("w", 4)], 1: [("w", 8)], 3: [("p", 1)], 4: [("w", 12)], 6: [("p", 0)]}
    def hooks():
        a("s_bitcmp1_b32 s50, 2")
        a("s_cbranch_scc1 a_hk_hi")
        a("s_branch a_hk_lo")
        a.label("a_hk_done")
    for t in range(4):
        b = t & 1; nb = b ^ 1
        if DEEP:
            post = [lambda: vread(nb, (t+1)*4096)]
            if t == 2: post = [hooks] + post
            half(S0, P0, O0, VB+8*b, (O1, VB+8*nb+4, P1+4, O1), (S1, KB+4*b, Q1, C1), False, post, [lambda: kread(b, (t+2)*4096)], 3)
            half(S1, P1, O1, VB+8*b, (O0, VB+8*b+4, P0+4, O0), (S0, KB+4*nb, Q0, C0), False, [])
            continue
        post = [lambda: kvread(nb, (t+1)*4096)]
        if t == 3: post = [hooks] + post
        half(S0, P0, O0, VB+8*b, (O1, VB+8*nb+4, P1+4, O1), (S1, KB+4*b, Q1, C1), False, post)
        half(S1, P1, O1, VB+8*b, (O0, VB+8*b+4, P0+4, O0), (S0, KB+4*nb, Q0, C0), True, [])
    a("v_add_u32 v2, 16384, v2")
    a("v_add_u32 v3, 16384, v3")
    a("s_add_u32 s50, s50, 1")
    a("s_cmp_lt_u32 s50, 8")
    a("s_cbranch_scc1 a_loop")
    mfma32(a, O1, VB+8+4, P1+4, O1)
    st.stamp()
    for i in range(2): a(f"ds_write_b128 v160, {vr(O0+4*i,4)} offset:{L_CB + i*1024}")
    a(f"ds_write_b32 v160, v{O0+8} offset:{L_CB + 2048}")
    lds_signal(a, C_CB, "v162")
    a("s_setprio 3")
    lds_wait(a, C_CB, 1, 12, 51, "v163", sleep=int(VAR.get("cbsleep", 0)))
    if "tfine" in VAR: st.stamp()
    for i in range(2): a(f"ds_read_b128 {vr(S0+4*i,4)}, v161 offset:{L_CB + i*1024}")
    a(f"ds_read_b32 v{S0+8}, v161 offset:{L_CB + 2048}")
    a("s_mov_b32 s51, 0x7b800000")
    a(f"s_mov_b32 s53, {hex((127 - 85) << 23)}")
    a("s_waitcnt lgkmcnt(0)")
    a(f"v_add_f32 v{O1+8}, v{O1+8}, v{S0+8}")
    a(f"v_rcp_f32 v14, v{O1+8}")
    for i in range(8): a(f"v_add_f32 v{O1+i}, v{O1+i}, v{S0+i}")
    a(f"v_add_f32 v12, abs(v{O1}), abs(v{O1+1})")
    a(f"v_add_f32 v13, abs(v{O1+2}), abs(v{O1+3})")
    for i in range(4, 8, 2):
        a(f"v_add_f32 v12, v12, abs(v{O1+i})")
        a(f"v_add_f32 v13, v13, abs(v{O1+i+1})")
    a("v_add_f32 v12, v12, v13")
    a(f"v_add_f32 v13, v12, v{O1+8}")
    a("v_cmp_ngt_f32 vcc, s51, v13")
    a("v_cmp_gt_f32 s[64:65], s53, v12")
    a("s_or_b64 vcc, vcc, s[64:65]")
    if "forcefb" in VAR: a("s_mov_b64 vcc, -1")
    if "bidle" in VAR: a("s_mov_b64 vcc, 0")
    a("s_cbranch_vccnz a_fallback")
    a.label("a_norm")
    for i in range(8): a(f"v_mul_f32 v{O1+i}, v{O1+i}, v14")
    cvt8(a, P0, O1)
    for i in range(4): a(f"v_min_u32 v{P0+i}, -2, v{P0+i}")
    if "nofast" not in VAR: a(f"buffer_store_dwordx4 {vr(P0,4)}, v9, s[36:39], s48 offen " + VAR.get("fst", ""))
    a(f"ds_write_b128 v164, {vr(P0,4)}")
    lds_signal(a, C_OF)
    st.stamp()
    a(f"s_mov_b32 s63, {SPIN}")
    a("s_mov_b32 s50, 0")
    a.label("a_poll")
    a(f"s_cmp_lt_u32 s63, {SPIN - int(VAR.get('fastn', 12))}")
    a("s_cselect_b32 s51, s63, 0")
    a("s_bitcmp1_b32 s51, 0")
    a(f"s_cselect_b32 s51, 0, {W_OF - W_OA}")
    a("v_add_u32 v13, s51, v9")
    for d in range(1, 4):
        a(f"buffer_load_dwordx4 {vr(S0+4*(d-1),4)}, v13, s[36:39], s{44+d} offen sc1")
    a("s_sub_u32 s63, s63, 1")
    for d in range(1, 4):
        r = S0 + 4*(d-1)
        nx = a.newlabel("pn")
        a(f"s_waitcnt vmcnt({3-d})")
        a(f"s_bitcmp1_b32 s50, {d}")
        a(f"s_cbranch_scc1 {nx}")
        a(f"v_max3_u32 v12, v{r}, v{r+1}, v{r+2}")
        a(f"v_max_u32 v12, v12, v{r+3}")
        a("v_cmp_eq_u32 vcc, -1, v12")
        a("s_cmp_eq_u32 s63, 0")
        a("s_cselect_b64 vcc, 0, vcc")
        a(f"s_cbranch_vccnz {nx}")
        a(f"ds_write_b128 v165, {vr(r,4)} offset:{d*8192}")
        lds_signal(a, C_OF + 4*d)
        a(f"s_bitset1_b32 s50, {d}")
        a.label(nx)
    a("s_cmp_eq_u32 s50, 14")
    a("s_cbranch_scc1 a_got")
    ls = a.newlabel("sl")
    a(f"s_cmp_eq_u32 s63, {SPIN - int(VAR.get('slown', 4))}")
    a(f"s_cbranch_scc0 {ls}")
    a(f"buffer_store_dwordx4 {vr(P0,4)}, v9, s[36:39], s44 offen sc1")
    a.label(ls)
    if int(VAR.get('tsleep', 0)): a(f"s_sleep {VAR.get('tsleep', 0)}")
    a("s_branch a_poll")
    a.label("a_got")
    if "xnoslow" not in VAR: a(f"buffer_store_dwordx4 {vr(P0,4)}, v9, s[36:39], s44 offen sc1")
    st.stamp()
    if "tfine" in VAR:
        a("s_waitcnt lgkmcnt(0)")
        a(f"s_sub_u32 s72, {SPIN}, s63")
        a("s_add_u32 s72, s72, s70")
    st.dump(None, 0)
    a("s_endpgm")
    def pretouch():
        a(f"v_lshlrev_b32 v13, 7, v1")
        a(f"v_add_u32 v13, {W_OF - W_OA}, v13")
        a("s_mov_b64 exec, 0xff")
        for d in range(1, 4): a(f"buffer_load_dword v166, v13, s[36:39], s{44+d} offen sc1")
        a("s_mov_b64 exec, -1")
    HK[3] = HK.get(3, []) + [("sig", C_PR)]
    HK[6] = HK.get(6, []) + [("sig", C_PR2)]
    HK[2] = [x for x in HK.get(2, []) if x[0] == "p"] + [("f", tail_setup)]
    HK[7] = [x for x in HK.get(7, []) if x[0] == "p"] + [("w", 16), ("w8", C_PR2)] + ([("f", pretouch)] if "nopre" not in VAR else [])
    for nm, rng in (("a_hk_lo", range(0, 4)), ("a_hk_hi", range(4, 8))):
        a.label(nm)
        for i in rng:
            if i not in HK: continue
            nx = a.newlabel("hk")
            a(f"s_cmp_eq_u32 s50, {i}")
            a(f"s_cbranch_scc0 {nx}")
            for kind, v in HK[i]:
                if kind == "w":
                    if "hkt" in VAR:
                        a("s_memtime s[4:5]")
                    lds_wait(a, C_ST + v, 4, 12, 51)
                    if "hkt" in VAR:
                        a("s_memtime s[6:7]")
                        a("s_waitcnt lgkmcnt(0)")
                        a("s_sub_u32 s6, s6, s4")
                        a(f"s_add_u32 s{72 + 2*(v//4 - 1)}, s70, s6")
                elif kind == "sig": lds_signal(a, v)
                elif kind == "f": v()
                elif kind == "w8": lds_wait(a, v, 8, 12, 51)
                elif kind == "s":
                    a("s_cmp_eq_u32 s43, 0")
                    a("s_cbranch_scc0 a_hk_done")
                    a("s_waitcnt vmcnt(0)")
                    lds_signal(a, C_ST + v)
                elif v[0] == v[1]: a(f"s_setprio {v[0]}")
                else:
                    for kh_, lv in enumerate(v):
                        if lv is None: continue
                        lp = a.newlabel("pp")
                        a(f"s_cmp_eq_u32 s43, {kh_}")
                        a(f"s_cbranch_scc0 {lp}")
                        a(f"s_setprio {lv}")
                        a.label(lp)
            a("s_branch a_hk_done")
            a.label(nx)
        a("s_branch a_hk_done")
    a.label("a_fallback")
    a("v_mov_b32 v12, 0xff800000")
    a("s_mov_b32 s50, 0")
    a.label("a_fb1")
    a(f"buffer_load_dwordx4 {vr(KB,4)}, v9, s[36:39], s50 offen sc1")
    a("s_waitcnt vmcnt(0)")
    mfma32(a, S0, KB, Q1, "0")
    a("s_add_u32 s50, s50, 2048")
    rowmax16(a, 12, S0, init=True)
    a("s_cmp_lt_u32 s50, 0x20000")
    a("s_cbranch_scc1 a_fb1")
    xhalf_max(a, 12, 13)
    a(f"v_sub_f32 v{C0}, 0, v12")
    for i in range(1, 16): a(f"v_mov_b32 v{C0+i}, v{C0}")
    for i in range(16): a(f"v_mov_b32 v{O1+i}, 0")
    a("v_lshlrev_b32 v3, 8, v7")
    a("v_lshl_add_u32 v3, v6, 4, v3")
    a("s_mov_b32 s50, 0")
    a.label("a_fb2")
    a(f"buffer_load_dwordx4 {vr(KB,4)}, v9, s[36:39], s50 offen sc1")
    a("s_mov_b64 exec, s[60:61]")
    a(f"buffer_load_dwordx4 {vr(VB,4)}, v3, s[36:39], s50 offen offset:1024 sc1")
    a(f"buffer_load_dwordx4 {vr(VB+4,4)}, v3, s[36:39], s50 offen offset:1536 sc1")
    a("s_mov_b64 exec, -1")
    a("s_waitcnt vmcnt(0)")
    mfma32(a, S0, KB, Q1, C0)
    a("s_add_u32 s50, s50, 2048")
    E(S0, 0, 16)
    cvt8(a, P0, S0); cvt8(a, P0+4, S0+8)
    mfma32(a, O1, VB, P0, O1)
    mfma32(a, O1, VB+4, P0+4, O1)
    a("s_cmp_lt_u32 s50, 0x20000")
    a("s_cbranch_scc1 a_fb2")
    a(f"v_rcp_f32 v14, v{O1+8}")
    a("s_branch a_norm")

def role_b(a, st):
    a("s_mov_b32 s58, 0")
    a("s_lshr_b32 s44, s40, 1")
    a("s_and_b32 s42, s26, 1")
    a("s_lshr_b32 s43, s26, 1")
    srd(a, 28, P_BX, 2 << 20)
    srd(a, 32, P_BWQKV, 512 * 3072)
    a("v_lshrrev_b32 v12, 3, v1")
    a("v_and_b32 v13, 7, v1")
    a("v_bfe_u32 v14, v1, 4, 1")
    a("v_lshlrev_b32 v14, 2, v14")
    a("v_xor_b32 v14, v14, v13")
    a("v_mul_u32_u24 v3, 3072, v12")
    a("v_lshl_add_u32 v3, v14, 4, v3")
    a("v_lshlrev_b32 v4, 10, v12")
    a("v_lshl_add_u32 v4, v14, 4, v4")
    a(f"s_mul_i32 s64, s26, {16*3072}")
    a("s_lshl_b32 s51, s27, 7")
    a("s_add_u32 s64, s64, s51")
    a("s_lshl_b32 s65, s44, 16")
    a("s_lshl_b32 s51, s26, 14")
    a("s_add_u32 s65, s65, s51")
    if MAP81:
        a("s_lshr_b32 s67, s3, 3")
        a("s_lshl_b32 s67, s67, 1")
        a("s_add_u32 s67, s67, s3")
    else:
        a("s_lshr_b32 s67, s3, 2")
        a("s_lshl_b32 s51, s3, 1")
        a("s_add_u32 s67, s67, s51")
    a("s_and_b32 s67, s67, 7")
    a("s_mul_i32 s56, s26, 6144")
    a(f"s_add_u32 s56, s56, {L_GB + GB_W}")
    a("s_mul_i32 s57, s26, 2080")
    a(f"s_add_u32 s57, s57, {L_GB + GB_X}")
    INLOOP = [False]
    def issue_ops(buf):
        o = buf * GB_SZ
        def pre():
            a(f"s_mul_i32 s48, s67, {64*3072}")
            a("s_add_u32 s48, s48, s64")
            a(f"s_add_u32 s47, s48, {8*3072}")
            a("s_lshl_b32 s49, s67, 7")
            a("s_add_u32 s49, s49, s65")
            a("s_add_u32 s66, s49, 8192")
            a("s_add_u32 s67, s67, 1")
            a("s_and_b32 s67, s67, 7")
        ops = [pre]
        for q in range(2):
            def fx(q=q):
                a(f"s_add_u32 m0, s57, {o + q*1040}")
                a(f"buffer_load_dwordx4 v4, s[28:31], {'s66' if q else 's49'} offen lds")
            ops.append(fx)
        for gq in range(2):
            for t in range(3):
                def f(gq=gq, t=t):
                    if t == 0: a(f"s_add_u32 m0, s56, {o + gq*3072}")
                    a(f"buffer_load_dwordx4 v3, s[32:35], {'s47' if gq else 's48'} offen offset:{t*1024} lds")
                ops.append(f)
        if "gnodma" in VAR and INLOOP[0]: return [lambda: None] * 8 + [lambda: a("s_sleep 10")]
        return ops
    BST = VAR.get("bstart", "st4")
    if BST == "early":
        for f in issue_ops(0): f()
    lk = a.newlabel("nokv")
    a("v_lshl_add_u32 v5, v1, 2, v10")
    a("v_mov_b32 v12, 0")
    a("ds_write_b32 v5, v12")
    kv_setup(a)
    a("s_waitcnt vmcnt(0) lgkmcnt(0)")
    a("v_readfirstlane_b32 s62, v19")
    a(f"s_add_u32 s62, s62, {TAGC}")
    a("s_barrier")
    a("s_cmp_eq_u32 s26, 3")
    a(f"s_cbranch_scc0 {lk}")
    kv_job(a)
    if "merge" not in VAR: a("s_barrier")
    kv_store(a)
    lk2 = a.newlabel("kvs")
    a(f"s_branch {lk2}")
    a.label(lk)
    if "merge" not in VAR: a("s_barrier")
    a.label(lk2)
    a("s_mov_b32 s45, s27")
    a("v_mul_u32_u24 v8, 3072, v7")
    a("v_bfe_u32 v14, v1, 2, 2")
    a("v_lshl_add_u32 v8, v14, 7, v8")
    a("v_bfe_u32 v14, v1, 3, 1")
    a("v_xor_b32 v14, s42, v14")
    a("v_lshl_add_u32 v8, v14, 6, v8")
    a("v_bfe_u32 v14, v1, 4, 1")
    a("v_lshl_add_u32 v8, v14, 5, v8")
    a("v_and_b32 v14, 3, v1")
    a("v_lshl_add_u32 v8, v14, 3, v8")
    a(f"v_add_u32 v8, {L_GB + GB_W}, v8")
    XM = 152
    a("v_bfe_u32 v14, v1, 1, 1")
    a("v_lshlrev_b32 v14, 2, v14")
    a("v_or_b32 v14, v14, v7")
    a("v_lshlrev_b32 v14, 4, v14")
    a("v_and_b32 v15, 7, v1")
    a("v_lshl_add_u32 v14, v15, 7, v14")
    a("v_xor_b32 v15, 64, v14")
    a("v_lshrrev_b32 v16, 3, v6")
    a("v_mul_u32_u24 v16, 1040, v16")
    a("s_mul_i32 s51, s43, 4160")
    a(f"s_add_u32 s51, s51, {L_GB + GB_X}")
    a(f"v_add3_u32 v{XM}, v14, v16, s51")
    a(f"v_add3_u32 v{XM+1}, v15, v16, s51")
    ACC = 20; WF = 84; XF = 108
    for i in range(48): a(f"v_mov_b32 v{ACC+i}, 0")
    for i in range(16): a(f"v_mov_b32 v{WF+12+i if i < 12 else XF+4+i-12}, 0")
    a("s_barrier")
    lk3 = a.newlabel("kvf")
    a("s_cmp_eq_u32 s26, 3")
    a(f"s_cbranch_scc0 {lk3}")
    kv_flag(a)
    a.label(lk3)
    st.stamp()
    a("s_barrier")
    LP, LS, LG = 126, 128, 144
    a("s_mul_i32 s51, s26, 6144")
    a(f"s_add_u32 s51, s51, {L_COMB}")
    a("v_lshlrev_b32 v15, 3, v7")
    a("v_sub_u32 v15, v6, v15")
    a("v_add_u32 v15, 10, v15")
    a(f"v_add_u32 v{LP}, s51, v9")
    a("v_lshlrev_b32 v14, 4, v6")
    a("v_add_u32 v14, s51, v14")
    for i in range(4):
        a(f"v_add_u32 v16, {2*i}, v15")
        a("v_lshrrev_b32 v17, 2, v16")
        a(f"v_lshl_add_u32 v{LG+i}, v17, 9, v14")
        a("v_lshrrev_b32 v17, 4, v16")
        a(f"v_lshl_add_u32 v{LS+i}, v17, 10, v14")
        a("v_bfe_u32 v17, v16, 2, 1")
        a(f"v_lshl_add_u32 v{LS+i}, v17, 9, v{LS+i}")
        a("v_bfe_u32 v17, v16, 3, 1")
        a(f"v_lshl_add_u32 v{LS+i}, v17, 3, v{LS+i}")
        a("v_and_b32 v17, 3, v16")
        a(f"v_lshl_add_u32 v{LS+i}, v17, 1, v{LS+i}")
        a(f"v_lshl_add_u32 v{LG+i}, v17, 2, v{LG+i}")
    ZR = 132
    for i in range(4): a(f"v_mov_b32 v{ZR+i}, 0")
    def read_ops(buf, sp, fb):
        r = []
        for t3 in range(3):
            for t in range(2):
                r.append(f"ds_read_b64_tr_b16 {vr(WF+12*fb+4*t3+2*t,2)}, v8 offset:{buf*GB_SZ + sp*6144 + t3*1024 + t*512}")
        r.insert(2, f"ds_read_b128 {vr(XF+4*fb,4)}, v{XM+(sp>>1)} offset:{buf*GB_SZ + (sp&1)*32}")
        if "gnoreads" in VAR: return []
        return r
    def mm(fb, k):
        w = WF + 12*fb; x = XF + 4*fb
        if "nomm" in VAR: return
        if k == 0: mfma32(a, ACC, w, x, ACC)
        elif k == 1: mfma32(a, ACC+16, w+4, x, ACC+16)
        else: mfma32(a, ACC+32, x, w+8, ACC+32)
    a("s_lshr_b32 s55, s40, 3")
    a("s_lshl_b32 s55, s55, 2")
    a("s_cmp_ge_u32 s3, 28")
    a("s_cselect_b32 s51, 28, 0")
    a("s_sub_u32 s59, s3, s51")
    a("s_add_u32 s53, s55, s26")
    a("s_lshl_b32 s53, s53, 13")
    a(f"s_add_u32 s53, s53, {W_KF}")
    a("s_add_u32 s52, s53, 4096")
    a("s_lshl_b32 s51, s26, 12")
    a("v_lshlrev_b32 v13, 3, v1")
    a("v_add_u32 v13, s51, v13")
    FQ = [68, 72, 76, 80, 84, 88, 92, 108]
    def kf_loads():
        for i, r in enumerate(FQ):
            a(f"buffer_load_dwordx4 {vr(r,4)}, v9, s[36:39], {'s53' if i < 4 else 's52'} offen offset:{(i&3)*1024} sc1")
    a(f"s_mov_b32 s63, {int(VAR.get('kfn', 3))}")
    a("s_mov_b32 s46, 0")
    a("s_barrier")
    kf_loads()
    a("s_barrier")
    st.stamp()
    a.label("b_kf")
    a("v_mov_b32 v14, 0")
    for i, r in enumerate(FQ):
        a(f"s_waitcnt vmcnt({7-i})")
        a(f"ds_write_b64 v13, {vr(r,2)} offset:{L_WK + i*512}")
        a(f"v_xor_b32 v15, v{r}, v{r+2}")
        a(f"v_xor_b32 v16, v{r+1}, v{r+3}")
        a("v_xor_b32 v15, s62, v15")
        a("v_xor_b32 v16, s62, v16")
        a("v_or3_b32 v14, v14, v15, v16")
    a("v_cmp_ne_u32 vcc, 0, v14")
    a("s_nop 1")
    a("s_cbranch_vccz b_kf_ok")
    a("s_sub_u32 s63, s63, 1")
    a("s_cbranch_scc1 b_kf_done")
    kf_loads()
    a("s_branch b_kf")
    a.label("b_kf_ok")
    lds_signal(a, C_ST + 0)
    a("s_mov_b32 s46, 1")
    a.label("b_kf_done")
    st.stamp()
    if "c0early" in VAR:
        lds_wait(a, C_QD, 4, 5, 51)
        for f in issue_ops(0): f()
    a("v_lshlrev_b32 v15, 7, v1")
    a("s_lshl_b32 s54, s26, 11")
    a(f"s_add_u32 s54, s54, {W_F1}")
    poll_flags(a, 15, "s54", 16, 16, sleep=int(VAR.get("psleep", 4)))
    bbar(a)
    lf = a.newlabel("kfok")
    a("s_cmp_eq_u32 s46, 1")
    a(f"s_cbranch_scc1 {lf}")
    a("s_lshl_b32 s53, s26, 12")
    kv_dma(a, 53, 4, first=True)
    a("s_waitcnt vmcnt(0)")
    lds_signal(a, C_ST + 0)
    a.label(lf)
    lds_wait(a, C_QD, 4, 5, 51)
    for k in range(1, 6):
        a("s_lshl_b32 s53, s26, 12")
        a(f"s_add_u32 s53, s53, {k*16384}")
        kv_dma(a, 53, 4)
        if k == 2:
            a("s_waitcnt vmcnt(4)")
            lds_signal(a, C_ST + 4)
    a("s_cmp_eq_u32 s43, 0")
    a(f"s_cselect_b32 s4, s{P_BWO}, s{P_AWO}")
    a(f"s_cselect_b32 s5, s{P_BWO+1}, s{P_AWO+1}")
    a("s_mov_b32 s6, 0x80000")
    a("s_mov_b32 s7, 0x20000")
    a("s_lshr_b32 s8, s2, 3")
    a("s_and_b32 s9, s2, 7")
    a("s_lshl_b32 s51, s8, 14")
    a("s_lshl_b32 s52, s9, 7")
    a("s_add_u32 s51, s51, s52")
    a("s_lshl_b32 s10, s26, 11")
    a(f"s_add_u32 s10, s10, {L_GB + 1024}")
    a("s_mov_b32 m0, s10")
    a("s_add_u32 s52, s51, 7168")
    a("buffer_load_dwordx4 v4, s[4:7], s51 offen lds")
    a("buffer_load_dwordx4 v4, s[4:7], s52 offen offset:1024 lds")
    lds_wait(a, C_QR, 4, 5, 51, sleep=2)
    for f in issue_ops(1): f()
    a("v_bfe_u32 v14, v1, 2, 2")
    a("v_lshlrev_b32 v14, 7, v14")
    a("v_bfe_u32 v15, v1, 3, 1")
    a("v_xor_b32 v15, s42, v15")
    a("v_lshl_add_u32 v14, v15, 6, v14")
    a("v_bfe_u32 v15, v1, 4, 1")
    a("v_lshl_add_u32 v14, v15, 5, v14")
    a("v_and_b32 v15, 1, v1")
    a("v_lshl_add_u32 v14, v15, 4, v14")
    a("v_bfe_u32 v15, v1, 1, 1")
    a("v_lshl_add_u32 v14, v15, 3, v14")
    a("v_lshl_add_u32 v14, v7, 9, v14")
    a("v_add_u32 v14, s10, v14")
    a("s_lshl_b32 s51, s9, 1")
    a("s_add_u32 s51, s51, s42")
    a("s_lshl_b32 s51, s51, 5")
    a("s_add_u32 s51, s51, s8")
    a("s_lshl_b32 s10, s51, 10")
    a("s_lshl_b32 s51, s43, 19")
    a("s_add_u32 s10, s10, s51")
    a(f"s_add_u32 s10, s10, {W_TO}")
    a("s_lshr_b32 s51, s9, 1")
    a("s_lshl_b32 s51, s51, 5")
    a("s_add_u32 s51, s51, s8")
    a("s_lshl_b32 s11, s51, 7")
    a("s_and_b32 s51, s9, 1")
    a("s_lshl_b32 s51, s51, 2")
    a("s_add_u32 s51, s51, s26")
    a("s_lshl_b32 s51, s51, 2")
    a("s_add_u32 s11, s11, s51")
    a(f"s_add_u32 s11, s11, {W_F4}")
    a("s_waitcnt vmcnt(10)")
    lds_signal(a, C_ST + 8)
    a("s_waitcnt vmcnt(8)")
    for t in range(2): a(f"ds_read_b64_tr_b16 {vr(160+2*t,2)}, v14 offset:{t*1024}")
    a("s_waitcnt vmcnt(0) lgkmcnt(0)")
    a("buffer_store_dwordx4 v[160:163], v9, s[36:39], s10 offen sc1")
    a("v_lshrrev_b32 v166, 1, v1")
    a("v_lshlrev_b32 v166, 7, v166")
    a("v_and_b32 v15, 1, v1")
    a("v_lshl_add_u32 v166, v15, 4, v166")
    a("s_lshl_b32 s8, s41, 12")
    a(f"s_add_u32 s8, s8, {W_F4}")
    a(f"s_setprio {VAR.get('bprio', 3)}")
    st.stamp()
    a("s_mov_b32 s50, 0")
    if "bidle" in VAR:
        a("s_waitcnt vmcnt(0)")
        bbar(a)
        a("s_mul_i32 s54, s26, 12288")
        a("s_add_u32 s54, s54, 81920")
        kv_dma(a, 54, 12)
        a("s_waitcnt vmcnt(0)")
        for c_ in (12, 16, 20): lds_signal(a, C_ST + c_)
        srd(a, 28, P_OUT, 4 << 20)
        a("s_mov_b32 s47, 0")
        a("s_branch b_tail")
    if "nogemm" in VAR: a("s_branch b_gend")
    INLOOP[0] = True
    a("s_branch b_in")
    a.label("b_loop")
    for buf in (1, 0):
        mm(1, 0)
        a("s_waitcnt vmcnt(0)")
        if buf == 1: a.label("b_in")
        else:
            lf4 = a.newlabel("f4")
            a("s_cmp_eq_u32 s50, 0")
            a(f"s_cbranch_scc0 {lf4}")
            store_flag(a, "s11", 164)
            a.label(lf4)
        a("s_add_u32 s58, s58, 4")
        lds_signal(a, C_BB)
        mm(1, 1)
        ops = issue_ops(buf ^ 1)
        if buf == 0:
            a("s_cmp_eq_u32 s50, 3")
            a("s_cselect_b32 s64, 0x7f000000, s64")
            a("s_cselect_b32 s65, 0x7f000000, s65")
            for r in (56, 57): a(f"s_cselect_b32 s{r}, 0x30000, s{r}")
        ops[0]()
        lds_wait(a, C_BB, "s58", 5, 51, sleep=int(VAR.get("bsleep", 0)))
        for x in read_ops(buf, 0, 0): a(x)
        mm(1, 2)
        oi = 1
        for _ in range(3): ops[oi](); oi += 1
        for sp in range(3):
            for x in read_ops(buf, sp+1, (sp+1) & 1): a(x)
            a("s_waitcnt lgkmcnt(7)")
            for k in range(3):
                mm(sp & 1, k)
                for _ in range(2):
                    if oi < len(ops): ops[oi](); oi += 1
        a("s_waitcnt lgkmcnt(0)")
    a("s_add_u32 s50, s50, 1")
    a("s_cmp_lt_u32 s50, 4")
    a("s_cbranch_scc1 b_loop")
    a.label("b_gend")
    a("buffer_load_dwordx4 v[160:163], v166, s[36:39], s8 offen sc1")
    a("s_add_u32 s58, s58, 4")
    lds_signal(a, C_BB)
    for k in range(3): mm(1, k)
    lds_wait(a, C_BB, "s58", 5, 51, sleep=0)
    a(f"s_mov_b32 s54, {23*4096}")
    kv_dma(a, 54, 4, only=(3,))
    a("s_lshl_b32 s54, s26, 13")
    a("s_add_u32 s54, s54, 98304")
    kv_dma(a, 54, 8)
    st.stamp()
    QF = 84; KF = 92; VF = 100; KH = 108; VH = 116
    cvt8(a, KF, ACC+16); cvt8(a, KF+4, ACC+24)
    cvt8(a, VF, ACC+32); cvt8(a, VF+4, ACC+40)
    a("s_mul_i32 s51, s42, 3072")
    a(f"s_add_u32 s51, s51, {L_BEX}")
    a("v_add_u32 v13, s51, v9")
    a("s_lshl_b32 s52, s44, 3")
    a("s_add_u32 s52, s52, s45")
    a("s_lshl_b32 s53, s52, 1")
    a("s_add_u32 s53, s53, s42")
    a("s_mul_i32 s53, s53, 3072")
    a(f"s_add_u32 s53, s53, {W_HALO}")
    a("s_lshl_b32 s52, s52, 7")
    a("s_lshl_b32 s51, s42, 2")
    a("s_add_u32 s52, s52, s51")
    a(f"s_add_u32 s52, s52, {W_F2}")
    l1 = a.newlabel("b_w1"); l2 = a.newlabel("b_w2")
    a("s_cmp_eq_u32 s43, 0")
    a(f"s_cbranch_scc0 {l1}")
    a(f"ds_write_b128 v13, {vr(KF,4)}")
    a(f"ds_write_b128 v13, {vr(KF+4,4)} offset:1024")
    a(f"ds_write_b128 v13, {vr(VF+4,4)} offset:2048")
    a("s_waitcnt vmcnt(0)")
    a(f"s_branch {l2}")
    a.label(l1)
    a(f"buffer_store_dwordx4 {vr(KF,4)}, v9, s[36:39], s53 offen sc1")
    a(f"buffer_store_dwordx4 {vr(KF+4,4)}, v9, s[36:39], s53 offen offset:1024 sc1")
    a(f"buffer_store_dwordx4 {vr(VF+4,4)}, v9, s[36:39], s53 offen offset:2048 sc1")
    a("s_waitcnt vmcnt(0)")
    store_flag(a, "s52", 14)
    a.label(l2)
    cvt8(a, QF, ACC); cvt8(a, QF+4, ACC+8)
    a("s_waitcnt vmcnt(1)")
    lds_signal(a, C_ST + 12)
    bbar(a)
    l1 = a.newlabel("b_x1"); l2 = a.newlabel("b_x2")
    a("s_or_b32 s51, s44, 0")
    a("s_cselect_b32 s51, s43, 1")
    a("s_cmp_eq_u32 s51, 0")
    a(f"s_cbranch_scc0 {l1}")
    a(f"s_sub_u32 s52, s52, {8*128}")
    a(f"s_sub_u32 s53, s53, {16*3072}")
    a("v_mov_b32 v5, 0")
    poll_flags(a, 5, "s52", 1, 14, sleep=6, width=1)
    a(f"buffer_load_dwordx4 {vr(KH,4)}, v9, s[36:39], s53 offen sc1")
    a(f"buffer_load_dwordx4 {vr(KH+4,4)}, v9, s[36:39], s53 offen offset:1024 sc1")
    a(f"buffer_load_dwordx4 {vr(VH,4)}, v9, s[36:39], s53 offen offset:2048 sc1")
    a("s_waitcnt vmcnt(0)")
    a(f"s_branch {l2}")
    a.label(l1)
    a(f"ds_read_b128 {vr(KH,4)}, v13")
    a(f"ds_read_b128 {vr(KH+4,4)}, v13 offset:1024")
    a(f"ds_read_b128 {vr(VH,4)}, v13 offset:2048")
    a.label(l2)
    lsn = a.newlabel("nosn")
    a("s_and_b32 s51, s40, 1")
    a("s_cmp_eq_u32 s51, s43")
    a(f"s_cbranch_scc0 {lsn}")
    a("s_lshl_b32 s51, s40, 2")
    a("s_add_u32 s51, s51, s41")
    a("s_lshl_b32 s51, s51, 1")
    a("s_add_u32 s51, s51, s42")
    a("s_lshl_b32 s51, s51, 12")
    a(f"s_add_u32 s51, s51, {W_OA}")
    for i in range(4): a(f"v_mov_b32 v{120+i}, -1")
    for i in range(4 if "xnoslow" not in VAR else 0): a(f"buffer_store_dwordx4 v[120:123], v9, s[36:39], s51 offen offset:{i*1024} sc1")
    a(f"s_add_u32 s51, s51, {W_OF - W_OA}")
    for i in range(4): a(f"buffer_store_dwordx4 v[120:123], v9, s[36:39], s51 offen offset:{i*1024} sc1")
    a.label(lsn)
    a("s_lshl_b32 s52, s44, 1")
    a("s_add_u32 s52, s52, s43")
    a("s_lshl_b32 s55, s52, 4")
    a("s_lshl_b32 s53, s45, 1")
    a("s_add_u32 s53, s53, s42")
    a("s_add_u32 s55, s55, s53")
    a("s_lshl_b32 s55, s55, 11")
    a(f"s_add_u32 s55, s55, {W_OB}")
    a("s_lshl_b32 s57, s52, 9")
    a("s_lshr_b32 s51, s53, 2")
    a("s_lshl_b32 s51, s51, 7")
    a("s_add_u32 s57, s57, s51")
    a("s_and_b32 s51, s53, 3")
    a("s_lshl_b32 s51, s51, 2")
    a("s_add_u32 s57, s57, s51")
    a(f"s_add_u32 s57, s57, {W_F3}")
    a("s_waitcnt lgkmcnt(0)")
    SM = 20; SH = 36; O = 52; PP = 68; T = 152
    a(f"s_mov_b32 s46, {CSCALE}")
    a("s_or_b32 s60, s44, s43")
    G = 136
    for hd in range(2 if "nolocal" not in VAR else 0):
        sm = SM + 32*hd; sh = sm + 16
        mfma32(a, sm, KF+4*hd, QF+4*hd, "0")
        mfma32(a, sh, KH+4*hd, QF+4*hd, "0")
    lz = a.newlabel("fz")
    a("s_cmp_eq_u32 s60, 0")
    a(f"s_cbranch_scc0 {lz}")
    for hd in range(2):
        for i in range(8): a(f"v_mov_b32 v{SM+32*hd+24+i}, 0xff800000")
    a.label(lz)
    for hd in range(2 if "nolocal" not in VAR else 0):
        sm = SM + 32*hd; sh = sm + 16
        for g_ in range(2): a(f"ds_write_b128 v{LP}, {vr(sh+8+4*g_,4)} offset:{1024*g_}")
        for g_ in range(4): a(f"ds_write_b128 v{LP}, {vr(sm+4*g_,4)} offset:{2048 + 1024*g_}")
        for i in range(4): a(f"ds_read_b32 v{G+4*hd+i}, v{LG+i}")
    for hd in range(2 if "nolocal" not in VAR else 0):
        g0 = G + 4*hd; t = T + 4*hd
        if hd == 0:
            for f in range(6): a(f"ds_write_b128 v{LP}, {vr(ZR,4)} offset:{f*1024}")
        a(f"s_waitcnt lgkmcnt({15 if hd == 0 else 4})")
        if hd == 0: a("s_waitcnt lgkmcnt(6)")
        a(f"v_max3_f32 v{t}, v{g0}, v{g0+1}, v{g0+2}")
        a(f"v_max_f32 v{t}, v{t}, v{g0+3}")
        xhalf_max(a, t, t+1)
        a(f"v_mul_f32 v{t}, s46, v{t}")
        for i in range(4): a(f"v_fma_f32 v{g0+i}, v{g0+i}, s46, -v{t}")
        for i in range(4): a(f"v_exp_f32 v{g0+i}, v{g0+i}")
        a(f"v_add_f32 v{t}, v{g0}, v{g0+1}")
        a(f"v_add_f32 v{t+1}, v{g0+2}, v{g0+3}")
        a(f"v_add_f32 v{t}, v{t}, v{t+1}")
        a(f"v_mov_b32 v{t+1}, v{t}")
        a(f"v_permlane32_swap_b32 v{t}, v{t+1}")
        a(f"v_add_f32 v{t}, v{t}, v{t+1}")
        a(f"v_rcp_f32 v{t}, v{t}")
        for i in range(4): a(f"v_mul_f32 v{g0+i}, v{g0+i}, v{t}")
        a(f"v_cvt_pk_bf16_f32 v{t+2}, v{g0}, v{g0+1}")
        a(f"v_cvt_pk_bf16_f32 v{t+3}, v{g0+2}, v{g0+3}")
        for i in range(4):
            a(f"ds_write_b16{'_d16_hi' if i & 1 else ''} v{LS+i}, v{t+2+(i>>1)} offset:{hd*3072}")
    for hd in range(2 if "nolocal" not in VAR else 0):
        for f in range(3): a(f"ds_read_b128 {vr(SM+12*hd+4*f,4)}, v{LP} offset:{hd*3072 + f*1024}")
    for hd in range(2 if "nolocal" not in VAR else 0):
        o = 52 + 16*hd; p = SM + 12*hd
        a(f"s_waitcnt lgkmcnt({3 - 3*hd})")
        mfma32(a, o, VH, p, "0")
        mfma32(a, o, VF, p+4, o)
        mfma32(a, o, VF+4, p+8, o)
    for hd in range(2 if "nolocal" not in VAR else 0):
        o = 52 + 16*hd
        cvt8(a, G+4*hd, o+8*hd)
        a(f"buffer_store_dwordx4 {vr(G+4*hd,4)}, v9, s[36:39], s55 offen offset:{hd*1024} sc1")
    a("s_waitcnt vmcnt(0)")
    store_flag(a, "s57", 12)
    st.stamp()
    srd(a, 28, P_OUT, 4 << 20)
    a("s_lshl_b32 s47, s41, 8")
    a("s_lshl_b32 s51, s26, 6")
    a("s_add_u32 s47, s47, s51")
    a("s_lshl_b32 s64, s47, 9")
    a(f"s_add_u32 s64, s64, {W_TO}")
    a("v_lshlrev_b32 v4, 11, v6")
    a("v_lshl_add_u32 v4, v7, 4, v4")
    a("s_lshl_b32 s51, s40, 16")
    a("s_add_u32 s47, s47, s51")
    ACC = 12; OB = 28; WL = 40
    def fload(i, rot):
        if (i & 3) == 0:
            a(f"s_add_u32 s51, {rot}, {i*1024}")
            a("s_and_b32 s51, s51, 0x7fff")
            a("s_add_u32 s48, s64, s51")
        a(f"buffer_load_dwordx4 {vr(WL+4*i,4)}, v9, s[36:39], s48 offen offset:{(i&3)*1024} sc1")
    lok = a.newlabel("f4ok")
    for i in range(4): a(f"v_xor_b32 v{160+i}, s62, v{160+i}")
    a("v_or3_b32 v160, v160, v161, v162")
    a("v_or_b32 v160, v160, v163")
    a("v_cmp_ne_u32 vcc, 0, v160")
    a("s_nop 1")
    a(f"s_cbranch_vccz {lok}")
    poll_flags(a, 166, "s8", 64, 160, sleep=8)
    a.label(lok)
    a("s_bfe_u32 s9, s3, 0x30002")
    a("s_lshl_b32 s9, s9, 12")
    if "touchA" in VAR:
        a("s_add_u32 s51, s64, s9")
        a("s_add_u32 s51, s51, 0x80000")
        a("v_lshlrev_b32 v5, 7, v6")
        a("buffer_load_dword v28, v5, s[36:39], s51 offen sc1")
    for i in range(32): fload(i, "s9")
    def run(lo, hi, addr, off0, after=None):
        o = lambda i: (i - off0) * 1024
        for i in range(lo, min(lo+2, hi)): a(f"ds_read_b128 {vr(OB+4*(i%3),4)}, {addr} offset:{o(i)}")
        for i in range(lo, hi):
            if i + 2 < hi:
                a(f"ds_read_b128 {vr(OB+4*((i+2)%3),4)}, {addr} offset:{o(i+2)}")
                a("s_waitcnt lgkmcnt(2)")
            else:
                a(f"s_waitcnt lgkmcnt({hi-1-i})")
            mfma32(a, ACC, WL+4*i, OB+4*(i%3), "0" if i == 0 else ACC)
            if after: after(i)
    a("v_lshlrev_b32 v5, 7, v1")
    a("s_lshl_b32 s57, s40, 9")
    a(f"s_add_u32 s57, s57, {W_F3}")
    poll_flags(a, 5, "s57", 4, 28, sleep=8)
    lds_signal(a, C_ST + 16)
    st.stamp()
    lds_wait(a, C_PR, 8, 5, 51, sleep=8)
    a("s_lshl_b32 s49, s40, 15")
    a(f"s_add_u32 s49, s49, {W_OB}")
    a("s_lshl_b32 s52, s26, 13")
    a(f"s_add_u32 s46, s52, {L_OB}")
    a("s_add_u32 s52, s52, s9")
    for q in range(8):
        if (q & 3) == 0:
            a(f"s_add_u32 m0, s46, {q*1024}")
            a(f"s_add_u32 s51, s52, {q*1024}")
            a("s_and_b32 s51, s51, 0x7fff")
            a("s_add_u32 s51, s51, s49")
        a(f"buffer_load_dwordx4 v9, s[36:39], s51 offen offset:{(q&3)*1024} sc1 lds")
    a(f"v_add_u32 v0, {L_OB}, v9")
    a("s_add_u32 s64, s64, 0x80000")
    a("s_lshl_b32 s10, s41, 13")
    a("s_waitcnt vmcnt(0)")
    bbar(a)
    if "late" in VAR:
        a("s_lshl_b32 s51, s26, 2")
        a("v_add_u32 v2, s51, v10")
        NL = int(VAR["late"])
        run(0, NL, "v0", 0, lambda i: fload(i, "s10"))
        lds_wait(a, C_CB, 1, 5, 52, "v2", sleep=4)
        a(f"s_setprio {VAR.get('lprio', 1)}")
        run(NL, 32, "v0", 0, lambda i: fload(i, "s10"))
        a("s_setprio 3")
    else:
        run(0, 32, "v0", 0, lambda i: fload(i, "s10"))
    cvt8(a, 28, ACC); cvt8(a, 32, ACC+8)
    a("buffer_store_dwordx4 v[28:31], v4, s[28:31], s47 offen offset:1024 " + VAR.get("stb", "nt"))
    a("buffer_store_dwordx4 v[32:35], v4, s[28:31], s47 offen offset:1056 " + VAR.get("stb", "nt"))
    st.stamp()
    a("s_waitcnt vmcnt(0)")
    a.label("b_tail")
    st.stamp()
    le = a.newlabel("ep")
    a("s_or_b32 s51, s2, s26")
    a("s_cmp_eq_u32 s51, 0")
    a(f"s_cbranch_scc0 {le}")
    a(f"s_mov_b32 s51, {W_EP}")
    store_flag(a, "s51", 28)
    a.label(le)
    a(f"v_add_u32 v0, {L_OA}, v9")
    lds_wait(a, C_CB + 0, 1, 5, 51, sleep=16)
    def rd(i): a(f"ds_read_b128 {vr(WL+4*(i-8),4)}, v0 offset:{i*1024}")
    lds_wait(a, C_OF, 8, 5, 51, sleep=0)
    if "tfine" in VAR: st.n = 5; st.stamp(); a("s_waitcnt lgkmcnt(0)")
    run(0, 8, "v0", 0)
    lds_wait(a, C_OF + 4, 8, 5, 51, sleep=0)
    if "tfine" in VAR: st.stamp(); a("s_waitcnt lgkmcnt(0)")
    for i in range(8, 16): rd(i)
    NE = int(VAR.get("ne", 3))
    for i in range(8, 8 + NE):
        a(f"s_waitcnt lgkmcnt({15 - i})")
        mfma32(a, ACC, WL+4*i, WL+4*(i-8), ACC)
        if i == 8: a(f"ds_read_b64 v[28:29], v10 offset:{C_OF + 8}")
    a("s_waitcnt lgkmcnt(0)")
    a("v_min_u32 v28, v28, v29")
    a("v_readfirstlane_b32 s51, v28")
    a("s_cmp_ge_u32 s51, 8")
    a("s_cbranch_scc0 b_slowtail")
    for i in range(8, 8 + NE): rd(i + 8)
    for i in range(8 + NE, 32):
        if i >= 16: a(f"s_waitcnt lgkmcnt({min(7, 31 - i)})")
        mfma32(a, ACC, WL+4*i, WL+4*(i-8), ACC)
        if i + 8 < 32: rd(i + 8)
    a.label("b_fin")
    cvt8(a, 28, ACC); cvt8(a, 32, ACC+8)
    a("buffer_store_dwordx4 v[28:31], v4, s[28:31], s47 offen " + VAR.get("sta", "nt"))
    a("buffer_store_dwordx4 v[32:35], v4, s[28:31], s47 offen offset:32 " + VAR.get("sta", "nt"))
    if DIAG:
        if "tfine" in VAR: st.stamp()
        a("s_waitcnt vmcnt(0)")
        st.stamp()
        st.dump(None, 0)
    a("s_endpgm")
    a.label("b_slowtail")
    for d in range(1, 4):
        if d > 1:
            lds_wait(a, C_OF + 4*d, 8, 5, 51, sleep=0)
            for i in range(8*d, 8*d + 8): rd(i)
        for i in range(8*d + (NE if d == 1 else 0), 8*d + 8):
            a(f"s_waitcnt lgkmcnt({8*d + 7 - i})")
            mfma32(a, ACC, WL+4*i, WL+4*(i-8), ACC)
    a("s_branch b_fin")

def pre_a(a):
    a("s_sub_u32 s59, s26, 4")
    a("s_and_b32 s42, s59, 3")
    a("s_lshr_b32 s43, s59, 2")
    a("s_lshr_b32 s46, s41, 1")
    a("s_lshl_b32 s49, s46, 4")
    a("s_lshl_b32 s48, s59, 1")
    a("s_add_u32 s49, s49, s48")
    a("s_xor_b32 s51, s49, 16")
    a("s_lshl_b32 s52, s40, 5")
    a("s_add_u32 s48, s52, s49")
    a("s_lshl_b32 s48, s48, 10")
    a("s_xor_b32 s50, s48, 16384")
    a(f"s_mul_i32 s49, s49, {XP}")
    a(f"s_mul_i32 s51, s51, {XP}")
    a("s_mov_b32 s30, 0x200000")
    a("s_mov_b32 s31, 0x20000")
    a(f"s_add_u32 m0, s49, {L_XA}")
    a("s_waitcnt lgkmcnt(0)")
    a(f"s_mov_b32 s28, s{P_AX}")
    a(f"s_mov_b32 s29, s{P_AX+1}")
    for k, (so, lb) in enumerate((("s48", "s49"), ("s50", "s51"))):
        for q in range(2):
            if k or q: a(f"s_add_u32 m0, {lb}, {L_XA + q*XP - q*1024}")
            a(f"buffer_load_dwordx4 v9, s[28:31], {so} offen offset:{q*1024} lds")
    srd(a, 36, P_WS, W_USED)
def pre_b(a):
    a("s_setprio 3")
    a("s_and_b32 s45, s41, 1")
    a("s_lshr_b32 s46, s41, 1")
    a("s_mov_b32 s30, 16384")
    a("s_mov_b32 s31, 0x20000")
    a("s_lshl_b32 s51, s26, 12")
    a(f"s_add_u32 m0, s51, {L_WK}")
    a(f"v_mov_b32 v18, {W_EP}")
    a("s_cmp_eq_u32 s45, 0")
    a("s_waitcnt lgkmcnt(0)")
    a(f"s_cselect_b32 s28, s{P_AWK}, s{P_AWV}")
    a(f"s_cselect_b32 s29, s{P_AWK+1}, s{P_AWV+1}")
    for q in range(4):
        a(f"buffer_load_dwordx4 v9, s[28:31], s51 offen offset:{q*1024} lds")
    srd(a, 36, P_WS, W_USED)
    a("buffer_load_dword v19, v18, s[36:39], 0 offen sc1")

def kernel():
    a = Asm(); n = NAME + "_kernel"
    a.label(n)
    a("s_cmp_ge_u32 s2, 256")
    a("s_cbranch_scc1 k_exit")
    load_ptrs(a)
    sta = Stamps(a, DIAG, real='--cyc' not in sys.argv); stb = Stamps(a, DIAG, real='--cyc' not in sys.argv)
    sta.stamp(); stb.n = sta.n
    VAR.setdefault("cpf", 142)
    if int(VAR["cpf"]):
        a("s_getpc_b64 s[32:33]")
        a("v_lshlrev_b32 v3, 7, v0")
        a(f"v_cmp_gt_u32 vcc, {int(VAR['cpf'])}, v0")
        a("s_and_saveexec_b64 s[34:35], vcc")
        a("s_cbranch_execz k_nopf")
        a("global_load_dword v167, v3, s[32:33]")
        a.label("k_nopf")
        a("s_mov_b64 exec, s[34:35]")
    a("v_and_b32 v1, 63, v0")
    a("v_lshrrev_b32 v2, 6, v0")
    a("v_readfirstlane_b32 s26, v2")
    a("s_and_b32 s27, s2, 7")
    a("s_lshr_b32 s3, s2, 3")
    if MAP81:
        a("s_lshl_b32 s40, s27, 3")
        a("s_lshr_b32 s41, s3, 2")
        a("s_add_u32 s40, s40, s41")
        a("s_and_b32 s41, s3, 3")
    else:
        a("s_lshr_b32 s40, s27, 1")
        a("s_lshl_b32 s40, s40, 4")
        a("s_lshr_b32 s41, s3, 1")
        a("s_add_u32 s40, s40, s41")
        a("s_and_b32 s41, s27, 1")
        a("s_lshl_b32 s41, s41, 1")
        a("s_and_b32 s27, s3, 1")
        a("s_add_u32 s41, s41, s27")
    a("s_lshl_b32 s27, s41, 1")
    a("s_and_b32 s51, s40, 1")
    a("s_add_u32 s27, s27, s51")
    a("v_and_b32 v6, 31, v1")
    a("v_lshrrev_b32 v7, 5, v1")
    a("v_lshlrev_b32 v9, 4, v1")
    a(f"v_mov_b32 v10, {L_CNT}")
    a("v_mov_b32 v11, 1")
    a("s_cmp_lt_u32 s26, 4")
    a("s_cbranch_scc0 pre_a")
    pre_b(a)
    a("s_barrier")
    a("s_branch role_b")
    a.label("pre_a")
    pre_a(a)
    a("s_barrier")
    role_a(a, sta)
    a.label("role_b")
    role_b(a, stb)
    a.label("k_exit")
    a("s_endpgm")
    return (n, a, 256, 768, LDS_SIZE, 168)

if __name__ == "__main__":
    write_file(sys.argv[1], [kernel()])
```

```python
import sys
from common import *
DIAG = "--diag" in sys.argv
VAR = dict((x[2:].split("=")+[1])[:2] for x in sys.argv if x.startswith("-V"))

W_KV = 0
W_F1 = 0x20000
W_F2 = 0x28000
W_F4 = 0x24000
W_F3 = 0x30000
W_EP = 0x3F000
W_KF = 0x40000
W_OA = 1 << 20
W_OB = 3 << 20
W_HALO = 5 << 20
W_OF = 10 << 20
W_TO = 14 << 20
W_USED = 16 << 20
L_XA = 16384
L_WK = 0
WQ_SLOT = [49664 + 16384*i for i in range(6)] + [16384, 32768]
L_GB = 97792
GB_W, GB_X, GB_SZ = 0, 24576, 32896
L_COMB = 131072
L_QX = 155392
L_BEX = 155648
L_CNT = 163584
LDS_SIZE = 163840
C_BB, C_ST, C_EX, C_XA, C_QB, C_QC, C_QD, C_XD = 4, 16, 40, 72, 76, 92, 96, 100
C_ISS, C_QR = 8, 12
C_PR, C_CB, C_OF = 104, 112, 144
L_CB = 0
L_OB = 24576
L_OA = 65536
C_PR2 = 108
BIAS = VAR.get("bias", "0xc2c80000")
VSC = 40
MAP81 = 'map24' not in VAR
XP = 1040
TAGC = 0x9E3779B9 - (1 << 32)
SPIN = 40000

def cvt8(a, dst, src):
    for i in range(4):
        a(f"v_cvt_pk_bf16_f32 v{dst+i}, v{src+2*i}, v{src+2*i+1}")

def tr_base32(a, dst, tmp):
    a(f"v_lshlrev_b32 v{dst}, 9, v7")
    a(f"v_bfe_u32 v{tmp}, v1, 2, 2")
    a(f"v_lshl_add_u32 v{dst}, v{tmp}, 6, v{dst}")
    a(f"v_bfe_u32 v{tmp}, v1, 4, 1")
    a(f"v_lshl_add_u32 v{dst}, v{tmp}, 5, v{dst}")
    a(f"v_and_b32 v{tmp}, 3, v1")
    a(f"v_lshl_add_u32 v{dst}, v{tmp}, 3, v{dst}")

def tr_base_wo(a, dst, tmp):
    a(f"v_lshlrev_b32 v{dst}, 8, v7")
    a(f"v_bfe_u32 v{tmp}, v1, 2, 2")
    a(f"v_lshl_add_u32 v{dst}, v{tmp}, 6, v{dst}")
    a(f"v_bfe_u32 v{tmp}, v1, 4, 1")
    a(f"v_lshl_add_u32 v{dst}, v{tmp}, 5, v{dst}")
    a(f"v_and_b32 v{tmp}, 1, v1")
    a(f"v_lshl_add_u32 v{dst}, v{tmp}, 4, v{dst}")
    a(f"v_bfe_u32 v{tmp}, v1, 1, 1")
    a(f"v_lshl_add_u32 v{dst}, v{tmp}, 3, v{dst}")

def lds_signal(a, off, addr="v10"):
    a("s_mov_b64 exec, 1")
    a(f"ds_add_u32 {addr}, v11 offset:{off}")
    a("s_mov_b64 exec, -1")
def lds_wait(a, off, val, tmp, stmp, addr="v10", sleep=1):
    l = a.newlabel("lw"); d = a.newlabel("lwd")
    a.label(l)
    a(f"ds_read_b32 v{tmp}, {addr} offset:{off}")
    a("s_waitcnt lgkmcnt(0)")
    a(f"v_readfirstlane_b32 s{stmp}, v{tmp}")
    a(f"s_cmp_ge_u32 s{stmp}, {val}")
    a(f"s_cbranch_scc1 {d}")
    if sleep: a(f"s_sleep {sleep}")
    a(f"s_branch {l}")
    a.label(d)
def bbar(a, tmp=5):
    a("s_add_u32 s58, s58, 4")
    lds_signal(a, C_BB)
    lds_wait(a, C_BB, "s58", tmp, 51, sleep=2)

def poll_flags(a, voff, soff, nl, t, sleep=2, width=4):
    l = a.newlabel("pf"); d = a.newlabel("pfd")
    a(f"s_mov_b32 s63, {SPIN}")
    if nl < 64: a(f"s_mov_b64 exec, {(1 << nl) - 1}")
    a.label(l)
    if width == 4:
        a(f"buffer_load_dwordx4 {vr(t,4)}, v{voff}, s[36:39], {soff} offen sc1")
        a("s_waitcnt vmcnt(0)")
        for i in range(4): a(f"v_xor_b32 v{t+i}, s62, v{t+i}")
        a(f"v_or3_b32 v{t}, v{t}, v{t+1}, v{t+2}")
        a(f"v_or_b32 v{t}, v{t}, v{t+3}")
    else:
        a(f"buffer_load_dword v{t}, v{voff}, s[36:39], {soff} offen sc1")
        a("s_waitcnt vmcnt(0)")
        a(f"v_xor_b32 v{t}, s62, v{t}")
    a(f"v_cmp_ne_u32 vcc, 0, v{t}")
    a("s_nop 1")
    a(f"s_cbranch_vccz {d}")
    a(f"s_sleep {sleep}")
    a("s_sub_u32 s63, s63, 1")
    a("s_cmp_lg_u32 s63, 0")
    a(f"s_cbranch_scc1 {l}")
    a.label(d)
    a("s_mov_b64 exec, -1")

def store_flag(a, soff, t):
    a(f"v_mov_b32 v{t}, s62")
    a(f"v_mov_b32 v{t+1}, 0")
    a("s_mov_b64 exec, 1")
    a(f"buffer_store_dword v{t}, v{t+1}, s[36:39], {soff} offen sc1")
    a("s_mov_b64 exec, -1")

def rowmax16(a, dst, S, init=None):
    if init is None:
        a(f"v_max3_f32 v{dst}, v{S}, v{S+1}, v{S+2}")
        for i in range(3, 15, 2): a(f"v_max3_f32 v{dst}, v{dst}, v{S+i}, v{S+i+1}")
        a(f"v_max_f32 v{dst}, v{dst}, v{S+15}")
    else:
        for i in range(0, 16, 2): a(f"v_max3_f32 v{dst}, v{dst}, v{S+i}, v{S+i+1}")
def xhalf_max(a, dst, tmp):
    a(f"v_mov_b32 v{tmp}, v{dst}")
    a(f"v_permlane32_swap_b32 v{dst}, v{tmp}")
    a(f"v_max_f32 v{dst}, v{dst}, v{tmp}")

def kv_dma(a, sreg, n, first=False, only=None):
    for q in range(n):
        if (q & 3) == 0:
            a(f"s_mov_b32 m0, s{sreg}")
            a(f"s_lshr_b32 s51, s{sreg}, 12")
            if not first:
                a("s_add_u32 s51, s51, s59")
                a("s_cmp_ge_u32 s51, 32")
                a("s_cselect_b32 s52, 28, 0")
                a("s_sub_u32 s51, s51, s52")
            a("s_add_u32 s51, s51, s55")
            a("s_and_b32 s51, s51, 31")
            a("s_lshl_b32 s51, s51, 12")
        if only is None or q in only: a(f"buffer_load_dwordx4 v9, s[36:39], s51 offen offset:{(q&3)*1024} sc1 lds")
        if (q & 3) == 3 and q + 1 < n: a(f"s_add_u32 s{sreg}, s{sreg}, 4096")

def kv_job(a, st=None):
    X = 24; W = 88
    lv = a.newlabel("kv_v"); ld = a.newlabel("kv_d")
    def reads(s):
        a(f"ds_read_b128 {vr(X+4*s,4)}, v14 offset:{s*64}")
        for t in range(2):
            a(f"ds_read_b64_tr_b16 {vr(W+4*s+2*t,2)}, v15 offset:{L_WK + s*1024 + t*128}")
    a("s_cmp_eq_u32 s45, 0")
    a(f"s_cbranch_scc0 {lv}")
    for which in range(2):
        if which: a.label(lv)
        for s in range(4): reads(s)
        for s in range(16):
            if s + 4 < 16:
                reads(s + 4); a("s_waitcnt lgkmcnt(12)")
            else:
                a(f"s_waitcnt lgkmcnt({3*(15-s)})")
            if which == 0: mfma16(a, 20, W+4*s, X+4*s, "0" if s == 0 else 20)
            else:          mfma16(a, 20, X+4*s, W+4*s, "0" if s == 0 else 20)
        if not which: a(f"s_branch {ld}")
    a.label(ld)
def kv_store(a):
    a("s_cmp_eq_u32 s45, 0")
    a(f"s_cselect_b32 s51, 1.0, {hex((127 + VSC) << 23)}")
    for i in range(4): a(f"v_mul_f32 v{20+i}, s51, v{20+i}")
    a("v_cvt_pk_bf16_f32 v156, v20, v21")
    a("v_cvt_pk_bf16_f32 v157, v22, v23")
    a("v_xor_b32 v158, s62, v156")
    a("v_xor_b32 v159, s62, v157")
    if "nokvfast" not in VAR: a("buffer_store_dwordx4 v[156:159], v17, s[36:39], s54 offen")
    a("buffer_store_dwordx2 v[156:157], v16, s[36:39], s52 offen sc1")
def kv_flag(a):
    a("s_waitcnt vmcnt(0)")
    store_flag(a, "s53", 18)

def kv_setup(a):
    a("v_and_b32 v12, 15, v1")
    a("v_lshrrev_b32 v13, 4, v1")
    a(f"v_mul_u32_u24 v14, {XP}, v12")
    a("v_lshl_add_u32 v14, v13, 4, v14")
    a(f"s_mul_i32 s51, s46, {16*XP}")
    a(f"s_add_u32 s51, s51, {L_XA}")
    a("v_add_u32 v14, s51, v14")
    a("v_lshlrev_b32 v15, 8, v13")
    a("v_lshl_add_u32 v15, v12, 3, v15")
    a("v_and_b32 v16, 1, v13")
    a("s_cmp_eq_u32 s45, 0")
    a("s_cselect_b32 s51, 9, 8")
    a("s_cselect_b32 s52, 8, 9")
    a("s_lshl_b32 s52, s46, s52")
    a("s_lshl_b32 s53, s45, 10")
    a("s_add_u32 s52, s52, s53")
    a("s_lshl_b32 s53, s40, 11")
    a("s_add_u32 s52, s52, s53")
    a("v_lshlrev_b32 v16, s51, v16")
    a("v_lshl_add_u32 v16, v12, 4, v16")
    a("v_lshrrev_b32 v17, 1, v13")
    a("v_lshl_add_u32 v16, v17, 3, v16")
    a("s_lshl_b32 s53, s40, 7")
    a("s_lshl_b32 s54, s41, 2")
    a("s_add_u32 s53, s53, s54")
    a(f"s_add_u32 s53, s53, {W_F1}")
    a("v_lshlrev_b32 v17, 1, v16")
    a("s_lshl_b32 s54, s52, 1")
    a(f"s_add_u32 s54, s54, {W_KF}")

def stouch_setup(a, slot, bw, bx):
    a("s_lshr_b32 s51, s3, 2")
    a(f"s_lshl_b32 s54, {slot}, 3")
    a("s_add_u32 s51, s51, s54")
    a("s_lshl_b32 s51, s51, 10")
    a("s_lshl_b32 s54, s27, 7")
    a("s_add_u32 s51, s51, s54")
    a(f"s_add_u32 s{bw}, s{P_BWQKV}, s51")
    a(f"s_addc_u32 s{bw+1}, s{P_BWQKV+1}, 0")
    a(f"s_add_u32 s{bw+2}, s{bw}, {24*32768}")
    a(f"s_addc_u32 s{bw+3}, s{bw+1}, 0")
    a("s_lshr_b32 s51, s40, 1")
    a("s_lshl_b32 s51, s51, 16")
    a("s_and_b32 s54, s3, 3")
    a("s_lshl_b32 s54, s54, 14")
    a("s_add_u32 s51, s51, s54")
    a(f"s_lshl_b32 s54, {slot}, 12")
    a("s_add_u32 s51, s51, s54")
    a(f"s_add_u32 s{bx}, s{P_BX}, s51")
    a(f"s_addc_u32 s{bx+1}, s{P_BX+1}, 0")
def stouch_list(chunks, bw, bx):
    l = []
    for c in chunks:
        for r in range(4): l.append((f"s[{bx}:{bx+1}]", r*1024 + c*128))
        for i in range(6):
            m = c*6 + i
            l.append((f"s[{bw}:{bw+1}]", m*32768) if m < 24 else (f"s[{bw+2}:{bw+3}]", (m-24)*32768))
    return l

def role_a(a, st):
    FINE = "fine" in VAR
    class F:
        def stamp(self):
            if FINE: st0.stamp()
    st0 = st; fs = F()
    if FINE:
        class N:
            n = 0
            def stamp(self): pass
            def dump(self, *x): st0.dump(*x)
        st = N()
    srd(a, 32, P_AWQ, 512 * 1024)
    S0, S1, O0, O1, C0, C1, P0, P1, Q0, Q1, KB, VB = 16, 32, 48, 64, 80, 96, 112, 120, 128, 132, 136, 144
    a(f"s_bfe_u32 s55, s3, {0x30002 if MAP81 else 0x30001}")
    a("s_cmp_eq_u32 s43, 0")
    a("s_cbranch_scc0 a_kh1")
    def early_init():
        for i in range(32): a(f"v_mov_b32 v{O0+i}, 0")
        a("s_lshl_b32 s56, s43, 11")
        a("v_add_u32 v2, s56, v9")
        a("v_lshlrev_b32 v3, 8, v7")
        a("v_lshl_add_u32 v3, v6, 4, v3")
        a("v_add_u32 v3, s56, v3")
        a("s_mov_b32 s60, 0x0000ffff")
        a("s_mov_b32 s61, 0x0000ffff")
        a("v_and_b32 v14, 27, v6")
        a("v_cmp_eq_u32 vcc, 16, v14")
        a(f"v_mov_b32 v13, {hex(((127 + VSC) << 7) * 0x10001)}")
        a("v_cndmask_b32 v14, 0, v13, vcc")
        for i in range(8): a(f"v_mov_b32 v{VB+i}, v14")
    XF = 16; WF = 144; ACC = 152
    a(f"v_mul_u32_u24 v4, {XP}, v6")
    a("v_lshl_add_u32 v4, v7, 4, v4")
    a("v_lshlrev_b32 v8, 11, v7")
    a("v_bfe_u32 v5, v1, 2, 2")
    a("v_lshl_add_u32 v8, v5, 8, v8")
    a("v_xor_b32 v5, s42, v5")
    a("v_lshl_add_u32 v8, v5, 6, v8")
    a("v_bfe_u32 v5, v1, 4, 1")
    a("v_lshl_add_u32 v8, v5, 5, v8")
    a("v_and_b32 v5, 3, v1")
    a("v_lshl_add_u32 v8, v5, 3, v8")
    a(f"s_waitcnt vmcnt({0 if 'merge' in VAR else 2}) lgkmcnt(0)")
    a("s_barrier")
    st.stamp()
    if "merge" not in VAR:
        a("s_waitcnt vmcnt(0)")
        a("s_barrier")
    fs.stamp()
    def xload(i):
        a(f"s_add_u32 s51, s55, {i}")
        a("s_and_b32 s51, s51, 7")
        a("s_lshl_b32 s51, s51, 7")
        a("v_add_u32 v5, s51, v4")
        for sp in range(4):
            a(f"ds_read_b128 {vr(XF+16*i+4*sp,4)}, v5 offset:{L_XA + sp*32}")
    for i in range(8): xload(i)
    a("v_add_u32 v5, 16384, v8")
    a("v_add_u32 v15, 115200, v8")
    a("v_add_u32 v8, 66048, v8")
    st.stamp(); fs.stamp()
    a("s_waitcnt lgkmcnt(0)")
    wmap = {}
    free = [144, 148]
    def qread(st_):
        i = st_ >> 2; sp = st_ & 3; sl = WQ_SLOT[i]
        r = free.pop(0); wmap[st_] = r
        base, off = ("v5", sl - 16384) if sl < 66048 else (("v8", sl - 66048) if sl < 115200 else ("v15", sl - 115200))
        for t in range(2):
            a(f"ds_read_b64_tr_b16 {vr(r+2*t,2)}, {base} offset:{off + sp*4096 + t*1024}")
    nr = 0; avail = 0; pend = []
    LEAD = int(VAR.get("lead", 4))
    for st_ in range(32):
        if avail < 32 and (st_ >= avail - LEAD):
            a("s_barrier")
            if FINE: fs.stamp(); a("s_waitcnt lgkmcnt(0)"); pend = []
            avail += 8
        while nr < avail and free and len(pend) <= 12:
            qread(nr); pend += [nr, nr]; nr += 1
            if nr == 32: lds_signal(a, C_QD); pend += [99]
        if st_ in pend:
            k = len(pend) - 1 - max(i for i, x in enumerate(pend) if x == st_)
            a(f"s_waitcnt lgkmcnt({k})")
            pend = pend[len(pend)-k:] if k else []
        mfma32(a, ACC, wmap[st_], XF+4*st_, "0" if st_ == 0 else ACC)
        for r in (wmap[st_], XF+4*st_):
            if not (48 <= r < 80) and (r < 144 or st_ < 6): free.append(r)
        if st_ == 17: early_init()
    st.stamp()
    a(f"s_mov_b32 s51, {CSCALE}")
    a("s_lshl_b32 s53, s42, 11")
    a(f"s_add_u32 s53, s53, {L_QX}")
    a("v_add_u32 v12, s53, v9")
    a("s_lshl_b32 s53, s42, 2")
    a("v_add_u32 v13, s53, v10")
    for i in range(16): a(f"v_mul_f32 v{ACC+i}, s51, v{ACC+i}")
    cvt8(a, Q1, ACC); cvt8(a, Q0, ACC+8)
    a(f"ds_write_b128 v12, {vr(Q1,4)}")
    a(f"ds_write_b128 v12, {vr(Q0,4)} offset:1024")
    lds_signal(a, C_EX, "v13")
    fs.stamp()
    a("s_branch a_join")
    a.label("a_kh1")
    st.n -= 3
    if FINE: st0.n = 1
    a("v_lshrrev_b32 v4, 4, v1")
    a("v_bfe_u32 v5, v1, 2, 2")
    a("v_xor_b32 v5, v5, v4")
    a("v_lshlrev_b32 v3, 10, v4")
    a("v_lshl_add_u32 v3, v5, 6, v3")
    a("v_and_b32 v5, 3, v1")
    a("v_lshl_add_u32 v3, v5, 4, v3")
    a("s_lshl_b32 s48, s42, 14")
    a("s_lshl_b32 s51, s41, 8")
    a("s_add_u32 s48, s48, s51")
    a("s_lshl_b32 s49, s42, 12")
    def op_q(i):
        a(f"s_add_u32 s51, s55, {i}")
        a("s_and_b32 s51, s51, 7")
        a("s_lshl_b32 s51, s51, 16")
        a("s_add_u32 s51, s51, s48")
        for q in range(4):
            a(f"s_add_u32 m0, s49, {WQ_SLOT[i] + q*1024}")
            if q: a("s_add_u32 s51, s51, 4096")
            a("buffer_load_dwordx4 v3, s[32:35], s51 offen lds")
    NPRE = int(VAR.get('npre', 2))
    for i in range(NPRE): op_q(i)
    MERGE = "merge" in VAR
    a(f"s_waitcnt vmcnt({4*NPRE + (0 if MERGE else 2)}) lgkmcnt(0)")
    a("s_barrier")
    st.stamp()
    nxt = NPRE
    if not MERGE:
        for _ in range(int(VAR.get("mid", 0))): op_q(nxt); nxt += 1
        a(f"s_waitcnt vmcnt({4*nxt})")
        a("s_barrier")
    fs.stamp()
    for gq in range(3):
        lim = 6 if gq == 0 else 8
        for _ in range(2):
            if nxt < lim: op_q(nxt); nxt += 1
        a(f"s_waitcnt vmcnt({4*(nxt - 2*gq - 2)})")
        fs.stamp()
        a("s_barrier")
    a("s_waitcnt vmcnt(0)")
    fs.stamp()
    a("s_barrier")
    st.stamp()
    early_init()
    a("s_lshl_b32 s53, s42, 11")
    a(f"s_add_u32 s53, s53, {L_QX}")
    a("v_add_u32 v15, s53, v9")
    a("s_lshl_b32 s53, s42, 2")
    a("v_add_u32 v13, s53, v10")
    lds_wait(a, C_EX, 1, 12, 51, "v13")
    a(f"ds_read_b128 {vr(Q0,4)}, v15")
    a(f"ds_read_b128 {vr(Q1,4)}, v15 offset:1024")
    fs.stamp()
    lds_signal(a, C_QR)
    st.stamp()
    a.label("a_join")
    def tail_setup():
        a("s_xor_b32 s52, s59, 4")
        a("s_mul_i32 s53, s59, 3072")
        a(f"v_add_u32 v160, s53, v9")
        a("s_mul_i32 s53, s52, 3072")
        a(f"v_add_u32 v161, s53, v9")
        a("s_lshl_b32 s53, s59, 2")
        a("v_add_u32 v162, s53, v10")
        a("s_lshl_b32 s53, s52, 2")
        a("v_add_u32 v163, s53, v10")
        a("s_lshl_b32 s57, s42, 1")
        a("s_add_u32 s57, s57, s43")
        a("s_lshl_b32 s58, s40, 5")
        a("s_lshl_b32 s53, s41, 3")
        a("s_add_u32 s53, s53, s58")
        a("s_add_u32 s53, s53, s57")
        a("s_lshl_b32 s53, s53, 10")
        a(f"s_add_u32 s44, s53, {W_OA}")
        a("s_lshl_b32 s57, s57, 10")
        a(f"s_add_u32 s57, s57, {L_OA}")
        a("v_add_u32 v164, s57, v9")
        a(f"s_add_u32 s48, s44, {W_OF - W_OA}")
        a("s_lshl_b32 s57, s59, 10")
        a(f"s_add_u32 s57, s57, {L_OA}")
        a("v_add_u32 v165, s57, v9")
        for d in range(1, 4):
            a(f"s_add_u32 s51, s41, {d}")
            a("s_and_b32 s51, s51, 3")
            a("s_lshl_b32 s51, s51, 3")
            a("s_add_u32 s51, s51, s58")
            a("s_add_u32 s51, s51, s59")
            a("s_lshl_b32 s51, s51, 10")
            a(f"s_add_u32 s{44+d}, s51, {W_OA}")
    for i in range(8, 16): a(f"v_mov_b32 v{VB+i}, v14")
    for i in range(4): a(f"v_mov_b32 v{P1+4+i}, 0")
    st.stamp()
    lds_wait(a, C_ST + 0, 4, 12, 51, sleep=0)
    if FINE: st0.n = 12
    fs.stamp()
    def kvread(b, off):
        a(f"ds_read_b128 {vr(KB+4*b,4)}, v2 offset:{off}")
        a("s_mov_b64 exec, s[60:61]")
        a(f"ds_read_b128 {vr(VB+8*b,4)}, v3 offset:{off+1024}")
        a(f"ds_read_b128 {vr(VB+8*b+4,4)}, v3 offset:{off+1536}")
        a("s_mov_b64 exec, -1")
    a(f"ds_read_b128 {vr(P0,4)}, v9")
    DEEP = "shallow" not in VAR
    def kread(b, off):
        if "nods" not in VAR: a(f"ds_read_b128 {vr(KB+4*b,4)}, v2 offset:{off}")
    def vread(b, off):
        if "nods" in VAR: return
        if "noex" not in VAR: a("s_mov_b64 exec, s[60:61]")
        a(f"ds_read_b128 {vr(VB+8*b,4)}, v3 offset:{off+1024}")
        a(f"ds_read_b128 {vr(VB+8*b+4,4)}, v3 offset:{off+1536}")
        if "noex" not in VAR: a("s_mov_b64 exec, -1")
    kvread(0, 0)
    if DEEP: kread(1, 4096)
    a(f"s_waitcnt lgkmcnt({4 if DEEP else 3})" if not DIAG else "s_waitcnt lgkmcnt(0)")
    mfma32(a, S0, P0, Q0, "0")
    mfma32(a, S1, P0, Q1, "0")
    for S, C in ((S0, C0), (S1, C1)):
        rowmax16(a, 12, S)
        xhalf_max(a, 12, 13)
        a(f"v_sub_f32 v{C}, {BIAS}, v12")
        for i in range(1, 16): a(f"v_mov_b32 v{C+i}, v{C}")
        if S == S0:
            a("s_waitcnt lgkmcnt(0)")
            mfma32(a, S0, KB, Q0, C0)
    st.stamp()
    a("s_mov_b32 s50, 0")
    a(f"s_setprio {VAR.get('ap0', 3)}")
    if DIAG: a("s_waitcnt lgkmcnt(0)")
    a(".p2align 6")
    for _ in range(int(VAR.get("shift", 0))): a("s_nop 0")
    a.label("a_loop")
    def E(S, lo, hi):
        for i in range(lo, hi): a(f"v_exp_f32{VAR.get('enc', '')} v{S+i}, v{S+i}")
    def half(S, P, O, Vx, pvy, snext, w1, post, post2=(), w2=None):
        E(S, 0, 2)
        mfma32(a, *pvy)
        for x in post: x()
        E(S, 2, 8)
        if w1: a("s_waitcnt lgkmcnt(0)")
        mfma32(a, *snext)
        for x in post2: x()
        cvt8(a, P, S)
        E(S, 8, 12)
        if w2 is not None: a(f"s_waitcnt lgkmcnt({w2})")
        mfma32(a, O, Vx, P, O)
        E(S, 12, 16)
        cvt8(a, P+4, S+8)
    HK = {0: [("w", 4)], 1: [("w", 8)], 3: [("p", 2)], 5: [("w", 12)]}
    for k in list(HK): HK[k] = [x for x in HK[k] if x[0] != "p"]
    PR0 = dict(zip(map(int, VAR.get("pr0", "3,5,6").split(",")), (2, 1, 0)))
    PR1 = dict(zip(map(int, VAR.get("pr1", "4,6,7").split(",")), (2, 1, 0)))
    for it in range(8):
        if it in PR0 or it in PR1: HK[it] = [("p", (PR0.get(it), PR1.get(it)))] + HK.get(it, [])
    if "ap0" in VAR: HK = {0: [("w", 4)], 1: [("w", 8)], 3: [("p", 1)], 4: [("w", 12)], 6: [("p", 0)]}
    def hooks():
        a("s_bitcmp1_b32 s50, 2")
        a("s_cbranch_scc1 a_hk_hi")
        a("s_branch a_hk_lo")
        a.label("a_hk_done")
    for t in range(4):
        b = t & 1; nb = b ^ 1
        if DEEP:
            post = [lambda: vread(nb, (t+1)*4096)]
            if t == 2: post = [hooks] + post
            half(S0, P0, O0, VB+8*b, (O1, VB+8*nb+4, P1+4, O1), (S1, KB+4*b, Q1, C1), False, post, [lambda: kread(b, (t+2)*4096)], 3)
            half(S1, P1, O1, VB+8*b, (O0, VB+8*b+4, P0+4, O0), (S0, KB+4*nb, Q0, C0), False, [])
            continue
        post = [lambda: kvread(nb, (t+1)*4096)]
        if t == 3: post = [hooks] + post
        half(S0, P0, O0, VB+8*b, (O1, VB+8*nb+4, P1+4, O1), (S1, KB+4*b, Q1, C1), False, post)
        half(S1, P1, O1, VB+8*b, (O0, VB+8*b+4, P0+4, O0), (S0, KB+4*nb, Q0, C0), True, [])
    a("v_add_u32 v2, 16384, v2")
    a("v_add_u32 v3, 16384, v3")
    a("s_add_u32 s50, s50, 1")
    a("s_cmp_lt_u32 s50, 8")
    a("s_cbranch_scc1 a_loop")
    mfma32(a, O1, VB+8+4, P1+4, O1)
    st.stamp()
    for i in range(2): a(f"ds_write_b128 v160, {vr(O0+4*i,4)} offset:{L_CB + i*1024}")
    a(f"ds_write_b32 v160, v{O0+8} offset:{L_CB + 2048}")
    lds_signal(a, C_CB, "v162")
    a("s_setprio 3")
    lds_wait(a, C_CB, 1, 12, 51, "v163", sleep=int(VAR.get("cbsleep", 0)))
    if "tfine" in VAR: st.stamp()
    for i in range(2): a(f"ds_read_b128 {vr(S0+4*i,4)}, v161 offset:{L_CB + i*1024}")
    a(f"ds_read_b32 v{S0+8}, v161 offset:{L_CB + 2048}")
    a("s_mov_b32 s51, 0x7b800000")
    a(f"s_mov_b32 s53, {hex((127 - 85) << 23)}")
    a("s_waitcnt lgkmcnt(0)")
    a(f"v_add_f32 v{O1+8}, v{O1+8}, v{S0+8}")
    a(f"v_rcp_f32 v14, v{O1+8}")
    for i in range(8): a(f"v_add_f32 v{O1+i}, v{O1+i}, v{S0+i}")
    a(f"v_add_f32 v12, abs(v{O1}), abs(v{O1+1})")
    a(f"v_add_f32 v13, abs(v{O1+2}), abs(v{O1+3})")
    for i in range(4, 8, 2):
        a(f"v_add_f32 v12, v12, abs(v{O1+i})")
        a(f"v_add_f32 v13, v13, abs(v{O1+i+1})")
    a("v_add_f32 v12, v12, v13")
    a(f"v_add_f32 v13, v12, v{O1+8}")
    a("v_cmp_ngt_f32 vcc, s51, v13")
    a("v_cmp_gt_f32 s[64:65], s53, v12")
    a("s_or_b64 vcc, vcc, s[64:65]")
    if "forcefb" in VAR: a("s_mov_b64 vcc, -1")
    if "bidle" in VAR: a("s_mov_b64 vcc, 0")
    a("s_cbranch_vccnz a_fallback")
    a.label("a_norm")
    for i in range(8): a(f"v_mul_f32 v{O1+i}, v{O1+i}, v14")
    cvt8(a, P0, O1)
    for i in range(4): a(f"v_min_u32 v{P0+i}, -2, v{P0+i}")
    if "nofast" not in VAR: a(f"buffer_store_dwordx4 {vr(P0,4)}, v9, s[36:39], s48 offen " + VAR.get("fst", ""))
    a(f"ds_write_b128 v164, {vr(P0,4)}")
    lds_signal(a, C_OF)
    st.stamp()
    a(f"s_mov_b32 s63, {SPIN}")
    a("s_mov_b32 s50, 0")
    a.label("a_poll")
    a(f"s_cmp_lt_u32 s63, {SPIN - int(VAR.get('fastn', 12))}")
    a("s_cselect_b32 s51, s63, 0")
    a("s_bitcmp1_b32 s51, 0")
    a(f"s_cselect_b32 s51, 0, {W_OF - W_OA}")
    a("v_add_u32 v13, s51, v9")
    for d in range(1, 4):
        a(f"buffer_load_dwordx4 {vr(S0+4*(d-1),4)}, v13, s[36:39], s{44+d} offen sc1")
    a("s_sub_u32 s63, s63, 1")
    for d in range(1, 4):
        r = S0 + 4*(d-1)
        nx = a.newlabel("pn")
        a(f"s_waitcnt vmcnt({3-d})")
        a(f"s_bitcmp1_b32 s50, {d}")
        a(f"s_cbranch_scc1 {nx}")
        a(f"v_max3_u32 v12, v{r}, v{r+1}, v{r+2}")
        a(f"v_max_u32 v12, v12, v{r+3}")
        a("v_cmp_eq_u32 vcc, -1, v12")
        a("s_cmp_eq_u32 s63, 0")
        a("s_cselect_b64 vcc, 0, vcc")
        a(f"s_cbranch_vccnz {nx}")
        a(f"ds_write_b128 v165, {vr(r,4)} offset:{d*8192}")
        lds_signal(a, C_OF + 4*d)
        a(f"s_bitset1_b32 s50, {d}")
        a.label(nx)
    a("s_cmp_eq_u32 s50, 14")
    a("s_cbranch_scc1 a_got")
    ls = a.newlabel("sl")
    a(f"s_cmp_eq_u32 s63, {SPIN - int(VAR.get('slown', 4))}")
    a(f"s_cbranch_scc0 {ls}")
    a(f"buffer_store_dwordx4 {vr(P0,4)}, v9, s[36:39], s44 offen sc1")
    a.label(ls)
    if int(VAR.get('tsleep', 0)): a(f"s_sleep {VAR.get('tsleep', 0)}")
    a("s_branch a_poll")
    a.label("a_got")
    if "xnoslow" not in VAR: a(f"buffer_store_dwordx4 {vr(P0,4)}, v9, s[36:39], s44 offen sc1")
    st.stamp()
    if "tfine" in VAR:
        a("s_waitcnt lgkmcnt(0)")
        a(f"s_sub_u32 s72, {SPIN}, s63")
        a("s_add_u32 s72, s72, s70")
    st.dump(None, 0)
    a("s_endpgm")
    def pretouch():
        a(f"v_lshlrev_b32 v13, 7, v1")
        a(f"v_add_u32 v13, {W_OF - W_OA}, v13")
        a("s_mov_b64 exec, 0xff")
        for d in range(1, 4): a(f"buffer_load_dword v166, v13, s[36:39], s{44+d} offen sc1")
        a("s_mov_b64 exec, -1")
    HK[3] = HK.get(3, []) + [("sig", C_PR)]
    HK[6] = HK.get(6, []) + [("sig", C_PR2)]
    HK[2] = [x for x in HK.get(2, []) if x[0] == "p"] + [("f", tail_setup)]
    HK[7] = [x for x in HK.get(7, []) if x[0] == "p"] + [("w", 16), ("w8", C_PR2)] + ([("f", pretouch)] if "nopre" not in VAR else [])
    for nm, rng in (("a_hk_lo", range(0, 4)), ("a_hk_hi", range(4, 8))):
        a.label(nm)
        for i in rng:
            if i not in HK: continue
            nx = a.newlabel("hk")
            a(f"s_cmp_eq_u32 s50, {i}")
            a(f"s_cbranch_scc0 {nx}")
            for kind, v in HK[i]:
                if kind == "w":
                    if "hkt" in VAR:
                        a("s_memtime s[4:5]")
                    lds_wait(a, C_ST + v, 4, 12, 51)
                    if "hkt" in VAR:
                        a("s_memtime s[6:7]")
                        a("s_waitcnt lgkmcnt(0)")
                        a("s_sub_u32 s6, s6, s4")
                        a(f"s_add_u32 s{72 + 2*(v//4 - 1)}, s70, s6")
                elif kind == "sig": lds_signal(a, v)
                elif kind == "f": v()
                elif kind == "w8": lds_wait(a, v, 8, 12, 51)
                elif kind == "s":
                    a("s_cmp_eq_u32 s43, 0")
                    a("s_cbranch_scc0 a_hk_done")
                    a("s_waitcnt vmcnt(0)")
                    lds_signal(a, C_ST + v)
                elif v[0] == v[1]: a(f"s_setprio {v[0]}")
                else:
                    for kh_, lv in enumerate(v):
                        if lv is None: continue
                        lp = a.newlabel("pp")
                        a(f"s_cmp_eq_u32 s43, {kh_}")
                        a(f"s_cbranch_scc0 {lp}")
                        a(f"s_setprio {lv}")
                        a.label(lp)
            a("s_branch a_hk_done")
            a.label(nx)
        a("s_branch a_hk_done")
    a.label("a_fallback")
    a("v_mov_b32 v12, 0xff800000")
    a("s_mov_b32 s50, 0")
    a.label("a_fb1")
    a(f"buffer_load_dwordx4 {vr(KB,4)}, v9, s[36:39], s50 offen sc1")
    a("s_waitcnt vmcnt(0)")
    mfma32(a, S0, KB, Q1, "0")
    a("s_add_u32 s50, s50, 2048")
    rowmax16(a, 12, S0, init=True)
    a("s_cmp_lt_u32 s50, 0x20000")
    a("s_cbranch_scc1 a_fb1")
    xhalf_max(a, 12, 13)
    a(f"v_sub_f32 v{C0}, 0, v12")
    for i in range(1, 16): a(f"v_mov_b32 v{C0+i}, v{C0}")
    for i in range(16): a(f"v_mov_b32 v{O1+i}, 0")
    a("v_lshlrev_b32 v3, 8, v7")
    a("v_lshl_add_u32 v3, v6, 4, v3")
    a("s_mov_b32 s50, 0")
    a.label("a_fb2")
    a(f"buffer_load_dwordx4 {vr(KB,4)}, v9, s[36:39], s50 offen sc1")
    a("s_mov_b64 exec, s[60:61]")
    a(f"buffer_load_dwordx4 {vr(VB,4)}, v3, s[36:39], s50 offen offset:1024 sc1")
    a(f"buffer_load_dwordx4 {vr(VB+4,4)}, v3, s[36:39], s50 offen offset:1536 sc1")
    a("s_mov_b64 exec, -1")
    a("s_waitcnt vmcnt(0)")
    mfma32(a, S0, KB, Q1, C0)
    a("s_add_u32 s50, s50, 2048")
    E(S0, 0, 16)
    cvt8(a, P0, S0); cvt8(a, P0+4, S0+8)
    mfma32(a, O1, VB, P0, O1)
    mfma32(a, O1, VB+4, P0+4, O1)
    a("s_cmp_lt_u32 s50, 0x20000")
    a("s_cbranch_scc1 a_fb2")
    a(f"v_rcp_f32 v14, v{O1+8}")
    a("s_branch a_norm")

def role_b(a, st):
    a("s_mov_b32 s58, 0")
    a("s_lshr_b32 s44, s40, 1")
    a("s_and_b32 s42, s26, 1")
    a("s_lshr_b32 s43, s26, 1")
    srd(a, 28, P_BX, 2 << 20)
    srd(a, 32, P_BWQKV, 512 * 3072)
    a("v_lshrrev_b32 v12, 3, v1")
    a("v_and_b32 v13, 7, v1")
    a("v_bfe_u32 v14, v1, 4, 1")
    a("v_lshlrev_b32 v14, 2, v14")
    a("v_xor_b32 v14, v14, v13")
    a("v_mul_u32_u24 v3, 3072, v12")
    a("v_lshl_add_u32 v3, v14, 4, v3")
    a("v_lshlrev_b32 v4, 10, v12")
    a("v_lshl_add_u32 v4, v14, 4, v4")
    a(f"s_mul_i32 s64, s26, {16*3072}")
    a("s_lshl_b32 s51, s27, 7")
    a("s_add_u32 s64, s64, s51")
    a("s_lshl_b32 s65, s44, 16")
    a("s_lshl_b32 s51, s26, 14")
    a("s_add_u32 s65, s65, s51")
    if MAP81:
        a("s_lshr_b32 s67, s3, 3")
        a("s_lshl_b32 s67, s67, 1")
        a("s_add_u32 s67, s67, s3")
    else:
        a("s_lshr_b32 s67, s3, 2")
        a("s_lshl_b32 s51, s3, 1")
        a("s_add_u32 s67, s67, s51")
    a("s_and_b32 s67, s67, 7")
    a("s_mul_i32 s56, s26, 6144")
    a(f"s_add_u32 s56, s56, {L_GB + GB_W}")
    a("s_mul_i32 s57, s26, 2080")
    a(f"s_add_u32 s57, s57, {L_GB + GB_X}")
    INLOOP = [False]
    def issue_ops(buf):
        o = buf * GB_SZ
        def pre():
            a(f"s_mul_i32 s48, s67, {64*3072}")
            a("s_add_u32 s48, s48, s64")
            a(f"s_add_u32 s47, s48, {8*3072}")
            a("s_lshl_b32 s49, s67, 7")
            a("s_add_u32 s49, s49, s65")
            a("s_add_u32 s66, s49, 8192")
            a("s_add_u32 s67, s67, 1")
            a("s_and_b32 s67, s67, 7")
        ops = [pre]
        for q in range(2):
            def fx(q=q):
                a(f"s_add_u32 m0, s57, {o + q*1040}")
                a(f"buffer_load_dwordx4 v4, s[28:31], {'s66' if q else 's49'} offen lds")
            ops.append(fx)
        for gq in range(2):
            for t in range(3):
                def f(gq=gq, t=t):
                    if t == 0: a(f"s_add_u32 m0, s56, {o + gq*3072}")
                    a(f"buffer_load_dwordx4 v3, s[32:35], {'s47' if gq else 's48'} offen offset:{t*1024} lds")
                ops.append(f)
        if "gnodma" in VAR and INLOOP[0]: return [lambda: None] * 8 + [lambda: a("s_sleep 10")]
        return ops
    BST = VAR.get("bstart", "st4")
    if BST == "early":
        for f in issue_ops(0): f()
    lk = a.newlabel("nokv")
    a("v_lshl_add_u32 v5, v1, 2, v10")
    a("v_mov_b32 v12, 0")
    a("ds_write_b32 v5, v12")
    kv_setup(a)
    a("s_waitcnt vmcnt(0) lgkmcnt(0)")
    a("v_readfirstlane_b32 s62, v19")
    a(f"s_add_u32 s62, s62, {TAGC}")
    a("s_barrier")
    a("s_cmp_eq_u32 s26, 3")
    a(f"s_cbranch_scc0 {lk}")
    kv_job(a)
    if "merge" not in VAR: a("s_barrier")
    kv_store(a)
    lk2 = a.newlabel("kvs")
    a(f"s_branch {lk2}")
    a.label(lk)
    if "merge" not in VAR: a("s_barrier")
    a.label(lk2)
    a("s_mov_b32 s45, s27")
    a("v_mul_u32_u24 v8, 3072, v7")
    a("v_bfe_u32 v14, v1, 2, 2")
    a("v_lshl_add_u32 v8, v14, 7, v8")
    a("v_bfe_u32 v14, v1, 3, 1")
    a("v_xor_b32 v14, s42, v14")
    a("v_lshl_add_u32 v8, v14, 6, v8")
    a("v_bfe_u32 v14, v1, 4, 1")
    a("v_lshl_add_u32 v8, v14, 5, v8")
    a("v_and_b32 v14, 3, v1")
    a("v_lshl_add_u32 v8, v14, 3, v8")
    a(f"v_add_u32 v8, {L_GB + GB_W}, v8")
    XM = 152
    a("v_bfe_u32 v14, v1, 1, 1")
    a("v_lshlrev_b32 v14, 2, v14")
    a("v_or_b32 v14, v14, v7")
    a("v_lshlrev_b32 v14, 4, v14")
    a("v_and_b32 v15, 7, v1")
    a("v_lshl_add_u32 v14, v15, 7, v14")
    a("v_xor_b32 v15, 64, v14")
    a("v_lshrrev_b32 v16, 3, v6")
    a("v_mul_u32_u24 v16, 1040, v16")
    a("s_mul_i32 s51, s43, 4160")
    a(f"s_add_u32 s51, s51, {L_GB + GB_X}")
    a(f"v_add3_u32 v{XM}, v14, v16, s51")
    a(f"v_add3_u32 v{XM+1}, v15, v16, s51")
    ACC = 20; WF = 84; XF = 108
    for i in range(48): a(f"v_mov_b32 v{ACC+i}, 0")
    for i in range(16): a(f"v_mov_b32 v{WF+12+i if i < 12 else XF+4+i-12}, 0")
    a("s_barrier")
    lk3 = a.newlabel("kvf")
    a("s_cmp_eq_u32 s26, 3")
    a(f"s_cbranch_scc0 {lk3}")
    kv_flag(a)
    a.label(lk3)
    st.stamp()
    a("s_barrier")
    LP, LS, LG = 126, 128, 144
    a("s_mul_i32 s51, s26, 6144")
    a(f"s_add_u32 s51, s51, {L_COMB}")
    a("v_lshlrev_b32 v15, 3, v7")
    a("v_sub_u32 v15, v6, v15")
    a("v_add_u32 v15, 10, v15")
    a(f"v_add_u32 v{LP}, s51, v9")
    a("v_lshlrev_b32 v14, 4, v6")
    a("v_add_u32 v14, s51, v14")
    for i in range(4):
        a(f"v_add_u32 v16, {2*i}, v15")
        a("v_lshrrev_b32 v17, 2, v16")
        a(f"v_lshl_add_u32 v{LG+i}, v17, 9, v14")
        a("v_lshrrev_b32 v17, 4, v16")
        a(f"v_lshl_add_u32 v{LS+i}, v17, 10, v14")
        a("v_bfe_u32 v17, v16, 2, 1")
        a(f"v_lshl_add_u32 v{LS+i}, v17, 9, v{LS+i}")
        a("v_bfe_u32 v17, v16, 3, 1")
        a(f"v_lshl_add_u32 v{LS+i}, v17, 3, v{LS+i}")
        a("v_and_b32 v17, 3, v16")
        a(f"v_lshl_add_u32 v{LS+i}, v17, 1, v{LS+i}")
        a(f"v_lshl_add_u32 v{LG+i}, v17, 2, v{LG+i}")
    ZR = 132
    for i in range(4): a(f"v_mov_b32 v{ZR+i}, 0")
    def read_ops(buf, sp, fb):
        r = []
        for t3 in range(3):
            for t in range(2):
                r.append(f"ds_read_b64_tr_b16 {vr(WF+12*fb+4*t3+2*t,2)}, v8 offset:{buf*GB_SZ + sp*6144 + t3*1024 + t*512}")
        r.insert(2, f"ds_read_b128 {vr(XF+4*fb,4)}, v{XM+(sp>>1)} offset:{buf*GB_SZ + (sp&1)*32}")
        if "gnoreads" in VAR: return []
        return r
    def mm(fb, k):
        w = WF + 12*fb; x = XF + 4*fb
        if "nomm" in VAR: return
        if k == 0: mfma32(a, ACC, w, x, ACC)
        elif k == 1: mfma32(a, ACC+16, w+4, x, ACC+16)
        else: mfma32(a, ACC+32, x, w+8, ACC+32)
        if "mgap" in VAR and k < 2: a(f"s_nop {VAR['mgap']}")
    a("s_lshr_b32 s55, s40, 3")
    a("s_lshl_b32 s55, s55, 2")
    a("s_cmp_ge_u32 s3, 28")
    a("s_cselect_b32 s51, 28, 0")
    a("s_sub_u32 s59, s3, s51")
    a("s_add_u32 s53, s55, s26")
    a("s_lshl_b32 s53, s53, 13")
    a(f"s_add_u32 s53, s53, {W_KF}")
    a("s_add_u32 s52, s53, 4096")
    a("s_lshl_b32 s51, s26, 12")
    a("v_lshlrev_b32 v13, 3, v1")
    a("v_add_u32 v13, s51, v13")
    FQ = [68, 72, 76, 80, 84, 88, 92, 108]
    def kf_loads():
        for i, r in enumerate(FQ):
            a(f"buffer_load_dwordx4 {vr(r,4)}, v9, s[36:39], {'s53' if i < 4 else 's52'} offen offset:{(i&3)*1024} sc1")
    a(f"s_mov_b32 s63, {int(VAR.get('kfn', 3))}")
    a("s_mov_b32 s46, 0")
    if "kfe" in VAR: kf_loads()
    a("s_barrier")
    if "kfe" not in VAR: kf_loads()
    a("s_barrier")
    st.stamp()
    a.label("b_kf")
    a("v_mov_b32 v14, 0")
    for i, r in enumerate(FQ):
        a(f"s_waitcnt vmcnt({7-i})")
        a(f"ds_write_b64 v13, {vr(r,2)} offset:{L_WK + i*512}")
        a(f"v_bitop3_b32 v15, v{r}, v{r+2}, s62 bitop3:0x96")
        a(f"v_bitop3_b32 v16, v{r+1}, v{r+3}, s62 bitop3:0x96")
        a("v_or3_b32 v14, v14, v15, v16")
    a("v_cmp_ne_u32 vcc, 0, v14")
    a("s_nop 1")
    a("s_cbranch_vccz b_kf_ok")
    a("s_sub_u32 s63, s63, 1")
    a("s_cbranch_scc1 b_kf_done")
    kf_loads()
    a("s_branch b_kf")
    a.label("b_kf_ok")
    lds_signal(a, C_ST + 0)
    a("s_mov_b32 s46, 1")
    a.label("b_kf_done")
    st.stamp()
    if "c0early" in VAR:
        lds_wait(a, C_QD, 4, 5, 51)
        for f in issue_ops(0): f()
    a("v_lshlrev_b32 v15, 7, v1")
    a("s_lshl_b32 s54, s26, 11")
    a(f"s_add_u32 s54, s54, {W_F1}")
    poll_flags(a, 15, "s54", 16, 16, sleep=int(VAR.get("psleep", 4)))
    bbar(a)
    lf = a.newlabel("kfok")
    a("s_cmp_eq_u32 s46, 1")
    a(f"s_cbranch_scc1 {lf}")
    a("s_lshl_b32 s53, s26, 12")
    kv_dma(a, 53, 4, first=True)
    a("s_waitcnt vmcnt(0)")
    lds_signal(a, C_ST + 0)
    a.label(lf)
    lds_wait(a, C_QD, 4, 5, 51)
    for k in range(1, 6):
        a("s_lshl_b32 s53, s26, 12")
        a(f"s_add_u32 s53, s53, {k*16384}")
        kv_dma(a, 53, 4)
        if k == 2:
            a("s_waitcnt vmcnt(4)")
            lds_signal(a, C_ST + 4)
    a("s_cmp_eq_u32 s43, 0")
    a(f"s_cselect_b32 s4, s{P_BWO}, s{P_AWO}")
    a(f"s_cselect_b32 s5, s{P_BWO+1}, s{P_AWO+1}")
    a("s_mov_b32 s6, 0x80000")
    a("s_mov_b32 s7, 0x20000")
    a("s_lshr_b32 s8, s2, 3")
    a("s_and_b32 s9, s2, 7")
    a("s_lshl_b32 s51, s8, 14")
    a("s_lshl_b32 s52, s9, 7")
    a("s_add_u32 s51, s51, s52")
    a("s_lshl_b32 s10, s26, 11")
    a(f"s_add_u32 s10, s10, {L_GB + 1024}")
    a("s_mov_b32 m0, s10")
    a("s_add_u32 s52, s51, 7168")
    a("buffer_load_dwordx4 v4, s[4:7], s51 offen lds")
    a("buffer_load_dwordx4 v4, s[4:7], s52 offen offset:1024 lds")
    lds_wait(a, C_QR, 4, 5, 51, sleep=2)
    for f in issue_ops(1): f()
    a("v_bfe_u32 v14, v1, 2, 2")
    a("v_lshlrev_b32 v14, 7, v14")
    a("v_bfe_u32 v15, v1, 3, 1")
    a("v_xor_b32 v15, s42, v15")
    a("v_lshl_add_u32 v14, v15, 6, v14")
    a("v_bfe_u32 v15, v1, 4, 1")
    a("v_lshl_add_u32 v14, v15, 5, v14")
    a("v_and_b32 v15, 1, v1")
    a("v_lshl_add_u32 v14, v15, 4, v14")
    a("v_bfe_u32 v15, v1, 1, 1")
    a("v_lshl_add_u32 v14, v15, 3, v14")
    a("v_lshl_add_u32 v14, v7, 9, v14")
    a("v_add_u32 v14, s10, v14")
    a("s_lshl_b32 s51, s9, 1")
    a("s_add_u32 s51, s51, s42")
    a("s_lshl_b32 s51, s51, 5")
    a("s_add_u32 s51, s51, s8")
    a("s_lshl_b32 s10, s51, 10")
    a("s_lshl_b32 s51, s43, 19")
    a("s_add_u32 s10, s10, s51")
    a(f"s_add_u32 s10, s10, {W_TO}")
    a("s_lshr_b32 s51, s9, 1")
    a("s_lshl_b32 s51, s51, 5")
    a("s_add_u32 s51, s51, s8")
    a("s_lshl_b32 s11, s51, 7")
    a("s_and_b32 s51, s9, 1")
    a("s_lshl_b32 s51, s51, 2")
    a("s_add_u32 s51, s51, s26")
    a("s_lshl_b32 s51, s51, 2")
    a("s_add_u32 s11, s11, s51")
    a(f"s_add_u32 s11, s11, {W_F4}")
    a("s_waitcnt vmcnt(10)")
    lds_signal(a, C_ST + 8)
    a("s_waitcnt vmcnt(8)")
    for t in range(2): a(f"ds_read_b64_tr_b16 {vr(160+2*t,2)}, v14 offset:{t*1024}")
    a("s_waitcnt vmcnt(0) lgkmcnt(0)")
    a("buffer_store_dwordx4 v[160:163], v9, s[36:39], s10 offen sc1")
    a("v_lshrrev_b32 v166, 1, v1")
    a("v_lshlrev_b32 v166, 7, v166")
    a("v_and_b32 v15, 1, v1")
    a("v_lshl_add_u32 v166, v15, 4, v166")
    a("s_lshl_b32 s8, s41, 12")
    a(f"s_add_u32 s8, s8, {W_F4}")
    a(f"s_setprio {VAR.get('bprio', 3)}")
    st.stamp()
    a("s_mov_b32 s50, 0")
    if "bidle" in VAR:
        a("s_waitcnt vmcnt(0)")
        bbar(a)
        a("s_mul_i32 s54, s26, 12288")
        a("s_add_u32 s54, s54, 81920")
        kv_dma(a, 54, 12)
        a("s_waitcnt vmcnt(0)")
        for c_ in (12, 16, 20): lds_signal(a, C_ST + c_)
        srd(a, 28, P_OUT, 4 << 20)
        a("s_mov_b32 s47, 0")
        a("s_branch b_tail")
    if "nogemm" in VAR: a("s_branch b_gend")
    INLOOP[0] = True
    a("s_branch b_in")
    a.label("b_loop")
    for buf in (1, 0):
        mm(1, 0)
        a("s_waitcnt vmcnt(0)")
        if buf == 1: a.label("b_in")
        else:
            lf4 = a.newlabel("f4")
            a("s_cmp_eq_u32 s50, 0")
            a(f"s_cbranch_scc0 {lf4}")
            store_flag(a, "s11", 164)
            a.label(lf4)
        a("s_add_u32 s58, s58, 4")
        lds_signal(a, C_BB)
        mm(1, 1)
        ops = issue_ops(buf ^ 1)
        if buf == 0:
            a("s_cmp_eq_u32 s50, 3")
            a("s_cselect_b32 s64, 0x7f000000, s64")
            a("s_cselect_b32 s65, 0x7f000000, s65")
            for r in (56, 57): a(f"s_cselect_b32 s{r}, 0x30000, s{r}")
        ops[0]()
        lds_wait(a, C_BB, "s58", 5, 51, sleep=int(VAR.get("bsleep", 0)))
        for x in read_ops(buf, 0, 0): a(x)
        mm(1, 2)
        oi = 1
        for _ in range(3): ops[oi](); oi += 1
        for sp in range(3):
            for x in read_ops(buf, sp+1, (sp+1) & 1): a(x)
            a("s_waitcnt lgkmcnt(7)")
            for k in range(3):
                mm(sp & 1, k)
                for _ in range(2):
                    if oi < len(ops): ops[oi](); oi += 1
        a("s_waitcnt lgkmcnt(0)")
    a("s_add_u32 s50, s50, 1")
    a("s_cmp_lt_u32 s50, 4")
    a("s_cbranch_scc1 b_loop")
    a.label("b_gend")
    a("buffer_load_dwordx4 v[160:163], v166, s[36:39], s8 offen sc1")
    a("s_add_u32 s58, s58, 4")
    lds_signal(a, C_BB)
    for k in range(3): mm(1, k)
    lds_wait(a, C_BB, "s58", 5, 51, sleep=0)
    a(f"s_mov_b32 s54, {23*4096}")
    kv_dma(a, 54, 4, only=(3,))
    a("s_lshl_b32 s54, s26, 13")
    a("s_add_u32 s54, s54, 98304")
    kv_dma(a, 54, 8)
    st.stamp()
    QF = 84; KF = 92; VF = 100; KH = 108; VH = 116
    cvt8(a, KF, ACC+16); cvt8(a, KF+4, ACC+24)
    cvt8(a, VF, ACC+32); cvt8(a, VF+4, ACC+40)
    a("s_mul_i32 s51, s42, 3072")
    a(f"s_add_u32 s51, s51, {L_BEX}")
    a("v_add_u32 v13, s51, v9")
    a("s_lshl_b32 s52, s44, 3")
    a("s_add_u32 s52, s52, s45")
    a("s_lshl_b32 s53, s52, 1")
    a("s_add_u32 s53, s53, s42")
    a("s_mul_i32 s53, s53, 3072")
    a(f"s_add_u32 s53, s53, {W_HALO}")
    a("s_lshl_b32 s52, s52, 7")
    a("s_lshl_b32 s51, s42, 2")
    a("s_add_u32 s52, s52, s51")
    a(f"s_add_u32 s52, s52, {W_F2}")
    l1 = a.newlabel("b_w1"); l2 = a.newlabel("b_w2")
    a("s_cmp_eq_u32 s43, 0")
    a(f"s_cbranch_scc0 {l1}")
    a(f"ds_write_b128 v13, {vr(KF,4)}")
    a(f"ds_write_b128 v13, {vr(KF+4,4)} offset:1024")
    a(f"ds_write_b128 v13, {vr(VF+4,4)} offset:2048")
    a("s_waitcnt vmcnt(0)")
    a(f"s_branch {l2}")
    a.label(l1)
    a(f"buffer_store_dwordx4 {vr(KF,4)}, v9, s[36:39], s53 offen sc1")
    a(f"buffer_store_dwordx4 {vr(KF+4,4)}, v9, s[36:39], s53 offen offset:1024 sc1")
    a(f"buffer_store_dwordx4 {vr(VF+4,4)}, v9, s[36:39], s53 offen offset:2048 sc1")
    a("s_waitcnt vmcnt(0)")
    store_flag(a, "s52", 14)
    a.label(l2)
    cvt8(a, QF, ACC); cvt8(a, QF+4, ACC+8)
    a("s_waitcnt vmcnt(1)")
    lds_signal(a, C_ST + 12)
    bbar(a)
    l1 = a.newlabel("b_x1"); l2 = a.newlabel("b_x2")
    a("s_or_b32 s51, s44, 0")
    a("s_cselect_b32 s51, s43, 1")
    a("s_cmp_eq_u32 s51, 0")
    a(f"s_cbranch_scc0 {l1}")
    a(f"s_sub_u32 s52, s52, {8*128}")
    a(f"s_sub_u32 s53, s53, {16*3072}")
    a("v_mov_b32 v5, 0")
    poll_flags(a, 5, "s52", 1, 14, sleep=6, width=1)
    a(f"buffer_load_dwordx4 {vr(KH,4)}, v9, s[36:39], s53 offen sc1")
    a(f"buffer_load_dwordx4 {vr(KH+4,4)}, v9, s[36:39], s53 offen offset:1024 sc1")
    a(f"buffer_load_dwordx4 {vr(VH,4)}, v9, s[36:39], s53 offen offset:2048 sc1")
    a("s_waitcnt vmcnt(0)")
    a(f"s_branch {l2}")
    a.label(l1)
    a(f"ds_read_b128 {vr(KH,4)}, v13")
    a(f"ds_read_b128 {vr(KH+4,4)}, v13 offset:1024")
    a(f"ds_read_b128 {vr(VH,4)}, v13 offset:2048")
    a.label(l2)
    lsn = a.newlabel("nosn")
    a("s_and_b32 s51, s40, 1")
    a("s_cmp_eq_u32 s51, s43")
    a(f"s_cbranch_scc0 {lsn}")
    a("s_lshl_b32 s51, s40, 2")
    a("s_add_u32 s51, s51, s41")
    a("s_lshl_b32 s51, s51, 1")
    a("s_add_u32 s51, s51, s42")
    a("s_lshl_b32 s51, s51, 12")
    a(f"s_add_u32 s51, s51, {W_OA}")
    for i in range(4): a(f"v_mov_b32 v{120+i}, -1")
    for i in range(4 if "xnoslow" not in VAR else 0): a(f"buffer_store_dwordx4 v[120:123], v9, s[36:39], s51 offen offset:{i*1024} sc1")
    a(f"s_add_u32 s51, s51, {W_OF - W_OA}")
    for i in range(4): a(f"buffer_store_dwordx4 v[120:123], v9, s[36:39], s51 offen offset:{i*1024} sc1")
    a.label(lsn)
    a("s_lshl_b32 s52, s44, 1")
    a("s_add_u32 s52, s52, s43")
    a("s_lshl_b32 s55, s52, 4")
    a("s_lshl_b32 s53, s45, 1")
    a("s_add_u32 s53, s53, s42")
    a("s_add_u32 s55, s55, s53")
    a("s_lshl_b32 s55, s55, 11")
    a(f"s_add_u32 s55, s55, {W_OB}")
    a("s_lshl_b32 s57, s52, 9")
    a("s_lshr_b32 s51, s53, 2")
    a("s_lshl_b32 s51, s51, 7")
    a("s_add_u32 s57, s57, s51")
    a("s_and_b32 s51, s53, 3")
    a("s_lshl_b32 s51, s51, 2")
    a("s_add_u32 s57, s57, s51")
    a(f"s_add_u32 s57, s57, {W_F3}")
    a("s_waitcnt lgkmcnt(0)")
    SM = 20; SH = 36; O = 52; PP = 68; T = 152
    a(f"s_mov_b32 s46, {CSCALE}")
    a("s_or_b32 s60, s44, s43")
    G = 136
    for hd in range(2 if "nolocal" not in VAR else 0):
        sm = SM + 32*hd; sh = sm + 16
        mfma32(a, sm, KF+4*hd, QF+4*hd, "0")
        mfma32(a, sh, KH+4*hd, QF+4*hd, "0")
    lz = a.newlabel("fz")
    a("s_cmp_eq_u32 s60, 0")
    a(f"s_cbranch_scc0 {lz}")
    for hd in range(2):
        for i in range(8): a(f"v_mov_b32 v{SM+32*hd+24+i}, 0xff800000")
    a.label(lz)
    for hd in range(2 if "nolocal" not in VAR else 0):
        sm = SM + 32*hd; sh = sm + 16
        for g_ in range(2): a(f"ds_write_b128 v{LP}, {vr(sh+8+4*g_,4)} offset:{1024*g_}")
        for g_ in range(4): a(f"ds_write_b128 v{LP}, {vr(sm+4*g_,4)} offset:{2048 + 1024*g_}")
        for i in range(4): a(f"ds_read_b32 v{G+4*hd+i}, v{LG+i}")
    for hd in range(2 if "nolocal" not in VAR else 0):
        g0 = G + 4*hd; t = T + 4*hd
        if hd == 0:
            for f in range(6): a(f"ds_write_b128 v{LP}, {vr(ZR,4)} offset:{f*1024}")
        a(f"s_waitcnt lgkmcnt({15 if hd == 0 else 4})")
        if hd == 0: a("s_waitcnt lgkmcnt(6)")
        a(f"v_max3_f32 v{t}, v{g0}, v{g0+1}, v{g0+2}")
        a(f"v_max_f32 v{t}, v{t}, v{g0+3}")
        xhalf_max(a, t, t+1)
        a(f"v_mul_f32 v{t}, s46, v{t}")
        for i in range(4): a(f"v_fma_f32 v{g0+i}, v{g0+i}, s46, -v{t}")
        for i in range(4): a(f"v_exp_f32 v{g0+i}, v{g0+i}")
        a(f"v_add_f32 v{t}, v{g0}, v{g0+1}")
        a(f"v_add_f32 v{t+1}, v{g0+2}, v{g0+3}")
        a(f"v_add_f32 v{t}, v{t}, v{t+1}")
        a(f"v_mov_b32 v{t+1}, v{t}")
        a(f"v_permlane32_swap_b32 v{t}, v{t+1}")
        a(f"v_add_f32 v{t}, v{t}, v{t+1}")
        a(f"v_rcp_f32 v{t}, v{t}")
        for i in range(4): a(f"v_mul_f32 v{g0+i}, v{g0+i}, v{t}")
        a(f"v_cvt_pk_bf16_f32 v{t+2}, v{g0}, v{g0+1}")
        a(f"v_cvt_pk_bf16_f32 v{t+3}, v{g0+2}, v{g0+3}")
        for i in range(4):
            a(f"ds_write_b16{'_d16_hi' if i & 1 else ''} v{LS+i}, v{t+2+(i>>1)} offset:{hd*3072}")
    for hd in range(2 if "nolocal" not in VAR else 0):
        for f in range(3): a(f"ds_read_b128 {vr(SM+12*hd+4*f,4)}, v{LP} offset:{hd*3072 + f*1024}")
    for hd in range(2 if "nolocal" not in VAR else 0):
        o = 52 + 16*hd; p = SM + 12*hd
        a(f"s_waitcnt lgkmcnt({3 - 3*hd})")
        mfma32(a, o, VH, p, "0")
        mfma32(a, o, VF, p+4, o)
        mfma32(a, o, VF+4, p+8, o)
    for hd in range(2 if "nolocal" not in VAR else 0):
        o = 52 + 16*hd
        cvt8(a, G+4*hd, o+8*hd)
        a(f"buffer_store_dwordx4 {vr(G+4*hd,4)}, v9, s[36:39], s55 offen offset:{hd*1024} sc1")
    a("s_waitcnt vmcnt(0)")
    store_flag(a, "s57", 12)
    st.stamp()
    srd(a, 28, P_OUT, 4 << 20)
    a("s_lshl_b32 s47, s41, 8")
    a("s_lshl_b32 s51, s26, 6")
    a("s_add_u32 s47, s47, s51")
    a("s_lshl_b32 s64, s47, 9")
    a(f"s_add_u32 s64, s64, {W_TO}")
    a("v_lshlrev_b32 v4, 11, v6")
    a("v_lshl_add_u32 v4, v7, 4, v4")
    a("s_lshl_b32 s51, s40, 16")
    a("s_add_u32 s47, s47, s51")
    ACC = 12; OB = 28; WL = 40
    def fload(i, rot):
        if (i & 3) == 0:
            a(f"s_add_u32 s51, {rot}, {i*1024}")
            a("s_and_b32 s51, s51, 0x7fff")
            a("s_add_u32 s48, s64, s51")
        a(f"buffer_load_dwordx4 {vr(WL+4*i,4)}, v9, s[36:39], s48 offen offset:{(i&3)*1024} sc1")
    lok = a.newlabel("f4ok")
    for i in range(4): a(f"v_xor_b32 v{160+i}, s62, v{160+i}")
    a("v_or3_b32 v160, v160, v161, v162")
    a("v_or_b32 v160, v160, v163")
    a("v_cmp_ne_u32 vcc, 0, v160")
    a("s_nop 1")
    a(f"s_cbranch_vccz {lok}")
    poll_flags(a, 166, "s8", 64, 160, sleep=8)
    a.label(lok)
    a("s_bfe_u32 s9, s3, 0x30002")
    a("s_lshl_b32 s9, s9, 12")
    if "touchA" in VAR:
        a("s_add_u32 s51, s64, s9")
        a("s_add_u32 s51, s51, 0x80000")
        a("v_lshlrev_b32 v5, 7, v6")
        a("buffer_load_dword v28, v5, s[36:39], s51 offen sc1")
    for i in range(32): fload(i, "s9")
    def run(lo, hi, addr, off0, after=None):
        o = lambda i: (i - off0) * 1024
        for i in range(lo, min(lo+2, hi)): a(f"ds_read_b128 {vr(OB+4*(i%3),4)}, {addr} offset:{o(i)}")
        for i in range(lo, hi):
            if i + 2 < hi:
                a(f"ds_read_b128 {vr(OB+4*((i+2)%3),4)}, {addr} offset:{o(i+2)}")
                a("s_waitcnt lgkmcnt(2)")
            else:
                a(f"s_waitcnt lgkmcnt({hi-1-i})")
            mfma32(a, ACC, WL+4*i, OB+4*(i%3), "0" if i == 0 else ACC)
            if after: after(i)
    a("v_lshlrev_b32 v5, 7, v1")
    a("s_lshl_b32 s57, s40, 9")
    a(f"s_add_u32 s57, s57, {W_F3}")
    poll_flags(a, 5, "s57", 4, 28, sleep=8)
    lds_signal(a, C_ST + 16)
    st.stamp()
    lds_wait(a, C_PR, 8, 5, 51, sleep=8)
    a("s_lshl_b32 s49, s40, 15")
    a(f"s_add_u32 s49, s49, {W_OB}")
    a("s_lshl_b32 s52, s26, 13")
    a(f"s_add_u32 s46, s52, {L_OB}")
    a("s_add_u32 s52, s52, s9")
    for q in range(8):
        if (q & 3) == 0:
            a(f"s_add_u32 m0, s46, {q*1024}")
            a(f"s_add_u32 s51, s52, {q*1024}")
            a("s_and_b32 s51, s51, 0x7fff")
            a("s_add_u32 s51, s51, s49")
        a(f"buffer_load_dwordx4 v9, s[36:39], s51 offen offset:{(q&3)*1024} sc1 lds")
    a(f"v_add_u32 v0, {L_OB}, v9")
    a("s_add_u32 s64, s64, 0x80000")
    a("s_lshl_b32 s10, s41, 13")
    a("s_waitcnt vmcnt(0)")
    bbar(a)
    if "late" in VAR:
        a("s_lshl_b32 s51, s26, 2")
        a("v_add_u32 v2, s51, v10")
        NL = int(VAR["late"])
        run(0, NL, "v0", 0, lambda i: fload(i, "s10"))
        lds_wait(a, C_CB, 1, 5, 52, "v2", sleep=4)
        a(f"s_setprio {VAR.get('lprio', 1)}")
        run(NL, 32, "v0", 0, lambda i: fload(i, "s10"))
        a("s_setprio 3")
    else:
        run(0, 32, "v0", 0, lambda i: fload(i, "s10"))
    cvt8(a, 28, ACC); cvt8(a, 32, ACC+8)
    a("buffer_store_dwordx4 v[28:31], v4, s[28:31], s47 offen offset:1024 " + VAR.get("stb", "nt"))
    a("buffer_store_dwordx4 v[32:35], v4, s[28:31], s47 offen offset:1056 " + VAR.get("stb", "nt"))
    st.stamp()
    a("s_waitcnt vmcnt(0)")
    a.label("b_tail")
    st.stamp()
    le = a.newlabel("ep")
    a("s_or_b32 s51, s2, s26")
    a("s_cmp_eq_u32 s51, 0")
    a(f"s_cbranch_scc0 {le}")
    a(f"s_mov_b32 s51, {W_EP}")
    store_flag(a, "s51", 28)
    a.label(le)
    a(f"v_add_u32 v0, {L_OA}, v9")
    lds_wait(a, C_CB + 0, 1, 5, 51, sleep=16)
    def rd(i): a(f"ds_read_b128 {vr(WL+4*(i-8),4)}, v0 offset:{i*1024}")
    lds_wait(a, C_OF, 8, 5, 51, sleep=0)
    if "tfine" in VAR: st.n = 5; st.stamp(); a("s_waitcnt lgkmcnt(0)")
    run(0, 8, "v0", 0)
    lds_wait(a, C_OF + 4, 8, 5, 51, sleep=0)
    if "tfine" in VAR: st.stamp(); a("s_waitcnt lgkmcnt(0)")
    for i in range(8, 16): rd(i)
    NE = int(VAR.get("ne", 3))
    for i in range(8, 8 + NE):
        a(f"s_waitcnt lgkmcnt({15 - i})")
        mfma32(a, ACC, WL+4*i, WL+4*(i-8), ACC)
        if i == 8: a(f"ds_read_b64 v[28:29], v10 offset:{C_OF + 8}")
    a("s_waitcnt lgkmcnt(0)")
    a("v_min_u32 v28, v28, v29")
    a("v_readfirstlane_b32 s51, v28")
    a("s_cmp_ge_u32 s51, 8")
    a("s_cbranch_scc0 b_slowtail")
    for i in range(8, 8 + NE): rd(i + 8)
    for i in range(8 + NE, 32):
        if i >= 16: a(f"s_waitcnt lgkmcnt({min(7, 31 - i)})")
        mfma32(a, ACC, WL+4*i, WL+4*(i-8), ACC)
        if i + 8 < 32: rd(i + 8)
    a.label("b_fin")
    cvt8(a, 28, ACC); cvt8(a, 32, ACC+8)
    a("buffer_store_dwordx4 v[28:31], v4, s[28:31], s47 offen " + VAR.get("sta", "nt"))
    a("buffer_store_dwordx4 v[32:35], v4, s[28:31], s47 offen offset:32 " + VAR.get("sta", "nt"))
    if DIAG:
        if "tfine" in VAR: st.stamp()
        a("s_waitcnt vmcnt(0)")
        st.stamp()
        st.dump(None, 0)
    a("s_endpgm")
    a.label("b_slowtail")
    for d in range(1, 4):
        if d > 1:
            lds_wait(a, C_OF + 4*d, 8, 5, 51, sleep=0)
            for i in range(8*d, 8*d + 8): rd(i)
        for i in range(8*d + (NE if d == 1 else 0), 8*d + 8):
            a(f"s_waitcnt lgkmcnt({8*d + 7 - i})")
            mfma32(a, ACC, WL+4*i, WL+4*(i-8), ACC)
    a("s_branch b_fin")

def pre_a(a):
    a("s_sub_u32 s59, s26, 4")
    a("s_and_b32 s42, s59, 3")
    a("s_lshr_b32 s43, s59, 2")
    a("s_lshr_b32 s46, s41, 1")
    a("s_lshl_b32 s49, s46, 4")
    a("s_lshl_b32 s48, s59, 1")
    a("s_add_u32 s49, s49, s48")
    a("s_xor_b32 s51, s49, 16")
    a("s_lshl_b32 s52, s40, 5")
    a("s_add_u32 s48, s52, s49")
    a("s_lshl_b32 s48, s48, 10")
    a("s_xor_b32 s50, s48, 16384")
    a(f"s_mul_i32 s49, s49, {XP}")
    a(f"s_mul_i32 s51, s51, {XP}")
    a("s_mov_b32 s30, 0x200000")
    a("s_mov_b32 s31, 0x20000")
    a(f"s_add_u32 m0, s49, {L_XA}")
    a("s_waitcnt lgkmcnt(0)")
    a(f"s_mov_b32 s28, s{P_AX}")
    a(f"s_mov_b32 s29, s{P_AX+1}")
    for k, (so, lb) in enumerate((("s48", "s49"), ("s50", "s51"))):
        for q in range(2):
            if k or q: a(f"s_add_u32 m0, {lb}, {L_XA + q*XP - q*1024}")
            a(f"buffer_load_dwordx4 v9, s[28:31], {so} offen offset:{q*1024} lds")
    srd(a, 36, P_WS, W_USED)
def pre_b(a):
    a("s_setprio 3")
    a("s_and_b32 s45, s41, 1")
    a("s_lshr_b32 s46, s41, 1")
    a("s_mov_b32 s30, 16384")
    a("s_mov_b32 s31, 0x20000")
    a("s_lshl_b32 s51, s26, 12")
    a(f"s_add_u32 m0, s51, {L_WK}")
    a(f"v_mov_b32 v18, {W_EP}")
    a("s_cmp_eq_u32 s45, 0")
    a("s_waitcnt lgkmcnt(0)")
    a(f"s_cselect_b32 s28, s{P_AWK}, s{P_AWV}")
    a(f"s_cselect_b32 s29, s{P_AWK+1}, s{P_AWV+1}")
    for q in range(4):
        a(f"buffer_load_dwordx4 v9, s[28:31], s51 offen offset:{q*1024} lds")
    srd(a, 36, P_WS, W_USED)
    a("buffer_load_dword v19, v18, s[36:39], 0 offen sc1")

def kernel():
    a = Asm(); n = NAME + "_kernel"
    a.label(n)
    a("s_cmp_ge_u32 s2, 256")
    a("s_cbranch_scc1 k_exit")
    load_ptrs(a)
    sta = Stamps(a, DIAG, real='--cyc' not in sys.argv); stb = Stamps(a, DIAG, real='--cyc' not in sys.argv)
    sta.stamp(); stb.n = sta.n
    VAR.setdefault("cpf", 142)
    if int(VAR["cpf"]):
        a("s_getpc_b64 s[32:33]")
        a("v_lshlrev_b32 v3, 7, v0")
        a(f"v_cmp_gt_u32 vcc, {int(VAR['cpf'])}, v0")
        a("s_and_saveexec_b64 s[34:35], vcc")
        a("s_cbranch_execz k_nopf")
        a("global_load_dword v167, v3, s[32:33]")
        a.label("k_nopf")
        a("s_mov_b64 exec, s[34:35]")
    a("v_and_b32 v1, 63, v0")
    a("v_lshrrev_b32 v2, 6, v0")
    a("v_readfirstlane_b32 s26, v2")
    a("s_and_b32 s27, s2, 7")
    a("s_lshr_b32 s3, s2, 3")
    if MAP81:
        a("s_lshl_b32 s40, s27, 3")
        a("s_lshr_b32 s41, s3, 2")
        a("s_add_u32 s40, s40, s41")
        a("s_and_b32 s41, s3, 3")
    else:
        a("s_lshr_b32 s40, s27, 1")
        a("s_lshl_b32 s40, s40, 4")
        a("s_lshr_b32 s41, s3, 1")
        a("s_add_u32 s40, s40, s41")
        a("s_and_b32 s41, s27, 1")
        a("s_lshl_b32 s41, s41, 1")
        a("s_and_b32 s27, s3, 1")
        a("s_add_u32 s41, s41, s27")
    a("s_lshl_b32 s27, s41, 1")
    a("s_and_b32 s51, s40, 1")
    a("s_add_u32 s27, s27, s51")
    a("v_and_b32 v6, 31, v1")
    a("v_lshrrev_b32 v7, 5, v1")
    a("v_lshlrev_b32 v9, 4, v1")
    a(f"v_mov_b32 v10, {L_CNT}")
    a("v_mov_b32 v11, 1")
    a("s_cmp_lt_u32 s26, 4")
    a("s_cbranch_scc0 pre_a")
    pre_b(a)
    a("s_barrier")
    a("s_branch role_b")
    a.label("pre_a")
    pre_a(a)
    a("s_barrier")
    role_a(a, sta)
    a.label("role_b")
    role_b(a, stb)
    a.label("k_exit")
    a("s_endpgm")
    return (n, a, 256, 768, LDS_SIZE, 168)

if __name__ == "__main__":
    write_file(sys.argv[1], [kernel()])
```

```python
import sys
from common import *
DIAG = "--diag" in sys.argv
VAR = dict((x[2:].split("=")+[1])[:2] for x in sys.argv if x.startswith("-V"))

W_KV = 0
W_F1 = 0x20000
W_F2 = 0x28000
W_F4 = 0x24000
W_F3 = 0x30000
W_EP = 0x3F000
W_KF = 0x40000
W_OA = 1 << 20
W_OB = 3 << 20
W_HALO = 5 << 20
W_OF = 10 << 20
W_TO = 14 << 20
W_USED = 16 << 20
L_XA = 16384
L_WK = 0
WQ_SLOT = [49664 + 16384*i for i in range(6)] + [16384, 32768]
L_GB = 97792
GB_W, GB_X, GB_SZ = 0, 24576, 32896
L_COMB = 131072
L_QX = 155392
L_BEX = 155648
L_CNT = 163584
LDS_SIZE = 163840
C_BB, C_ST, C_EX, C_XA, C_QB, C_QC, C_QD, C_XD = 4, 16, 40, 72, 76, 92, 96, 100
C_ISS, C_QR = 8, 12
C_PR, C_CB, C_OF = 104, 112, 144
L_CB = 0
L_OB = 24576
L_OA = 65536
C_PR2 = 108
C_NL = 160
BIAS = VAR.get("bias", "0xc2c80000")
VSC = 40
MAP81 = 'map24' not in VAR
XP = 1040
TAGC = 0x9E3779B9 - (1 << 32)
SPIN = 40000

def cvt8(a, dst, src):
    for i in range(4):
        a(f"v_cvt_pk_bf16_f32 v{dst+i}, v{src+2*i}, v{src+2*i+1}")

def tr_base32(a, dst, tmp):
    a(f"v_lshlrev_b32 v{dst}, 9, v7")
    a(f"v_bfe_u32 v{tmp}, v1, 2, 2")
    a(f"v_lshl_add_u32 v{dst}, v{tmp}, 6, v{dst}")
    a(f"v_bfe_u32 v{tmp}, v1, 4, 1")
    a(f"v_lshl_add_u32 v{dst}, v{tmp}, 5, v{dst}")
    a(f"v_and_b32 v{tmp}, 3, v1")
    a(f"v_lshl_add_u32 v{dst}, v{tmp}, 3, v{dst}")

def tr_base_wo(a, dst, tmp):
    a(f"v_lshlrev_b32 v{dst}, 8, v7")
    a(f"v_bfe_u32 v{tmp}, v1, 2, 2")
    a(f"v_lshl_add_u32 v{dst}, v{tmp}, 6, v{dst}")
    a(f"v_bfe_u32 v{tmp}, v1, 4, 1")
    a(f"v_lshl_add_u32 v{dst}, v{tmp}, 5, v{dst}")
    a(f"v_and_b32 v{tmp}, 1, v1")
    a(f"v_lshl_add_u32 v{dst}, v{tmp}, 4, v{dst}")
    a(f"v_bfe_u32 v{tmp}, v1, 1, 1")
    a(f"v_lshl_add_u32 v{dst}, v{tmp}, 3, v{dst}")

JS = [0]
def jitter(a):
    if "jit" not in VAR: return
    JS[0] += 1
    l = a.newlabel("jit")
    a("s_mul_i32 s97, s2, 13")
    a("s_add_u32 s97, s97, s26")
    a(f"s_mul_i32 s97, s97, {(JS[0] * 2654435761 + int(VAR['jit']) * 40503) % (1 << 31) | 1}")
    a("s_lshr_b32 s97, s97, 13")
    a("s_and_b32 s97, s97, 7")
    a("s_cmp_eq_u32 s97, 0")
    a(f"s_cbranch_scc0 {l}")
    a(f"s_sleep {20 + (JS[0] * 37) % 100}")
    a.label(l)
def lds_signal(a, off, addr="v10"):
    jitter(a)
    a("s_mov_b64 exec, 1")
    a(f"ds_add_u32 {addr}, v11 offset:{off}")
    a("s_mov_b64 exec, -1")
def lds_wait(a, off, val, tmp, stmp, addr="v10", sleep=1):
    l = a.newlabel("lw"); d = a.newlabel("lwd")
    a.label(l)
    a(f"ds_read_b32 v{tmp}, {addr} offset:{off}")
    a("s_waitcnt lgkmcnt(0)")
    a(f"v_readfirstlane_b32 s{stmp}, v{tmp}")
    a(f"s_cmp_ge_u32 s{stmp}, {val}")
    a(f"s_cbranch_scc1 {d}")
    if sleep: a(f"s_sleep {sleep}")
    a(f"s_branch {l}")
    a.label(d)
    jitter(a)
def bbar(a, tmp=5):
    a("s_add_u32 s58, s58, 4")
    lds_signal(a, C_BB)
    lds_wait(a, C_BB, "s58", tmp, 51, sleep=2)

def poll_flags(a, voff, soff, nl, t, sleep=2, width=4):
    l = a.newlabel("pf"); d = a.newlabel("pfd")
    a(f"s_mov_b32 s63, {SPIN}")
    if nl < 64: a(f"s_mov_b64 exec, {(1 << nl) - 1}")
    a.label(l)
    if width == 4:
        a(f"buffer_load_dwordx4 {vr(t,4)}, v{voff}, s[36:39], {soff} offen sc1")
        a("s_waitcnt vmcnt(0)")
        for i in range(4): a(f"v_xor_b32 v{t+i}, s62, v{t+i}")
        a(f"v_or3_b32 v{t}, v{t}, v{t+1}, v{t+2}")
        a(f"v_or_b32 v{t}, v{t}, v{t+3}")
    else:
        a(f"buffer_load_dword v{t}, v{voff}, s[36:39], {soff} offen sc1")
        a("s_waitcnt vmcnt(0)")
        a(f"v_xor_b32 v{t}, s62, v{t}")
    a(f"v_cmp_ne_u32 vcc, 0, v{t}")
    a("s_nop 1")
    a(f"s_cbranch_vccz {d}")
    a(f"s_sleep {sleep}")
    a("s_sub_u32 s63, s63, 1")
    a("s_cmp_lg_u32 s63, 0")
    a(f"s_cbranch_scc1 {l}")
    a.label(d)
    a("s_mov_b64 exec, -1")

def store_flag(a, soff, t):
    jitter(a)
    a(f"v_mov_b32 v{t}, s62")
    a(f"v_mov_b32 v{t+1}, 0")
    a("s_mov_b64 exec, 1")
    a(f"buffer_store_dword v{t}, v{t+1}, s[36:39], {soff} offen sc1")
    a("s_mov_b64 exec, -1")

def rowmax16(a, dst, S, init=None):
    if init is None:
        a(f"v_max3_f32 v{dst}, v{S}, v{S+1}, v{S+2}")
        for i in range(3, 15, 2): a(f"v_max3_f32 v{dst}, v{dst}, v{S+i}, v{S+i+1}")
        a(f"v_max_f32 v{dst}, v{dst}, v{S+15}")
    else:
        for i in range(0, 16, 2): a(f"v_max3_f32 v{dst}, v{dst}, v{S+i}, v{S+i+1}")
def xhalf_max(a, dst, tmp):
    a(f"v_mov_b32 v{tmp}, v{dst}")
    a(f"v_permlane32_swap_b32 v{dst}, v{tmp}")
    a(f"v_max_f32 v{dst}, v{dst}, v{tmp}")

def kv_dma(a, sreg, n, first=False, only=None):
    for q in range(n):
        if (q & 3) == 0:
            a(f"s_mov_b32 m0, s{sreg}")
            a(f"s_lshr_b32 s51, s{sreg}, 12")
            if not first:
                a("s_add_u32 s51, s51, s59")
                a("s_cmp_ge_u32 s51, 32")
                a("s_cselect_b32 s52, 28, 0")
                a("s_sub_u32 s51, s51, s52")
            a("s_add_u32 s51, s51, s55")
            a("s_and_b32 s51, s51, 31")
            a("s_lshl_b32 s51, s51, 12")
        if only is None or q in only: a(f"buffer_load_dwordx4 v9, s[36:39], s51 offen offset:{(q&3)*1024} sc1 lds")
        if (q & 3) == 3 and q + 1 < n: a(f"s_add_u32 s{sreg}, s{sreg}, 4096")

def kv_job(a, st=None):
    X = 24; W = 88
    lv = a.newlabel("kv_v"); ld = a.newlabel("kv_d")
    def reads(s):
        a(f"ds_read_b128 {vr(X+4*s,4)}, v14 offset:{s*64}")
        for t in range(2):
            a(f"ds_read_b64_tr_b16 {vr(W+4*s+2*t,2)}, v15 offset:{L_WK + s*1024 + t*128}")
    a("s_cmp_eq_u32 s45, 0")
    a(f"s_cbranch_scc0 {lv}")
    for which in range(2):
        if which: a.label(lv)
        for s in range(4): reads(s)
        for s in range(16):
            if s + 4 < 16:
                reads(s + 4); a("s_waitcnt lgkmcnt(12)")
            else:
                a(f"s_waitcnt lgkmcnt({3*(15-s)})")
            if which == 0: mfma16(a, 20, W+4*s, X+4*s, "0" if s == 0 else 20)
            else:          mfma16(a, 20, X+4*s, W+4*s, "0" if s == 0 else 20)
        if not which: a(f"s_branch {ld}")
    a.label(ld)
def kv_store(a):
    jitter(a)
    a("s_cmp_eq_u32 s45, 0")
    a(f"s_cselect_b32 s51, 1.0, {hex((127 + VSC) << 23)}")
    for i in range(4): a(f"v_mul_f32 v{20+i}, s51, v{20+i}")
    a("v_cvt_pk_bf16_f32 v156, v20, v21")
    a("v_cvt_pk_bf16_f32 v157, v22, v23")
    a("v_xor_b32 v158, s62, v156")
    a("v_xor_b32 v159, s62, v157")
    if "nokvfast" not in VAR: a("buffer_store_dwordx4 v[156:159], v17, s[36:39], s54 offen")
    a("buffer_store_dwordx2 v[156:157], v16, s[36:39], s52 offen sc1")
def kv_flag(a):
    a("s_waitcnt vmcnt(0)")
    store_flag(a, "s53", 18)

def kv_setup(a):
    a("v_and_b32 v12, 15, v1")
    a("v_lshrrev_b32 v13, 4, v1")
    a(f"v_mul_u32_u24 v14, {XP}, v12")
    a("v_lshl_add_u32 v14, v13, 4, v14")
    a(f"s_mul_i32 s51, s46, {16*XP}")
    a(f"s_add_u32 s51, s51, {L_XA}")
    a("v_add_u32 v14, s51, v14")
    a("v_lshlrev_b32 v15, 8, v13")
    a("v_lshl_add_u32 v15, v12, 3, v15")
    a("v_and_b32 v16, 1, v13")
    a("s_cmp_eq_u32 s45, 0")
    a("s_cselect_b32 s51, 9, 8")
    a("s_cselect_b32 s52, 8, 9")
    a("s_lshl_b32 s52, s46, s52")
    a("s_lshl_b32 s53, s45, 10")
    a("s_add_u32 s52, s52, s53")
    a("s_lshl_b32 s53, s40, 11")
    a("s_add_u32 s52, s52, s53")
    a("v_lshlrev_b32 v16, s51, v16")
    a("v_lshl_add_u32 v16, v12, 4, v16")
    a("v_lshrrev_b32 v17, 1, v13")
    a("v_lshl_add_u32 v16, v17, 3, v16")
    a("s_lshl_b32 s53, s40, 7")
    a("s_lshl_b32 s54, s41, 2")
    a("s_add_u32 s53, s53, s54")
    a(f"s_add_u32 s53, s53, {W_F1}")
    a("v_lshlrev_b32 v17, 1, v16")
    a("s_lshl_b32 s54, s52, 1")
    a(f"s_add_u32 s54, s54, {W_KF}")

def stouch_setup(a, slot, bw, bx):
    a("s_lshr_b32 s51, s3, 2")
    a(f"s_lshl_b32 s54, {slot}, 3")
    a("s_add_u32 s51, s51, s54")
    a("s_lshl_b32 s51, s51, 10")
    a("s_lshl_b32 s54, s27, 7")
    a("s_add_u32 s51, s51, s54")
    a(f"s_add_u32 s{bw}, s{P_BWQKV}, s51")
    a(f"s_addc_u32 s{bw+1}, s{P_BWQKV+1}, 0")
    a(f"s_add_u32 s{bw+2}, s{bw}, {24*32768}")
    a(f"s_addc_u32 s{bw+3}, s{bw+1}, 0")
    a("s_lshr_b32 s51, s40, 1")
    a("s_lshl_b32 s51, s51, 16")
    a("s_and_b32 s54, s3, 3")
    a("s_lshl_b32 s54, s54, 14")
    a("s_add_u32 s51, s51, s54")
    a(f"s_lshl_b32 s54, {slot}, 12")
    a("s_add_u32 s51, s51, s54")
    a(f"s_add_u32 s{bx}, s{P_BX}, s51")
    a(f"s_addc_u32 s{bx+1}, s{P_BX+1}, 0")
def stouch_list(chunks, bw, bx):
    l = []
    for c in chunks:
        for r in range(4): l.append((f"s[{bx}:{bx+1}]", r*1024 + c*128))
        for i in range(6):
            m = c*6 + i
            l.append((f"s[{bw}:{bw+1}]", m*32768) if m < 24 else (f"s[{bw+2}:{bw+3}]", (m-24)*32768))
    return l

def role_a(a, st):
    FINE = "fine" in VAR
    class F:
        def stamp(self):
            if FINE: st0.stamp()
    st0 = st; fs = F()
    if FINE:
        class N:
            n = 0
            def stamp(self): pass
            def dump(self, *x): st0.dump(*x)
        st = N()
    srd(a, 32, P_AWQ, 512 * 1024)
    S0, S1, O0, O1, C0, C1, P0, P1, Q0, Q1, KB, VB = 16, 32, 48, 64, 80, 96, 112, 120, 128, 132, 136, 144
    a(f"s_bfe_u32 s55, s3, {0x30002 if MAP81 else 0x30001}")
    a("s_cmp_eq_u32 s43, 0")
    a("s_cbranch_scc0 a_kh1")
    def early_init():
        for i in range(32): a(f"v_mov_b32 v{O0+i}, 0")
        a("s_lshl_b32 s56, s43, 11")
        a("v_add_u32 v2, s56, v9")
        a("v_lshlrev_b32 v3, 8, v7")
        a("v_lshl_add_u32 v3, v6, 4, v3")
        a("v_add_u32 v3, s56, v3")
        a("s_mov_b32 s60, 0x0000ffff")
        a("s_mov_b32 s61, 0x0000ffff")
        a("v_and_b32 v14, 27, v6")
        a("v_cmp_eq_u32 vcc, 16, v14")
        a(f"v_mov_b32 v13, {hex(((127 + VSC) << 7) * 0x10001)}")
        a("v_cndmask_b32 v14, 0, v13, vcc")
        for i in range(8): a(f"v_mov_b32 v{VB+i}, v14")
    XF = 16; WF = 144; ACC = 152
    a(f"v_mul_u32_u24 v4, {XP}, v6")
    a("v_lshl_add_u32 v4, v7, 4, v4")
    a("v_lshlrev_b32 v8, 11, v7")
    a("v_bfe_u32 v5, v1, 2, 2")
    a("v_lshl_add_u32 v8, v5, 8, v8")
    a("v_xor_b32 v5, s42, v5")
    a("v_lshl_add_u32 v8, v5, 6, v8")
    a("v_bfe_u32 v5, v1, 4, 1")
    a("v_lshl_add_u32 v8, v5, 5, v8")
    a("v_and_b32 v5, 3, v1")
    a("v_lshl_add_u32 v8, v5, 3, v8")
    a(f"s_waitcnt vmcnt({0 if 'merge' in VAR else 2}) lgkmcnt(0)")
    a("s_barrier")
    st.stamp()
    if "merge" not in VAR:
        a("s_waitcnt vmcnt(0)")
        a("s_barrier")
    fs.stamp()
    def xload(i):
        a(f"s_add_u32 s51, s55, {i}")
        a("s_and_b32 s51, s51, 7")
        a("s_lshl_b32 s51, s51, 7")
        a("v_add_u32 v5, s51, v4")
        for sp in range(4):
            a(f"ds_read_b128 {vr(XF+16*i+4*sp,4)}, v5 offset:{L_XA + sp*32}")
    for i in range(8): xload(i)
    a("v_add_u32 v5, 16384, v8")
    a("v_add_u32 v15, 115200, v8")
    a("v_add_u32 v8, 66048, v8")
    st.stamp(); fs.stamp()
    a("s_waitcnt lgkmcnt(0)")
    wmap = {}
    free = [144, 148]
    def qread(st_):
        i = st_ >> 2; sp = st_ & 3; sl = WQ_SLOT[i]
        r = free.pop(0); wmap[st_] = r
        base, off = ("v5", sl - 16384) if sl < 66048 else (("v8", sl - 66048) if sl < 115200 else ("v15", sl - 115200))
        for t in range(2):
            a(f"ds_read_b64_tr_b16 {vr(r+2*t,2)}, {base} offset:{off + sp*4096 + t*1024}")
    nr = 0; avail = 0; pend = []
    LEAD = int(VAR.get("lead", 4))
    for st_ in range(32):
        if avail < 32 and (st_ >= avail - LEAD):
            a("s_barrier")
            if FINE: fs.stamp(); a("s_waitcnt lgkmcnt(0)"); pend = []
            avail += 8
        while nr < avail and free and len(pend) <= 12:
            qread(nr); pend += [nr, nr]; nr += 1
            if nr == 32: lds_signal(a, C_QD); pend += [99]
        if st_ in pend:
            k = len(pend) - 1 - max(i for i, x in enumerate(pend) if x == st_)
            a(f"s_waitcnt lgkmcnt({k})")
            pend = pend[len(pend)-k:] if k else []
        mfma32(a, ACC, wmap[st_], XF+4*st_, "0" if st_ == 0 else ACC)
        for r in (wmap[st_], XF+4*st_):
            if not (48 <= r < 80) and (r < 144 or st_ < 6): free.append(r)
        if st_ == 17: early_init()
    st.stamp()
    a(f"s_mov_b32 s51, {CSCALE}")
    a("s_lshl_b32 s53, s42, 11")
    a(f"s_add_u32 s53, s53, {L_QX}")
    a("v_add_u32 v12, s53, v9")
    a("s_lshl_b32 s53, s42, 2")
    a("v_add_u32 v13, s53, v10")
    for i in range(16): a(f"v_mul_f32 v{ACC+i}, s51, v{ACC+i}")
    cvt8(a, Q1, ACC); cvt8(a, Q0, ACC+8)
    a(f"ds_write_b128 v12, {vr(Q1,4)}")
    a(f"ds_write_b128 v12, {vr(Q0,4)} offset:1024")
    lds_signal(a, C_EX, "v13")
    fs.stamp()
    a("s_branch a_join")
    a.label("a_kh1")
    st.n -= 3
    if FINE: st0.n = 1
    a("v_lshrrev_b32 v4, 4, v1")
    a("v_bfe_u32 v5, v1, 2, 2")
    a("v_xor_b32 v5, v5, v4")
    a("v_lshlrev_b32 v3, 10, v4")
    a("v_lshl_add_u32 v3, v5, 6, v3")
    a("v_and_b32 v5, 3, v1")
    a("v_lshl_add_u32 v3, v5, 4, v3")
    a("s_lshl_b32 s48, s42, 14")
    a("s_lshl_b32 s51, s41, 8")
    a("s_add_u32 s48, s48, s51")
    a("s_lshl_b32 s49, s42, 12")
    def op_q(i):
        a(f"s_add_u32 s51, s55, {i}")
        a("s_and_b32 s51, s51, 7")
        a("s_lshl_b32 s51, s51, 16")
        a("s_add_u32 s51, s51, s48")
        for q in range(4):
            a(f"s_add_u32 m0, s49, {WQ_SLOT[i] + q*1024}")
            if q: a("s_add_u32 s51, s51, 4096")
            a("buffer_load_dwordx4 v3, s[32:35], s51 offen lds")
    NPRE = int(VAR.get('npre', 2))
    for i in range(NPRE): op_q(i)
    MERGE = "merge" in VAR
    a(f"s_waitcnt vmcnt({4*NPRE + (0 if MERGE else 2)}) lgkmcnt(0)")
    a("s_barrier")
    st.stamp()
    nxt = NPRE
    if not MERGE:
        for _ in range(int(VAR.get("mid", 0))): op_q(nxt); nxt += 1
        a(f"s_waitcnt vmcnt({4*nxt})")
        a("s_barrier")
    fs.stamp()
    for gq in range(3):
        lim = 6 if gq == 0 else 8
        for _ in range(2):
            if nxt < lim: op_q(nxt); nxt += 1
        a(f"s_waitcnt vmcnt({4*(nxt - 2*gq - 2)})")
        fs.stamp()
        a("s_barrier")
    a("s_waitcnt vmcnt(0)")
    fs.stamp()
    a("s_barrier")
    st.stamp()
    early_init()
    a("s_lshl_b32 s53, s42, 11")
    a(f"s_add_u32 s53, s53, {L_QX}")
    a("v_add_u32 v15, s53, v9")
    a("s_lshl_b32 s53, s42, 2")
    a("v_add_u32 v13, s53, v10")
    lds_wait(a, C_EX, 1, 12, 51, "v13")
    a(f"ds_read_b128 {vr(Q0,4)}, v15")
    a(f"ds_read_b128 {vr(Q1,4)}, v15 offset:1024")
    fs.stamp()
    lds_signal(a, C_QR)
    st.stamp()
    a.label("a_join")
    def tail_setup():
        a("s_xor_b32 s52, s59, 4")
        a("s_mul_i32 s53, s59, 3072")
        a(f"v_add_u32 v160, s53, v9")
        a("s_mul_i32 s53, s52, 3072")
        a(f"v_add_u32 v161, s53, v9")
        a("s_lshl_b32 s53, s59, 2")
        a("v_add_u32 v162, s53, v10")
        a("s_lshl_b32 s53, s52, 2")
        a("v_add_u32 v163, s53, v10")
        a("s_lshl_b32 s57, s42, 1")
        a("s_add_u32 s57, s57, s43")
        a("s_lshl_b32 s58, s40, 5")
        a("s_lshl_b32 s53, s41, 3")
        a("s_add_u32 s53, s53, s58")
        a("s_add_u32 s53, s53, s57")
        a("s_lshl_b32 s53, s53, 10")
        a(f"s_add_u32 s44, s53, {W_OA}")
        a("s_lshl_b32 s57, s57, 10")
        a(f"s_add_u32 s57, s57, {L_OA}")
        a("v_add_u32 v164, s57, v9")
        a(f"s_add_u32 s48, s44, {W_OF - W_OA}")
        a("s_lshl_b32 s57, s59, 10")
        a(f"s_add_u32 s57, s57, {L_OA}")
        a("v_add_u32 v165, s57, v9")
        for d in range(1, 4):
            a(f"s_add_u32 s51, s41, {d}")
            a("s_and_b32 s51, s51, 3")
            a("s_lshl_b32 s51, s51, 3")
            a("s_add_u32 s51, s51, s58")
            a("s_add_u32 s51, s51, s59")
            a("s_lshl_b32 s51, s51, 10")
            a(f"s_add_u32 s{44+d}, s51, {W_OA}")
    for i in range(8, 16): a(f"v_mov_b32 v{VB+i}, v14")
    for i in range(4): a(f"v_mov_b32 v{P1+4+i}, 0")
    st.stamp()
    lds_wait(a, C_ST + 0, 4, 12, 51, sleep=0)
    if FINE: st0.n = 12
    fs.stamp()
    def kvread(b, off):
        a(f"ds_read_b128 {vr(KB+4*b,4)}, v2 offset:{off}")
        a("s_mov_b64 exec, s[60:61]")
        a(f"ds_read_b128 {vr(VB+8*b,4)}, v3 offset:{off+1024}")
        a(f"ds_read_b128 {vr(VB+8*b+4,4)}, v3 offset:{off+1536}")
        a("s_mov_b64 exec, -1")
    a(f"ds_read_b128 {vr(P0,4)}, v9")
    DEEP = "shallow" not in VAR
    def kread(b, off):
        if "nods" not in VAR: a(f"ds_read_b128 {vr(KB+4*b,4)}, v2 offset:{off}")
    def vread(b, off):
        if "nods" in VAR: return
        if "noex" not in VAR: a("s_mov_b64 exec, s[60:61]")
        a(f"ds_read_b128 {vr(VB+8*b,4)}, v3 offset:{off+1024}")
        a(f"ds_read_b128 {vr(VB+8*b+4,4)}, v3 offset:{off+1536}")
        if "noex" not in VAR: a("s_mov_b64 exec, -1")
    kvread(0, 0)
    if DEEP: kread(1, 4096)
    a(f"s_waitcnt lgkmcnt({4 if DEEP else 3})" if not DIAG else "s_waitcnt lgkmcnt(0)")
    mfma32(a, S0, P0, Q0, "0")
    mfma32(a, S1, P0, Q1, "0")
    for S, C in ((S0, C0), (S1, C1)):
        rowmax16(a, 12, S)
        xhalf_max(a, 12, 13)
        a(f"v_sub_f32 v{C}, {BIAS}, v12")
        for i in range(1, 16): a(f"v_mov_b32 v{C+i}, v{C}")
        if S == S0:
            a("s_waitcnt lgkmcnt(0)")
            mfma32(a, S0, KB, Q0, C0)
    st.stamp()
    a("s_mov_b32 s50, 0")
    a(f"s_setprio {VAR.get('ap0', 3)}")
    if DIAG: a("s_waitcnt lgkmcnt(0)")
    a(".p2align 6")
    for _ in range(int(VAR.get("shift", 0))): a("s_nop 0")
    a.label("a_loop")
    def E(S, lo, hi):
        for i in range(lo, hi): a(f"v_exp_f32{VAR.get('enc', '')} v{S+i}, v{S+i}")
    def half(S, P, O, Vx, pvy, snext, w1, post, post2=(), w2=None):
        E(S, 0, 2)
        mfma32(a, *pvy)
        for x in post: x()
        E(S, 2, 8)
        if w1: a("s_waitcnt lgkmcnt(0)")
        mfma32(a, *snext)
        for x in post2: x()
        cvt8(a, P, S)
        E(S, 8, 12)
        if w2 is not None: a(f"s_waitcnt lgkmcnt({w2})")
        mfma32(a, O, Vx, P, O)
        E(S, 12, 16)
        cvt8(a, P+4, S+8)
    HK = {0: [("w", 4)], 1: [("w", 8)], 3: [("p", 2)], 5: [("w", 12)]}
    for k in list(HK): HK[k] = [x for x in HK[k] if x[0] != "p"]
    PR0 = dict(zip(map(int, VAR.get("pr0", "3,5,6").split(",")), (2, 1, 0)))
    PR1 = dict(zip(map(int, VAR.get("pr1", "4,6,7").split(",")), (2, 1, 0)))
    for it in range(8):
        if it in PR0 or it in PR1: HK[it] = [("p", (PR0.get(it), PR1.get(it)))] + HK.get(it, [])
    if "ap0" in VAR: HK = {0: [("w", 4)], 1: [("w", 8)], 3: [("p", 1)], 4: [("w", 12)], 6: [("p", 0)]}
    def hooks():
        a("s_bitcmp1_b32 s50, 2")
        a("s_cbranch_scc1 a_hk_hi")
        a("s_branch a_hk_lo")
        a.label("a_hk_done")
    for t in range(4):
        b = t & 1; nb = b ^ 1
        if DEEP:
            post = [lambda: vread(nb, (t+1)*4096)]
            if t == 2: post = [hooks] + post
            half(S0, P0, O0, VB+8*b, (O1, VB+8*nb+4, P1+4, O1), (S1, KB+4*b, Q1, C1), False, post, [lambda: kread(b, (t+2)*4096)], 3)
            half(S1, P1, O1, VB+8*b, (O0, VB+8*b+4, P0+4, O0), (S0, KB+4*nb, Q0, C0), False, [])
            continue
        post = [lambda: kvread(nb, (t+1)*4096)]
        if t == 3: post = [hooks] + post
        half(S0, P0, O0, VB+8*b, (O1, VB+8*nb+4, P1+4, O1), (S1, KB+4*b, Q1, C1), False, post)
        half(S1, P1, O1, VB+8*b, (O0, VB+8*b+4, P0+4, O0), (S0, KB+4*nb, Q0, C0), True, [])
    a("v_add_u32 v2, 16384, v2")
    a("v_add_u32 v3, 16384, v3")
    a("s_add_u32 s50, s50, 1")
    a("s_cmp_lt_u32 s50, 8")
    a("s_cbranch_scc1 a_loop")
    mfma32(a, O1, VB+8+4, P1+4, O1)
    st.stamp()
    for i in range(2): a(f"ds_write_b128 v160, {vr(O0+4*i,4)} offset:{L_CB + i*1024}")
    a(f"ds_write_b32 v160, v{O0+8} offset:{L_CB + 2048}")
    lds_signal(a, C_CB, "v162")
    a("s_setprio 3")
    lds_wait(a, C_CB, 1, 12, 51, "v163", sleep=int(VAR.get("cbsleep", 0)))
    if "tfine" in VAR: st.stamp()
    for i in range(2): a(f"ds_read_b128 {vr(S0+4*i,4)}, v161 offset:{L_CB + i*1024}")
    a(f"ds_read_b32 v{S0+8}, v161 offset:{L_CB + 2048}")
    a("s_mov_b32 s51, 0x7b800000")
    a(f"s_mov_b32 s53, {hex((127 - 85) << 23)}")
    a("s_waitcnt lgkmcnt(0)")
    a(f"v_add_f32 v{O1+8}, v{O1+8}, v{S0+8}")
    a(f"v_rcp_f32 v14, v{O1+8}")
    for i in range(8): a(f"v_add_f32 v{O1+i}, v{O1+i}, v{S0+i}")
    a(f"v_add_f32 v12, abs(v{O1}), abs(v{O1+1})")
    a(f"v_add_f32 v13, abs(v{O1+2}), abs(v{O1+3})")
    for i in range(4, 8, 2):
        a(f"v_add_f32 v12, v12, abs(v{O1+i})")
        a(f"v_add_f32 v13, v13, abs(v{O1+i+1})")
    a("v_add_f32 v12, v12, v13")
    a(f"v_add_f32 v13, v12, v{O1+8}")
    a("v_cmp_ngt_f32 vcc, s51, v13")
    a("v_cmp_gt_f32 s[64:65], s53, v12")
    a("s_or_b64 vcc, vcc, s[64:65]")
    if "forcefb" in VAR: a("s_mov_b64 vcc, -1")
    if "bidle" in VAR: a("s_mov_b64 vcc, 0")
    a("s_cbranch_vccnz a_fallback")
    a.label("a_norm")
    for i in range(8): a(f"v_mul_f32 v{O1+i}, v{O1+i}, v14")
    cvt8(a, P0, O1)
    for i in range(4): a(f"v_min_u32 v{P0+i}, -2, v{P0+i}")
    if "nofast" not in VAR: a(f"buffer_store_dwordx4 {vr(P0,4)}, v9, s[36:39], s48 offen " + VAR.get("fst", ""))
    a(f"ds_write_b128 v164, {vr(P0,4)}")
    lds_signal(a, C_OF)
    st.stamp()
    a(f"s_mov_b32 s63, {SPIN}")
    lnl = a.newlabel("nl")
    a("s_cmp_eq_u32 s49, 0")
    a(f"s_cbranch_scc1 {lnl}")
    a(f"buffer_store_dwordx4 {vr(P0,4)}, v9, s[36:39], s44 offen sc1")
    a(f"s_mov_b32 s63, {SPIN - 20}")
    a("s_mov_b32 s49, 0")
    a.label(lnl)
    a("s_mov_b32 s50, 0")
    a.label("a_poll")
    a(f"s_cmp_lt_u32 s63, {SPIN - int(VAR.get('fastn', 12))}")
    a("s_cselect_b32 s51, s63, 0")
    a("s_bitcmp1_b32 s51, 0")
    a(f"s_cselect_b32 s51, 0, {W_OF - W_OA}")
    a("v_add_u32 v13, s51, v9")
    for d in range(1, 4):
        a(f"buffer_load_dwordx4 {vr(S0+4*(d-1),4)}, v13, s[36:39], s{44+d} offen sc1")
    a("s_sub_u32 s63, s63, 1")
    for d in range(1, 4):
        r = S0 + 4*(d-1)
        nx = a.newlabel("pn")
        a(f"s_waitcnt vmcnt({3-d})")
        a(f"s_bitcmp1_b32 s50, {d}")
        a(f"s_cbranch_scc1 {nx}")
        a(f"v_max3_u32 v12, v{r}, v{r+1}, v{r+2}")
        a(f"v_max_u32 v12, v12, v{r+3}")
        a("v_cmp_eq_u32 vcc, -1, v12")
        a("s_cmp_eq_u32 s63, 0")
        a("s_cselect_b64 vcc, 0, vcc")
        a(f"s_cbranch_vccnz {nx}")
        a(f"ds_write_b128 v165, {vr(r,4)} offset:{d*8192}")
        lds_signal(a, C_OF + 4*d)
        a(f"s_bitset1_b32 s50, {d}")
        a.label(nx)
    a("s_cmp_eq_u32 s50, 14")
    a("s_cbranch_scc1 a_got")
    ls = a.newlabel("sl")
    a(f"s_cmp_eq_u32 s63, {SPIN - int(VAR.get('slown', 4))}")
    a(f"s_cbranch_scc0 {ls}")
    a(f"buffer_store_dwordx4 {vr(P0,4)}, v9, s[36:39], s44 offen sc1")
    a.label(ls)
    if int(VAR.get('tsleep', 0)): a(f"s_sleep {VAR.get('tsleep', 0)}")
    a("s_branch a_poll")
    a.label("a_got")
    a("s_cmp_eq_u32 s49, 0")
    a("s_cbranch_scc1 a_done")
    a(f"buffer_store_dwordx4 {vr(P0,4)}, v9, s[36:39], s44 offen sc1")
    a.label("a_done")
    st.stamp()
    if "tfine" in VAR:
        a("s_waitcnt lgkmcnt(0)")
        a(f"s_sub_u32 s72, {SPIN}, s63")
        a("s_add_u32 s72, s72, s70")
    st.dump(None, 0)
    a("s_endpgm")
    def read_nl():
        a(f"ds_read_b32 v12, v10 offset:{C_NL}")
        a("s_waitcnt lgkmcnt(0)")
        a("v_readfirstlane_b32 s49, v12")
    def pretouch():
        a(f"v_lshlrev_b32 v13, 7, v1")
        a(f"v_add_u32 v13, {W_OF - W_OA}, v13")
        a("s_mov_b64 exec, 0xff")
        for d in range(1, 4): a(f"buffer_load_dword v166, v13, s[36:39], s{44+d} offen sc1")
        a("s_mov_b64 exec, -1")
    HK[3] = HK.get(3, []) + [("sig", C_PR)]
    HK[6] = HK.get(6, []) + [("sig", C_PR2)]
    HK[2] = [x for x in HK.get(2, []) if x[0] == "p"] + [("f", tail_setup)]
    HK[7] = [x for x in HK.get(7, []) if x[0] == "p"] + [("w", 16), ("w8", C_PR2), ("f", read_nl)] + ([("f", pretouch)] if "nopre" not in VAR else [])
    for nm, rng in (("a_hk_lo", range(0, 4)), ("a_hk_hi", range(4, 8))):
        a.label(nm)
        for i in rng:
            if i not in HK: continue
            nx = a.newlabel("hk")
            a(f"s_cmp_eq_u32 s50, {i}")
            a(f"s_cbranch_scc0 {nx}")
            for kind, v in HK[i]:
                if kind == "w":
                    if "hkt" in VAR:
                        a("s_memtime s[4:5]")
                    lds_wait(a, C_ST + v, 4, 12, 51)
                    if "hkt" in VAR:
                        a("s_memtime s[6:7]")
                        a("s_waitcnt lgkmcnt(0)")
                        a("s_sub_u32 s6, s6, s4")
                        a(f"s_add_u32 s{72 + 2*(v//4 - 1)}, s70, s6")
                elif kind == "sig": lds_signal(a, v)
                elif kind == "f": v()
                elif kind == "w8": lds_wait(a, v, 8, 12, 51)
                elif kind == "s":
                    a("s_cmp_eq_u32 s43, 0")
                    a("s_cbranch_scc0 a_hk_done")
                    a("s_waitcnt vmcnt(0)")
                    lds_signal(a, C_ST + v)
                elif v[0] == v[1]: a(f"s_setprio {v[0]}")
                else:
                    for kh_, lv in enumerate(v):
                        if lv is None: continue
                        lp = a.newlabel("pp")
                        a(f"s_cmp_eq_u32 s43, {kh_}")
                        a(f"s_cbranch_scc0 {lp}")
                        a(f"s_setprio {lv}")
                        a.label(lp)
            a("s_branch a_hk_done")
            a.label(nx)
        a("s_branch a_hk_done")
    a.label("a_fallback")
    a("v_mov_b32 v12, 0xff800000")
    a("s_mov_b32 s50, 0")
    a.label("a_fb1")
    a(f"buffer_load_dwordx4 {vr(KB,4)}, v9, s[36:39], s50 offen sc1")
    a("s_waitcnt vmcnt(0)")
    mfma32(a, S0, KB, Q1, "0")
    a("s_add_u32 s50, s50, 2048")
    rowmax16(a, 12, S0, init=True)
    a("s_cmp_lt_u32 s50, 0x20000")
    a("s_cbranch_scc1 a_fb1")
    xhalf_max(a, 12, 13)
    a(f"v_sub_f32 v{C0}, 0, v12")
    for i in range(1, 16): a(f"v_mov_b32 v{C0+i}, v{C0}")
    for i in range(16): a(f"v_mov_b32 v{O1+i}, 0")
    a("v_lshlrev_b32 v3, 8, v7")
    a("v_lshl_add_u32 v3, v6, 4, v3")
    a("s_mov_b32 s50, 0")
    a.label("a_fb2")
    a(f"buffer_load_dwordx4 {vr(KB,4)}, v9, s[36:39], s50 offen sc1")
    a("s_mov_b64 exec, s[60:61]")
    a(f"buffer_load_dwordx4 {vr(VB,4)}, v3, s[36:39], s50 offen offset:1024 sc1")
    a(f"buffer_load_dwordx4 {vr(VB+4,4)}, v3, s[36:39], s50 offen offset:1536 sc1")
    a("s_mov_b64 exec, -1")
    a("s_waitcnt vmcnt(0)")
    mfma32(a, S0, KB, Q1, C0)
    a("s_add_u32 s50, s50, 2048")
    E(S0, 0, 16)
    cvt8(a, P0, S0); cvt8(a, P0+4, S0+8)
    mfma32(a, O1, VB, P0, O1)
    mfma32(a, O1, VB+4, P0+4, O1)
    a("s_cmp_lt_u32 s50, 0x20000")
    a("s_cbranch_scc1 a_fb2")
    a(f"v_rcp_f32 v14, v{O1+8}")
    a("s_branch a_norm")

def role_b(a, st):
    a("s_mov_b32 s58, 0")
    a("s_lshr_b32 s44, s40, 1")
    a("s_and_b32 s42, s26, 1")
    a("s_lshr_b32 s43, s26, 1")
    srd(a, 28, P_BX, 2 << 20)
    srd(a, 32, P_BWQKV, 512 * 3072)
    a("v_lshrrev_b32 v12, 3, v1")
    a("v_and_b32 v13, 7, v1")
    a("v_bfe_u32 v14, v1, 4, 1")
    a("v_lshlrev_b32 v14, 2, v14")
    a("v_xor_b32 v14, v14, v13")
    a("v_mul_u32_u24 v3, 3072, v12")
    a("v_lshl_add_u32 v3, v14, 4, v3")
    a("v_lshlrev_b32 v4, 10, v12")
    a("v_lshl_add_u32 v4, v14, 4, v4")
    a(f"s_mul_i32 s64, s26, {16*3072}")
    a("s_lshl_b32 s51, s27, 7")
    a("s_add_u32 s64, s64, s51")
    a("s_lshl_b32 s65, s44, 16")
    a("s_lshl_b32 s51, s26, 14")
    a("s_add_u32 s65, s65, s51")
    if MAP81:
        a("s_lshr_b32 s67, s3, 3")
        a("s_lshl_b32 s67, s67, 1")
        a("s_add_u32 s67, s67, s3")
    else:
        a("s_lshr_b32 s67, s3, 2")
        a("s_lshl_b32 s51, s3, 1")
        a("s_add_u32 s67, s67, s51")
    a("s_and_b32 s67, s67, 7")
    a("s_mul_i32 s56, s26, 6144")
    a(f"s_add_u32 s56, s56, {L_GB + GB_W}")
    a("s_mul_i32 s57, s26, 2080")
    a(f"s_add_u32 s57, s57, {L_GB + GB_X}")
    INLOOP = [False]
    def issue_ops(buf):
        o = buf * GB_SZ
        def pre():
            a(f"s_mul_i32 s48, s67, {64*3072}")
            a("s_add_u32 s48, s48, s64")
            a(f"s_add_u32 s47, s48, {8*3072}")
            a("s_lshl_b32 s49, s67, 7")
            a("s_add_u32 s49, s49, s65")
            a("s_add_u32 s66, s49, 8192")
            a("s_add_u32 s67, s67, 1")
            a("s_and_b32 s67, s67, 7")
        ops = [pre]
        for q in range(2):
            def fx(q=q):
                a(f"s_add_u32 m0, s57, {o + q*1040}")
                a(f"buffer_load_dwordx4 v4, s[28:31], {'s66' if q else 's49'} offen lds")
            ops.append(fx)
        for gq in range(2):
            for t in range(3):
                def f(gq=gq, t=t):
                    if t == 0: a(f"s_add_u32 m0, s56, {o + gq*3072}")
                    a(f"buffer_load_dwordx4 v3, s[32:35], {'s47' if gq else 's48'} offen offset:{t*1024} lds")
                ops.append(f)
        if "gnodma" in VAR and INLOOP[0]: return [lambda: None] * 8 + [lambda: a("s_sleep 10")]
        return ops
    BST = VAR.get("bstart", "st4")
    if BST == "early":
        for f in issue_ops(0): f()
    lk = a.newlabel("nokv")
    a("v_lshl_add_u32 v5, v1, 2, v10")
    a("v_mov_b32 v12, 0")
    a("ds_write_b32 v5, v12")
    kv_setup(a)
    a("s_waitcnt vmcnt(0) lgkmcnt(0)")
    a("v_readfirstlane_b32 s62, v19")
    a(f"s_add_u32 s62, s62, {TAGC}")
    a("s_barrier")
    a("s_cmp_eq_u32 s26, 3")
    a(f"s_cbranch_scc0 {lk}")
    kv_job(a)
    if "merge" not in VAR: a("s_barrier")
    kv_store(a)
    lk2 = a.newlabel("kvs")
    a(f"s_branch {lk2}")
    a.label(lk)
    if "merge" not in VAR: a("s_barrier")
    a.label(lk2)
    a("s_mov_b32 s45, s27")
    a("v_mul_u32_u24 v8, 3072, v7")
    a("v_bfe_u32 v14, v1, 2, 2")
    a("v_lshl_add_u32 v8, v14, 7, v8")
    a("v_bfe_u32 v14, v1, 3, 1")
    a("v_xor_b32 v14, s42, v14")
    a("v_lshl_add_u32 v8, v14, 6, v8")
    a("v_bfe_u32 v14, v1, 4, 1")
    a("v_lshl_add_u32 v8, v14, 5, v8")
    a("v_and_b32 v14, 3, v1")
    a("v_lshl_add_u32 v8, v14, 3, v8")
    a(f"v_add_u32 v8, {L_GB + GB_W}, v8")
    XM = 152
    a("v_bfe_u32 v14, v1, 1, 1")
    a("v_lshlrev_b32 v14, 2, v14")
    a("v_or_b32 v14, v14, v7")
    a("v_lshlrev_b32 v14, 4, v14")
    a("v_and_b32 v15, 7, v1")
    a("v_lshl_add_u32 v14, v15, 7, v14")
    a("v_xor_b32 v15, 64, v14")
    a("v_lshrrev_b32 v16, 3, v6")
    a("v_mul_u32_u24 v16, 1040, v16")
    a("s_mul_i32 s51, s43, 4160")
    a(f"s_add_u32 s51, s51, {L_GB + GB_X}")
    a(f"v_add3_u32 v{XM}, v14, v16, s51")
    a(f"v_add3_u32 v{XM+1}, v15, v16, s51")
    ACC = 20; WF = 84; XF = 108
    for i in range(48): a(f"v_mov_b32 v{ACC+i}, 0")
    for i in range(16): a(f"v_mov_b32 v{WF+12+i if i < 12 else XF+4+i-12}, 0")
    a("s_barrier")
    lk3 = a.newlabel("kvf")
    a("s_cmp_eq_u32 s26, 3")
    a(f"s_cbranch_scc0 {lk3}")
    kv_flag(a)
    a.label(lk3)
    st.stamp()
    a("s_barrier")
    LP, LS, LG = 126, 128, 144
    a("s_mul_i32 s51, s26, 6144")
    a(f"s_add_u32 s51, s51, {L_COMB}")
    a("v_lshlrev_b32 v15, 3, v7")
    a("v_sub_u32 v15, v6, v15")
    a("v_add_u32 v15, 10, v15")
    a(f"v_add_u32 v{LP}, s51, v9")
    a("v_lshlrev_b32 v14, 4, v6")
    a("v_add_u32 v14, s51, v14")
    for i in range(4):
        a(f"v_add_u32 v16, {2*i}, v15")
        a("v_lshrrev_b32 v17, 2, v16")
        a(f"v_lshl_add_u32 v{LG+i}, v17, 9, v14")
        a("v_lshrrev_b32 v17, 4, v16")
        a(f"v_lshl_add_u32 v{LS+i}, v17, 10, v14")
        a("v_bfe_u32 v17, v16, 2, 1")
        a(f"v_lshl_add_u32 v{LS+i}, v17, 9, v{LS+i}")
        a("v_bfe_u32 v17, v16, 3, 1")
        a(f"v_lshl_add_u32 v{LS+i}, v17, 3, v{LS+i}")
        a("v_and_b32 v17, 3, v16")
        a(f"v_lshl_add_u32 v{LS+i}, v17, 1, v{LS+i}")
        a(f"v_lshl_add_u32 v{LG+i}, v17, 2, v{LG+i}")
    ZR = 132
    for i in range(4): a(f"v_mov_b32 v{ZR+i}, 0")
    def read_ops(buf, sp, fb):
        r = []
        for t3 in range(3):
            for t in range(2):
                r.append(f"ds_read_b64_tr_b16 {vr(WF+12*fb+4*t3+2*t,2)}, v8 offset:{buf*GB_SZ + sp*6144 + t3*1024 + t*512}")
        r.insert(2, f"ds_read_b128 {vr(XF+4*fb,4)}, v{XM+(sp>>1)} offset:{buf*GB_SZ + (sp&1)*32}")
        if "gnoreads" in VAR: return []
        return r
    def mm(fb, k):
        w = WF + 12*fb; x = XF + 4*fb
        if "nomm" in VAR: return
        if k == 0: mfma32(a, ACC, w, x, ACC)
        elif k == 1: mfma32(a, ACC+16, w+4, x, ACC+16)
        else: mfma32(a, ACC+32, x, w+8, ACC+32)
        if "mgap" in VAR and k < 2: a(f"s_nop {VAR['mgap']}")
    a("s_lshr_b32 s55, s40, 3")
    a("s_lshl_b32 s55, s55, 2")
    a("s_cmp_ge_u32 s3, 28")
    a("s_cselect_b32 s51, 28, 0")
    a("s_sub_u32 s59, s3, s51")
    a("s_add_u32 s53, s55, s26")
    a("s_lshl_b32 s53, s53, 13")
    a(f"s_add_u32 s53, s53, {W_KF}")
    a("s_add_u32 s52, s53, 4096")
    a("s_lshl_b32 s51, s26, 12")
    a("v_lshlrev_b32 v13, 3, v1")
    a("v_add_u32 v13, s51, v13")
    FQ = [68, 72, 76, 80, 84, 88, 92, 108]
    def kf_loads():
        for i, r in enumerate(FQ):
            a(f"buffer_load_dwordx4 {vr(r,4)}, v9, s[36:39], {'s53' if i < 4 else 's52'} offen offset:{(i&3)*1024} sc1")
    a(f"s_mov_b32 s63, {int(VAR.get('kfn', 3))}")
    a("s_mov_b32 s46, 0")
    if "kfe" in VAR: kf_loads()
    a("s_barrier")
    if "kfe" not in VAR: kf_loads()
    a("s_barrier")
    st.stamp()
    a.label("b_kf")
    a("v_mov_b32 v14, 0")
    for i, r in enumerate(FQ):
        a(f"s_waitcnt vmcnt({7-i})")
        a(f"ds_write_b64 v13, {vr(r,2)} offset:{L_WK + i*512}")
        a(f"v_bitop3_b32 v15, v{r}, v{r+2}, s62 bitop3:0x96")
        a(f"v_bitop3_b32 v16, v{r+1}, v{r+3}, s62 bitop3:0x96")
        a("v_or3_b32 v14, v14, v15, v16")
    a("v_cmp_ne_u32 vcc, 0, v14")
    a("s_nop 1")
    a("s_cbranch_vccz b_kf_ok")
    a("s_sub_u32 s63, s63, 1")
    a("s_cbranch_scc1 b_kf_done")
    kf_loads()
    a("s_branch b_kf")
    a.label("b_kf_ok")
    lds_signal(a, C_ST + 0)
    a("s_mov_b32 s46, 1")
    a.label("b_kf_done")
    st.stamp()
    if "c0early" in VAR:
        lds_wait(a, C_QD, 4, 5, 51)
        for f in issue_ops(0): f()
    a("v_lshlrev_b32 v15, 7, v1")
    a("s_lshl_b32 s54, s26, 11")
    a(f"s_add_u32 s54, s54, {W_F1}")
    poll_flags(a, 15, "s54", 16, 16, sleep=int(VAR.get("psleep", 4)))
    bbar(a)
    lf = a.newlabel("kfok")
    a("s_cmp_eq_u32 s46, 1")
    a(f"s_cbranch_scc1 {lf}")
    a("s_lshl_b32 s53, s26, 12")
    kv_dma(a, 53, 4, first=True)
    a("s_waitcnt vmcnt(0)")
    lds_signal(a, C_ST + 0)
    a.label(lf)
    lds_wait(a, C_QD, 4, 5, 51)
    for k in range(1, 6):
        a("s_lshl_b32 s53, s26, 12")
        a(f"s_add_u32 s53, s53, {k*16384}")
        kv_dma(a, 53, 4)
        if k == 2:
            a("s_waitcnt vmcnt(4)")
            lds_signal(a, C_ST + 4)
    a("s_cmp_eq_u32 s43, 0")
    a(f"s_cselect_b32 s4, s{P_BWO}, s{P_AWO}")
    a(f"s_cselect_b32 s5, s{P_BWO+1}, s{P_AWO+1}")
    a("s_mov_b32 s6, 0x80000")
    a("s_mov_b32 s7, 0x20000")
    a("s_lshr_b32 s8, s2, 3")
    a("s_and_b32 s9, s2, 7")
    a("s_lshl_b32 s51, s8, 14")
    a("s_lshl_b32 s52, s9, 7")
    a("s_add_u32 s51, s51, s52")
    a("s_lshl_b32 s10, s26, 11")
    a(f"s_add_u32 s10, s10, {L_GB + 1024}")
    a("s_mov_b32 m0, s10")
    a("s_add_u32 s52, s51, 7168")
    a("buffer_load_dwordx4 v4, s[4:7], s51 offen lds")
    a("buffer_load_dwordx4 v4, s[4:7], s52 offen offset:1024 lds")
    lds_wait(a, C_QR, 4, 5, 51, sleep=2)
    for f in issue_ops(1): f()
    a("v_bfe_u32 v14, v1, 2, 2")
    a("v_lshlrev_b32 v14, 7, v14")
    a("v_bfe_u32 v15, v1, 3, 1")
    a("v_xor_b32 v15, s42, v15")
    a("v_lshl_add_u32 v14, v15, 6, v14")
    a("v_bfe_u32 v15, v1, 4, 1")
    a("v_lshl_add_u32 v14, v15, 5, v14")
    a("v_and_b32 v15, 1, v1")
    a("v_lshl_add_u32 v14, v15, 4, v14")
    a("v_bfe_u32 v15, v1, 1, 1")
    a("v_lshl_add_u32 v14, v15, 3, v14")
    a("v_lshl_add_u32 v14, v7, 9, v14")
    a("v_add_u32 v14, s10, v14")
    a("s_lshl_b32 s51, s9, 1")
    a("s_add_u32 s51, s51, s42")
    a("s_lshl_b32 s51, s51, 5")
    a("s_add_u32 s51, s51, s8")
    a("s_lshl_b32 s10, s51, 10")
    a("s_lshl_b32 s51, s43, 19")
    a("s_add_u32 s10, s10, s51")
    a(f"s_add_u32 s10, s10, {W_TO}")
    a("s_lshr_b32 s51, s9, 1")
    a("s_lshl_b32 s51, s51, 5")
    a("s_add_u32 s51, s51, s8")
    a("s_lshl_b32 s11, s51, 7")
    a("s_and_b32 s51, s9, 1")
    a("s_lshl_b32 s51, s51, 2")
    a("s_add_u32 s51, s51, s26")
    a("s_lshl_b32 s51, s51, 2")
    a("s_add_u32 s11, s11, s51")
    a(f"s_add_u32 s11, s11, {W_F4}")
    a("s_waitcnt vmcnt(10)")
    lds_signal(a, C_ST + 8)
    a("s_waitcnt vmcnt(8)")
    for t in range(2): a(f"ds_read_b64_tr_b16 {vr(160+2*t,2)}, v14 offset:{t*1024}")
    a("s_waitcnt vmcnt(0) lgkmcnt(0)")
    a("buffer_store_dwordx4 v[160:163], v9, s[36:39], s10 offen sc1")
    a("v_lshrrev_b32 v166, 1, v1")
    a("v_lshlrev_b32 v166, 7, v166")
    a("v_and_b32 v15, 1, v1")
    a("v_lshl_add_u32 v166, v15, 4, v166")
    a("s_lshl_b32 s8, s41, 12")
    a(f"s_add_u32 s8, s8, {W_F4}")
    a(f"s_setprio {VAR.get('bprio', 3)}")
    st.stamp()
    a("s_mov_b32 s50, 0")
    if "bidle" in VAR:
        a("s_waitcnt vmcnt(0)")
        bbar(a)
        a("s_mul_i32 s54, s26, 12288")
        a("s_add_u32 s54, s54, 81920")
        kv_dma(a, 54, 12)
        a("s_waitcnt vmcnt(0)")
        for c_ in (12, 16, 20): lds_signal(a, C_ST + c_)
        srd(a, 28, P_OUT, 4 << 20)
        a("s_mov_b32 s47, 0")
        a("s_branch b_tail")
    if "nogemm" in VAR: a("s_branch b_gend")
    INLOOP[0] = True
    a("s_branch b_in")
    a.label("b_loop")
    for buf in (1, 0):
        mm(1, 0)
        a("s_waitcnt vmcnt(0)")
        if buf == 1: a.label("b_in")
        else:
            lf4 = a.newlabel("f4")
            a("s_cmp_eq_u32 s50, 0")
            a(f"s_cbranch_scc0 {lf4}")
            store_flag(a, "s11", 164)
            a.label(lf4)
        a("s_add_u32 s58, s58, 4")
        lds_signal(a, C_BB)
        mm(1, 1)
        ops = issue_ops(buf ^ 1)
        if buf == 0:
            a("s_cmp_eq_u32 s50, 3")
            a("s_cselect_b32 s64, 0x7f000000, s64")
            a("s_cselect_b32 s65, 0x7f000000, s65")
            for r in (56, 57): a(f"s_cselect_b32 s{r}, 0x30000, s{r}")
        ops[0]()
        lds_wait(a, C_BB, "s58", 5, 51, sleep=int(VAR.get("bsleep", 0)))
        oi = 1
        for _ in range(int(VAR.get("dfirst", 0))): ops[oi](); oi += 1
        for x in read_ops(buf, 0, 0): a(x)
        mm(1, 2)
        for _ in range(int(VAR.get("dsec", 3))):
            if oi < len(ops): ops[oi](); oi += 1
        for sp in range(3):
            for x in read_ops(buf, sp+1, (sp+1) & 1): a(x)
            a("s_waitcnt lgkmcnt(7)")
            for k in range(3):
                mm(sp & 1, k)
                for _ in range(2):
                    if oi < len(ops): ops[oi](); oi += 1
        a("s_waitcnt lgkmcnt(0)")
    a("s_add_u32 s50, s50, 1")
    a("s_cmp_lt_u32 s50, 4")
    a("s_cbranch_scc1 b_loop")
    a.label("b_gend")
    a("buffer_load_dwordx4 v[160:163], v166, s[36:39], s8 offen sc1")
    a("s_add_u32 s58, s58, 4")
    lds_signal(a, C_BB)
    for k in range(3): mm(1, k)
    lds_wait(a, C_BB, "s58", 5, 51, sleep=0)
    a(f"s_mov_b32 s54, {23*4096}")
    kv_dma(a, 54, 4, only=(3,))
    a("s_lshl_b32 s54, s26, 13")
    a("s_add_u32 s54, s54, 98304")
    kv_dma(a, 54, 8)
    st.stamp()
    QF = 84; KF = 92; VF = 100; KH = 108; VH = 116
    cvt8(a, KF, ACC+16); cvt8(a, KF+4, ACC+24)
    cvt8(a, VF, ACC+32); cvt8(a, VF+4, ACC+40)
    a("s_mul_i32 s51, s42, 3072")
    a(f"s_add_u32 s51, s51, {L_BEX}")
    a("v_add_u32 v13, s51, v9")
    a("s_lshl_b32 s52, s44, 3")
    a("s_add_u32 s52, s52, s45")
    a("s_lshl_b32 s53, s52, 1")
    a("s_add_u32 s53, s53, s42")
    a("s_mul_i32 s53, s53, 3072")
    a(f"s_add_u32 s53, s53, {W_HALO}")
    a("s_lshl_b32 s52, s52, 7")
    a("s_lshl_b32 s51, s42, 2")
    a("s_add_u32 s52, s52, s51")
    a(f"s_add_u32 s52, s52, {W_F2}")
    l1 = a.newlabel("b_w1"); l2 = a.newlabel("b_w2")
    a("s_cmp_eq_u32 s43, 0")
    a(f"s_cbranch_scc0 {l1}")
    a(f"ds_write_b128 v13, {vr(KF,4)}")
    a(f"ds_write_b128 v13, {vr(KF+4,4)} offset:1024")
    a(f"ds_write_b128 v13, {vr(VF+4,4)} offset:2048")
    a("s_waitcnt vmcnt(0)")
    a(f"s_branch {l2}")
    a.label(l1)
    a(f"buffer_store_dwordx4 {vr(KF,4)}, v9, s[36:39], s53 offen sc1")
    a(f"buffer_store_dwordx4 {vr(KF+4,4)}, v9, s[36:39], s53 offen offset:1024 sc1")
    a(f"buffer_store_dwordx4 {vr(VF+4,4)}, v9, s[36:39], s53 offen offset:2048 sc1")
    a("s_waitcnt vmcnt(0)")
    store_flag(a, "s52", 14)
    a.label(l2)
    cvt8(a, QF, ACC); cvt8(a, QF+4, ACC+8)
    a("s_waitcnt vmcnt(1)")
    lds_signal(a, C_ST + 12)
    bbar(a)
    l1 = a.newlabel("b_x1"); l2 = a.newlabel("b_x2")
    a("s_or_b32 s51, s44, 0")
    a("s_cselect_b32 s51, s43, 1")
    a("s_cmp_eq_u32 s51, 0")
    a(f"s_cbranch_scc0 {l1}")
    a(f"s_sub_u32 s52, s52, {8*128}")
    a(f"s_sub_u32 s53, s53, {16*3072}")
    a("v_mov_b32 v5, 0")
    poll_flags(a, 5, "s52", 1, 14, sleep=6, width=1)
    a(f"buffer_load_dwordx4 {vr(KH,4)}, v9, s[36:39], s53 offen sc1")
    a(f"buffer_load_dwordx4 {vr(KH+4,4)}, v9, s[36:39], s53 offen offset:1024 sc1")
    a(f"buffer_load_dwordx4 {vr(VH,4)}, v9, s[36:39], s53 offen offset:2048 sc1")
    a("s_waitcnt vmcnt(0)")
    a(f"s_branch {l2}")
    a.label(l1)
    a(f"ds_read_b128 {vr(KH,4)}, v13")
    a(f"ds_read_b128 {vr(KH+4,4)}, v13 offset:1024")
    a(f"ds_read_b128 {vr(VH,4)}, v13 offset:2048")
    a.label(l2)
    lsn = a.newlabel("nosn")
    a("s_and_b32 s51, s40, 1")
    a("s_cmp_eq_u32 s51, s43")
    a(f"s_cbranch_scc0 {lsn}")
    a("s_lshl_b32 s51, s40, 2")
    a("s_add_u32 s51, s51, s41")
    a("s_lshl_b32 s51, s51, 1")
    a("s_add_u32 s51, s51, s42")
    a("s_lshl_b32 s51, s51, 12")
    a(f"s_add_u32 s51, s51, {W_OA}")
    for i in range(4): a(f"v_mov_b32 v{120+i}, -1")
    for i in range(4 if "xnoslow" not in VAR else 0): a(f"buffer_store_dwordx4 v[120:123], v9, s[36:39], s51 offen offset:{i*1024} sc1")
    a(f"s_add_u32 s51, s51, {W_OF - W_OA}")
    for i in range(4): a(f"buffer_store_dwordx4 v[120:123], v9, s[36:39], s51 offen offset:{i*1024} sc1")
    a.label(lsn)
    a("s_lshl_b32 s52, s44, 1")
    a("s_add_u32 s52, s52, s43")
    a("s_lshl_b32 s55, s52, 4")
    a("s_lshl_b32 s53, s45, 1")
    a("s_add_u32 s53, s53, s42")
    a("s_add_u32 s55, s55, s53")
    a("s_lshl_b32 s55, s55, 11")
    a(f"s_add_u32 s55, s55, {W_OB}")
    a("s_lshl_b32 s57, s52, 9")
    a("s_lshr_b32 s51, s53, 2")
    a("s_lshl_b32 s51, s51, 7")
    a("s_add_u32 s57, s57, s51")
    a("s_and_b32 s51, s53, 3")
    a("s_lshl_b32 s51, s51, 2")
    a("s_add_u32 s57, s57, s51")
    a(f"s_add_u32 s57, s57, {W_F3}")
    a("s_waitcnt lgkmcnt(0)")
    SM = 20; SH = 36; O = 52; PP = 68; T = 152
    a(f"s_mov_b32 s46, {CSCALE}")
    a("s_or_b32 s60, s44, s43")
    G = 136
    for hd in range(2 if "nolocal" not in VAR else 0):
        sm = SM + 32*hd; sh = sm + 16
        mfma32(a, sm, KF+4*hd, QF+4*hd, "0")
        mfma32(a, sh, KH+4*hd, QF+4*hd, "0")
    lz = a.newlabel("fz")
    a("s_cmp_eq_u32 s60, 0")
    a(f"s_cbranch_scc0 {lz}")
    for hd in range(2):
        for i in range(8): a(f"v_mov_b32 v{SM+32*hd+24+i}, 0xff800000")
    a.label(lz)
    for hd in range(2 if "nolocal" not in VAR else 0):
        sm = SM + 32*hd; sh = sm + 16
        for g_ in range(2): a(f"ds_write_b128 v{LP}, {vr(sh+8+4*g_,4)} offset:{1024*g_}")
        for g_ in range(4): a(f"ds_write_b128 v{LP}, {vr(sm+4*g_,4)} offset:{2048 + 1024*g_}")
        for i in range(4): a(f"ds_read_b32 v{G+4*hd+i}, v{LG+i}")
    for hd in range(2 if "nolocal" not in VAR else 0):
        g0 = G + 4*hd; t = T + 4*hd
        if hd == 0:
            for f in range(6): a(f"ds_write_b128 v{LP}, {vr(ZR,4)} offset:{f*1024}")
        a(f"s_waitcnt lgkmcnt({15 if hd == 0 else 4})")
        if hd == 0: a("s_waitcnt lgkmcnt(6)")
        a(f"v_max3_f32 v{t}, v{g0}, v{g0+1}, v{g0+2}")
        a(f"v_max_f32 v{t}, v{t}, v{g0+3}")
        xhalf_max(a, t, t+1)
        a(f"v_mul_f32 v{t}, s46, v{t}")
        for i in range(4): a(f"v_fma_f32 v{g0+i}, v{g0+i}, s46, -v{t}")
        for i in range(4): a(f"v_exp_f32 v{g0+i}, v{g0+i}")
        a(f"v_add_f32 v{t}, v{g0}, v{g0+1}")
        a(f"v_add_f32 v{t+1}, v{g0+2}, v{g0+3}")
        a(f"v_add_f32 v{t}, v{t}, v{t+1}")
        a(f"v_mov_b32 v{t+1}, v{t}")
        a(f"v_permlane32_swap_b32 v{t}, v{t+1}")
        a(f"v_add_f32 v{t}, v{t}, v{t+1}")
        a(f"v_rcp_f32 v{t}, v{t}")
        for i in range(4): a(f"v_mul_f32 v{g0+i}, v{g0+i}, v{t}")
        a(f"v_cvt_pk_bf16_f32 v{t+2}, v{g0}, v{g0+1}")
        a(f"v_cvt_pk_bf16_f32 v{t+3}, v{g0+2}, v{g0+3}")
        for i in range(4):
            a(f"ds_write_b16{'_d16_hi' if i & 1 else ''} v{LS+i}, v{t+2+(i>>1)} offset:{hd*3072}")
    for hd in range(2 if "nolocal" not in VAR else 0):
        for f in range(3): a(f"ds_read_b128 {vr(SM+12*hd+4*f,4)}, v{LP} offset:{hd*3072 + f*1024}")
    for hd in range(2 if "nolocal" not in VAR else 0):
        o = 52 + 16*hd; p = SM + 12*hd
        a(f"s_waitcnt lgkmcnt({3 - 3*hd})")
        mfma32(a, o, VH, p, "0")
        mfma32(a, o, VF, p+4, o)
        mfma32(a, o, VF+4, p+8, o)
    for hd in range(2 if "nolocal" not in VAR else 0):
        o = 52 + 16*hd
        cvt8(a, G+4*hd, o+8*hd)
        a(f"buffer_store_dwordx4 {vr(G+4*hd,4)}, v9, s[36:39], s55 offen offset:{hd*1024} sc1")
    a("s_waitcnt vmcnt(0)")
    a("s_getreg_b32 s61, hwreg(HW_REG_XCC_ID, 0, 4)")
    a("s_xor_b32 s62, s62, s61")
    store_flag(a, "s57", 12)
    a("s_xor_b32 s62, s62, s61")
    st.stamp()
    srd(a, 28, P_OUT, 4 << 20)
    a("s_lshl_b32 s47, s41, 8")
    a("s_lshl_b32 s51, s26, 6")
    a("s_add_u32 s47, s47, s51")
    a("s_lshl_b32 s64, s47, 9")
    a(f"s_add_u32 s64, s64, {W_TO}")
    a("v_lshlrev_b32 v4, 11, v6")
    a("v_lshl_add_u32 v4, v7, 4, v4")
    a("s_lshl_b32 s51, s40, 16")
    a("s_add_u32 s47, s47, s51")
    ACC = 12; OB = 28; WL = 40
    def fload(i, rot):
        if (i & 3) == 0:
            a(f"s_add_u32 s51, {rot}, {i*1024}")
            a("s_and_b32 s51, s51, 0x7fff")
            a("s_add_u32 s48, s64, s51")
        a(f"buffer_load_dwordx4 {vr(WL+4*i,4)}, v9, s[36:39], s48 offen offset:{(i&3)*1024} sc1")
    lok = a.newlabel("f4ok")
    for i in range(4): a(f"v_xor_b32 v{160+i}, s62, v{160+i}")
    a("v_or3_b32 v160, v160, v161, v162")
    a("v_or_b32 v160, v160, v163")
    a("v_cmp_ne_u32 vcc, 0, v160")
    a("s_nop 1")
    a(f"s_cbranch_vccz {lok}")
    poll_flags(a, 166, "s8", 64, 160, sleep=8)
    a.label(lok)
    a("s_bfe_u32 s9, s3, 0x30002")
    a("s_lshl_b32 s9, s9, 12")
    if "touchA" in VAR:
        a("s_add_u32 s51, s64, s9")
        a("s_add_u32 s51, s51, 0x80000")
        a("v_lshlrev_b32 v5, 7, v6")
        a("buffer_load_dword v28, v5, s[36:39], s51 offen sc1")
    for i in range(32): fload(i, "s9")
    def run(lo, hi, addr, off0, after=None):
        o = lambda i: (i - off0) * 1024
        for i in range(lo, min(lo+2, hi)): a(f"ds_read_b128 {vr(OB+4*(i%3),4)}, {addr} offset:{o(i)}")
        for i in range(lo, hi):
            if i + 2 < hi:
                a(f"ds_read_b128 {vr(OB+4*((i+2)%3),4)}, {addr} offset:{o(i+2)}")
                a("s_waitcnt lgkmcnt(2)")
            else:
                a(f"s_waitcnt lgkmcnt({hi-1-i})")
            mfma32(a, ACC, WL+4*i, OB+4*(i%3), "0" if i == 0 else ACC)
            if after: after(i)
    a("v_lshlrev_b32 v5, 7, v1")
    a("s_lshl_b32 s57, s40, 9")
    a(f"s_add_u32 s57, s57, {W_F3}")
    a(f"s_mov_b32 s63, {SPIN}")
    a("s_xor_b32 s51, s62, s61")
    a("s_mov_b64 exec, 15")
    a.label("b_f3")
    a("buffer_load_dwordx4 v[28:31], v5, s[36:39], s57 offen sc1")
    a("s_waitcnt vmcnt(0)")
    for i in range(4): a(f"v_xor_b32 v{28+i}, s51, v{28+i}")
    a("v_or3_b32 v28, v28, v29, v30")
    a("v_or_b32 v28, v28, v31")
    a("v_cmp_lt_u32 vcc, 15, v28")
    a("s_nop 1")
    a("s_cbranch_vccz b_f3d")
    a("s_sleep 8")
    a("s_sub_u32 s63, s63, 1")
    a("s_cmp_lg_u32 s63, 0")
    a("s_cbranch_scc1 b_f3")
    a.label("b_f3d")
    a("v_cmp_ne_u32 vcc, 0, v28")
    a("s_mov_b64 exec, -1")
    a("s_cbranch_vccz b_f3l")
    lds_signal(a, C_NL)
    a.label("b_f3l")
    lds_signal(a, C_ST + 16)
    st.stamp()
    lds_wait(a, C_PR, 8, 5, 51, sleep=8)
    a("s_lshl_b32 s49, s40, 15")
    a(f"s_add_u32 s49, s49, {W_OB}")
    a("s_lshl_b32 s52, s26, 13")
    a(f"s_add_u32 s46, s52, {L_OB}")
    a("s_add_u32 s52, s52, s9")
    for q in range(8):
        if (q & 3) == 0:
            a(f"s_add_u32 m0, s46, {q*1024}")
            a(f"s_add_u32 s51, s52, {q*1024}")
            a("s_and_b32 s51, s51, 0x7fff")
            a("s_add_u32 s51, s51, s49")
        a(f"buffer_load_dwordx4 v9, s[36:39], s51 offen offset:{(q&3)*1024} sc1 lds")
    a(f"v_add_u32 v0, {L_OB}, v9")
    a("s_add_u32 s64, s64, 0x80000")
    a("s_lshl_b32 s10, s41, 13")
    a("s_waitcnt vmcnt(0)")
    bbar(a)
    if "late" in VAR:
        a("s_lshl_b32 s51, s26, 2")
        a("v_add_u32 v2, s51, v10")
        NL = int(VAR["late"])
        run(0, NL, "v0", 0, lambda i: fload(i, "s10"))
        lds_wait(a, C_CB, 1, 5, 52, "v2", sleep=4)
        a(f"s_setprio {VAR.get('lprio', 1)}")
        run(NL, 32, "v0", 0, lambda i: fload(i, "s10"))
        a("s_setprio 3")
    else:
        run(0, 32, "v0", 0, lambda i: fload(i, "s10"))
    cvt8(a, 28, ACC); cvt8(a, 32, ACC+8)
    a("buffer_store_dwordx4 v[28:31], v4, s[28:31], s47 offen offset:1024 " + VAR.get("stb", "nt"))
    a("buffer_store_dwordx4 v[32:35], v4, s[28:31], s47 offen offset:1056 " + VAR.get("stb", "nt"))
    st.stamp()
    a("s_waitcnt vmcnt(0)")
    a.label("b_tail")
    st.stamp()
    le = a.newlabel("ep")
    a("s_or_b32 s51, s2, s26")
    a("s_cmp_eq_u32 s51, 0")
    a(f"s_cbranch_scc0 {le}")
    a(f"s_mov_b32 s51, {W_EP}")
    store_flag(a, "s51", 28)
    a.label(le)
    a(f"v_add_u32 v0, {L_OA}, v9")
    lds_wait(a, C_CB + 0, 1, 5, 51, sleep=16)
    def rd(i): a(f"ds_read_b128 {vr(WL+4*(i-8),4)}, v0 offset:{i*1024}")
    lds_wait(a, C_OF, 8, 5, 51, sleep=0)
    if "tfine" in VAR: st.n = 5; st.stamp(); a("s_waitcnt lgkmcnt(0)")
    run(0, 8, "v0", 0)
    lds_wait(a, C_OF + 4, 8, 5, 51, sleep=0)
    if "tfine" in VAR: st.stamp(); a("s_waitcnt lgkmcnt(0)")
    for i in range(8, 16): rd(i)
    NE = int(VAR.get("ne", 3))
    for i in range(8, 8 + NE):
        a(f"s_waitcnt lgkmcnt({15 - i})")
        mfma32(a, ACC, WL+4*i, WL+4*(i-8), ACC)
        if i == 8: a(f"ds_read_b64 v[28:29], v10 offset:{C_OF + 8}")
    a("s_waitcnt lgkmcnt(0)")
    a("v_min_u32 v28, v28, v29")
    a("v_readfirstlane_b32 s51, v28")
    a("s_cmp_ge_u32 s51, 8")
    a("s_cbranch_scc0 b_slowtail")
    for i in range(8, 8 + NE): rd(i + 8)
    for i in range(8 + NE, 32):
        if i >= 16: a(f"s_waitcnt lgkmcnt({min(7, 31 - i)})")
        mfma32(a, ACC, WL+4*i, WL+4*(i-8), ACC)
        if i + 8 < 32: rd(i + 8)
    a.label("b_fin")
    cvt8(a, 28, ACC); cvt8(a, 32, ACC+8)
    a("buffer_store_dwordx4 v[28:31], v4, s[28:31], s47 offen " + VAR.get("sta", "nt"))
    a("buffer_store_dwordx4 v[32:35], v4, s[28:31], s47 offen offset:32 " + VAR.get("sta", "nt"))
    if DIAG:
        if "tfine" in VAR: st.stamp()
        a("s_waitcnt vmcnt(0)")
        st.stamp()
        st.dump(None, 0)
    a("s_endpgm")
    a.label("b_slowtail")
    for d in range(1, 4):
        if d > 1:
            lds_wait(a, C_OF + 4*d, 8, 5, 51, sleep=0)
            for i in range(8*d, 8*d + 8): rd(i)
        for i in range(8*d + (NE if d == 1 else 0), 8*d + 8):
            a(f"s_waitcnt lgkmcnt({8*d + 7 - i})")
            mfma32(a, ACC, WL+4*i, WL+4*(i-8), ACC)
    a("s_branch b_fin")

def pre_a(a):
    a("s_sub_u32 s59, s26, 4")
    a("s_and_b32 s42, s59, 3")
    a("s_lshr_b32 s43, s59, 2")
    a("s_lshr_b32 s46, s41, 1")
    a("s_lshl_b32 s49, s46, 4")
    a("s_lshl_b32 s48, s59, 1")
    a("s_add_u32 s49, s49, s48")
    a("s_xor_b32 s51, s49, 16")
    a("s_lshl_b32 s52, s40, 5")
    a("s_add_u32 s48, s52, s49")
    a("s_lshl_b32 s48, s48, 10")
    a("s_xor_b32 s50, s48, 16384")
    a(f"s_mul_i32 s49, s49, {XP}")
    a(f"s_mul_i32 s51, s51, {XP}")
    a("s_mov_b32 s30, 0x200000")
    a("s_mov_b32 s31, 0x20000")
    a(f"s_add_u32 m0, s49, {L_XA}")
    a("s_waitcnt lgkmcnt(0)")
    a(f"s_mov_b32 s28, s{P_AX}")
    a(f"s_mov_b32 s29, s{P_AX+1}")
    for k, (so, lb) in enumerate((("s48", "s49"), ("s50", "s51"))):
        for q in range(2):
            if k or q: a(f"s_add_u32 m0, {lb}, {L_XA + q*XP - q*1024}")
            a(f"buffer_load_dwordx4 v9, s[28:31], {so} offen offset:{q*1024} lds")
    srd(a, 36, P_WS, W_USED)
def pre_b(a):
    a("s_setprio 3")
    a("s_and_b32 s45, s41, 1")
    a("s_lshr_b32 s46, s41, 1")
    a("s_mov_b32 s30, 16384")
    a("s_mov_b32 s31, 0x20000")
    a("s_lshl_b32 s51, s26, 12")
    a(f"s_add_u32 m0, s51, {L_WK}")
    a(f"v_mov_b32 v18, {W_EP}")
    a("s_cmp_eq_u32 s45, 0")
    a("s_waitcnt lgkmcnt(0)")
    a(f"s_cselect_b32 s28, s{P_AWK}, s{P_AWV}")
    a(f"s_cselect_b32 s29, s{P_AWK+1}, s{P_AWV+1}")
    for q in range(4):
        a(f"buffer_load_dwordx4 v9, s[28:31], s51 offen offset:{q*1024} lds")
    srd(a, 36, P_WS, W_USED)
    a("buffer_load_dword v19, v18, s[36:39], 0 offen sc1")

def kernel():
    a = Asm(); n = NAME + "_kernel"
    a.label(n)
    a("s_cmp_ge_u32 s2, 256")
    a("s_cbranch_scc1 k_exit")
    load_ptrs(a)
    sta = Stamps(a, DIAG, real='--cyc' not in sys.argv); stb = Stamps(a, DIAG, real='--cyc' not in sys.argv)
    sta.stamp(); stb.n = sta.n
    VAR.setdefault("cpf", 142)
    if int(VAR["cpf"]):
        a("s_getpc_b64 s[32:33]")
        a("v_lshlrev_b32 v3, 7, v0")
        a(f"v_cmp_gt_u32 vcc, {int(VAR['cpf'])}, v0")
        a("s_and_saveexec_b64 s[34:35], vcc")
        a("s_cbranch_execz k_nopf")
        a("global_load_dword v167, v3, s[32:33]")
        a.label("k_nopf")
        a("s_mov_b64 exec, s[34:35]")
    a("v_and_b32 v1, 63, v0")
    a("v_lshrrev_b32 v2, 6, v0")
    a("v_readfirstlane_b32 s26, v2")
    a("s_and_b32 s27, s2, 7")
    a("s_lshr_b32 s3, s2, 3")
    if MAP81:
        a("s_lshl_b32 s40, s27, 3")
        a("s_lshr_b32 s41, s3, 2")
        a("s_add_u32 s40, s40, s41")
        a("s_and_b32 s41, s3, 3")
    else:
        a("s_lshr_b32 s40, s27, 1")
        a("s_lshl_b32 s40, s40, 4")
        a("s_lshr_b32 s41, s3, 1")
        a("s_add_u32 s40, s40, s41")
        a("s_and_b32 s41, s27, 1")
        a("s_lshl_b32 s41, s41, 1")
        a("s_and_b32 s27, s3, 1")
        a("s_add_u32 s41, s41, s27")
    a("s_lshl_b32 s27, s41, 1")
    a("s_and_b32 s51, s40, 1")
    a("s_add_u32 s27, s27, s51")
    a("v_and_b32 v6, 31, v1")
    a("v_lshrrev_b32 v7, 5, v1")
    a("v_lshlrev_b32 v9, 4, v1")
    a(f"v_mov_b32 v10, {L_CNT}")
    a("v_mov_b32 v11, 1")
    a("s_cmp_lt_u32 s26, 4")
    a("s_cbranch_scc0 pre_a")
    pre_b(a)
    a("s_barrier")
    a("s_branch role_b")
    a.label("pre_a")
    pre_a(a)
    a("s_barrier")
    role_a(a, sta)
    a.label("role_b")
    role_b(a, stb)
    a.label("k_exit")
    a("s_endpgm")
    return (n, a, 256, 768, LDS_SIZE, 168)

if __name__ == "__main__":
    write_file(sys.argv[1], [kernel()])
```

```python
import sys
from common import *
DIAG = "--diag" in sys.argv
VAR = dict((x[2:].split("=")+[1])[:2] for x in sys.argv if x.startswith("-V"))

W_KV = 0
W_F1 = 0x20000
W_F2 = 0x28000
W_F4 = 0x24000
W_F3 = 0x30000
W_EP = 0x3F000
W_KF = 0x40000
W_OA = 1 << 20
W_OB = 3 << 20
W_HALO = 5 << 20
W_OF = 10 << 20
W_TO = 14 << 20
W_USED = 16 << 20
L_XA = 16384
L_WK = 0
WQ_SLOT = [49664 + 16384*i for i in range(6)] + [16384, 32768]
L_GB = 97792
GB_W, GB_X, GB_SZ = 0, 24576, 32896
L_COMB = 131072
L_QX = 155392
L_BEX = 155648
L_CNT = 163584
LDS_SIZE = 163840
C_BB, C_ST, C_EX, C_XA, C_QB, C_QC, C_QD, C_XD = 4, 16, 40, 72, 76, 92, 96, 100
C_ISS, C_QR = 8, 12
C_PR, C_CB, C_OF = 104, 112, 144
L_CB = 0
L_OB = 24576
L_OA = 65536
C_PR2 = 108
C_NL = 160
BIAS = VAR.get("bias", "0xc2c80000")
VSC = 40
MAP81 = 'map24' not in VAR
XP = 1040
TAGC = 0x9E3779B9 - (1 << 32)
SPIN = 40000

def cvt8(a, dst, src):
    for i in range(4):
        a(f"v_cvt_pk_bf16_f32 v{dst+i}, v{src+2*i}, v{src+2*i+1}")

def tr_base32(a, dst, tmp):
    a(f"v_lshlrev_b32 v{dst}, 9, v7")
    a(f"v_bfe_u32 v{tmp}, v1, 2, 2")
    a(f"v_lshl_add_u32 v{dst}, v{tmp}, 6, v{dst}")
    a(f"v_bfe_u32 v{tmp}, v1, 4, 1")
    a(f"v_lshl_add_u32 v{dst}, v{tmp}, 5, v{dst}")
    a(f"v_and_b32 v{tmp}, 3, v1")
    a(f"v_lshl_add_u32 v{dst}, v{tmp}, 3, v{dst}")

def tr_base_wo(a, dst, tmp):
    a(f"v_lshlrev_b32 v{dst}, 8, v7")
    a(f"v_bfe_u32 v{tmp}, v1, 2, 2")
    a(f"v_lshl_add_u32 v{dst}, v{tmp}, 6, v{dst}")
    a(f"v_bfe_u32 v{tmp}, v1, 4, 1")
    a(f"v_lshl_add_u32 v{dst}, v{tmp}, 5, v{dst}")
    a(f"v_and_b32 v{tmp}, 1, v1")
    a(f"v_lshl_add_u32 v{dst}, v{tmp}, 4, v{dst}")
    a(f"v_bfe_u32 v{tmp}, v1, 1, 1")
    a(f"v_lshl_add_u32 v{dst}, v{tmp}, 3, v{dst}")

JS = [0]
def jitter(a):
    if "jit" not in VAR: return
    JS[0] += 1
    l = a.newlabel("jit")
    a("s_mul_i32 s97, s2, 13")
    a("s_add_u32 s97, s97, s26")
    a(f"s_mul_i32 s97, s97, {(JS[0] * 2654435761 + int(VAR['jit']) * 40503) % (1 << 31) | 1}")
    a("s_lshr_b32 s97, s97, 13")
    a("s_and_b32 s97, s97, 7")
    a("s_cmp_eq_u32 s97, 0")
    a(f"s_cbranch_scc0 {l}")
    a(f"s_sleep {20 + (JS[0] * 37) % 100}")
    a.label(l)
def lds_signal(a, off, addr="v10"):
    jitter(a)
    a("s_mov_b64 exec, 1")
    a(f"ds_add_u32 {addr}, v11 offset:{off}")
    a("s_mov_b64 exec, -1")
def lds_wait(a, off, val, tmp, stmp, addr="v10", sleep=1):
    l = a.newlabel("lw"); d = a.newlabel("lwd")
    a.label(l)
    a(f"ds_read_b32 v{tmp}, {addr} offset:{off}")
    a("s_waitcnt lgkmcnt(0)")
    a(f"v_readfirstlane_b32 s{stmp}, v{tmp}")
    a(f"s_cmp_ge_u32 s{stmp}, {val}")
    a(f"s_cbranch_scc1 {d}")
    if sleep: a(f"s_sleep {sleep}")
    a(f"s_branch {l}")
    a.label(d)
    jitter(a)
def bbar(a, tmp=5):
    a("s_add_u32 s58, s58, 4")
    lds_signal(a, C_BB)
    lds_wait(a, C_BB, "s58", tmp, 51, sleep=2)

def poll_flags(a, voff, soff, nl, t, sleep=2, width=4):
    l = a.newlabel("pf"); d = a.newlabel("pfd")
    a(f"s_mov_b32 s63, {SPIN}")
    if nl < 64: a(f"s_mov_b64 exec, {(1 << nl) - 1}")
    a.label(l)
    if width == 4:
        a(f"buffer_load_dwordx4 {vr(t,4)}, v{voff}, s[36:39], {soff} offen sc1")
        a("s_waitcnt vmcnt(0)")
        for i in range(4): a(f"v_xor_b32 v{t+i}, s62, v{t+i}")
        a(f"v_or3_b32 v{t}, v{t}, v{t+1}, v{t+2}")
        a(f"v_or_b32 v{t}, v{t}, v{t+3}")
    else:
        a(f"buffer_load_dword v{t}, v{voff}, s[36:39], {soff} offen sc1")
        a("s_waitcnt vmcnt(0)")
        a(f"v_xor_b32 v{t}, s62, v{t}")
    a(f"v_cmp_ne_u32 vcc, 0, v{t}")
    a("s_nop 1")
    a(f"s_cbranch_vccz {d}")
    a(f"s_sleep {sleep}")
    a("s_sub_u32 s63, s63, 1")
    a("s_cmp_lg_u32 s63, 0")
    a(f"s_cbranch_scc1 {l}")
    a.label(d)
    a("s_mov_b64 exec, -1")

def store_flag(a, soff, t):
    jitter(a)
    a(f"v_mov_b32 v{t}, s62")
    a(f"v_mov_b32 v{t+1}, 0")
    a("s_mov_b64 exec, 1")
    a(f"buffer_store_dword v{t}, v{t+1}, s[36:39], {soff} offen sc1")
    a("s_mov_b64 exec, -1")

def rowmax16(a, dst, S, init=None):
    if init is None:
        a(f"v_max3_f32 v{dst}, v{S}, v{S+1}, v{S+2}")
        for i in range(3, 15, 2): a(f"v_max3_f32 v{dst}, v{dst}, v{S+i}, v{S+i+1}")
        a(f"v_max_f32 v{dst}, v{dst}, v{S+15}")
    else:
        for i in range(0, 16, 2): a(f"v_max3_f32 v{dst}, v{dst}, v{S+i}, v{S+i+1}")
def xhalf_max(a, dst, tmp):
    a(f"v_mov_b32 v{tmp}, v{dst}")
    a(f"v_permlane32_swap_b32 v{dst}, v{tmp}")
    a(f"v_max_f32 v{dst}, v{dst}, v{tmp}")

def kv_dma(a, sreg, n, first=False, only=None):
    for q in range(n):
        if (q & 3) == 0:
            a(f"s_mov_b32 m0, s{sreg}")
            a(f"s_lshr_b32 s51, s{sreg}, 12")
            if not first:
                a("s_add_u32 s51, s51, s59")
                a("s_cmp_ge_u32 s51, 32")
                a("s_cselect_b32 s52, 28, 0")
                a("s_sub_u32 s51, s51, s52")
            a("s_add_u32 s51, s51, s55")
            a("s_and_b32 s51, s51, 31")
            a("s_lshl_b32 s51, s51, 12")
        if only is None or q in only: a(f"buffer_load_dwordx4 v9, s[36:39], s51 offen offset:{(q&3)*1024} sc1 lds")
        if (q & 3) == 3 and q + 1 < n: a(f"s_add_u32 s{sreg}, s{sreg}, 4096")

def kv_job(a, st=None):
    X = 24; W = 88
    lv = a.newlabel("kv_v"); ld = a.newlabel("kv_d")
    def reads(s):
        a(f"ds_read_b128 {vr(X+4*s,4)}, v14 offset:{s*64}")
        for t in range(2):
            a(f"ds_read_b64_tr_b16 {vr(W+4*s+2*t,2)}, v15 offset:{L_WK + s*1024 + t*128}")
    a("s_cmp_eq_u32 s45, 0")
    a(f"s_cbranch_scc0 {lv}")
    for which in range(2):
        if which: a.label(lv)
        for s in range(4): reads(s)
        for s in range(16):
            if s + 4 < 16:
                reads(s + 4); a("s_waitcnt lgkmcnt(12)")
            else:
                a(f"s_waitcnt lgkmcnt({3*(15-s)})")
            if which == 0: mfma16(a, 20, W+4*s, X+4*s, "0" if s == 0 else 20)
            else:          mfma16(a, 20, X+4*s, W+4*s, "0" if s == 0 else 20)
        if not which: a(f"s_branch {ld}")
    a.label(ld)
def kv_store(a):
    jitter(a)
    a("s_cmp_eq_u32 s45, 0")
    a(f"s_cselect_b32 s51, 1.0, {hex((127 + VSC) << 23)}")
    for i in range(4): a(f"v_mul_f32 v{20+i}, s51, v{20+i}")
    a("v_cvt_pk_bf16_f32 v156, v20, v21")
    a("v_cvt_pk_bf16_f32 v157, v22, v23")
    a("v_xor_b32 v158, s62, v156")
    a("v_xor_b32 v159, s62, v157")
    if "nokvfast" not in VAR: a("buffer_store_dwordx4 v[156:159], v17, s[36:39], s54 offen")
    a("buffer_store_dwordx2 v[156:157], v16, s[36:39], s52 offen sc1")
def kv_flag(a):
    a("s_waitcnt vmcnt(0)")
    store_flag(a, "s53", 18)

def kv_setup(a):
    a("v_and_b32 v12, 15, v1")
    a("v_lshrrev_b32 v13, 4, v1")
    a(f"v_mul_u32_u24 v14, {XP}, v12")
    a("v_lshl_add_u32 v14, v13, 4, v14")
    a(f"s_mul_i32 s51, s46, {16*XP}")
    a(f"s_add_u32 s51, s51, {L_XA}")
    a("v_add_u32 v14, s51, v14")
    a("v_lshlrev_b32 v15, 8, v13")
    a("v_lshl_add_u32 v15, v12, 3, v15")
    a("v_and_b32 v16, 1, v13")
    a("s_cmp_eq_u32 s45, 0")
    a("s_cselect_b32 s51, 9, 8")
    a("s_cselect_b32 s52, 8, 9")
    a("s_lshl_b32 s52, s46, s52")
    a("s_lshl_b32 s53, s45, 10")
    a("s_add_u32 s52, s52, s53")
    a("s_lshl_b32 s53, s40, 11")
    a("s_add_u32 s52, s52, s53")
    a("v_lshlrev_b32 v16, s51, v16")
    a("v_lshl_add_u32 v16, v12, 4, v16")
    a("v_lshrrev_b32 v17, 1, v13")
    a("v_lshl_add_u32 v16, v17, 3, v16")
    a("s_lshl_b32 s53, s40, 7")
    a("s_lshl_b32 s54, s41, 2")
    a("s_add_u32 s53, s53, s54")
    a(f"s_add_u32 s53, s53, {W_F1}")
    a("v_lshlrev_b32 v17, 1, v16")
    a("s_lshl_b32 s54, s52, 1")
    a(f"s_add_u32 s54, s54, {W_KF}")

def stouch_setup(a, slot, bw, bx):
    a("s_lshr_b32 s51, s3, 2")
    a(f"s_lshl_b32 s54, {slot}, 3")
    a("s_add_u32 s51, s51, s54")
    a("s_lshl_b32 s51, s51, 10")
    a("s_lshl_b32 s54, s27, 7")
    a("s_add_u32 s51, s51, s54")
    a(f"s_add_u32 s{bw}, s{P_BWQKV}, s51")
    a(f"s_addc_u32 s{bw+1}, s{P_BWQKV+1}, 0")
    a(f"s_add_u32 s{bw+2}, s{bw}, {24*32768}")
    a(f"s_addc_u32 s{bw+3}, s{bw+1}, 0")
    a("s_lshr_b32 s51, s40, 1")
    a("s_lshl_b32 s51, s51, 16")
    a("s_and_b32 s54, s3, 3")
    a("s_lshl_b32 s54, s54, 14")
    a("s_add_u32 s51, s51, s54")
    a(f"s_lshl_b32 s54, {slot}, 12")
    a("s_add_u32 s51, s51, s54")
    a(f"s_add_u32 s{bx}, s{P_BX}, s51")
    a(f"s_addc_u32 s{bx+1}, s{P_BX+1}, 0")
def stouch_list(chunks, bw, bx):
    l = []
    for c in chunks:
        for r in range(4): l.append((f"s[{bx}:{bx+1}]", r*1024 + c*128))
        for i in range(6):
            m = c*6 + i
            l.append((f"s[{bw}:{bw+1}]", m*32768) if m < 24 else (f"s[{bw+2}:{bw+3}]", (m-24)*32768))
    return l

def role_a(a, st):
    FINE = "fine" in VAR
    class F:
        def stamp(self):
            if FINE: st0.stamp()
    st0 = st; fs = F()
    if FINE:
        class N:
            n = 0
            def stamp(self): pass
            def dump(self, *x): st0.dump(*x)
        st = N()
    srd(a, 32, P_AWQ, 512 * 1024)
    S0, S1, O0, O1, C0, C1, P0, P1, Q0, Q1, KB, VB = 16, 32, 48, 64, 80, 96, 112, 120, 128, 132, 136, 144
    a(f"s_bfe_u32 s55, s3, {0x30002 if MAP81 else 0x30001}")
    a("s_cmp_eq_u32 s43, 0")
    a("s_cbranch_scc0 a_kh1")
    def early_init():
        for i in range(32): a(f"v_mov_b32 v{O0+i}, 0")
        a("s_lshl_b32 s56, s43, 11")
        a("v_add_u32 v2, s56, v9")
        a("v_lshlrev_b32 v3, 8, v7")
        a("v_lshl_add_u32 v3, v6, 4, v3")
        a("v_add_u32 v3, s56, v3")
        a("s_mov_b32 s60, 0x0000ffff")
        a("s_mov_b32 s61, 0x0000ffff")
        a("v_and_b32 v14, 27, v6")
        a("v_cmp_eq_u32 vcc, 16, v14")
        a(f"v_mov_b32 v13, {hex(((127 + VSC) << 7) * 0x10001)}")
        a("v_cndmask_b32 v14, 0, v13, vcc")
        for i in range(8): a(f"v_mov_b32 v{VB+i}, v14")
    XF = 16; WF = 144; ACC = 152
    a(f"v_mul_u32_u24 v4, {XP}, v6")
    a("v_lshl_add_u32 v4, v7, 4, v4")
    a("v_lshlrev_b32 v8, 11, v7")
    a("v_bfe_u32 v5, v1, 2, 2")
    a("v_lshl_add_u32 v8, v5, 8, v8")
    a("v_xor_b32 v5, s42, v5")
    a("v_lshl_add_u32 v8, v5, 6, v8")
    a("v_bfe_u32 v5, v1, 4, 1")
    a("v_lshl_add_u32 v8, v5, 5, v8")
    a("v_and_b32 v5, 3, v1")
    a("v_lshl_add_u32 v8, v5, 3, v8")
    a(f"s_waitcnt vmcnt({0 if 'merge' in VAR else 2}) lgkmcnt(0)")
    a("s_barrier")
    st.stamp()
    if "merge" not in VAR:
        a("s_waitcnt vmcnt(0)")
        a("s_barrier")
    fs.stamp()
    def xload(i):
        a(f"s_add_u32 s51, s55, {i}")
        a("s_and_b32 s51, s51, 7")
        a("s_lshl_b32 s51, s51, 7")
        a("v_add_u32 v5, s51, v4")
        for sp in range(4):
            a(f"ds_read_b128 {vr(XF+16*i+4*sp,4)}, v5 offset:{L_XA + sp*32}")
    for i in range(8): xload(i)
    a("v_add_u32 v5, 16384, v8")
    a("v_add_u32 v15, 115200, v8")
    a("v_add_u32 v8, 66048, v8")
    st.stamp(); fs.stamp()
    a("s_waitcnt lgkmcnt(0)")
    wmap = {}
    free = [144, 148]
    def qread(st_):
        i = st_ >> 2; sp = st_ & 3; sl = WQ_SLOT[i]
        r = free.pop(0); wmap[st_] = r
        base, off = ("v5", sl - 16384) if sl < 66048 else (("v8", sl - 66048) if sl < 115200 else ("v15", sl - 115200))
        for t in range(2):
            a(f"ds_read_b64_tr_b16 {vr(r+2*t,2)}, {base} offset:{off + sp*4096 + t*1024}")
    nr = 0; avail = 0; pend = []
    LEAD = int(VAR.get("lead", 4))
    for st_ in range(32):
        if avail < 32 and (st_ >= avail - LEAD):
            a("s_barrier")
            if FINE: fs.stamp(); a("s_waitcnt lgkmcnt(0)"); pend = []
            avail += 8
        while nr < avail and free and len(pend) <= 12:
            qread(nr); pend += [nr, nr]; nr += 1
            if nr == 32: lds_signal(a, C_QD); pend += [99]
        if st_ in pend:
            k = len(pend) - 1 - max(i for i, x in enumerate(pend) if x == st_)
            a(f"s_waitcnt lgkmcnt({k})")
            pend = pend[len(pend)-k:] if k else []
        mfma32(a, ACC, wmap[st_], XF+4*st_, "0" if st_ == 0 else ACC)
        for r in (wmap[st_], XF+4*st_):
            if not (48 <= r < 80) and (r < 144 or st_ < 6): free.append(r)
        if st_ == 17: early_init()
    st.stamp()
    a(f"s_mov_b32 s51, {CSCALE}")
    a("s_lshl_b32 s53, s42, 11")
    a(f"s_add_u32 s53, s53, {L_QX}")
    a("v_add_u32 v12, s53, v9")
    a("s_lshl_b32 s53, s42, 2")
    a("v_add_u32 v13, s53, v10")
    for i in range(16): a(f"v_mul_f32 v{ACC+i}, s51, v{ACC+i}")
    cvt8(a, Q1, ACC); cvt8(a, Q0, ACC+8)
    a(f"ds_write_b128 v12, {vr(Q1,4)}")
    a(f"ds_write_b128 v12, {vr(Q0,4)} offset:1024")
    lds_signal(a, C_EX, "v13")
    fs.stamp()
    a("s_branch a_join")
    a.label("a_kh1")
    st.n -= 3
    if FINE: st0.n = 1
    a("v_lshrrev_b32 v4, 4, v1")
    a("v_bfe_u32 v5, v1, 2, 2")
    a("v_xor_b32 v5, v5, v4")
    a("v_lshlrev_b32 v3, 10, v4")
    a("v_lshl_add_u32 v3, v5, 6, v3")
    a("v_and_b32 v5, 3, v1")
    a("v_lshl_add_u32 v3, v5, 4, v3")
    a("s_lshl_b32 s48, s42, 14")
    a("s_lshl_b32 s51, s41, 8")
    a("s_add_u32 s48, s48, s51")
    a("s_lshl_b32 s49, s42, 12")
    def op_q(i):
        a(f"s_add_u32 s51, s55, {i}")
        a("s_and_b32 s51, s51, 7")
        a("s_lshl_b32 s51, s51, 16")
        a("s_add_u32 s51, s51, s48")
        for q in range(4):
            a(f"s_add_u32 m0, s49, {WQ_SLOT[i] + q*1024}")
            if q: a("s_add_u32 s51, s51, 4096")
            a("buffer_load_dwordx4 v3, s[32:35], s51 offen lds")
    NPRE = int(VAR.get('npre', 2))
    for i in range(NPRE): op_q(i)
    MERGE = "merge" in VAR
    a(f"s_waitcnt vmcnt({4*NPRE + (0 if MERGE else 2)}) lgkmcnt(0)")
    a("s_barrier")
    st.stamp()
    nxt = NPRE
    if not MERGE:
        for _ in range(int(VAR.get("mid", 0))): op_q(nxt); nxt += 1
        a(f"s_waitcnt vmcnt({4*nxt})")
        a("s_barrier")
    fs.stamp()
    for gq in range(3):
        lim = 6 if gq == 0 else 8
        for _ in range(2):
            if nxt < lim: op_q(nxt); nxt += 1
        a(f"s_waitcnt vmcnt({4*(nxt - 2*gq - 2)})")
        fs.stamp()
        a("s_barrier")
    a("s_waitcnt vmcnt(0)")
    fs.stamp()
    a("s_barrier")
    st.stamp()
    early_init()
    a("s_lshl_b32 s53, s42, 11")
    a(f"s_add_u32 s53, s53, {L_QX}")
    a("v_add_u32 v15, s53, v9")
    a("s_lshl_b32 s53, s42, 2")
    a("v_add_u32 v13, s53, v10")
    lds_wait(a, C_EX, 1, 12, 51, "v13")
    a(f"ds_read_b128 {vr(Q0,4)}, v15")
    a(f"ds_read_b128 {vr(Q1,4)}, v15 offset:1024")
    fs.stamp()
    lds_signal(a, C_QR)
    st.stamp()
    a.label("a_join")
    def tail_setup():
        a("s_xor_b32 s52, s59, 4")
        a("s_mul_i32 s53, s59, 3072")
        a(f"v_add_u32 v160, s53, v9")
        a("s_mul_i32 s53, s52, 3072")
        a(f"v_add_u32 v161, s53, v9")
        a("s_lshl_b32 s53, s59, 2")
        a("v_add_u32 v162, s53, v10")
        a("s_lshl_b32 s53, s52, 2")
        a("v_add_u32 v163, s53, v10")
        a("s_lshl_b32 s57, s42, 1")
        a("s_add_u32 s57, s57, s43")
        a("s_lshl_b32 s58, s40, 5")
        a("s_lshl_b32 s53, s41, 3")
        a("s_add_u32 s53, s53, s58")
        a("s_add_u32 s53, s53, s57")
        a("s_lshl_b32 s53, s53, 10")
        a(f"s_add_u32 s44, s53, {W_OA}")
        a("s_lshl_b32 s57, s57, 10")
        a(f"s_add_u32 s57, s57, {L_OA}")
        a("v_add_u32 v164, s57, v9")
        a(f"s_add_u32 s48, s44, {W_OF - W_OA}")
        a("s_lshl_b32 s57, s59, 10")
        a(f"s_add_u32 s57, s57, {L_OA}")
        a("v_add_u32 v165, s57, v9")
        for d in range(1, 4):
            a(f"s_add_u32 s51, s41, {d}")
            a("s_and_b32 s51, s51, 3")
            a("s_lshl_b32 s51, s51, 3")
            a("s_add_u32 s51, s51, s58")
            a("s_add_u32 s51, s51, s59")
            a("s_lshl_b32 s51, s51, 10")
            a(f"s_add_u32 s{44+d}, s51, {W_OA}")
    for i in range(8, 16): a(f"v_mov_b32 v{VB+i}, v14")
    for i in range(4): a(f"v_mov_b32 v{P1+4+i}, 0")
    st.stamp()
    lds_wait(a, C_ST + 0, 4, 12, 51, sleep=0)
    if FINE: st0.n = 12
    fs.stamp()
    def kvread(b, off):
        a(f"ds_read_b128 {vr(KB+4*b,4)}, v2 offset:{off}")
        a("s_mov_b64 exec, s[60:61]")
        a(f"ds_read_b128 {vr(VB+8*b,4)}, v3 offset:{off+1024}")
        a(f"ds_read_b128 {vr(VB+8*b+4,4)}, v3 offset:{off+1536}")
        a("s_mov_b64 exec, -1")
    a(f"ds_read_b128 {vr(P0,4)}, v9")
    DEEP = "shallow" not in VAR
    def kread(b, off):
        if "nods" not in VAR: a(f"ds_read_b128 {vr(KB+4*b,4)}, v2 offset:{off}")
    def vread(b, off):
        if "nods" in VAR: return
        if "noex" not in VAR: a("s_mov_b64 exec, s[60:61]")
        a(f"ds_read_b128 {vr(VB+8*b,4)}, v3 offset:{off+1024}")
        a(f"ds_read_b128 {vr(VB+8*b+4,4)}, v3 offset:{off+1536}")
        if "noex" not in VAR: a("s_mov_b64 exec, -1")
    kvread(0, 0)
    if DEEP: kread(1, 4096)
    a(f"s_waitcnt lgkmcnt({4 if DEEP else 3})" if not DIAG else "s_waitcnt lgkmcnt(0)")
    mfma32(a, S0, P0, Q0, "0")
    mfma32(a, S1, P0, Q1, "0")
    for S, C in ((S0, C0), (S1, C1)):
        rowmax16(a, 12, S)
        xhalf_max(a, 12, 13)
        a(f"v_sub_f32 v{C}, {BIAS}, v12")
        for i in range(1, 16): a(f"v_mov_b32 v{C+i}, v{C}")
        if S == S0:
            a("s_waitcnt lgkmcnt(0)")
            mfma32(a, S0, KB, Q0, C0)
    st.stamp()
    a("s_mov_b32 s50, 0")
    a(f"s_setprio {VAR.get('ap0', 3)}")
    if DIAG: a("s_waitcnt lgkmcnt(0)")
    a(".p2align 6")
    for _ in range(int(VAR.get("shift", 0))): a("s_nop 0")
    a.label("a_loop")
    def E(S, lo, hi):
        for i in range(lo, hi): a(f"v_exp_f32{VAR.get('enc', '')} v{S+i}, v{S+i}")
    def half(S, P, O, Vx, pvy, snext, w1, post, post2=(), w2=None):
        E(S, 0, 2)
        mfma32(a, *pvy)
        for x in post: x()
        E(S, 2, 8)
        if w1: a("s_waitcnt lgkmcnt(0)")
        mfma32(a, *snext)
        for x in post2: x()
        cvt8(a, P, S)
        E(S, 8, 12)
        if w2 is not None: a(f"s_waitcnt lgkmcnt({w2})")
        mfma32(a, O, Vx, P, O)
        E(S, 12, 16)
        cvt8(a, P+4, S+8)
    HK = {0: [("w", 4)], 1: [("w", 8)], 3: [("p", 2)], 5: [("w", 12)]}
    for k in list(HK): HK[k] = [x for x in HK[k] if x[0] != "p"]
    PR0 = dict(zip(map(int, VAR.get("pr0", "3,5,6").split(",")), (2, 1, 0)))
    PR1 = dict(zip(map(int, VAR.get("pr1", "4,6,7").split(",")), (2, 1, 0)))
    for it in range(8):
        if it in PR0 or it in PR1: HK[it] = [("p", (PR0.get(it), PR1.get(it)))] + HK.get(it, [])
    if "ap0" in VAR: HK = {0: [("w", 4)], 1: [("w", 8)], 3: [("p", 1)], 4: [("w", 12)], 6: [("p", 0)]}
    def hooks():
        a("s_bitcmp1_b32 s50, 2")
        a("s_cbranch_scc1 a_hk_hi")
        a("s_branch a_hk_lo")
        a.label("a_hk_done")
    for t in range(4):
        b = t & 1; nb = b ^ 1
        if DEEP:
            post = [lambda: vread(nb, (t+1)*4096)]
            if t == 2: post = [hooks] + post
            half(S0, P0, O0, VB+8*b, (O1, VB+8*nb+4, P1+4, O1), (S1, KB+4*b, Q1, C1), False, post, [lambda: kread(b, (t+2)*4096)], 3)
            half(S1, P1, O1, VB+8*b, (O0, VB+8*b+4, P0+4, O0), (S0, KB+4*nb, Q0, C0), False, [])
            continue
        post = [lambda: kvread(nb, (t+1)*4096)]
        if t == 3: post = [hooks] + post
        half(S0, P0, O0, VB+8*b, (O1, VB+8*nb+4, P1+4, O1), (S1, KB+4*b, Q1, C1), False, post)
        half(S1, P1, O1, VB+8*b, (O0, VB+8*b+4, P0+4, O0), (S0, KB+4*nb, Q0, C0), True, [])
    a("v_add_u32 v2, 16384, v2")
    a("v_add_u32 v3, 16384, v3")
    a("s_add_u32 s50, s50, 1")
    a("s_cmp_lt_u32 s50, 8")
    a("s_cbranch_scc1 a_loop")
    mfma32(a, O1, VB+8+4, P1+4, O1)
    st.stamp()
    for i in range(2): a(f"ds_write_b128 v160, {vr(O0+4*i,4)} offset:{L_CB + i*1024}")
    a(f"ds_write_b32 v160, v{O0+8} offset:{L_CB + 2048}")
    lds_signal(a, C_CB, "v162")
    a("s_setprio 3")
    lds_wait(a, C_CB, 1, 12, 51, "v163", sleep=int(VAR.get("cbsleep", 0)))
    if "tfine" in VAR: st.stamp()
    for i in range(2): a(f"ds_read_b128 {vr(S0+4*i,4)}, v161 offset:{L_CB + i*1024}")
    a(f"ds_read_b32 v{S0+8}, v161 offset:{L_CB + 2048}")
    a("s_mov_b32 s51, 0x7b800000")
    a(f"s_mov_b32 s53, {hex((127 - 85) << 23)}")
    a("s_waitcnt lgkmcnt(0)")
    a(f"v_add_f32 v{O1+8}, v{O1+8}, v{S0+8}")
    a(f"v_rcp_f32 v14, v{O1+8}")
    for i in range(8): a(f"v_add_f32 v{O1+i}, v{O1+i}, v{S0+i}")
    a(f"v_add_f32 v12, abs(v{O1}), abs(v{O1+1})")
    a(f"v_add_f32 v13, abs(v{O1+2}), abs(v{O1+3})")
    for i in range(4, 8, 2):
        a(f"v_add_f32 v12, v12, abs(v{O1+i})")
        a(f"v_add_f32 v13, v13, abs(v{O1+i+1})")
    a("v_add_f32 v12, v12, v13")
    a(f"v_add_f32 v13, v12, v{O1+8}")
    a("v_cmp_ngt_f32 vcc, s51, v13")
    a("v_cmp_gt_f32 s[64:65], s53, v12")
    a("s_or_b64 vcc, vcc, s[64:65]")
    if "forcefb" in VAR: a("s_mov_b64 vcc, -1")
    if "bidle" in VAR: a("s_mov_b64 vcc, 0")
    a("s_cbranch_vccnz a_fallback")
    a.label("a_norm")
    for i in range(8): a(f"v_mul_f32 v{O1+i}, v{O1+i}, v14")
    cvt8(a, P0, O1)
    for i in range(4): a(f"v_min_u32 v{P0+i}, -2, v{P0+i}")
    if "nofast" not in VAR: a(f"buffer_store_dwordx4 {vr(P0,4)}, v9, s[36:39], s48 offen " + VAR.get("fst", ""))
    a(f"ds_write_b128 v164, {vr(P0,4)}")
    lds_signal(a, C_OF)
    st.stamp()
    a(f"s_mov_b32 s63, {SPIN}")
    lnl = a.newlabel("nl")
    a("s_cmp_eq_u32 s49, 0")
    a(f"s_cbranch_scc1 {lnl}")
    a(f"buffer_store_dwordx4 {vr(P0,4)}, v9, s[36:39], s44 offen sc1")
    a(f"s_mov_b32 s63, {SPIN - 20}")
    a("s_mov_b32 s49, 0")
    a.label(lnl)
    a("s_mov_b32 s50, 0")
    a.label("a_poll")
    a(f"s_cmp_lt_u32 s63, {SPIN - int(VAR.get('fastn', 12))}")
    a("s_cselect_b32 s51, s63, 0")
    a("s_bitcmp1_b32 s51, 0")
    a(f"s_cselect_b32 s51, 0, {W_OF - W_OA}")
    a("v_add_u32 v13, s51, v9")
    for d in range(1, 4):
        a(f"buffer_load_dwordx4 {vr(S0+4*(d-1),4)}, v13, s[36:39], s{44+d} offen sc1")
    a("s_sub_u32 s63, s63, 1")
    for d in range(1, 4):
        r = S0 + 4*(d-1)
        nx = a.newlabel("pn")
        a(f"s_waitcnt vmcnt({3-d})")
        a(f"s_bitcmp1_b32 s50, {d}")
        a(f"s_cbranch_scc1 {nx}")
        a(f"v_max3_u32 v12, v{r}, v{r+1}, v{r+2}")
        a(f"v_max_u32 v12, v12, v{r+3}")
        a("v_cmp_eq_u32 vcc, -1, v12")
        a("s_cmp_eq_u32 s63, 0")
        a("s_cselect_b64 vcc, 0, vcc")
        a(f"s_cbranch_vccnz {nx}")
        a(f"ds_write_b128 v165, {vr(r,4)} offset:{d*8192}")
        lds_signal(a, C_OF + 4*d)
        a(f"s_bitset1_b32 s50, {d}")
        a.label(nx)
    a("s_cmp_eq_u32 s50, 14")
    a("s_cbranch_scc1 a_got")
    ls = a.newlabel("sl")
    a(f"s_cmp_eq_u32 s63, {SPIN - int(VAR.get('slown', 4))}")
    a(f"s_cbranch_scc0 {ls}")
    a(f"buffer_store_dwordx4 {vr(P0,4)}, v9, s[36:39], s44 offen sc1")
    a.label(ls)
    if int(VAR.get('tsleep', 0)): a(f"s_sleep {VAR.get('tsleep', 0)}")
    a("s_branch a_poll")
    a.label("a_got")
    a("s_cmp_eq_u32 s49, 0")
    a("s_cbranch_scc1 a_done")
    a(f"buffer_store_dwordx4 {vr(P0,4)}, v9, s[36:39], s44 offen sc1")
    a.label("a_done")
    st.stamp()
    if "tfine" in VAR:
        a("s_waitcnt lgkmcnt(0)")
        a(f"s_sub_u32 s72, {SPIN}, s63")
        a("s_add_u32 s72, s72, s70")
    st.dump(None, 0)
    a("s_endpgm")
    def read_nl():
        a(f"ds_read_b32 v12, v10 offset:{C_NL}")
        a("s_waitcnt lgkmcnt(0)")
        a("v_readfirstlane_b32 s49, v12")
    def pretouch():
        a(f"v_lshlrev_b32 v13, 7, v1")
        a(f"v_add_u32 v13, {W_OF - W_OA}, v13")
        a("s_mov_b64 exec, 0xff")
        for d in range(1, 4): a(f"buffer_load_dword v166, v13, s[36:39], s{44+d} offen sc1")
        a("s_mov_b64 exec, -1")
    HK[3] = HK.get(3, []) + [("sig", C_PR)]
    HK[6] = HK.get(6, []) + [("sig", C_PR2)]
    HK[2] = [x for x in HK.get(2, []) if x[0] == "p"] + [("f", tail_setup)]
    HK[7] = [x for x in HK.get(7, []) if x[0] == "p"] + [("w", 16), ("w8", C_PR2), ("f", read_nl)] + ([("f", pretouch)] if "nopre" not in VAR else [])
    for nm, rng in (("a_hk_lo", range(0, 4)), ("a_hk_hi", range(4, 8))):
        a.label(nm)
        for i in rng:
            if i not in HK: continue
            nx = a.newlabel("hk")
            a(f"s_cmp_eq_u32 s50, {i}")
            a(f"s_cbranch_scc0 {nx}")
            for kind, v in HK[i]:
                if kind == "w":
                    if "hkt" in VAR:
                        a("s_memtime s[4:5]")
                    lds_wait(a, C_ST + v, 4, 12, 51)
                    if "hkt" in VAR:
                        a("s_memtime s[6:7]")
                        a("s_waitcnt lgkmcnt(0)")
                        a("s_sub_u32 s6, s6, s4")
                        a(f"s_add_u32 s{72 + 2*(v//4 - 1)}, s70, s6")
                elif kind == "sig": lds_signal(a, v)
                elif kind == "f": v()
                elif kind == "w8": lds_wait(a, v, 8, 12, 51)
                elif kind == "s":
                    a("s_cmp_eq_u32 s43, 0")
                    a("s_cbranch_scc0 a_hk_done")
                    a("s_waitcnt vmcnt(0)")
                    lds_signal(a, C_ST + v)
                elif v[0] == v[1]: a(f"s_setprio {v[0]}")
                else:
                    for kh_, lv in enumerate(v):
                        if lv is None: continue
                        lp = a.newlabel("pp")
                        a(f"s_cmp_eq_u32 s43, {kh_}")
                        a(f"s_cbranch_scc0 {lp}")
                        a(f"s_setprio {lv}")
                        a.label(lp)
            a("s_branch a_hk_done")
            a.label(nx)
        a("s_branch a_hk_done")
    a.label("a_fallback")
    a("v_mov_b32 v12, 0xff800000")
    a("s_mov_b32 s50, 0")
    a.label("a_fb1")
    a(f"buffer_load_dwordx4 {vr(KB,4)}, v9, s[36:39], s50 offen sc1")
    a("s_waitcnt vmcnt(0)")
    mfma32(a, S0, KB, Q1, "0")
    a("s_add_u32 s50, s50, 2048")
    rowmax16(a, 12, S0, init=True)
    a("s_cmp_lt_u32 s50, 0x20000")
    a("s_cbranch_scc1 a_fb1")
    xhalf_max(a, 12, 13)
    a(f"v_sub_f32 v{C0}, 0, v12")
    for i in range(1, 16): a(f"v_mov_b32 v{C0+i}, v{C0}")
    for i in range(16): a(f"v_mov_b32 v{O1+i}, 0")
    a("v_lshlrev_b32 v3, 8, v7")
    a("v_lshl_add_u32 v3, v6, 4, v3")
    a("s_mov_b32 s50, 0")
    a.label("a_fb2")
    a(f"buffer_load_dwordx4 {vr(KB,4)}, v9, s[36:39], s50 offen sc1")
    a("s_mov_b64 exec, s[60:61]")
    a(f"buffer_load_dwordx4 {vr(VB,4)}, v3, s[36:39], s50 offen offset:1024 sc1")
    a(f"buffer_load_dwordx4 {vr(VB+4,4)}, v3, s[36:39], s50 offen offset:1536 sc1")
    a("s_mov_b64 exec, -1")
    a("s_waitcnt vmcnt(0)")
    mfma32(a, S0, KB, Q1, C0)
    a("s_add_u32 s50, s50, 2048")
    E(S0, 0, 16)
    cvt8(a, P0, S0); cvt8(a, P0+4, S0+8)
    mfma32(a, O1, VB, P0, O1)
    mfma32(a, O1, VB+4, P0+4, O1)
    a("s_cmp_lt_u32 s50, 0x20000")
    a("s_cbranch_scc1 a_fb2")
    a(f"v_rcp_f32 v14, v{O1+8}")
    a("s_branch a_norm")

def role_b(a, st):
    a("s_mov_b32 s58, 0")
    a("s_lshr_b32 s44, s40, 1")
    a("s_and_b32 s42, s26, 1")
    a("s_lshr_b32 s43, s26, 1")
    srd(a, 28, P_BX, 2 << 20)
    srd(a, 32, P_BWQKV, 512 * 3072)
    a("v_lshrrev_b32 v12, 3, v1")
    a("v_and_b32 v13, 7, v1")
    a("v_bfe_u32 v14, v1, 4, 1")
    a("v_lshlrev_b32 v14, 2, v14")
    a("v_xor_b32 v14, v14, v13")
    a("v_mul_u32_u24 v3, 3072, v12")
    a("v_lshl_add_u32 v3, v14, 4, v3")
    a("v_lshlrev_b32 v4, 10, v12")
    a("v_lshl_add_u32 v4, v14, 4, v4")
    a(f"s_mul_i32 s64, s26, {16*3072}")
    a("s_lshl_b32 s51, s27, 7")
    a("s_add_u32 s64, s64, s51")
    a("s_lshl_b32 s65, s44, 16")
    a("s_lshl_b32 s51, s26, 14")
    a("s_add_u32 s65, s65, s51")
    if MAP81:
        a("s_lshr_b32 s67, s3, 3")
        a("s_lshl_b32 s67, s67, 1")
        a("s_add_u32 s67, s67, s3")
    else:
        a("s_lshr_b32 s67, s3, 2")
        a("s_lshl_b32 s51, s3, 1")
        a("s_add_u32 s67, s67, s51")
    a("s_and_b32 s67, s67, 7")
    a("s_mul_i32 s56, s26, 6144")
    a(f"s_add_u32 s56, s56, {L_GB + GB_W}")
    a("s_mul_i32 s57, s26, 2080")
    a(f"s_add_u32 s57, s57, {L_GB + GB_X}")
    INLOOP = [False]
    def issue_ops(buf):
        o = buf * GB_SZ
        def pre():
            a(f"s_mul_i32 s48, s67, {64*3072}")
            a("s_add_u32 s48, s48, s64")
            a(f"s_add_u32 s47, s48, {8*3072}")
            a("s_lshl_b32 s49, s67, 7")
            a("s_add_u32 s49, s49, s65")
            a("s_add_u32 s66, s49, 8192")
            a("s_add_u32 s67, s67, 1")
            a("s_and_b32 s67, s67, 7")
        ops = [pre]
        for q in range(2):
            def fx(q=q):
                a(f"s_add_u32 m0, s57, {o + q*1040}")
                a(f"buffer_load_dwordx4 v4, s[28:31], {'s66' if q else 's49'} offen lds")
            ops.append(fx)
        for gq in range(2):
            for t in range(3):
                def f(gq=gq, t=t):
                    if t == 0: a(f"s_add_u32 m0, s56, {o + gq*3072}")
                    a(f"buffer_load_dwordx4 v3, s[32:35], {'s47' if gq else 's48'} offen offset:{t*1024} lds")
                ops.append(f)
        if "gnodma" in VAR and INLOOP[0]: return [lambda: None] * 8 + [lambda: a("s_sleep 10")]
        return ops
    BST = VAR.get("bstart", "st4")
    if BST == "early":
        for f in issue_ops(0): f()
    lk = a.newlabel("nokv")
    a("v_lshl_add_u32 v5, v1, 2, v10")
    a("v_mov_b32 v12, 0")
    a("ds_write_b32 v5, v12")
    kv_setup(a)
    a("s_waitcnt vmcnt(0) lgkmcnt(0)")
    a("v_readfirstlane_b32 s62, v19")
    a(f"s_add_u32 s62, s62, {TAGC}")
    a("s_barrier")
    a("s_cmp_eq_u32 s26, 3")
    a(f"s_cbranch_scc0 {lk}")
    kv_job(a)
    if "merge" not in VAR: a("s_barrier")
    kv_store(a)
    lk2 = a.newlabel("kvs")
    a(f"s_branch {lk2}")
    a.label(lk)
    if "merge" not in VAR: a("s_barrier")
    a.label(lk2)
    a("s_mov_b32 s45, s27")
    a("v_mul_u32_u24 v8, 3072, v7")
    a("v_bfe_u32 v14, v1, 2, 2")
    a("v_lshl_add_u32 v8, v14, 7, v8")
    a("v_bfe_u32 v14, v1, 3, 1")
    a("v_xor_b32 v14, s42, v14")
    a("v_lshl_add_u32 v8, v14, 6, v8")
    a("v_bfe_u32 v14, v1, 4, 1")
    a("v_lshl_add_u32 v8, v14, 5, v8")
    a("v_and_b32 v14, 3, v1")
    a("v_lshl_add_u32 v8, v14, 3, v8")
    a(f"v_add_u32 v8, {L_GB + GB_W}, v8")
    XM = 152
    a("v_bfe_u32 v14, v1, 1, 1")
    a("v_lshlrev_b32 v14, 2, v14")
    a("v_or_b32 v14, v14, v7")
    a("v_lshlrev_b32 v14, 4, v14")
    a("v_and_b32 v15, 7, v1")
    a("v_lshl_add_u32 v14, v15, 7, v14")
    a("v_xor_b32 v15, 64, v14")
    a("v_lshrrev_b32 v16, 3, v6")
    a("v_mul_u32_u24 v16, 1040, v16")
    a("s_mul_i32 s51, s43, 4160")
    a(f"s_add_u32 s51, s51, {L_GB + GB_X}")
    a(f"v_add3_u32 v{XM}, v14, v16, s51")
    a(f"v_add3_u32 v{XM+1}, v15, v16, s51")
    ACC = 20; WF = 84; XF = 108
    for i in range(48): a(f"v_mov_b32 v{ACC+i}, 0")
    for i in range(16): a(f"v_mov_b32 v{WF+12+i if i < 12 else XF+4+i-12}, 0")
    a("s_barrier")
    lk3 = a.newlabel("kvf")
    a("s_cmp_eq_u32 s26, 3")
    a(f"s_cbranch_scc0 {lk3}")
    kv_flag(a)
    a.label(lk3)
    st.stamp()
    a("s_barrier")
    LP, LS, LG = 126, 128, 144
    a("s_mul_i32 s51, s26, 6144")
    a(f"s_add_u32 s51, s51, {L_COMB}")
    a("v_lshlrev_b32 v15, 3, v7")
    a("v_sub_u32 v15, v6, v15")
    a("v_add_u32 v15, 10, v15")
    a(f"v_add_u32 v{LP}, s51, v9")
    a("v_lshlrev_b32 v14, 4, v6")
    a("v_add_u32 v14, s51, v14")
    for i in range(4):
        a(f"v_add_u32 v16, {2*i}, v15")
        a("v_lshrrev_b32 v17, 2, v16")
        a(f"v_lshl_add_u32 v{LG+i}, v17, 9, v14")
        a("v_lshrrev_b32 v17, 4, v16")
        a(f"v_lshl_add_u32 v{LS+i}, v17, 10, v14")
        a("v_bfe_u32 v17, v16, 2, 1")
        a(f"v_lshl_add_u32 v{LS+i}, v17, 9, v{LS+i}")
        a("v_bfe_u32 v17, v16, 3, 1")
        a(f"v_lshl_add_u32 v{LS+i}, v17, 3, v{LS+i}")
        a("v_and_b32 v17, 3, v16")
        a(f"v_lshl_add_u32 v{LS+i}, v17, 1, v{LS+i}")
        a(f"v_lshl_add_u32 v{LG+i}, v17, 2, v{LG+i}")
    ZR = 132
    for i in range(4): a(f"v_mov_b32 v{ZR+i}, 0")
    def read_ops(buf, sp, fb):
        r = []
        for t3 in range(3):
            for t in range(2):
                r.append(f"ds_read_b64_tr_b16 {vr(WF+12*fb+4*t3+2*t,2)}, v8 offset:{buf*GB_SZ + sp*6144 + t3*1024 + t*512}")
        r.insert(2, f"ds_read_b128 {vr(XF+4*fb,4)}, v{XM+(sp>>1)} offset:{buf*GB_SZ + (sp&1)*32}")
        if "gnoreads" in VAR: return []
        return r
    def mm(fb, k):
        w = WF + 12*fb; x = XF + 4*fb
        if "nomm" in VAR: return
        if k == 0: mfma32(a, ACC, w, x, ACC)
        elif k == 1: mfma32(a, ACC+16, w+4, x, ACC+16)
        else: mfma32(a, ACC+32, x, w+8, ACC+32)
        if "mgap" in VAR and k < 2: a(f"s_nop {VAR['mgap']}")
    a("s_lshr_b32 s55, s40, 3")
    a("s_lshl_b32 s55, s55, 2")
    a("s_cmp_ge_u32 s3, 28")
    a("s_cselect_b32 s51, 28, 0")
    a("s_sub_u32 s59, s3, s51")
    a("s_add_u32 s53, s55, s26")
    a("s_lshl_b32 s53, s53, 13")
    a(f"s_add_u32 s53, s53, {W_KF}")
    a("s_add_u32 s52, s53, 4096")
    a("s_lshl_b32 s51, s26, 12")
    a("v_lshlrev_b32 v13, 3, v1")
    a("v_add_u32 v13, s51, v13")
    FQ = [68, 72, 76, 80, 84, 88, 92, 108]
    def kf_loads():
        for i, r in enumerate(FQ):
            a(f"buffer_load_dwordx4 {vr(r,4)}, v9, s[36:39], {'s53' if i < 4 else 's52'} offen offset:{(i&3)*1024} sc1")
    a(f"s_mov_b32 s63, {int(VAR.get('kfn', 3))}")
    a("s_mov_b32 s46, 0")
    if "kfe" in VAR: kf_loads()
    a("s_barrier")
    if "kfe" not in VAR: kf_loads()
    a("s_barrier")
    st.stamp()
    a.label("b_kf")
    a("v_mov_b32 v14, 0")
    for i, r in enumerate(FQ):
        a(f"s_waitcnt vmcnt({7-i})")
        a(f"ds_write_b64 v13, {vr(r,2)} offset:{L_WK + i*512}")
        a(f"v_bitop3_b32 v15, v{r}, v{r+2}, s62 bitop3:0x96")
        a(f"v_bitop3_b32 v16, v{r+1}, v{r+3}, s62 bitop3:0x96")
        a("v_or3_b32 v14, v14, v15, v16")
    a("v_cmp_ne_u32 vcc, 0, v14")
    a("s_nop 1")
    a("s_cbranch_vccz b_kf_ok")
    a("s_sub_u32 s63, s63, 1")
    a("s_cbranch_scc1 b_kf_done")
    kf_loads()
    a("s_branch b_kf")
    a.label("b_kf_ok")
    lds_signal(a, C_ST + 0)
    a("s_mov_b32 s46, 1")
    a.label("b_kf_done")
    st.stamp()
    if "c0early" in VAR:
        lds_wait(a, C_QD, 4, 5, 51)
        for f in issue_ops(0): f()
    a("v_lshlrev_b32 v15, 7, v1")
    a("s_lshl_b32 s54, s26, 11")
    a(f"s_add_u32 s54, s54, {W_F1}")
    poll_flags(a, 15, "s54", 16, 16, sleep=int(VAR.get("psleep", 4)))
    bbar(a)
    lf = a.newlabel("kfok")
    a("s_cmp_eq_u32 s46, 1")
    a(f"s_cbranch_scc1 {lf}")
    a("s_lshl_b32 s53, s26, 12")
    kv_dma(a, 53, 4, first=True)
    a("s_waitcnt vmcnt(0)")
    lds_signal(a, C_ST + 0)
    a.label(lf)
    lds_wait(a, C_QD, 4, 5, 51)
    for k in range(1, 6):
        a("s_lshl_b32 s53, s26, 12")
        a(f"s_add_u32 s53, s53, {k*16384}")
        kv_dma(a, 53, 4)
        if k == 2:
            a("s_waitcnt vmcnt(4)")
            lds_signal(a, C_ST + 4)
    a("s_cmp_eq_u32 s43, 0")
    a(f"s_cselect_b32 s4, s{P_BWO}, s{P_AWO}")
    a(f"s_cselect_b32 s5, s{P_BWO+1}, s{P_AWO+1}")
    a("s_mov_b32 s6, 0x80000")
    a("s_mov_b32 s7, 0x20000")
    a("s_lshr_b32 s8, s2, 3")
    a("s_and_b32 s9, s2, 7")
    a("s_lshl_b32 s51, s8, 14")
    a("s_lshl_b32 s52, s9, 7")
    a("s_add_u32 s51, s51, s52")
    a("s_lshl_b32 s10, s26, 11")
    a(f"s_add_u32 s10, s10, {L_GB + 1024}")
    a("s_mov_b32 m0, s10")
    a("s_add_u32 s52, s51, 7168")
    a("buffer_load_dwordx4 v4, s[4:7], s51 offen lds")
    a("buffer_load_dwordx4 v4, s[4:7], s52 offen offset:1024 lds")
    lds_wait(a, C_QR, 4, 5, 51, sleep=2)
    for f in issue_ops(1): f()
    a("v_bfe_u32 v14, v1, 2, 2")
    a("v_lshlrev_b32 v14, 7, v14")
    a("v_bfe_u32 v15, v1, 3, 1")
    a("v_xor_b32 v15, s42, v15")
    a("v_lshl_add_u32 v14, v15, 6, v14")
    a("v_bfe_u32 v15, v1, 4, 1")
    a("v_lshl_add_u32 v14, v15, 5, v14")
    a("v_and_b32 v15, 1, v1")
    a("v_lshl_add_u32 v14, v15, 4, v14")
    a("v_bfe_u32 v15, v1, 1, 1")
    a("v_lshl_add_u32 v14, v15, 3, v14")
    a("v_lshl_add_u32 v14, v7, 9, v14")
    a("v_add_u32 v14, s10, v14")
    a("s_lshl_b32 s51, s9, 1")
    a("s_add_u32 s51, s51, s42")
    a("s_lshl_b32 s51, s51, 5")
    a("s_add_u32 s51, s51, s8")
    a("s_lshl_b32 s10, s51, 10")
    a("s_lshl_b32 s51, s43, 19")
    a("s_add_u32 s10, s10, s51")
    a(f"s_add_u32 s10, s10, {W_TO}")
    a("s_lshr_b32 s51, s9, 1")
    a("s_lshl_b32 s51, s51, 5")
    a("s_add_u32 s51, s51, s8")
    a("s_lshl_b32 s11, s51, 7")
    a("s_and_b32 s51, s9, 1")
    a("s_lshl_b32 s51, s51, 2")
    a("s_add_u32 s51, s51, s26")
    a("s_lshl_b32 s51, s51, 2")
    a("s_add_u32 s11, s11, s51")
    a(f"s_add_u32 s11, s11, {W_F4}")
    a("s_waitcnt vmcnt(10)")
    lds_signal(a, C_ST + 8)
    a("s_waitcnt vmcnt(8)")
    for t in range(2): a(f"ds_read_b64_tr_b16 {vr(160+2*t,2)}, v14 offset:{t*1024}")
    a("s_waitcnt vmcnt(0) lgkmcnt(0)")
    a("buffer_store_dwordx4 v[160:163], v9, s[36:39], s10 offen sc1")
    a("v_lshrrev_b32 v166, 1, v1")
    a("v_lshlrev_b32 v166, 7, v166")
    a("v_and_b32 v15, 1, v1")
    a("v_lshl_add_u32 v166, v15, 4, v166")
    a("s_lshl_b32 s8, s41, 12")
    a(f"s_add_u32 s8, s8, {W_F4}")
    a(f"s_setprio {VAR.get('bprio', 3)}")
    st.stamp()
    a("s_mov_b32 s50, 0")
    if "bidle" in VAR:
        a("s_waitcnt vmcnt(0)")
        bbar(a)
        a("s_mul_i32 s54, s26, 12288")
        a("s_add_u32 s54, s54, 81920")
        kv_dma(a, 54, 12)
        a("s_waitcnt vmcnt(0)")
        for c_ in (12, 16, 20): lds_signal(a, C_ST + c_)
        srd(a, 28, P_OUT, 4 << 20)
        a("s_mov_b32 s47, 0")
        a("s_branch b_tail")
    if "nogemm" in VAR: a("s_branch b_gend")
    INLOOP[0] = True
    a("s_branch b_in")
    a.label("b_loop")
    for buf in (1, 0):
        mm(1, 0)
        a("s_waitcnt vmcnt(0)")
        if buf == 1: a.label("b_in")
        else:
            lf4 = a.newlabel("f4")
            a("s_cmp_eq_u32 s50, 0")
            a(f"s_cbranch_scc0 {lf4}")
            store_flag(a, "s11", 164)
            a.label(lf4)
        a("s_add_u32 s58, s58, 4")
        lds_signal(a, C_BB)
        mm(1, 1)
        ops = issue_ops(buf ^ 1)
        if buf == 0:
            a("s_cmp_eq_u32 s50, 3")
            a("s_cselect_b32 s64, 0x7f000000, s64")
            a("s_cselect_b32 s65, 0x7f000000, s65")
            for r in (56, 57): a(f"s_cselect_b32 s{r}, 0x30000, s{r}")
        ops[0]()
        lds_wait(a, C_BB, "s58", 5, 51, sleep=int(VAR.get("bsleep", 0)))
        oi = 1
        for _ in range(int(VAR.get("dfirst", 0))): ops[oi](); oi += 1
        for x in read_ops(buf, 0, 0): a(x)
        mm(1, 2)
        for _ in range(int(VAR.get("dsec", 3))):
            if oi < len(ops): ops[oi](); oi += 1
        for sp in range(3):
            for x in read_ops(buf, sp+1, (sp+1) & 1): a(x)
            a("s_waitcnt lgkmcnt(7)")
            for k in range(3):
                mm(sp & 1, k)
                for _ in range(2):
                    if oi < len(ops): ops[oi](); oi += 1
        a("s_waitcnt lgkmcnt(0)")
    a("s_add_u32 s50, s50, 1")
    a("s_cmp_lt_u32 s50, 4")
    a("s_cbranch_scc1 b_loop")
    a.label("b_gend")
    a("buffer_load_dwordx4 v[160:163], v166, s[36:39], s8 offen sc1")
    a("s_add_u32 s58, s58, 4")
    lds_signal(a, C_BB)
    for k in range(3): mm(1, k)
    lds_wait(a, C_BB, "s58", 5, 51, sleep=0)
    a(f"s_mov_b32 s54, {23*4096}")
    kv_dma(a, 54, 4, only=(3,))
    a("s_lshl_b32 s54, s26, 13")
    a("s_add_u32 s54, s54, 98304")
    kv_dma(a, 54, 8)
    st.stamp()
    QF = 84; KF = 92; VF = 100; KH = 108; VH = 116
    cvt8(a, KF, ACC+16); cvt8(a, KF+4, ACC+24)
    cvt8(a, VF, ACC+32); cvt8(a, VF+4, ACC+40)
    a("s_mul_i32 s51, s42, 3072")
    a(f"s_add_u32 s51, s51, {L_BEX}")
    a("v_add_u32 v13, s51, v9")
    a("s_lshl_b32 s52, s44, 3")
    a("s_add_u32 s52, s52, s45")
    a("s_lshl_b32 s53, s52, 1")
    a("s_add_u32 s53, s53, s42")
    a("s_mul_i32 s53, s53, 3072")
    a(f"s_add_u32 s53, s53, {W_HALO}")
    a("s_lshl_b32 s52, s52, 7")
    a("s_lshl_b32 s51, s42, 2")
    a("s_add_u32 s52, s52, s51")
    a(f"s_add_u32 s52, s52, {W_F2}")
    l1 = a.newlabel("b_w1"); l2 = a.newlabel("b_w2")
    a("s_cmp_eq_u32 s43, 0")
    a(f"s_cbranch_scc0 {l1}")
    a(f"ds_write_b128 v13, {vr(KF,4)}")
    a(f"ds_write_b128 v13, {vr(KF+4,4)} offset:1024")
    a(f"ds_write_b128 v13, {vr(VF+4,4)} offset:2048")
    a("s_waitcnt vmcnt(0)")
    a(f"s_branch {l2}")
    a.label(l1)
    a(f"buffer_store_dwordx4 {vr(KF,4)}, v9, s[36:39], s53 offen sc1")
    a(f"buffer_store_dwordx4 {vr(KF+4,4)}, v9, s[36:39], s53 offen offset:1024 sc1")
    a(f"buffer_store_dwordx4 {vr(VF+4,4)}, v9, s[36:39], s53 offen offset:2048 sc1")
    a("s_waitcnt vmcnt(0)")
    store_flag(a, "s52", 14)
    a.label(l2)
    cvt8(a, QF, ACC); cvt8(a, QF+4, ACC+8)
    a("s_waitcnt vmcnt(1)")
    lds_signal(a, C_ST + 12)
    bbar(a)
    l1 = a.newlabel("b_x1"); l2 = a.newlabel("b_x2")
    a("s_or_b32 s51, s44, 0")
    a("s_cselect_b32 s51, s43, 1")
    a("s_cmp_eq_u32 s51, 0")
    a(f"s_cbranch_scc0 {l1}")
    a(f"s_sub_u32 s52, s52, {8*128}")
    a(f"s_sub_u32 s53, s53, {16*3072}")
    a("v_mov_b32 v5, 0")
    poll_flags(a, 5, "s52", 1, 14, sleep=6, width=1)
    a(f"buffer_load_dwordx4 {vr(KH,4)}, v9, s[36:39], s53 offen sc1")
    a(f"buffer_load_dwordx4 {vr(KH+4,4)}, v9, s[36:39], s53 offen offset:1024 sc1")
    a(f"buffer_load_dwordx4 {vr(VH,4)}, v9, s[36:39], s53 offen offset:2048 sc1")
    a("s_waitcnt vmcnt(0)")
    a(f"s_branch {l2}")
    a.label(l1)
    a(f"ds_read_b128 {vr(KH,4)}, v13")
    a(f"ds_read_b128 {vr(KH+4,4)}, v13 offset:1024")
    a(f"ds_read_b128 {vr(VH,4)}, v13 offset:2048")
    a.label(l2)
    lsn = a.newlabel("nosn")
    a("s_and_b32 s51, s40, 1")
    a("s_cmp_eq_u32 s51, s43")
    a(f"s_cbranch_scc0 {lsn}")
    a("s_lshl_b32 s51, s40, 2")
    a("s_add_u32 s51, s51, s41")
    a("s_lshl_b32 s51, s51, 1")
    a("s_add_u32 s51, s51, s42")
    a("s_lshl_b32 s51, s51, 12")
    a(f"s_add_u32 s51, s51, {W_OA}")
    for i in range(4): a(f"v_mov_b32 v{120+i}, -1")
    for i in range(4 if "xnoslow" not in VAR else 0): a(f"buffer_store_dwordx4 v[120:123], v9, s[36:39], s51 offen offset:{i*1024} sc1")
    a(f"s_add_u32 s51, s51, {W_OF - W_OA}")
    for i in range(4): a(f"buffer_store_dwordx4 v[120:123], v9, s[36:39], s51 offen offset:{i*1024} sc1")
    a.label(lsn)
    a("s_lshl_b32 s52, s44, 1")
    a("s_add_u32 s52, s52, s43")
    a("s_lshl_b32 s55, s52, 4")
    a("s_lshl_b32 s53, s45, 1")
    a("s_add_u32 s53, s53, s42")
    a("s_add_u32 s55, s55, s53")
    a("s_lshl_b32 s55, s55, 11")
    a(f"s_add_u32 s55, s55, {W_OB}")
    a("s_lshl_b32 s57, s52, 9")
    a("s_lshr_b32 s51, s53, 2")
    a("s_lshl_b32 s51, s51, 7")
    a("s_add_u32 s57, s57, s51")
    a("s_and_b32 s51, s53, 3")
    a("s_lshl_b32 s51, s51, 2")
    a("s_add_u32 s57, s57, s51")
    a(f"s_add_u32 s57, s57, {W_F3}")
    a("s_waitcnt lgkmcnt(0)")
    SM = 20; SH = 36; O = 52; PP = 68; T = 152
    a(f"s_mov_b32 s46, {CSCALE}")
    a("s_or_b32 s60, s44, s43")
    G = 136
    for hd in range(2 if "nolocal" not in VAR else 0):
        sm = SM + 32*hd; sh = sm + 16
        mfma32(a, sm, KF+4*hd, QF+4*hd, "0")
        mfma32(a, sh, KH+4*hd, QF+4*hd, "0")
    lz = a.newlabel("fz")
    a("s_cmp_eq_u32 s60, 0")
    a(f"s_cbranch_scc0 {lz}")
    for hd in range(2):
        for i in range(8): a(f"v_mov_b32 v{SM+32*hd+24+i}, 0xff800000")
    a.label(lz)
    for hd in range(2 if "nolocal" not in VAR else 0):
        sm = SM + 32*hd; sh = sm + 16
        for g_ in range(2): a(f"ds_write_b128 v{LP}, {vr(sh+8+4*g_,4)} offset:{1024*g_}")
        for g_ in range(4): a(f"ds_write_b128 v{LP}, {vr(sm+4*g_,4)} offset:{2048 + 1024*g_}")
        for i in range(4): a(f"ds_read_b32 v{G+4*hd+i}, v{LG+i}")
    for hd in range(2 if "nolocal" not in VAR else 0):
        g0 = G + 4*hd; t = T + 4*hd
        if hd == 0:
            for f in range(6): a(f"ds_write_b128 v{LP}, {vr(ZR,4)} offset:{f*1024}")
        a(f"s_waitcnt lgkmcnt({15 if hd == 0 else 4})")
        if hd == 0: a("s_waitcnt lgkmcnt(6)")
        a(f"v_max3_f32 v{t}, v{g0}, v{g0+1}, v{g0+2}")
        a(f"v_max_f32 v{t}, v{t}, v{g0+3}")
        xhalf_max(a, t, t+1)
        a(f"v_mul_f32 v{t}, s46, v{t}")
        for i in range(4): a(f"v_fma_f32 v{g0+i}, v{g0+i}, s46, -v{t}")
        for i in range(4): a(f"v_exp_f32 v{g0+i}, v{g0+i}")
        a(f"v_add_f32 v{t}, v{g0}, v{g0+1}")
        a(f"v_add_f32 v{t+1}, v{g0+2}, v{g0+3}")
        a(f"v_add_f32 v{t}, v{t}, v{t+1}")
        a(f"v_mov_b32 v{t+1}, v{t}")
        a(f"v_permlane32_swap_b32 v{t}, v{t+1}")
        a(f"v_add_f32 v{t}, v{t}, v{t+1}")
        a(f"v_rcp_f32 v{t}, v{t}")
        for i in range(4): a(f"v_mul_f32 v{g0+i}, v{g0+i}, v{t}")
        a(f"v_cvt_pk_bf16_f32 v{t+2}, v{g0}, v{g0+1}")
        a(f"v_cvt_pk_bf16_f32 v{t+3}, v{g0+2}, v{g0+3}")
        for i in range(4):
            a(f"ds_write_b16{'_d16_hi' if i & 1 else ''} v{LS+i}, v{t+2+(i>>1)} offset:{hd*3072}")
    for hd in range(2 if "nolocal" not in VAR else 0):
        for f in range(3): a(f"ds_read_b128 {vr(SM+12*hd+4*f,4)}, v{LP} offset:{hd*3072 + f*1024}")
    for hd in range(2 if "nolocal" not in VAR else 0):
        o = 52 + 16*hd; p = SM + 12*hd
        a(f"s_waitcnt lgkmcnt({3 - 3*hd})")
        mfma32(a, o, VH, p, "0")
        mfma32(a, o, VF, p+4, o)
        mfma32(a, o, VF+4, p+8, o)
    for hd in range(2 if "nolocal" not in VAR else 0):
        o = 52 + 16*hd
        cvt8(a, G+4*hd, o+8*hd)
        a(f"buffer_store_dwordx4 {vr(G+4*hd,4)}, v9, s[36:39], s55 offen offset:{hd*1024} sc1")
    a("s_waitcnt vmcnt(0)")
    a("s_getreg_b32 s61, hwreg(HW_REG_XCC_ID, 0, 4)")
    a("s_xor_b32 s62, s62, s61")
    store_flag(a, "s57", 12)
    a("s_xor_b32 s62, s62, s61")
    st.stamp()
    srd(a, 28, P_OUT, 4 << 20)
    a("s_lshl_b32 s47, s41, 8")
    a("s_lshl_b32 s51, s26, 6")
    a("s_add_u32 s47, s47, s51")
    a("s_lshl_b32 s64, s47, 9")
    a(f"s_add_u32 s64, s64, {W_TO}")
    a("v_lshlrev_b32 v4, 11, v6")
    a("v_lshl_add_u32 v4, v7, 4, v4")
    a("s_lshl_b32 s51, s40, 16")
    a("s_add_u32 s47, s47, s51")
    ACC = 12; OB = 28; WL = 40
    def fload(i, rot):
        if (i & 3) == 0:
            a(f"s_add_u32 s51, {rot}, {i*1024}")
            a("s_and_b32 s51, s51, 0x7fff")
            a("s_add_u32 s48, s64, s51")
        a(f"buffer_load_dwordx4 {vr(WL+4*i,4)}, v9, s[36:39], s48 offen offset:{(i&3)*1024} sc1")
    lok = a.newlabel("f4ok")
    for i in range(4): a(f"v_xor_b32 v{160+i}, s62, v{160+i}")
    a("v_or3_b32 v160, v160, v161, v162")
    a("v_or_b32 v160, v160, v163")
    a("v_cmp_ne_u32 vcc, 0, v160")
    a("s_nop 1")
    a(f"s_cbranch_vccz {lok}")
    poll_flags(a, 166, "s8", 64, 160, sleep=8)
    a.label(lok)
    a("s_bfe_u32 s9, s3, 0x30002")
    a("s_lshl_b32 s9, s9, 12")
    if "touchA" in VAR:
        a("s_add_u32 s51, s64, s9")
        a("s_add_u32 s51, s51, 0x80000")
        a("v_lshlrev_b32 v5, 7, v6")
        a("buffer_load_dword v28, v5, s[36:39], s51 offen sc1")
    for i in range(32): fload(i, "s9")
    def run(lo, hi, addr, off0, after=None):
        o = lambda i: (i - off0) * 1024
        for i in range(lo, min(lo+2, hi)): a(f"ds_read_b128 {vr(OB+4*(i%3),4)}, {addr} offset:{o(i)}")
        for i in range(lo, hi):
            if i + 2 < hi:
                a(f"ds_read_b128 {vr(OB+4*((i+2)%3),4)}, {addr} offset:{o(i+2)}")
                a("s_waitcnt lgkmcnt(2)")
            else:
                a(f"s_waitcnt lgkmcnt({hi-1-i})")
            mfma32(a, ACC, WL+4*i, OB+4*(i%3), "0" if i == 0 else ACC)
            if after: after(i)
    a("v_lshlrev_b32 v5, 7, v1")
    a("s_lshl_b32 s57, s40, 9")
    a(f"s_add_u32 s57, s57, {W_F3}")
    a(f"s_mov_b32 s63, {SPIN}")
    a("s_xor_b32 s51, s62, s61")
    a("s_mov_b64 exec, 15")
    a.label("b_f3")
    a("buffer_load_dwordx4 v[28:31], v5, s[36:39], s57 offen sc1")
    a("s_waitcnt vmcnt(0)")
    for i in range(4): a(f"v_xor_b32 v{28+i}, s51, v{28+i}")
    a("v_or3_b32 v28, v28, v29, v30")
    a("v_or_b32 v28, v28, v31")
    a("v_cmp_lt_u32 vcc, 15, v28")
    a("s_nop 1")
    a("s_cbranch_vccz b_f3d")
    a("s_sleep 8")
    a("s_sub_u32 s63, s63, 1")
    a("s_cmp_lg_u32 s63, 0")
    a("s_cbranch_scc1 b_f3")
    a.label("b_f3d")
    a("v_cmp_ne_u32 vcc, 0, v28")
    a("s_mov_b64 exec, -1")
    a("s_cbranch_vccz b_f3l")
    lds_signal(a, C_NL)
    a.label("b_f3l")
    lds_signal(a, C_ST + 16)
    st.stamp()
    lds_wait(a, C_PR, 8, 5, 51, sleep=8)
    a("s_lshl_b32 s49, s40, 15")
    a(f"s_add_u32 s49, s49, {W_OB}")
    a("s_lshl_b32 s52, s26, 13")
    a(f"s_add_u32 s46, s52, {L_OB}")
    a("s_add_u32 s52, s52, s9")
    for q in range(8):
        if (q & 3) == 0:
            a(f"s_add_u32 m0, s46, {q*1024}")
            a(f"s_add_u32 s51, s52, {q*1024}")
            a("s_and_b32 s51, s51, 0x7fff")
            a("s_add_u32 s51, s51, s49")
        a(f"buffer_load_dwordx4 v9, s[36:39], s51 offen offset:{(q&3)*1024} sc1 lds")
    a(f"v_add_u32 v0, {L_OB}, v9")
    a("s_add_u32 s64, s64, 0x80000")
    a("s_lshl_b32 s10, s41, 13")
    a("s_waitcnt vmcnt(0)")
    bbar(a)
    if "late" in VAR:
        a("s_lshl_b32 s51, s26, 2")
        a("v_add_u32 v2, s51, v10")
        NL = int(VAR["late"])
        run(0, NL, "v0", 0, lambda i: fload(i, "s10"))
        lds_wait(a, C_CB, 1, 5, 52, "v2", sleep=4)
        a(f"s_setprio {VAR.get('lprio', 1)}")
        run(NL, 32, "v0", 0, lambda i: fload(i, "s10"))
        a("s_setprio 3")
    else:
        run(0, 32, "v0", 0, lambda i: fload(i, "s10"))
    cvt8(a, 28, ACC); cvt8(a, 32, ACC+8)
    if "stlate" in VAR: a("s_waitcnt vmcnt(0)")
    a("buffer_store_dwordx4 v[28:31], v4, s[28:31], s47 offen offset:1024 " + VAR.get("stb", "nt").replace("+", " "))
    a("buffer_store_dwordx4 v[32:35], v4, s[28:31], s47 offen offset:1056 " + VAR.get("stb", "nt").replace("+", " "))
    st.stamp()
    if "stlate" not in VAR: a("s_waitcnt vmcnt(0)")
    a.label("b_tail")
    st.stamp()
    le = a.newlabel("ep")
    a("s_or_b32 s51, s2, s26")
    a("s_cmp_eq_u32 s51, 0")
    a(f"s_cbranch_scc0 {le}")
    a(f"s_mov_b32 s51, {W_EP}")
    store_flag(a, "s51", 28)
    a.label(le)
    a(f"v_add_u32 v0, {L_OA}, v9")
    lds_wait(a, C_CB + 0, 1, 5, 51, sleep=16)
    def rd(i): a(f"ds_read_b128 {vr(WL+4*(i-8),4)}, v0 offset:{i*1024}")
    lds_wait(a, C_OF, 8, 5, 51, sleep=0)
    if "tfine" in VAR: st.n = 5; st.stamp(); a("s_waitcnt lgkmcnt(0)")
    run(0, 8, "v0", 0)
    lds_wait(a, C_OF + 4, 8, 5, 51, sleep=0)
    if "tfine" in VAR: st.stamp(); a("s_waitcnt lgkmcnt(0)")
    for i in range(8, 16): rd(i)
    NE = int(VAR.get("ne", 3))
    for i in range(8, 8 + NE):
        a(f"s_waitcnt lgkmcnt({15 - i})")
        mfma32(a, ACC, WL+4*i, WL+4*(i-8), ACC)
        if i == 8: a(f"ds_read_b64 v[28:29], v10 offset:{C_OF + 8}")
    a("s_waitcnt lgkmcnt(0)")
    a("v_min_u32 v28, v28, v29")
    a("v_readfirstlane_b32 s51, v28")
    a("s_cmp_ge_u32 s51, 8")
    a("s_cbranch_scc0 b_slowtail")
    for i in range(8, 8 + NE): rd(i + 8)
    for i in range(8 + NE, 32):
        if i >= 16: a(f"s_waitcnt lgkmcnt({min(7, 31 - i)})")
        mfma32(a, ACC, WL+4*i, WL+4*(i-8), ACC)
        if i + 8 < 32: rd(i + 8)
    a.label("b_fin")
    cvt8(a, 28, ACC); cvt8(a, 32, ACC+8)
    a("buffer_store_dwordx4 v[28:31], v4, s[28:31], s47 offen " + VAR.get("sta", "nt"))
    a("buffer_store_dwordx4 v[32:35], v4, s[28:31], s47 offen offset:32 " + VAR.get("sta", "nt"))
    if DIAG:
        if "tfine" in VAR: st.stamp()
        a("s_waitcnt vmcnt(0)")
        st.stamp()
        st.dump(None, 0)
    a("s_endpgm")
    a.label("b_slowtail")
    for d in range(1, 4):
        if d > 1:
            lds_wait(a, C_OF + 4*d, 8, 5, 51, sleep=0)
            for i in range(8*d, 8*d + 8): rd(i)
        for i in range(8*d + (NE if d == 1 else 0), 8*d + 8):
            a(f"s_waitcnt lgkmcnt({8*d + 7 - i})")
            mfma32(a, ACC, WL+4*i, WL+4*(i-8), ACC)
    a("s_branch b_fin")

def pre_a(a):
    a("s_sub_u32 s59, s26, 4")
    a("s_and_b32 s42, s59, 3")
    a("s_lshr_b32 s43, s59, 2")
    a("s_lshr_b32 s46, s41, 1")
    a("s_lshl_b32 s49, s46, 4")
    a("s_lshl_b32 s48, s59, 1")
    a("s_add_u32 s49, s49, s48")
    a("s_xor_b32 s51, s49, 16")
    a("s_lshl_b32 s52, s40, 5")
    a("s_add_u32 s48, s52, s49")
    a("s_lshl_b32 s48, s48, 10")
    a("s_xor_b32 s50, s48, 16384")
    a(f"s_mul_i32 s49, s49, {XP}")
    a(f"s_mul_i32 s51, s51, {XP}")
    a("s_mov_b32 s30, 0x200000")
    a("s_mov_b32 s31, 0x20000")
    a(f"s_add_u32 m0, s49, {L_XA}")
    a("s_waitcnt lgkmcnt(0)")
    a(f"s_mov_b32 s28, s{P_AX}")
    a(f"s_mov_b32 s29, s{P_AX+1}")
    for k, (so, lb) in enumerate((("s48", "s49"), ("s50", "s51"))):
        for q in range(2):
            if k or q: a(f"s_add_u32 m0, {lb}, {L_XA + q*XP - q*1024}")
            a(f"buffer_load_dwordx4 v9, s[28:31], {so} offen offset:{q*1024} lds")
    srd(a, 36, P_WS, W_USED)
def pre_b(a):
    a("s_setprio 3")
    a("s_and_b32 s45, s41, 1")
    a("s_lshr_b32 s46, s41, 1")
    a("s_mov_b32 s30, 16384")
    a("s_mov_b32 s31, 0x20000")
    a("s_lshl_b32 s51, s26, 12")
    a(f"s_add_u32 m0, s51, {L_WK}")
    a(f"v_mov_b32 v18, {W_EP}")
    a("s_cmp_eq_u32 s45, 0")
    a("s_waitcnt lgkmcnt(0)")
    a(f"s_cselect_b32 s28, s{P_AWK}, s{P_AWV}")
    a(f"s_cselect_b32 s29, s{P_AWK+1}, s{P_AWV+1}")
    for q in range(4):
        a(f"buffer_load_dwordx4 v9, s[28:31], s51 offen offset:{q*1024} lds")
    srd(a, 36, P_WS, W_USED)
    a("buffer_load_dword v19, v18, s[36:39], 0 offen sc1")

def kernel():
    a = Asm(); n = NAME + "_kernel"
    a.label(n)
    a("s_cmp_ge_u32 s2, 256")
    a("s_cbranch_scc1 k_exit")
    load_ptrs(a)
    sta = Stamps(a, DIAG, real='--cyc' not in sys.argv); stb = Stamps(a, DIAG, real='--cyc' not in sys.argv)
    sta.stamp(); stb.n = sta.n
    VAR.setdefault("cpf", 142)
    if int(VAR["cpf"]):
        a("s_getpc_b64 s[32:33]")
        a("v_lshlrev_b32 v3, 7, v0")
        a(f"v_cmp_gt_u32 vcc, {int(VAR['cpf'])}, v0")
        a("s_and_saveexec_b64 s[34:35], vcc")
        a("s_cbranch_execz k_nopf")
        a("global_load_dword v167, v3, s[32:33]")
        a.label("k_nopf")
        a("s_mov_b64 exec, s[34:35]")
    a("v_and_b32 v1, 63, v0")
    a("v_lshrrev_b32 v2, 6, v0")
    a("v_readfirstlane_b32 s26, v2")
    a("s_and_b32 s27, s2, 7")
    a("s_lshr_b32 s3, s2, 3")
    if MAP81:
        a("s_lshl_b32 s40, s27, 3")
        a("s_lshr_b32 s41, s3, 2")
        a("s_add_u32 s40, s40, s41")
        a("s_and_b32 s41, s3, 3")
    else:
        a("s_lshr_b32 s40, s27, 1")
        a("s_lshl_b32 s40, s40, 4")
        a("s_lshr_b32 s41, s3, 1")
        a("s_add_u32 s40, s40, s41")
        a("s_and_b32 s41, s27, 1")
        a("s_lshl_b32 s41, s41, 1")
        a("s_and_b32 s27, s3, 1")
        a("s_add_u32 s41, s41, s27")
    a("s_lshl_b32 s27, s41, 1")
    a("s_and_b32 s51, s40, 1")
    a("s_add_u32 s27, s27, s51")
    a("v_and_b32 v6, 31, v1")
    a("v_lshrrev_b32 v7, 5, v1")
    a("v_lshlrev_b32 v9, 4, v1")
    a(f"v_mov_b32 v10, {L_CNT}")
    a("v_mov_b32 v11, 1")
    a("s_cmp_lt_u32 s26, 4")
    a("s_cbranch_scc0 pre_a")
    pre_b(a)
    a("s_barrier")
    a("s_branch role_b")
    a.label("pre_a")
    pre_a(a)
    a("s_barrier")
    role_a(a, sta)
    a.label("role_b")
    role_b(a, stb)
    a.label("k_exit")
    a("s_endpgm")
    return (n, a, 256, 768, LDS_SIZE, 168)

if __name__ == "__main__":
    write_file(sys.argv[1], [kernel()])
```

```python
import sys
from common import *
DIAG = "--diag" in sys.argv
VAR = dict((x[2:].split("=")+[1])[:2] for x in sys.argv if x.startswith("-V"))

W_KV = 0
W_F1 = 0x20000
W_F2 = 0x28000
W_F4 = 0x24000
W_F3 = 0x30000
W_EP = 0x3F000
W_KF = 0x40000
W_OA = 1 << 20
W_OB = 3 << 20
W_HALO = 5 << 20
W_OF = 10 << 20
W_TO = 14 << 20
W_USED = 16 << 20
L_XA = 16384
L_WK = 0
WQ_SLOT = [49664 + 16384*i for i in range(6)] + [16384, 32768]
L_GB = 97792
GB_W, GB_X, GB_SZ = 0, 24576, 32896
L_COMB = 131072
L_QX = 155392
L_BEX = 155648
L_CNT = 163584
LDS_SIZE = 163840
C_BB, C_ST, C_EX, C_XA, C_QB, C_QC, C_QD, C_XD = 4, 16, 40, 72, 76, 92, 96, 100
C_ISS, C_QR = 8, 12
C_PR, C_CB, C_OF = 104, 112, 144
L_CB = 0
L_OB = 24576
L_OA = 65536
C_PR2 = 108
C_NL = 160
BIAS = VAR.get("bias", "0xc2c80000")
VSC = 40
MAP81 = 'map24' not in VAR
XP = 1040
TAGC = 0x9E3779B9 - (1 << 32)
SPIN = 40000

def cvt8(a, dst, src):
    for i in range(4):
        a(f"v_cvt_pk_bf16_f32 v{dst+i}, v{src+2*i}, v{src+2*i+1}")

def tr_base32(a, dst, tmp):
    a(f"v_lshlrev_b32 v{dst}, 9, v7")
    a(f"v_bfe_u32 v{tmp}, v1, 2, 2")
    a(f"v_lshl_add_u32 v{dst}, v{tmp}, 6, v{dst}")
    a(f"v_bfe_u32 v{tmp}, v1, 4, 1")
    a(f"v_lshl_add_u32 v{dst}, v{tmp}, 5, v{dst}")
    a(f"v_and_b32 v{tmp}, 3, v1")
    a(f"v_lshl_add_u32 v{dst}, v{tmp}, 3, v{dst}")

def tr_base_wo(a, dst, tmp):
    a(f"v_lshlrev_b32 v{dst}, 8, v7")
    a(f"v_bfe_u32 v{tmp}, v1, 2, 2")
    a(f"v_lshl_add_u32 v{dst}, v{tmp}, 6, v{dst}")
    a(f"v_bfe_u32 v{tmp}, v1, 4, 1")
    a(f"v_lshl_add_u32 v{dst}, v{tmp}, 5, v{dst}")
    a(f"v_and_b32 v{tmp}, 1, v1")
    a(f"v_lshl_add_u32 v{dst}, v{tmp}, 4, v{dst}")
    a(f"v_bfe_u32 v{tmp}, v1, 1, 1")
    a(f"v_lshl_add_u32 v{dst}, v{tmp}, 3, v{dst}")

JS = [0]
def jitter(a):
    if "jit" not in VAR: return
    JS[0] += 1
    l = a.newlabel("jit")
    a("s_mul_i32 s97, s2, 13")
    a("s_add_u32 s97, s97, s26")
    a(f"s_mul_i32 s97, s97, {(JS[0] * 2654435761 + int(VAR['jit']) * 40503) % (1 << 31) | 1}")
    a("s_lshr_b32 s97, s97, 13")
    a("s_and_b32 s97, s97, 7")
    a("s_cmp_eq_u32 s97, 0")
    a(f"s_cbranch_scc0 {l}")
    a(f"s_sleep {20 + (JS[0] * 37) % 100}")
    a.label(l)
def lds_signal(a, off, addr="v10"):
    jitter(a)
    a("s_mov_b64 exec, 1")
    a(f"ds_add_u32 {addr}, v11 offset:{off}")
    a("s_mov_b64 exec, -1")
def lds_wait(a, off, val, tmp, stmp, addr="v10", sleep=1):
    l = a.newlabel("lw"); d = a.newlabel("lwd")
    a.label(l)
    a(f"ds_read_b32 v{tmp}, {addr} offset:{off}")
    a("s_waitcnt lgkmcnt(0)")
    a(f"v_readfirstlane_b32 s{stmp}, v{tmp}")
    a(f"s_cmp_ge_u32 s{stmp}, {val}")
    a(f"s_cbranch_scc1 {d}")
    if sleep: a(f"s_sleep {sleep}")
    a(f"s_branch {l}")
    a.label(d)
    jitter(a)
def bbar(a, tmp=5):
    a("s_add_u32 s58, s58, 4")
    lds_signal(a, C_BB)
    lds_wait(a, C_BB, "s58", tmp, 51, sleep=2)

def poll_flags(a, voff, soff, nl, t, sleep=2, width=4):
    l = a.newlabel("pf"); d = a.newlabel("pfd")
    a(f"s_mov_b32 s63, {SPIN}")
    if nl < 64: a(f"s_mov_b64 exec, {(1 << nl) - 1}")
    a.label(l)
    if width == 4:
        a(f"buffer_load_dwordx4 {vr(t,4)}, v{voff}, s[36:39], {soff} offen sc1")
        a("s_waitcnt vmcnt(0)")
        for i in range(4): a(f"v_xor_b32 v{t+i}, s62, v{t+i}")
        a(f"v_or3_b32 v{t}, v{t}, v{t+1}, v{t+2}")
        a(f"v_or_b32 v{t}, v{t}, v{t+3}")
    else:
        a(f"buffer_load_dword v{t}, v{voff}, s[36:39], {soff} offen sc1")
        a("s_waitcnt vmcnt(0)")
        a(f"v_xor_b32 v{t}, s62, v{t}")
    a(f"v_cmp_ne_u32 vcc, 0, v{t}")
    a("s_nop 1")
    a(f"s_cbranch_vccz {d}")
    a(f"s_sleep {sleep}")
    a("s_sub_u32 s63, s63, 1")
    a("s_cmp_lg_u32 s63, 0")
    a(f"s_cbranch_scc1 {l}")
    a.label(d)
    a("s_mov_b64 exec, -1")

def store_flag(a, soff, t):
    jitter(a)
    a(f"v_mov_b32 v{t}, s62")
    a(f"v_mov_b32 v{t+1}, 0")
    a("s_mov_b64 exec, 1")
    a(f"buffer_store_dword v{t}, v{t+1}, s[36:39], {soff} offen sc1")
    a("s_mov_b64 exec, -1")

def rowmax16(a, dst, S, init=None):
    if init is None:
        a(f"v_max3_f32 v{dst}, v{S}, v{S+1}, v{S+2}")
        for i in range(3, 15, 2): a(f"v_max3_f32 v{dst}, v{dst}, v{S+i}, v{S+i+1}")
        a(f"v_max_f32 v{dst}, v{dst}, v{S+15}")
    else:
        for i in range(0, 16, 2): a(f"v_max3_f32 v{dst}, v{dst}, v{S+i}, v{S+i+1}")
def xhalf_max(a, dst, tmp):
    a(f"v_mov_b32 v{tmp}, v{dst}")
    a(f"v_permlane32_swap_b32 v{dst}, v{tmp}")
    a(f"v_max_f32 v{dst}, v{dst}, v{tmp}")

def kv_dma(a, sreg, n, first=False, only=None):
    for q in range(n):
        if (q & 3) == 0:
            a(f"s_mov_b32 m0, s{sreg}")
            a(f"s_lshr_b32 s51, s{sreg}, 12")
            if not first:
                a("s_add_u32 s51, s51, s59")
                a("s_cmp_ge_u32 s51, 32")
                a("s_cselect_b32 s52, 28, 0")
                a("s_sub_u32 s51, s51, s52")
            a("s_add_u32 s51, s51, s55")
            a("s_and_b32 s51, s51, 31")
            a("s_lshl_b32 s51, s51, 12")
        if only is None or q in only: a(f"buffer_load_dwordx4 v9, s[36:39], s51 offen offset:{(q&3)*1024} sc1 lds")
        if (q & 3) == 3 and q + 1 < n: a(f"s_add_u32 s{sreg}, s{sreg}, 4096")

def kv_job(a, st=None):
    X = 24; W = 88
    lv = a.newlabel("kv_v"); ld = a.newlabel("kv_d")
    def reads(s):
        a(f"ds_read_b128 {vr(X+4*s,4)}, v14 offset:{s*64}")
        for t in range(2):
            a(f"ds_read_b64_tr_b16 {vr(W+4*s+2*t,2)}, v15 offset:{L_WK + s*1024 + t*128}")
    a("s_cmp_eq_u32 s45, 0")
    a(f"s_cbranch_scc0 {lv}")
    for which in range(2):
        if which: a.label(lv)
        for s in range(4): reads(s)
        for s in range(16):
            if s + 4 < 16:
                reads(s + 4); a("s_waitcnt lgkmcnt(12)")
            else:
                a(f"s_waitcnt lgkmcnt({3*(15-s)})")
            if which == 0: mfma16(a, 20, W+4*s, X+4*s, "0" if s == 0 else 20)
            else:          mfma16(a, 20, X+4*s, W+4*s, "0" if s == 0 else 20)
        if not which: a(f"s_branch {ld}")
    a.label(ld)
def kv_store(a):
    jitter(a)
    a("s_cmp_eq_u32 s45, 0")
    a(f"s_cselect_b32 s51, 1.0, {hex((127 + VSC) << 23)}")
    for i in range(4): a(f"v_mul_f32 v{20+i}, s51, v{20+i}")
    a("v_cvt_pk_bf16_f32 v156, v20, v21")
    a("v_cvt_pk_bf16_f32 v157, v22, v23")
    a("v_xor_b32 v158, s62, v156")
    a("v_xor_b32 v159, s62, v157")
    if "nokvfast" not in VAR: a("buffer_store_dwordx4 v[156:159], v17, s[36:39], s54 offen")
    a("buffer_store_dwordx2 v[156:157], v16, s[36:39], s52 offen sc1")
def kv_flag(a):
    a("s_waitcnt vmcnt(0)")
    store_flag(a, "s53", 18)

def kv_setup(a):
    a("v_and_b32 v12, 15, v1")
    a("v_lshrrev_b32 v13, 4, v1")
    a(f"v_mul_u32_u24 v14, {XP}, v12")
    a("v_lshl_add_u32 v14, v13, 4, v14")
    a(f"s_mul_i32 s51, s46, {16*XP}")
    a(f"s_add_u32 s51, s51, {L_XA}")
    a("v_add_u32 v14, s51, v14")
    a("v_lshlrev_b32 v15, 8, v13")
    a("v_lshl_add_u32 v15, v12, 3, v15")
    a("v_and_b32 v16, 1, v13")
    a("s_cmp_eq_u32 s45, 0")
    a("s_cselect_b32 s51, 9, 8")
    a("s_cselect_b32 s52, 8, 9")
    a("s_lshl_b32 s52, s46, s52")
    a("s_lshl_b32 s53, s45, 10")
    a("s_add_u32 s52, s52, s53")
    a("s_lshl_b32 s53, s40, 11")
    a("s_add_u32 s52, s52, s53")
    a("v_lshlrev_b32 v16, s51, v16")
    a("v_lshl_add_u32 v16, v12, 4, v16")
    a("v_lshrrev_b32 v17, 1, v13")
    a("v_lshl_add_u32 v16, v17, 3, v16")
    a("s_lshl_b32 s53, s40, 7")
    a("s_lshl_b32 s54, s41, 2")
    a("s_add_u32 s53, s53, s54")
    a(f"s_add_u32 s53, s53, {W_F1}")
    a("v_lshlrev_b32 v17, 1, v16")
    a("s_lshl_b32 s54, s52, 1")
    a(f"s_add_u32 s54, s54, {W_KF}")

def stouch_setup(a, slot, bw, bx):
    a("s_lshr_b32 s51, s3, 2")
    a(f"s_lshl_b32 s54, {slot}, 3")
    a("s_add_u32 s51, s51, s54")
    a("s_lshl_b32 s51, s51, 10")
    a("s_lshl_b32 s54, s27, 7")
    a("s_add_u32 s51, s51, s54")
    a(f"s_add_u32 s{bw}, s{P_BWQKV}, s51")
    a(f"s_addc_u32 s{bw+1}, s{P_BWQKV+1}, 0")
    a(f"s_add_u32 s{bw+2}, s{bw}, {24*32768}")
    a(f"s_addc_u32 s{bw+3}, s{bw+1}, 0")
    a("s_lshr_b32 s51, s40, 1")
    a("s_lshl_b32 s51, s51, 16")
    a("s_and_b32 s54, s3, 3")
    a("s_lshl_b32 s54, s54, 14")
    a("s_add_u32 s51, s51, s54")
    a(f"s_lshl_b32 s54, {slot}, 12")
    a("s_add_u32 s51, s51, s54")
    a(f"s_add_u32 s{bx}, s{P_BX}, s51")
    a(f"s_addc_u32 s{bx+1}, s{P_BX+1}, 0")
def stouch_list(chunks, bw, bx):
    l = []
    for c in chunks:
        for r in range(4): l.append((f"s[{bx}:{bx+1}]", r*1024 + c*128))
        for i in range(6):
            m = c*6 + i
            l.append((f"s[{bw}:{bw+1}]", m*32768) if m < 24 else (f"s[{bw+2}:{bw+3}]", (m-24)*32768))
    return l

def role_a(a, st):
    FINE = "fine" in VAR
    class F:
        def stamp(self):
            if FINE: st0.stamp()
    st0 = st; fs = F()
    if FINE:
        class N:
            n = 0
            def stamp(self): pass
            def dump(self, *x): st0.dump(*x)
        st = N()
    srd(a, 32, P_AWQ, 512 * 1024)
    S0, S1, O0, O1, C0, C1, P0, P1, Q0, Q1, KB, VB = 16, 32, 48, 64, 80, 96, 112, 120, 128, 132, 136, 144
    a(f"s_bfe_u32 s55, s3, {0x30002 if MAP81 else 0x30001}")
    a("s_cmp_eq_u32 s43, 0")
    a("s_cbranch_scc0 a_kh1")
    def early_init():
        for i in range(32): a(f"v_mov_b32 v{O0+i}, 0")
        a("s_lshl_b32 s56, s43, 11")
        a("v_add_u32 v2, s56, v9")
        a("v_lshlrev_b32 v3, 8, v7")
        a("v_lshl_add_u32 v3, v6, 4, v3")
        a("v_add_u32 v3, s56, v3")
        a("s_mov_b32 s60, 0x0000ffff")
        a("s_mov_b32 s61, 0x0000ffff")
        a("v_and_b32 v14, 27, v6")
        a("v_cmp_eq_u32 vcc, 16, v14")
        a(f"v_mov_b32 v13, {hex(((127 + VSC) << 7) * 0x10001)}")
        a("v_cndmask_b32 v14, 0, v13, vcc")
        for i in range(8): a(f"v_mov_b32 v{VB+i}, v14")
    XF = 16; WF = 144; ACC = 152
    a(f"v_mul_u32_u24 v4, {XP}, v6")
    a("v_lshl_add_u32 v4, v7, 4, v4")
    a("v_lshlrev_b32 v8, 11, v7")
    a("v_bfe_u32 v5, v1, 2, 2")
    a("v_lshl_add_u32 v8, v5, 8, v8")
    a("v_xor_b32 v5, s42, v5")
    a("v_lshl_add_u32 v8, v5, 6, v8")
    a("v_bfe_u32 v5, v1, 4, 1")
    a("v_lshl_add_u32 v8, v5, 5, v8")
    a("v_and_b32 v5, 3, v1")
    a("v_lshl_add_u32 v8, v5, 3, v8")
    a(f"s_waitcnt vmcnt({0 if 'merge' in VAR else 2}) lgkmcnt(0)")
    a("s_barrier")
    st.stamp()
    if "merge" not in VAR:
        a("s_waitcnt vmcnt(0)")
        a("s_barrier")
    fs.stamp()
    def xload(i):
        a(f"s_add_u32 s51, s55, {i}")
        a("s_and_b32 s51, s51, 7")
        a("s_lshl_b32 s51, s51, 7")
        a("v_add_u32 v5, s51, v4")
        for sp in range(4):
            a(f"ds_read_b128 {vr(XF+16*i+4*sp,4)}, v5 offset:{L_XA + sp*32}")
    for i in range(8): xload(i)
    a("v_add_u32 v5, 16384, v8")
    a("v_add_u32 v15, 115200, v8")
    a("v_add_u32 v8, 66048, v8")
    st.stamp(); fs.stamp()
    a("s_waitcnt lgkmcnt(0)")
    wmap = {}
    free = [144, 148]
    def qread(st_):
        i = st_ >> 2; sp = st_ & 3; sl = WQ_SLOT[i]
        r = free.pop(0); wmap[st_] = r
        base, off = ("v5", sl - 16384) if sl < 66048 else (("v8", sl - 66048) if sl < 115200 else ("v15", sl - 115200))
        for t in range(2):
            a(f"ds_read_b64_tr_b16 {vr(r+2*t,2)}, {base} offset:{off + sp*4096 + t*1024}")
    nr = 0; avail = 0; pend = []
    LEAD = int(VAR.get("lead", 4))
    for st_ in range(32):
        if avail < 32 and (st_ >= avail - LEAD):
            a("s_barrier")
            if FINE: fs.stamp(); a("s_waitcnt lgkmcnt(0)"); pend = []
            avail += 8
        while nr < avail and free and len(pend) <= 12:
            qread(nr); pend += [nr, nr]; nr += 1
            if nr == 32: lds_signal(a, C_QD); pend += [99]
        if st_ in pend:
            k = len(pend) - 1 - max(i for i, x in enumerate(pend) if x == st_)
            a(f"s_waitcnt lgkmcnt({k})")
            pend = pend[len(pend)-k:] if k else []
        mfma32(a, ACC, wmap[st_], XF+4*st_, "0" if st_ == 0 else ACC)
        for r in (wmap[st_], XF+4*st_):
            if not (48 <= r < 80) and (r < 144 or st_ < 6): free.append(r)
        if st_ == 17: early_init()
    st.stamp()
    a(f"s_mov_b32 s51, {CSCALE}")
    a("s_lshl_b32 s53, s42, 11")
    a(f"s_add_u32 s53, s53, {L_QX}")
    a("v_add_u32 v12, s53, v9")
    a("s_lshl_b32 s53, s42, 2")
    a("v_add_u32 v13, s53, v10")
    for i in range(16): a(f"v_mul_f32 v{ACC+i}, s51, v{ACC+i}")
    cvt8(a, Q1, ACC); cvt8(a, Q0, ACC+8)
    a(f"ds_write_b128 v12, {vr(Q1,4)}")
    a(f"ds_write_b128 v12, {vr(Q0,4)} offset:1024")
    lds_signal(a, C_EX, "v13")
    fs.stamp()
    a("s_branch a_join")
    a.label("a_kh1")
    st.n -= 3
    if FINE: st0.n = 1
    a("v_lshrrev_b32 v4, 4, v1")
    a("v_bfe_u32 v5, v1, 2, 2")
    a("v_xor_b32 v5, v5, v4")
    a("v_lshlrev_b32 v3, 10, v4")
    a("v_lshl_add_u32 v3, v5, 6, v3")
    a("v_and_b32 v5, 3, v1")
    a("v_lshl_add_u32 v3, v5, 4, v3")
    a("s_lshl_b32 s48, s42, 14")
    a("s_lshl_b32 s51, s41, 8")
    a("s_add_u32 s48, s48, s51")
    a("s_lshl_b32 s49, s42, 12")
    def op_q(i):
        a(f"s_add_u32 s51, s55, {i}")
        a("s_and_b32 s51, s51, 7")
        a("s_lshl_b32 s51, s51, 16")
        a("s_add_u32 s51, s51, s48")
        for q in range(4):
            a(f"s_add_u32 m0, s49, {WQ_SLOT[i] + q*1024}")
            if q: a("s_add_u32 s51, s51, 4096")
            a("buffer_load_dwordx4 v3, s[32:35], s51 offen lds")
    NPRE = int(VAR.get('npre', 2))
    for i in range(NPRE): op_q(i)
    MERGE = "merge" in VAR
    a(f"s_waitcnt vmcnt({4*NPRE + (0 if MERGE else 2)}) lgkmcnt(0)")
    a("s_barrier")
    st.stamp()
    nxt = NPRE
    if not MERGE:
        for _ in range(int(VAR.get("mid", 0))): op_q(nxt); nxt += 1
        a(f"s_waitcnt vmcnt({4*nxt})")
        a("s_barrier")
    fs.stamp()
    for gq in range(3):
        lim = 6 if gq == 0 else 8
        for _ in range(2):
            if nxt < lim: op_q(nxt); nxt += 1
        a(f"s_waitcnt vmcnt({4*(nxt - 2*gq - 2)})")
        fs.stamp()
        a("s_barrier")
    a("s_waitcnt vmcnt(0)")
    fs.stamp()
    a("s_barrier")
    st.stamp()
    early_init()
    a("s_lshl_b32 s53, s42, 11")
    a(f"s_add_u32 s53, s53, {L_QX}")
    a("v_add_u32 v15, s53, v9")
    a("s_lshl_b32 s53, s42, 2")
    a("v_add_u32 v13, s53, v10")
    lds_wait(a, C_EX, 1, 12, 51, "v13")
    a(f"ds_read_b128 {vr(Q0,4)}, v15")
    a(f"ds_read_b128 {vr(Q1,4)}, v15 offset:1024")
    fs.stamp()
    lds_signal(a, C_QR)
    st.stamp()
    a.label("a_join")
    def tail_setup():
        a("s_xor_b32 s52, s59, 4")
        a("s_mul_i32 s53, s59, 3072")
        a(f"v_add_u32 v160, s53, v9")
        a("s_mul_i32 s53, s52, 3072")
        a(f"v_add_u32 v161, s53, v9")
        a("s_lshl_b32 s53, s59, 2")
        a("v_add_u32 v162, s53, v10")
        a("s_lshl_b32 s53, s52, 2")
        a("v_add_u32 v163, s53, v10")
        a("s_lshl_b32 s57, s42, 1")
        a("s_add_u32 s57, s57, s43")
        a("s_lshl_b32 s58, s40, 5")
        a("s_lshl_b32 s53, s41, 3")
        a("s_add_u32 s53, s53, s58")
        a("s_add_u32 s53, s53, s57")
        a("s_lshl_b32 s53, s53, 10")
        a(f"s_add_u32 s44, s53, {W_OA}")
        a("s_lshl_b32 s57, s57, 10")
        a(f"s_add_u32 s57, s57, {L_OA}")
        a("v_add_u32 v164, s57, v9")
        a(f"s_add_u32 s48, s44, {W_OF - W_OA}")
        a("s_lshl_b32 s57, s59, 10")
        a(f"s_add_u32 s57, s57, {L_OA}")
        a("v_add_u32 v165, s57, v9")
        for d in range(1, 4):
            a(f"s_add_u32 s51, s41, {d}")
            a("s_and_b32 s51, s51, 3")
            a("s_lshl_b32 s51, s51, 3")
            a("s_add_u32 s51, s51, s58")
            a("s_add_u32 s51, s51, s59")
            a("s_lshl_b32 s51, s51, 10")
            a(f"s_add_u32 s{44+d}, s51, {W_OA}")
    for i in range(8, 16): a(f"v_mov_b32 v{VB+i}, v14")
    for i in range(4): a(f"v_mov_b32 v{P1+4+i}, 0")
    st.stamp()
    lds_wait(a, C_ST + 0, 4, 12, 51, sleep=0)
    if FINE: st0.n = 12
    fs.stamp()
    def kvread(b, off):
        a(f"ds_read_b128 {vr(KB+4*b,4)}, v2 offset:{off}")
        a("s_mov_b64 exec, s[60:61]")
        a(f"ds_read_b128 {vr(VB+8*b,4)}, v3 offset:{off+1024}")
        a(f"ds_read_b128 {vr(VB+8*b+4,4)}, v3 offset:{off+1536}")
        a("s_mov_b64 exec, -1")
    a(f"ds_read_b128 {vr(P0,4)}, v9")
    DEEP = "shallow" not in VAR
    def kread(b, off):
        if "nods" not in VAR: a(f"ds_read_b128 {vr(KB+4*b,4)}, v2 offset:{off}")
    def vread(b, off):
        if "nods" in VAR: return
        if "noex" not in VAR: a("s_mov_b64 exec, s[60:61]")
        a(f"ds_read_b128 {vr(VB+8*b,4)}, v3 offset:{off+1024}")
        a(f"ds_read_b128 {vr(VB+8*b+4,4)}, v3 offset:{off+1536}")
        if "noex" not in VAR: a("s_mov_b64 exec, -1")
    kvread(0, 0)
    if DEEP: kread(1, 4096)
    a(f"s_waitcnt lgkmcnt({4 if DEEP else 3})" if not DIAG else "s_waitcnt lgkmcnt(0)")
    mfma32(a, S0, P0, Q0, "0")
    mfma32(a, S1, P0, Q1, "0")
    for S, C in ((S0, C0), (S1, C1)):
        rowmax16(a, 12, S)
        xhalf_max(a, 12, 13)
        a(f"v_sub_f32 v{C}, {BIAS}, v12")
        for i in range(1, 16): a(f"v_mov_b32 v{C+i}, v{C}")
        if S == S0:
            a("s_waitcnt lgkmcnt(0)")
            mfma32(a, S0, KB, Q0, C0)
    st.stamp()
    a("s_mov_b32 s50, 0")
    a(f"s_setprio {VAR.get('ap0', 3)}")
    if DIAG: a("s_waitcnt lgkmcnt(0)")
    a(".p2align 6")
    for _ in range(int(VAR.get("shift", 0))): a("s_nop 0")
    a.label("a_loop")
    def E(S, lo, hi):
        for i in range(lo, hi): a(f"v_exp_f32{VAR.get('enc', '')} v{S+i}, v{S+i}")
    def half(S, P, O, Vx, pvy, snext, w1, post, post2=(), w2=None):
        E(S, 0, 2)
        mfma32(a, *pvy)
        for x in post: x()
        E(S, 2, 8)
        if w1: a("s_waitcnt lgkmcnt(0)")
        mfma32(a, *snext)
        for x in post2: x()
        cvt8(a, P, S)
        E(S, 8, 12)
        if w2 is not None: a(f"s_waitcnt lgkmcnt({w2})")
        mfma32(a, O, Vx, P, O)
        E(S, 12, 16)
        cvt8(a, P+4, S+8)
    HK = {0: [("w", 4)], 1: [("w", 8)], 3: [("p", 2)], 5: [("w", 12)]}
    for k in list(HK): HK[k] = [x for x in HK[k] if x[0] != "p"]
    PR0 = dict(zip(map(int, VAR.get("pr0", "3,5,6").split(",")), (2, 1, 0)))
    PR1 = dict(zip(map(int, VAR.get("pr1", "4,6,7").split(",")), (2, 1, 0)))
    for it in range(8):
        if it in PR0 or it in PR1: HK[it] = [("p", (PR0.get(it), PR1.get(it)))] + HK.get(it, [])
    if "ap0" in VAR: HK = {0: [("w", 4)], 1: [("w", 8)], 3: [("p", 1)], 4: [("w", 12)], 6: [("p", 0)]}
    def hooks():
        a("s_bitcmp1_b32 s50, 2")
        a("s_cbranch_scc1 a_hk_hi")
        a("s_branch a_hk_lo")
        a.label("a_hk_done")
    for t in range(4):
        b = t & 1; nb = b ^ 1
        if DEEP:
            post = [lambda: vread(nb, (t+1)*4096)]
            if t == 2: post = [hooks] + post
            half(S0, P0, O0, VB+8*b, (O1, VB+8*nb+4, P1+4, O1), (S1, KB+4*b, Q1, C1), False, post, [lambda: kread(b, (t+2)*4096)], 3)
            half(S1, P1, O1, VB+8*b, (O0, VB+8*b+4, P0+4, O0), (S0, KB+4*nb, Q0, C0), False, [])
            continue
        post = [lambda: kvread(nb, (t+1)*4096)]
        if t == 3: post = [hooks] + post
        half(S0, P0, O0, VB+8*b, (O1, VB+8*nb+4, P1+4, O1), (S1, KB+4*b, Q1, C1), False, post)
        half(S1, P1, O1, VB+8*b, (O0, VB+8*b+4, P0+4, O0), (S0, KB+4*nb, Q0, C0), True, [])
    a("v_add_u32 v2, 16384, v2")
    a("v_add_u32 v3, 16384, v3")
    a("s_add_u32 s50, s50, 1")
    a("s_cmp_lt_u32 s50, 8")
    a("s_cbranch_scc1 a_loop")
    mfma32(a, O1, VB+8+4, P1+4, O1)
    st.stamp()
    for i in range(2): a(f"ds_write_b128 v160, {vr(O0+4*i,4)} offset:{L_CB + i*1024}")
    a(f"ds_write_b32 v160, v{O0+8} offset:{L_CB + 2048}")
    lds_signal(a, C_CB, "v162")
    a("s_setprio 3")
    lds_wait(a, C_CB, 1, 12, 51, "v163", sleep=int(VAR.get("cbsleep", 0)))
    if "tfine" in VAR: st.stamp()
    for i in range(2): a(f"ds_read_b128 {vr(S0+4*i,4)}, v161 offset:{L_CB + i*1024}")
    a(f"ds_read_b32 v{S0+8}, v161 offset:{L_CB + 2048}")
    a("s_mov_b32 s51, 0x7b800000")
    a(f"s_mov_b32 s53, {hex((127 - 85) << 23)}")
    a("s_waitcnt lgkmcnt(0)")
    a(f"v_add_f32 v{O1+8}, v{O1+8}, v{S0+8}")
    a(f"v_rcp_f32 v14, v{O1+8}")
    for i in range(8): a(f"v_add_f32 v{O1+i}, v{O1+i}, v{S0+i}")
    a(f"v_add_f32 v12, abs(v{O1}), abs(v{O1+1})")
    a(f"v_add_f32 v13, abs(v{O1+2}), abs(v{O1+3})")
    for i in range(4, 8, 2):
        a(f"v_add_f32 v12, v12, abs(v{O1+i})")
        a(f"v_add_f32 v13, v13, abs(v{O1+i+1})")
    a("v_add_f32 v12, v12, v13")
    a(f"v_add_f32 v13, v12, v{O1+8}")
    a("v_cmp_ngt_f32 vcc, s51, v13")
    a("v_cmp_gt_f32 s[64:65], s53, v12")
    a("s_or_b64 vcc, vcc, s[64:65]")
    if "forcefb" in VAR: a("s_mov_b64 vcc, -1")
    if "bidle" in VAR: a("s_mov_b64 vcc, 0")
    a("s_cbranch_vccnz a_fallback")
    a.label("a_norm")
    for i in range(8): a(f"v_mul_f32 v{O1+i}, v{O1+i}, v14")
    cvt8(a, P0, O1)
    for i in range(4): a(f"v_min_u32 v{P0+i}, -2, v{P0+i}")
    if "nofast" not in VAR: a(f"buffer_store_dwordx4 {vr(P0,4)}, v9, s[36:39], s48 offen " + VAR.get("fst", "nt"))
    a(f"ds_write_b128 v164, {vr(P0,4)}")
    lds_signal(a, C_OF)
    st.stamp()
    a(f"s_mov_b32 s63, {SPIN}")
    lnl = a.newlabel("nl")
    a("s_cmp_eq_u32 s49, 0")
    a(f"s_cbranch_scc1 {lnl}")
    a(f"buffer_store_dwordx4 {vr(P0,4)}, v9, s[36:39], s44 offen sc1")
    a(f"s_mov_b32 s63, {SPIN - 20}")
    a("s_mov_b32 s49, 0")
    a.label(lnl)
    a("s_mov_b32 s50, 0")
    a.label("a_poll")
    a(f"s_cmp_lt_u32 s63, {SPIN - int(VAR.get('fastn', 12))}")
    a("s_cselect_b32 s51, s63, 0")
    a("s_bitcmp1_b32 s51, 0")
    a(f"s_cselect_b32 s51, 0, {W_OF - W_OA}")
    a("v_add_u32 v13, s51, v9")
    for d in range(1, 4):
        a(f"buffer_load_dwordx4 {vr(S0+4*(d-1),4)}, v13, s[36:39], s{44+d} offen sc1")
    a("s_sub_u32 s63, s63, 1")
    for d in range(1, 4):
        r = S0 + 4*(d-1)
        nx = a.newlabel("pn")
        a(f"s_waitcnt vmcnt({3-d})")
        a(f"s_bitcmp1_b32 s50, {d}")
        a(f"s_cbranch_scc1 {nx}")
        a(f"v_max3_u32 v12, v{r}, v{r+1}, v{r+2}")
        a(f"v_max_u32 v12, v12, v{r+3}")
        a("v_cmp_eq_u32 vcc, -1, v12")
        a("s_cmp_eq_u32 s63, 0")
        a("s_cselect_b64 vcc, 0, vcc")
        a(f"s_cbranch_vccnz {nx}")
        a(f"ds_write_b128 v165, {vr(r,4)} offset:{d*8192}")
        lds_signal(a, C_OF + 4*d)
        a(f"s_bitset1_b32 s50, {d}")
        a.label(nx)
    a("s_cmp_eq_u32 s50, 14")
    a("s_cbranch_scc1 a_got")
    ls = a.newlabel("sl")
    a(f"s_cmp_eq_u32 s63, {SPIN - int(VAR.get('slown', 4))}")
    a(f"s_cbranch_scc0 {ls}")
    a(f"buffer_store_dwordx4 {vr(P0,4)}, v9, s[36:39], s44 offen sc1")
    a.label(ls)
    if int(VAR.get('tsleep', 0)): a(f"s_sleep {VAR.get('tsleep', 0)}")
    a("s_branch a_poll")
    a.label("a_got")
    a("s_cmp_eq_u32 s49, 0")
    a("s_cbranch_scc1 a_done")
    a(f"buffer_store_dwordx4 {vr(P0,4)}, v9, s[36:39], s44 offen sc1")
    a.label("a_done")
    st.stamp()
    if "tfine" in VAR:
        a("s_waitcnt lgkmcnt(0)")
        a(f"s_sub_u32 s72, {SPIN}, s63")
        a("s_add_u32 s72, s72, s70")
    st.dump(None, 0)
    a("s_endpgm")
    def read_nl():
        a(f"ds_read_b32 v12, v10 offset:{C_NL}")
        a("s_waitcnt lgkmcnt(0)")
        a("v_readfirstlane_b32 s49, v12")
    def pretouch():
        a(f"v_lshlrev_b32 v13, 7, v1")
        a(f"v_add_u32 v13, {W_OF - W_OA}, v13")
        a("s_mov_b64 exec, 0xff")
        for d in range(1, 4): a(f"buffer_load_dword v166, v13, s[36:39], s{44+d} offen sc1")
        a("s_mov_b64 exec, -1")
    HK[3] = HK.get(3, []) + [("sig", C_PR)]
    HK[6] = HK.get(6, []) + [("sig", C_PR2)]
    HK[2] = [x for x in HK.get(2, []) if x[0] == "p"] + [("f", tail_setup)]
    HK[7] = [x for x in HK.get(7, []) if x[0] == "p"] + [("w", 16), ("w8", C_PR2), ("f", read_nl)] + ([("f", pretouch)] if "nopre" not in VAR else [])
    for nm, rng in (("a_hk_lo", range(0, 4)), ("a_hk_hi", range(4, 8))):
        a.label(nm)
        for i in rng:
            if i not in HK: continue
            nx = a.newlabel("hk")
            a(f"s_cmp_eq_u32 s50, {i}")
            a(f"s_cbranch_scc0 {nx}")
            for kind, v in HK[i]:
                if kind == "w":
                    if "hkt" in VAR:
                        a("s_memtime s[4:5]")
                    lds_wait(a, C_ST + v, 4, 12, 51)
                    if "hkt" in VAR:
                        a("s_memtime s[6:7]")
                        a("s_waitcnt lgkmcnt(0)")
                        a("s_sub_u32 s6, s6, s4")
                        a(f"s_add_u32 s{72 + 2*(v//4 - 1)}, s70, s6")
                elif kind == "sig": lds_signal(a, v)
                elif kind == "f": v()
                elif kind == "w8": lds_wait(a, v, 8, 12, 51)
                elif kind == "s":
                    a("s_cmp_eq_u32 s43, 0")
                    a("s_cbranch_scc0 a_hk_done")
                    a("s_waitcnt vmcnt(0)")
                    lds_signal(a, C_ST + v)
                elif v[0] == v[1]: a(f"s_setprio {v[0]}")
                else:
                    for kh_, lv in enumerate(v):
                        if lv is None: continue
                        lp = a.newlabel("pp")
                        a(f"s_cmp_eq_u32 s43, {kh_}")
                        a(f"s_cbranch_scc0 {lp}")
                        a(f"s_setprio {lv}")
                        a.label(lp)
            a("s_branch a_hk_done")
            a.label(nx)
        a("s_branch a_hk_done")
    a.label("a_fallback")
    a("v_mov_b32 v12, 0xff800000")
    a("s_mov_b32 s50, 0")
    a.label("a_fb1")
    a(f"buffer_load_dwordx4 {vr(KB,4)}, v9, s[36:39], s50 offen sc1")
    a("s_waitcnt vmcnt(0)")
    mfma32(a, S0, KB, Q1, "0")
    a("s_add_u32 s50, s50, 2048")
    rowmax16(a, 12, S0, init=True)
    a("s_cmp_lt_u32 s50, 0x20000")
    a("s_cbranch_scc1 a_fb1")
    xhalf_max(a, 12, 13)
    a(f"v_sub_f32 v{C0}, 0, v12")
    for i in range(1, 16): a(f"v_mov_b32 v{C0+i}, v{C0}")
    for i in range(16): a(f"v_mov_b32 v{O1+i}, 0")
    a("v_lshlrev_b32 v3, 8, v7")
    a("v_lshl_add_u32 v3, v6, 4, v3")
    a("s_mov_b32 s50, 0")
    a.label("a_fb2")
    a(f"buffer_load_dwordx4 {vr(KB,4)}, v9, s[36:39], s50 offen sc1")
    a("s_mov_b64 exec, s[60:61]")
    a(f"buffer_load_dwordx4 {vr(VB,4)}, v3, s[36:39], s50 offen offset:1024 sc1")
    a(f"buffer_load_dwordx4 {vr(VB+4,4)}, v3, s[36:39], s50 offen offset:1536 sc1")
    a("s_mov_b64 exec, -1")
    a("s_waitcnt vmcnt(0)")
    mfma32(a, S0, KB, Q1, C0)
    a("s_add_u32 s50, s50, 2048")
    E(S0, 0, 16)
    cvt8(a, P0, S0); cvt8(a, P0+4, S0+8)
    mfma32(a, O1, VB, P0, O1)
    mfma32(a, O1, VB+4, P0+4, O1)
    a("s_cmp_lt_u32 s50, 0x20000")
    a("s_cbranch_scc1 a_fb2")
    a(f"v_rcp_f32 v14, v{O1+8}")
    a("s_branch a_norm")

def role_b(a, st):
    a("s_mov_b32 s58, 0")
    a("s_lshr_b32 s44, s40, 1")
    a("s_and_b32 s42, s26, 1")
    a("s_lshr_b32 s43, s26, 1")
    srd(a, 28, P_BX, 2 << 20)
    srd(a, 32, P_BWQKV, 512 * 3072)
    a("v_lshrrev_b32 v12, 3, v1")
    a("v_and_b32 v13, 7, v1")
    a("v_bfe_u32 v14, v1, 4, 1")
    a("v_lshlrev_b32 v14, 2, v14")
    a("v_xor_b32 v14, v14, v13")
    a("v_mul_u32_u24 v3, 3072, v12")
    a("v_lshl_add_u32 v3, v14, 4, v3")
    a("v_lshlrev_b32 v4, 10, v12")
    a("v_lshl_add_u32 v4, v14, 4, v4")
    a(f"s_mul_i32 s64, s26, {16*3072}")
    a("s_lshl_b32 s51, s27, 7")
    a("s_add_u32 s64, s64, s51")
    a("s_lshl_b32 s65, s44, 16")
    a("s_lshl_b32 s51, s26, 14")
    a("s_add_u32 s65, s65, s51")
    if MAP81:
        a("s_lshr_b32 s67, s3, 3")
        a("s_lshl_b32 s67, s67, 1")
        a("s_add_u32 s67, s67, s3")
    else:
        a("s_lshr_b32 s67, s3, 2")
        a("s_lshl_b32 s51, s3, 1")
        a("s_add_u32 s67, s67, s51")
    a("s_and_b32 s67, s67, 7")
    a("s_mul_i32 s56, s26, 6144")
    a(f"s_add_u32 s56, s56, {L_GB + GB_W}")
    a("s_mul_i32 s57, s26, 2080")
    a(f"s_add_u32 s57, s57, {L_GB + GB_X}")
    INLOOP = [False]
    def issue_ops(buf):
        o = buf * GB_SZ
        def pre():
            a(f"s_mul_i32 s48, s67, {64*3072}")
            a("s_add_u32 s48, s48, s64")
            a(f"s_add_u32 s47, s48, {8*3072}")
            a("s_lshl_b32 s49, s67, 7")
            a("s_add_u32 s49, s49, s65")
            a("s_add_u32 s66, s49, 8192")
            a("s_add_u32 s67, s67, 1")
            a("s_and_b32 s67, s67, 7")
        ops = [pre]
        for q in range(2):
            def fx(q=q):
                a(f"s_add_u32 m0, s57, {o + q*1040}")
                a(f"buffer_load_dwordx4 v4, s[28:31], {'s66' if q else 's49'} offen lds")
            ops.append(fx)
        for gq in range(2):
            for t in range(3):
                def f(gq=gq, t=t):
                    if t == 0: a(f"s_add_u32 m0, s56, {o + gq*3072}")
                    a(f"buffer_load_dwordx4 v3, s[32:35], {'s47' if gq else 's48'} offen offset:{t*1024} lds")
                ops.append(f)
        if "gnodma" in VAR and INLOOP[0]: return [lambda: None] * 8 + [lambda: a("s_sleep 10")]
        return ops
    BST = VAR.get("bstart", "st4")
    if BST == "early":
        for f in issue_ops(0): f()
    lk = a.newlabel("nokv")
    a("v_lshl_add_u32 v5, v1, 2, v10")
    a("v_mov_b32 v12, 0")
    a("ds_write_b32 v5, v12")
    kv_setup(a)
    a("s_waitcnt vmcnt(0) lgkmcnt(0)")
    a("v_readfirstlane_b32 s62, v19")
    a(f"s_add_u32 s62, s62, {TAGC}")
    a("s_barrier")
    a("s_cmp_eq_u32 s26, 3")
    a(f"s_cbranch_scc0 {lk}")
    kv_job(a)
    if "merge" not in VAR: a("s_barrier")
    kv_store(a)
    lk2 = a.newlabel("kvs")
    a(f"s_branch {lk2}")
    a.label(lk)
    if "merge" not in VAR: a("s_barrier")
    a.label(lk2)
    a("s_mov_b32 s45, s27")
    a("v_mul_u32_u24 v8, 3072, v7")
    a("v_bfe_u32 v14, v1, 2, 2")
    a("v_lshl_add_u32 v8, v14, 7, v8")
    a("v_bfe_u32 v14, v1, 3, 1")
    a("v_xor_b32 v14, s42, v14")
    a("v_lshl_add_u32 v8, v14, 6, v8")
    a("v_bfe_u32 v14, v1, 4, 1")
    a("v_lshl_add_u32 v8, v14, 5, v8")
    a("v_and_b32 v14, 3, v1")
    a("v_lshl_add_u32 v8, v14, 3, v8")
    a(f"v_add_u32 v8, {L_GB + GB_W}, v8")
    XM = 152
    a("v_bfe_u32 v14, v1, 1, 1")
    a("v_lshlrev_b32 v14, 2, v14")
    a("v_or_b32 v14, v14, v7")
    a("v_lshlrev_b32 v14, 4, v14")
    a("v_and_b32 v15, 7, v1")
    a("v_lshl_add_u32 v14, v15, 7, v14")
    a("v_xor_b32 v15, 64, v14")
    a("v_lshrrev_b32 v16, 3, v6")
    a("v_mul_u32_u24 v16, 1040, v16")
    a("s_mul_i32 s51, s43, 4160")
    a(f"s_add_u32 s51, s51, {L_GB + GB_X}")
    a(f"v_add3_u32 v{XM}, v14, v16, s51")
    a(f"v_add3_u32 v{XM+1}, v15, v16, s51")
    ACC = 20; WF = 84; XF = 108
    for i in range(48): a(f"v_mov_b32 v{ACC+i}, 0")
    for i in range(16): a(f"v_mov_b32 v{WF+12+i if i < 12 else XF+4+i-12}, 0")
    a("s_barrier")
    lk3 = a.newlabel("kvf")
    a("s_cmp_eq_u32 s26, 3")
    a(f"s_cbranch_scc0 {lk3}")
    kv_flag(a)
    a.label(lk3)
    st.stamp()
    a("s_barrier")
    LP, LS, LG = 126, 128, 144
    a("s_mul_i32 s51, s26, 6144")
    a(f"s_add_u32 s51, s51, {L_COMB}")
    a("v_lshlrev_b32 v15, 3, v7")
    a("v_sub_u32 v15, v6, v15")
    a("v_add_u32 v15, 10, v15")
    a(f"v_add_u32 v{LP}, s51, v9")
    a("v_lshlrev_b32 v14, 4, v6")
    a("v_add_u32 v14, s51, v14")
    for i in range(4):
        a(f"v_add_u32 v16, {2*i}, v15")
        a("v_lshrrev_b32 v17, 2, v16")
        a(f"v_lshl_add_u32 v{LG+i}, v17, 9, v14")
        a("v_lshrrev_b32 v17, 4, v16")
        a(f"v_lshl_add_u32 v{LS+i}, v17, 10, v14")
        a("v_bfe_u32 v17, v16, 2, 1")
        a(f"v_lshl_add_u32 v{LS+i}, v17, 9, v{LS+i}")
        a("v_bfe_u32 v17, v16, 3, 1")
        a(f"v_lshl_add_u32 v{LS+i}, v17, 3, v{LS+i}")
        a("v_and_b32 v17, 3, v16")
        a(f"v_lshl_add_u32 v{LS+i}, v17, 1, v{LS+i}")
        a(f"v_lshl_add_u32 v{LG+i}, v17, 2, v{LG+i}")
    ZR = 132
    for i in range(4): a(f"v_mov_b32 v{ZR+i}, 0")
    def read_ops(buf, sp, fb):
        r = []
        for t3 in range(3):
            for t in range(2):
                r.append(f"ds_read_b64_tr_b16 {vr(WF+12*fb+4*t3+2*t,2)}, v8 offset:{buf*GB_SZ + sp*6144 + t3*1024 + t*512}")
        r.insert(2, f"ds_read_b128 {vr(XF+4*fb,4)}, v{XM+(sp>>1)} offset:{buf*GB_SZ + (sp&1)*32}")
        if "gnoreads" in VAR: return []
        return r
    def mm(fb, k):
        w = WF + 12*fb; x = XF + 4*fb
        if "nomm" in VAR: return
        if k == 0: mfma32(a, ACC, w, x, ACC)
        elif k == 1: mfma32(a, ACC+16, w+4, x, ACC+16)
        else: mfma32(a, ACC+32, x, w+8, ACC+32)
        if "mgap" in VAR and k < 2: a(f"s_nop {VAR['mgap']}")
    a("s_lshr_b32 s55, s40, 3")
    a("s_lshl_b32 s55, s55, 2")
    a("s_cmp_ge_u32 s3, 28")
    a("s_cselect_b32 s51, 28, 0")
    a("s_sub_u32 s59, s3, s51")
    a("s_add_u32 s53, s55, s26")
    a("s_lshl_b32 s53, s53, 13")
    a(f"s_add_u32 s53, s53, {W_KF}")
    a("s_add_u32 s52, s53, 4096")
    a("s_lshl_b32 s51, s26, 12")
    a("v_lshlrev_b32 v13, 3, v1")
    a("v_add_u32 v13, s51, v13")
    FQ = [68, 72, 76, 80, 84, 88, 92, 108]
    def kf_loads():
        for i, r in enumerate(FQ):
            a(f"buffer_load_dwordx4 {vr(r,4)}, v9, s[36:39], {'s53' if i < 4 else 's52'} offen offset:{(i&3)*1024} sc1")
    a(f"s_mov_b32 s63, {int(VAR.get('kfn', 3))}")
    a("s_mov_b32 s46, 0")
    if "kfe" in VAR: kf_loads()
    a("s_barrier")
    if "kfe" not in VAR: kf_loads()
    a("s_barrier")
    st.stamp()
    a.label("b_kf")
    a("v_mov_b32 v14, 0")
    for i, r in enumerate(FQ):
        a(f"s_waitcnt vmcnt({7-i})")
        a(f"ds_write_b64 v13, {vr(r,2)} offset:{L_WK + i*512}")
        a(f"v_bitop3_b32 v15, v{r}, v{r+2}, s62 bitop3:0x96")
        a(f"v_bitop3_b32 v16, v{r+1}, v{r+3}, s62 bitop3:0x96")
        a("v_or3_b32 v14, v14, v15, v16")
    a("v_cmp_ne_u32 vcc, 0, v14")
    a("s_nop 1")
    a("s_cbranch_vccz b_kf_ok")
    a("s_sub_u32 s63, s63, 1")
    a("s_cbranch_scc1 b_kf_done")
    kf_loads()
    a("s_branch b_kf")
    a.label("b_kf_ok")
    lds_signal(a, C_ST + 0)
    a("s_mov_b32 s46, 1")
    a.label("b_kf_done")
    st.stamp()
    if "c0early" in VAR:
        lds_wait(a, C_QD, 4, 5, 51)
        for f in issue_ops(0): f()
    a("v_lshlrev_b32 v15, 7, v1")
    a("s_lshl_b32 s54, s26, 11")
    a(f"s_add_u32 s54, s54, {W_F1}")
    poll_flags(a, 15, "s54", 16, 16, sleep=int(VAR.get("psleep", 4)))
    bbar(a)
    lf = a.newlabel("kfok")
    a("s_cmp_eq_u32 s46, 1")
    a(f"s_cbranch_scc1 {lf}")
    a("s_lshl_b32 s53, s26, 12")
    kv_dma(a, 53, 4, first=True)
    a("s_waitcnt vmcnt(0)")
    lds_signal(a, C_ST + 0)
    a.label(lf)
    lds_wait(a, C_QD, 4, 5, 51)
    for k in range(1, 6):
        a("s_lshl_b32 s53, s26, 12")
        a(f"s_add_u32 s53, s53, {k*16384}")
        kv_dma(a, 53, 4)
        if k == 2:
            a("s_waitcnt vmcnt(4)")
            lds_signal(a, C_ST + 4)
    a("s_cmp_eq_u32 s43, 0")
    a(f"s_cselect_b32 s4, s{P_BWO}, s{P_AWO}")
    a(f"s_cselect_b32 s5, s{P_BWO+1}, s{P_AWO+1}")
    a("s_mov_b32 s6, 0x80000")
    a("s_mov_b32 s7, 0x20000")
    a("s_lshr_b32 s8, s2, 3")
    a("s_and_b32 s9, s2, 7")
    a("s_lshl_b32 s51, s8, 14")
    a("s_lshl_b32 s52, s9, 7")
    a("s_add_u32 s51, s51, s52")
    a("s_lshl_b32 s10, s26, 11")
    a(f"s_add_u32 s10, s10, {L_GB + 1024}")
    a("s_mov_b32 m0, s10")
    a("s_add_u32 s52, s51, 7168")
    a("buffer_load_dwordx4 v4, s[4:7], s51 offen lds")
    a("buffer_load_dwordx4 v4, s[4:7], s52 offen offset:1024 lds")
    lds_wait(a, C_QR, 4, 5, 51, sleep=2)
    for f in issue_ops(1): f()
    a("v_bfe_u32 v14, v1, 2, 2")
    a("v_lshlrev_b32 v14, 7, v14")
    a("v_bfe_u32 v15, v1, 3, 1")
    a("v_xor_b32 v15, s42, v15")
    a("v_lshl_add_u32 v14, v15, 6, v14")
    a("v_bfe_u32 v15, v1, 4, 1")
    a("v_lshl_add_u32 v14, v15, 5, v14")
    a("v_and_b32 v15, 1, v1")
    a("v_lshl_add_u32 v14, v15, 4, v14")
    a("v_bfe_u32 v15, v1, 1, 1")
    a("v_lshl_add_u32 v14, v15, 3, v14")
    a("v_lshl_add_u32 v14, v7, 9, v14")
    a("v_add_u32 v14, s10, v14")
    a("s_lshl_b32 s51, s9, 1")
    a("s_add_u32 s51, s51, s42")
    a("s_lshl_b32 s51, s51, 5")
    a("s_add_u32 s51, s51, s8")
    a("s_lshl_b32 s10, s51, 10")
    a("s_lshl_b32 s51, s43, 19")
    a("s_add_u32 s10, s10, s51")
    a(f"s_add_u32 s10, s10, {W_TO}")
    a("s_lshr_b32 s51, s9, 1")
    a("s_lshl_b32 s51, s51, 5")
    a("s_add_u32 s51, s51, s8")
    a("s_lshl_b32 s11, s51, 7")
    a("s_and_b32 s51, s9, 1")
    a("s_lshl_b32 s51, s51, 2")
    a("s_add_u32 s51, s51, s26")
    a("s_lshl_b32 s51, s51, 2")
    a("s_add_u32 s11, s11, s51")
    a(f"s_add_u32 s11, s11, {W_F4}")
    a("s_waitcnt vmcnt(10)")
    lds_signal(a, C_ST + 8)
    a("s_waitcnt vmcnt(8)")
    for t in range(2): a(f"ds_read_b64_tr_b16 {vr(160+2*t,2)}, v14 offset:{t*1024}")
    a("s_waitcnt vmcnt(0) lgkmcnt(0)")
    a("buffer_store_dwordx4 v[160:163], v9, s[36:39], s10 offen sc1")
    a("v_lshrrev_b32 v166, 1, v1")
    a("v_lshlrev_b32 v166, 7, v166")
    a("v_and_b32 v15, 1, v1")
    a("v_lshl_add_u32 v166, v15, 4, v166")
    a("s_lshl_b32 s8, s41, 12")
    a(f"s_add_u32 s8, s8, {W_F4}")
    a(f"s_setprio {VAR.get('bprio', 3)}")
    st.stamp()
    a("s_mov_b32 s50, 0")
    if "bidle" in VAR:
        a("s_waitcnt vmcnt(0)")
        bbar(a)
        a("s_mul_i32 s54, s26, 12288")
        a("s_add_u32 s54, s54, 81920")
        kv_dma(a, 54, 12)
        a("s_waitcnt vmcnt(0)")
        for c_ in (12, 16, 20): lds_signal(a, C_ST + c_)
        srd(a, 28, P_OUT, 4 << 20)
        a("s_mov_b32 s47, 0")
        a("s_branch b_tail")
    if "nogemm" in VAR: a("s_branch b_gend")
    INLOOP[0] = True
    a("s_branch b_in")
    a.label("b_loop")
    for buf in (1, 0):
        mm(1, 0)
        a("s_waitcnt vmcnt(0)")
        if buf == 1: a.label("b_in")
        else:
            lf4 = a.newlabel("f4")
            a("s_cmp_eq_u32 s50, 0")
            a(f"s_cbranch_scc0 {lf4}")
            store_flag(a, "s11", 164)
            a.label(lf4)
        a("s_add_u32 s58, s58, 4")
        lds_signal(a, C_BB)
        mm(1, 1)
        ops = issue_ops(buf ^ 1)
        if buf == 0:
            a("s_cmp_eq_u32 s50, 3")
            a("s_cselect_b32 s64, 0x7f000000, s64")
            a("s_cselect_b32 s65, 0x7f000000, s65")
            for r in (56, 57): a(f"s_cselect_b32 s{r}, 0x30000, s{r}")
        ops[0]()
        lds_wait(a, C_BB, "s58", 5, 51, sleep=int(VAR.get("bsleep", 0)))
        oi = 1
        for _ in range(int(VAR.get("dfirst", 0))): ops[oi](); oi += 1
        for x in read_ops(buf, 0, 0): a(x)
        mm(1, 2)
        for _ in range(int(VAR.get("dsec", 3))):
            if oi < len(ops): ops[oi](); oi += 1
        for sp in range(3):
            for x in read_ops(buf, sp+1, (sp+1) & 1): a(x)
            a("s_waitcnt lgkmcnt(7)")
            for k in range(3):
                mm(sp & 1, k)
                for _ in range(2):
                    if oi < len(ops): ops[oi](); oi += 1
        a("s_waitcnt lgkmcnt(0)")
    a("s_add_u32 s50, s50, 1")
    a("s_cmp_lt_u32 s50, 4")
    a("s_cbranch_scc1 b_loop")
    a.label("b_gend")
    a("buffer_load_dwordx4 v[160:163], v166, s[36:39], s8 offen sc1")
    a("s_add_u32 s58, s58, 4")
    lds_signal(a, C_BB)
    for k in range(3): mm(1, k)
    lds_wait(a, C_BB, "s58", 5, 51, sleep=0)
    a(f"s_mov_b32 s54, {23*4096}")
    kv_dma(a, 54, 4, only=(3,))
    a("s_lshl_b32 s54, s26, 13")
    a("s_add_u32 s54, s54, 98304")
    kv_dma(a, 54, 8)
    st.stamp()
    QF = 84; KF = 92; VF = 100; KH = 108; VH = 116
    cvt8(a, KF, ACC+16); cvt8(a, KF+4, ACC+24)
    cvt8(a, VF, ACC+32); cvt8(a, VF+4, ACC+40)
    a("s_mul_i32 s51, s42, 3072")
    a(f"s_add_u32 s51, s51, {L_BEX}")
    a("v_add_u32 v13, s51, v9")
    a("s_lshl_b32 s52, s44, 3")
    a("s_add_u32 s52, s52, s45")
    a("s_lshl_b32 s53, s52, 1")
    a("s_add_u32 s53, s53, s42")
    a("s_mul_i32 s53, s53, 3072")
    a(f"s_add_u32 s53, s53, {W_HALO}")
    a("s_lshl_b32 s52, s52, 7")
    a("s_lshl_b32 s51, s42, 2")
    a("s_add_u32 s52, s52, s51")
    a(f"s_add_u32 s52, s52, {W_F2}")
    l1 = a.newlabel("b_w1"); l2 = a.newlabel("b_w2")
    a("s_cmp_eq_u32 s43, 0")
    a(f"s_cbranch_scc0 {l1}")
    a(f"ds_write_b128 v13, {vr(KF,4)}")
    a(f"ds_write_b128 v13, {vr(KF+4,4)} offset:1024")
    a(f"ds_write_b128 v13, {vr(VF+4,4)} offset:2048")
    a("s_waitcnt vmcnt(0)")
    a(f"s_branch {l2}")
    a.label(l1)
    a(f"buffer_store_dwordx4 {vr(KF,4)}, v9, s[36:39], s53 offen sc1")
    a(f"buffer_store_dwordx4 {vr(KF+4,4)}, v9, s[36:39], s53 offen offset:1024 sc1")
    a(f"buffer_store_dwordx4 {vr(VF+4,4)}, v9, s[36:39], s53 offen offset:2048 sc1")
    a("s_waitcnt vmcnt(0)")
    store_flag(a, "s52", 14)
    a.label(l2)
    cvt8(a, QF, ACC); cvt8(a, QF+4, ACC+8)
    a("s_waitcnt vmcnt(1)")
    lds_signal(a, C_ST + 12)
    bbar(a)
    l1 = a.newlabel("b_x1"); l2 = a.newlabel("b_x2")
    a("s_or_b32 s51, s44, 0")
    a("s_cselect_b32 s51, s43, 1")
    a("s_cmp_eq_u32 s51, 0")
    a(f"s_cbranch_scc0 {l1}")
    a(f"s_sub_u32 s52, s52, {8*128}")
    a(f"s_sub_u32 s53, s53, {16*3072}")
    a("v_mov_b32 v5, 0")
    poll_flags(a, 5, "s52", 1, 14, sleep=6, width=1)
    a(f"buffer_load_dwordx4 {vr(KH,4)}, v9, s[36:39], s53 offen sc1")
    a(f"buffer_load_dwordx4 {vr(KH+4,4)}, v9, s[36:39], s53 offen offset:1024 sc1")
    a(f"buffer_load_dwordx4 {vr(VH,4)}, v9, s[36:39], s53 offen offset:2048 sc1")
    a("s_waitcnt vmcnt(0)")
    a(f"s_branch {l2}")
    a.label(l1)
    a(f"ds_read_b128 {vr(KH,4)}, v13")
    a(f"ds_read_b128 {vr(KH+4,4)}, v13 offset:1024")
    a(f"ds_read_b128 {vr(VH,4)}, v13 offset:2048")
    a.label(l2)
    lsn = a.newlabel("nosn")
    a("s_and_b32 s51, s40, 1")
    a("s_cmp_eq_u32 s51, s43")
    a(f"s_cbranch_scc0 {lsn}")
    a("s_lshl_b32 s51, s40, 2")
    a("s_add_u32 s51, s51, s41")
    a("s_lshl_b32 s51, s51, 1")
    a("s_add_u32 s51, s51, s42")
    a("s_lshl_b32 s51, s51, 12")
    a(f"s_add_u32 s51, s51, {W_OA}")
    for i in range(4): a(f"v_mov_b32 v{120+i}, -1")
    for i in range(4 if "xnoslow" not in VAR else 0): a(f"buffer_store_dwordx4 v[120:123], v9, s[36:39], s51 offen offset:{i*1024} sc1")
    a(f"s_add_u32 s51, s51, {W_OF - W_OA}")
    for i in range(4): a(f"buffer_store_dwordx4 v[120:123], v9, s[36:39], s51 offen offset:{i*1024} sc1")
    a.label(lsn)
    a("s_lshl_b32 s52, s44, 1")
    a("s_add_u32 s52, s52, s43")
    a("s_lshl_b32 s55, s52, 4")
    a("s_lshl_b32 s53, s45, 1")
    a("s_add_u32 s53, s53, s42")
    a("s_add_u32 s55, s55, s53")
    a("s_lshl_b32 s55, s55, 11")
    a(f"s_add_u32 s55, s55, {W_OB}")
    a("s_lshl_b32 s57, s52, 9")
    a("s_lshr_b32 s51, s53, 2")
    a("s_lshl_b32 s51, s51, 7")
    a("s_add_u32 s57, s57, s51")
    a("s_and_b32 s51, s53, 3")
    a("s_lshl_b32 s51, s51, 2")
    a("s_add_u32 s57, s57, s51")
    a(f"s_add_u32 s57, s57, {W_F3}")
    a("s_waitcnt lgkmcnt(0)")
    SM = 20; SH = 36; O = 52; PP = 68; T = 152
    a(f"s_mov_b32 s46, {CSCALE}")
    a("s_or_b32 s60, s44, s43")
    G = 136
    for hd in range(2 if "nolocal" not in VAR else 0):
        sm = SM + 32*hd; sh = sm + 16
        mfma32(a, sm, KF+4*hd, QF+4*hd, "0")
        mfma32(a, sh, KH+4*hd, QF+4*hd, "0")
    lz = a.newlabel("fz")
    a("s_cmp_eq_u32 s60, 0")
    a(f"s_cbranch_scc0 {lz}")
    for hd in range(2):
        for i in range(8): a(f"v_mov_b32 v{SM+32*hd+24+i}, 0xff800000")
    a.label(lz)
    for hd in range(2 if "nolocal" not in VAR else 0):
        sm = SM + 32*hd; sh = sm + 16
        for g_ in range(2): a(f"ds_write_b128 v{LP}, {vr(sh+8+4*g_,4)} offset:{1024*g_}")
        for g_ in range(4): a(f"ds_write_b128 v{LP}, {vr(sm+4*g_,4)} offset:{2048 + 1024*g_}")
        for i in range(4): a(f"ds_read_b32 v{G+4*hd+i}, v{LG+i}")
    for hd in range(2 if "nolocal" not in VAR else 0):
        g0 = G + 4*hd; t = T + 4*hd
        if hd == 0:
            for f in range(6): a(f"ds_write_b128 v{LP}, {vr(ZR,4)} offset:{f*1024}")
        a(f"s_waitcnt lgkmcnt({15 if hd == 0 else 4})")
        if hd == 0: a("s_waitcnt lgkmcnt(6)")
        a(f"v_max3_f32 v{t}, v{g0}, v{g0+1}, v{g0+2}")
        a(f"v_max_f32 v{t}, v{t}, v{g0+3}")
        xhalf_max(a, t, t+1)
        a(f"v_mul_f32 v{t}, s46, v{t}")
        for i in range(4): a(f"v_fma_f32 v{g0+i}, v{g0+i}, s46, -v{t}")
        for i in range(4): a(f"v_exp_f32 v{g0+i}, v{g0+i}")
        a(f"v_add_f32 v{t}, v{g0}, v{g0+1}")
        a(f"v_add_f32 v{t+1}, v{g0+2}, v{g0+3}")
        a(f"v_add_f32 v{t}, v{t}, v{t+1}")
        a(f"v_mov_b32 v{t+1}, v{t}")
        a(f"v_permlane32_swap_b32 v{t}, v{t+1}")
        a(f"v_add_f32 v{t}, v{t}, v{t+1}")
        a(f"v_rcp_f32 v{t}, v{t}")
        for i in range(4): a(f"v_mul_f32 v{g0+i}, v{g0+i}, v{t}")
        a(f"v_cvt_pk_bf16_f32 v{t+2}, v{g0}, v{g0+1}")
        a(f"v_cvt_pk_bf16_f32 v{t+3}, v{g0+2}, v{g0+3}")
        for i in range(4):
            a(f"ds_write_b16{'_d16_hi' if i & 1 else ''} v{LS+i}, v{t+2+(i>>1)} offset:{hd*3072}")
    for hd in range(2 if "nolocal" not in VAR else 0):
        for f in range(3): a(f"ds_read_b128 {vr(SM+12*hd+4*f,4)}, v{LP} offset:{hd*3072 + f*1024}")
    for hd in range(2 if "nolocal" not in VAR else 0):
        o = 52 + 16*hd; p = SM + 12*hd
        a(f"s_waitcnt lgkmcnt({3 - 3*hd})")
        mfma32(a, o, VH, p, "0")
        mfma32(a, o, VF, p+4, o)
        mfma32(a, o, VF+4, p+8, o)
    for hd in range(2 if "nolocal" not in VAR else 0):
        o = 52 + 16*hd
        cvt8(a, G+4*hd, o+8*hd)
        a(f"buffer_store_dwordx4 {vr(G+4*hd,4)}, v9, s[36:39], s55 offen offset:{hd*1024} sc1")
    a("s_waitcnt vmcnt(0)")
    a("s_getreg_b32 s61, hwreg(HW_REG_XCC_ID, 0, 4)")
    a("s_xor_b32 s62, s62, s61")
    store_flag(a, "s57", 12)
    a("s_xor_b32 s62, s62, s61")
    st.stamp()
    srd(a, 28, P_OUT, 4 << 20)
    a("s_lshl_b32 s47, s41, 8")
    a("s_lshl_b32 s51, s26, 6")
    a("s_add_u32 s47, s47, s51")
    a("s_lshl_b32 s64, s47, 9")
    a(f"s_add_u32 s64, s64, {W_TO}")
    a("v_lshrrev_b32 v8, 2, v1")
    a("v_and_b32 v3, 3, v1")
    a("v_lshlrev_b32 v4, 11, v8")
    a("v_lshl_add_u32 v4, v3, 4, v4")
    a("s_mul_i32 s51, s26, 6144")
    a(f"s_add_u32 s51, s51, {L_COMB}")
    a("v_mul_u32_u24 v8, 80, v8")
    a("v_lshl_add_u32 v3, v3, 4, v8")
    a("v_add_u32 v3, s51, v3")
    a("v_mul_u32_u24 v8, 80, v6")
    a("v_lshl_add_u32 v8, v7, 4, v8")
    a("v_add_u32 v8, s51, v8")
    a("s_lshl_b32 s51, s40, 16")
    a("s_add_u32 s47, s47, s51")
    a("s_add_u32 s56, s47, 32768")
    def out_store(off, flag):
        cvt8(a, 28, 12)
        a("ds_write_b128 v8, v[28:31]")
        cvt8(a, 32, 20)
        a("ds_write_b128 v8, v[32:35] offset:32")
        a("ds_read_b128 v[12:15], v3")
        a("ds_read_b128 v[16:19], v3 offset:1280")
        a("s_waitcnt lgkmcnt(1)")
        a(f"buffer_store_dwordx4 v[12:15], v4, s[28:31], s47 offen offset:{off} {flag}")
        a("s_waitcnt lgkmcnt(0)")
        a(f"buffer_store_dwordx4 v[16:19], v4, s[28:31], s56 offen offset:{off} {flag}")
    ACC = 12; OB = 28; WL = 40
    def fload(i, rot):
        if (i & 3) == 0:
            a(f"s_add_u32 s51, {rot}, {i*1024}")
            a("s_and_b32 s51, s51, 0x7fff")
            a("s_add_u32 s48, s64, s51")
        a(f"buffer_load_dwordx4 {vr(WL+4*i,4)}, v9, s[36:39], s48 offen offset:{(i&3)*1024} sc1")
    lok = a.newlabel("f4ok")
    for i in range(4): a(f"v_xor_b32 v{160+i}, s62, v{160+i}")
    a("v_or3_b32 v160, v160, v161, v162")
    a("v_or_b32 v160, v160, v163")
    a("v_cmp_ne_u32 vcc, 0, v160")
    a("s_nop 1")
    a(f"s_cbranch_vccz {lok}")
    poll_flags(a, 166, "s8", 64, 160, sleep=8)
    a.label(lok)
    a("s_bfe_u32 s9, s3, 0x30002")
    a("s_lshl_b32 s9, s9, 12")
    if "touchA" in VAR:
        a("s_add_u32 s51, s64, s9")
        a("s_add_u32 s51, s51, 0x80000")
        a("v_lshlrev_b32 v5, 7, v6")
        a("buffer_load_dword v28, v5, s[36:39], s51 offen sc1")
    for i in range(32): fload(i, "s9")
    def run(lo, hi, addr, off0, after=None):
        o = lambda i: (i - off0) * 1024
        for i in range(lo, min(lo+2, hi)): a(f"ds_read_b128 {vr(OB+4*(i%3),4)}, {addr} offset:{o(i)}")
        for i in range(lo, hi):
            if i + 2 < hi:
                a(f"ds_read_b128 {vr(OB+4*((i+2)%3),4)}, {addr} offset:{o(i+2)}")
                a("s_waitcnt lgkmcnt(2)")
            else:
                a(f"s_waitcnt lgkmcnt({hi-1-i})")
            mfma32(a, ACC, WL+4*i, OB+4*(i%3), "0" if i == 0 else ACC)
            if after: after(i)
    a("v_lshlrev_b32 v5, 7, v1")
    a("s_lshl_b32 s57, s40, 9")
    a(f"s_add_u32 s57, s57, {W_F3}")
    a(f"s_mov_b32 s63, {SPIN}")
    a("s_xor_b32 s51, s62, s61")
    a("s_mov_b64 exec, 15")
    a.label("b_f3")
    a("buffer_load_dwordx4 v[28:31], v5, s[36:39], s57 offen sc1")
    a("s_waitcnt vmcnt(0)")
    for i in range(4): a(f"v_xor_b32 v{28+i}, s51, v{28+i}")
    a("v_or3_b32 v28, v28, v29, v30")
    a("v_or_b32 v28, v28, v31")
    a("v_cmp_lt_u32 vcc, 15, v28")
    a("s_nop 1")
    a("s_cbranch_vccz b_f3d")
    a("s_sleep 8")
    a("s_sub_u32 s63, s63, 1")
    a("s_cmp_lg_u32 s63, 0")
    a("s_cbranch_scc1 b_f3")
    a.label("b_f3d")
    a("v_cmp_ne_u32 vcc, 0, v28")
    a("s_mov_b64 exec, -1")
    a("s_cbranch_vccz b_f3l")
    lds_signal(a, C_NL)
    a.label("b_f3l")
    lds_signal(a, C_ST + 16)
    st.stamp()
    lds_wait(a, C_PR, 8, 5, 51, sleep=8)
    a("s_lshl_b32 s49, s40, 15")
    a(f"s_add_u32 s49, s49, {W_OB}")
    a("s_lshl_b32 s52, s26, 13")
    a(f"s_add_u32 s46, s52, {L_OB}")
    a("s_add_u32 s52, s52, s9")
    for q in range(8):
        if (q & 3) == 0:
            a(f"s_add_u32 m0, s46, {q*1024}")
            a(f"s_add_u32 s51, s52, {q*1024}")
            a("s_and_b32 s51, s51, 0x7fff")
            a("s_add_u32 s51, s51, s49")
        a(f"buffer_load_dwordx4 v9, s[36:39], s51 offen offset:{(q&3)*1024} sc1 lds")
    a(f"v_add_u32 v0, {L_OB}, v9")
    a("s_add_u32 s64, s64, 0x80000")
    a("s_lshl_b32 s10, s41, 13")
    a("s_waitcnt vmcnt(0)")
    bbar(a)
    if "late" in VAR:
        a("s_lshl_b32 s51, s26, 2")
        a("v_add_u32 v2, s51, v10")
        NL = int(VAR["late"])
        run(0, NL, "v0", 0, lambda i: fload(i, "s10"))
        lds_wait(a, C_CB, 1, 5, 52, "v2", sleep=4)
        a(f"s_setprio {VAR.get('lprio', 1)}")
        run(NL, 32, "v0", 0, lambda i: fload(i, "s10"))
        a("s_setprio 3")
    else:
        run(0, 32, "v0", 0, lambda i: fload(i, "s10"))
    a("s_waitcnt vmcnt(0)")
    if DIAG: a("s_waitcnt lgkmcnt(0)")
    out_store(1024, VAR.get("stb", "nt"))
    st.stamp()
    if "stearly" in VAR: a("s_waitcnt vmcnt(0)")
    a.label("b_tail")
    st.stamp()
    le = a.newlabel("ep")
    a("s_or_b32 s51, s2, s26")
    a("s_cmp_eq_u32 s51, 0")
    a(f"s_cbranch_scc0 {le}")
    a(f"s_mov_b32 s51, {W_EP}")
    store_flag(a, "s51", 28)
    a.label(le)
    a(f"v_add_u32 v0, {L_OA}, v9")
    lds_wait(a, C_CB + 0, 1, 5, 51, sleep=16)
    def rd(i): a(f"ds_read_b128 {vr(WL+4*(i-8),4)}, v0 offset:{i*1024}")
    lds_wait(a, C_OF, 8, 5, 51, sleep=0)
    if "tfine" in VAR: st.n = 5; st.stamp(); a("s_waitcnt lgkmcnt(0)")
    run(0, 8, "v0", 0)
    lds_wait(a, C_OF + 4, 8, 5, 51, sleep=0)
    if "tfine" in VAR: st.stamp(); a("s_waitcnt lgkmcnt(0)")
    for i in range(8, 16): rd(i)
    NE = int(VAR.get("ne", 3))
    for i in range(8, 8 + NE):
        a(f"s_waitcnt lgkmcnt({15 - i})")
        mfma32(a, ACC, WL+4*i, WL+4*(i-8), ACC)
        if i == 8: a(f"ds_read_b64 v[28:29], v10 offset:{C_OF + 8}")
    a("s_waitcnt lgkmcnt(0)")
    a("v_min_u32 v28, v28, v29")
    a("v_readfirstlane_b32 s51, v28")
    a("s_cmp_ge_u32 s51, 8")
    a("s_cbranch_scc0 b_slowtail")
    for i in range(8, 8 + NE): rd(i + 8)
    for i in range(8 + NE, 32):
        if i >= 16: a(f"s_waitcnt lgkmcnt({min(7, 31 - i)})")
        mfma32(a, ACC, WL+4*i, WL+4*(i-8), ACC)
        if i + 8 < 32: rd(i + 8)
    a.label("b_fin")
    out_store(0, VAR.get("sta", "nt"))
    if DIAG:
        if "tfine" in VAR: st.stamp()
        a("s_waitcnt vmcnt(0)")
        st.stamp()
        st.dump(None, 0)
    a("s_endpgm")
    a.label("b_slowtail")
    for d in range(1, 4):
        if d > 1:
            lds_wait(a, C_OF + 4*d, 8, 5, 51, sleep=0)
            for i in range(8*d, 8*d + 8): rd(i)
        for i in range(8*d + (NE if d == 1 else 0), 8*d + 8):
            a(f"s_waitcnt lgkmcnt({8*d + 7 - i})")
            mfma32(a, ACC, WL+4*i, WL+4*(i-8), ACC)
    a("s_branch b_fin")

def pre_a(a):
    a("s_sub_u32 s59, s26, 4")
    a("s_and_b32 s42, s59, 3")
    a("s_lshr_b32 s43, s59, 2")
    a("s_lshr_b32 s46, s41, 1")
    a("s_lshl_b32 s49, s46, 4")
    a("s_lshl_b32 s48, s59, 1")
    a("s_add_u32 s49, s49, s48")
    a("s_xor_b32 s51, s49, 16")
    a("s_lshl_b32 s52, s40, 5")
    a("s_add_u32 s48, s52, s49")
    a("s_lshl_b32 s48, s48, 10")
    a("s_xor_b32 s50, s48, 16384")
    a(f"s_mul_i32 s49, s49, {XP}")
    a(f"s_mul_i32 s51, s51, {XP}")
    a("s_mov_b32 s30, 0x200000")
    a("s_mov_b32 s31, 0x20000")
    a(f"s_add_u32 m0, s49, {L_XA}")
    a("s_waitcnt lgkmcnt(0)")
    a(f"s_mov_b32 s28, s{P_AX}")
    a(f"s_mov_b32 s29, s{P_AX+1}")
    for k, (so, lb) in enumerate((("s48", "s49"), ("s50", "s51"))):
        for q in range(2):
            if k or q: a(f"s_add_u32 m0, {lb}, {L_XA + q*XP - q*1024}")
            a(f"buffer_load_dwordx4 v9, s[28:31], {so} offen offset:{q*1024} lds")
    srd(a, 36, P_WS, W_USED)
def pre_b(a):
    a("s_setprio 3")
    a("s_and_b32 s45, s41, 1")
    a("s_lshr_b32 s46, s41, 1")
    a("s_mov_b32 s30, 16384")
    a("s_mov_b32 s31, 0x20000")
    a("s_lshl_b32 s51, s26, 12")
    a(f"s_add_u32 m0, s51, {L_WK}")
    a(f"v_mov_b32 v18, {W_EP}")
    a("s_cmp_eq_u32 s45, 0")
    a("s_waitcnt lgkmcnt(0)")
    a(f"s_cselect_b32 s28, s{P_AWK}, s{P_AWV}")
    a(f"s_cselect_b32 s29, s{P_AWK+1}, s{P_AWV+1}")
    for q in range(4):
        a(f"buffer_load_dwordx4 v9, s[28:31], s51 offen offset:{q*1024} lds")
    srd(a, 36, P_WS, W_USED)
    a("buffer_load_dword v19, v18, s[36:39], 0 offen sc1")

def kernel():
    a = Asm(); n = NAME + "_kernel"
    a.label(n)
    a("s_cmp_ge_u32 s2, 256")
    a("s_cbranch_scc1 k_exit")
    load_ptrs(a)
    sta = Stamps(a, DIAG, real='--cyc' not in sys.argv); stb = Stamps(a, DIAG, real='--cyc' not in sys.argv)
    sta.stamp(); stb.n = sta.n
    VAR.setdefault("cpf", 144)
    if int(VAR["cpf"]):
        a("s_getpc_b64 s[32:33]")
        a("v_lshlrev_b32 v3, 7, v0")
        a(f"v_cmp_gt_u32 vcc, {int(VAR['cpf'])}, v0")
        a("s_and_saveexec_b64 s[34:35], vcc")
        a("s_cbranch_execz k_nopf")
        a("global_load_dword v167, v3, s[32:33]")
        a.label("k_nopf")
        a("s_mov_b64 exec, s[34:35]")
    a("v_and_b32 v1, 63, v0")
    a("v_lshrrev_b32 v2, 6, v0")
    a("v_readfirstlane_b32 s26, v2")
    a("s_and_b32 s27, s2, 7")
    a("s_lshr_b32 s3, s2, 3")
    if MAP81:
        a("s_lshl_b32 s40, s27, 3")
        a("s_lshr_b32 s41, s3, 2")
        a("s_add_u32 s40, s40, s41")
        a("s_and_b32 s41, s3, 3")
    else:
        a("s_lshr_b32 s40, s27, 1")
        a("s_lshl_b32 s40, s40, 4")
        a("s_lshr_b32 s41, s3, 1")
        a("s_add_u32 s40, s40, s41")
        a("s_and_b32 s41, s27, 1")
        a("s_lshl_b32 s41, s41, 1")
        a("s_and_b32 s27, s3, 1")
        a("s_add_u32 s41, s41, s27")
    a("s_lshl_b32 s27, s41, 1")
    a("s_and_b32 s51, s40, 1")
    a("s_add_u32 s27, s27, s51")
    a("v_and_b32 v6, 31, v1")
    a("v_lshrrev_b32 v7, 5, v1")
    a("v_lshlrev_b32 v9, 4, v1")
    a(f"v_mov_b32 v10, {L_CNT}")
    a("v_mov_b32 v11, 1")
    a("s_cmp_lt_u32 s26, 4")
    a("s_cbranch_scc0 pre_a")
    pre_b(a)
    a("s_barrier")
    a("s_branch role_b")
    a.label("pre_a")
    pre_a(a)
    a("s_barrier")
    role_a(a, sta)
    a.label("role_b")
    role_b(a, stb)
    a.label("k_exit")
    a("s_endpgm")
    return (n, a, 256, 768, LDS_SIZE, 168)

if __name__ == "__main__":
    write_file(sys.argv[1], [kernel()])
```
